```python
import torch

def _softmax(x, axis=-1):
    return torch.softmax(x, dim=axis)
def _gelu(x):
    return torch.nn.functional.gelu(x, approximate="tanh")
def _silu(x):
    return torch.nn.functional.silu(x)
def _sigmoid(x):
    return torch.sigmoid(x)
def _layernorm(x, axis=-1, eps=1e-5):
    m = x.mean(dim=axis, keepdim=True)
    v = x.var(dim=axis, keepdim=True, unbiased=False)
    return (x - m) / torch.sqrt(v + eps)
def _scatter_add(tgt, idx, src, axis=0):
    return tgt.clone().index_add_(axis, idx, src)
def _segment_sum(src, seg, n):
    out = torch.zeros((n,) + src.shape[1:], dtype=src.dtype)
    return out.index_add_(0, seg, src)
def _pad(x, pw):
    flat = tuple(v for pair in reversed(pw) for v in pair)
    return torch.nn.functional.pad(x, flat)

kernel_name = 'recurrent_scan__gqa_block_cached__geglu_ffn__decode'

def setup_inputs():

    _w = (lambda a: (lambda t: t.to(torch.bfloat16) if t.is_floating_point() else t)(torch.as_tensor(a)))
    def _A_setup():
        B, Sq, D = 4, 1, 640
        Hq, Hkv, Sk, Dh = 32, 32, 4096, 128
        assert Hq % Hkv == 0, (Hq, Hkv)
        return {
            "x": _w((lambda *s: torch.randn(*s, dtype=torch.bfloat16) * 0.05)(B, Sq, D)),
            "k_cache": _w((lambda *s: torch.randn(*s, dtype=torch.bfloat16) * 1.6)(B, Hkv, Sk, Dh)),
            "v_cache": _w((lambda *s: torch.randn(*s, dtype=torch.bfloat16) * 0.2)(B, Hkv, Sk, Dh)),
            "wq": _w((lambda *s: torch.randn(*s, dtype=torch.bfloat16) * 1.6)(D, Hq * Dh) * (D ** -0.5)),
            "wo": _w((lambda *s: torch.randn(*s, dtype=torch.bfloat16) * 0.2)(Hq * Dh, D) * ((Hq * Dh) ** -0.5)),
        }
    _A_in = _A_setup()

    def _B_setup():
        B, S, D, F = 4, 1, 640, 1728
        return {
            "x": _w((lambda *s: torch.randn(*s, dtype=torch.bfloat16) * 0.05)(B, S, D)),
            "w_gate": _w((lambda *s: torch.randn(*s, dtype=torch.bfloat16) * 0.1)(D, F)),
            "w_up": _w((lambda *s: torch.randn(*s, dtype=torch.bfloat16) * 0.1)(D, F)),
            "w_down": _w((lambda *s: torch.randn(*s, dtype=torch.bfloat16) * 0.1)(F, D)),
        }
    _B_in = _B_setup()

    return {
        "A_x": _A_in["x"],
        "A_k_cache": _A_in["k_cache"],
        "A_v_cache": _A_in["v_cache"],
        "A_wq": _A_in["wq"],
        "A_wo": _A_in["wo"],
        "B_x": _B_in["x"],
        "B_w_gate": _B_in["w_gate"],
        "B_w_up": _B_in["w_up"],
        "B_w_down": _B_in["w_down"],
    }

def reference(A_x, A_k_cache, A_v_cache, A_wq, A_wo, B_x, B_w_gate, B_w_up, B_w_down):
    def _A_ref(x, k_cache, v_cache, wq, wo):
        B, Sq, D = x.shape
        Hq, Dh = 32, 128
        Hkv = k_cache.shape[1]
        rep = Hq // Hkv
        q = (lambda x, *d: x.permute(*d))((x @ wq).reshape(B, Sq, Hq, Dh), 0, 2, 1, 3)
        k = (lambda x, n, axis: torch.repeat_interleave(x, n, dim=axis))(k_cache, rep, axis=1)
        v = (lambda x, n, axis: torch.repeat_interleave(x, n, dim=axis))(v_cache, rep, axis=1)
        scores = torch.einsum("bhqd,bhkd->bhqk", q, k) * (Dh ** -0.5)
        p = _softmax(scores, axis=-1)
        o = torch.einsum("bhqk,bhkd->bhqd", p, v)
        return (lambda x, *d: x.permute(*d))(o, 0, 2, 1, 3).reshape(B, Sq, Hq * Dh) @ wo

    def _B_ref(x, w_gate, w_up, w_down):
        return (_gelu(x @ w_gate) * (x @ w_up)) @ w_down

    x = A_x
    xn = _layernorm(x, axis=-1)
    s = _A_ref(xn, A_k_cache, A_v_cache, A_wq, A_wo)
    g = _silu(_B_ref(xn, B_w_gate, B_w_up, B_w_down))
    return x + s * g
```

```python
import re

TRANS = ('v_exp_f32', 'v_log_f32', 'v_rcp_f32', 'v_rsq_f32', 'v_sqrt_f32', 'v_sin_f32', 'v_cos_f32', 'v_rcp_iflag_f32')

def regs_of(tok):
    tok = tok.strip()
    neg = tok.startswith('-')
    if neg: tok = tok[1:]
    if tok.startswith('abs(') and tok.endswith(')'): tok = tok[4:-1]
    if tok.startswith('|') and tok.endswith('|'): tok = tok[1:-1]
    m = re.fullmatch(r'([vsa])(\d+)', tok)
    if m: return {(m.group(1), int(m.group(2)))}
    m = re.fullmatch(r'([vsa])\[(\d+):(\d+)\]', tok)
    if m: return {(m.group(1), i) for i in range(int(m.group(2)), int(m.group(3)) + 1)}
    if tok == 'vcc': return {('s', 'vcc_lo'), ('s', 'vcc_hi')}
    if tok in ('vcc_lo', 'vcc_hi'): return {('s', tok)}
    if tok == 'exec': return {('s', 'exec_lo'), ('s', 'exec_hi')}
    if tok == 'm0': return {('s', 'm0')}
    return set()

def split_ops(rest):
    ops, depth, cur = [], 0, ''
    for ch in rest:
        if ch in '[(': depth += 1
        if ch in '])': depth -= 1
        if ch == ',' and depth == 0:
            ops.append(cur.strip()); cur = ''
        else:
            cur += ch
    if cur.strip(): ops.append(cur.strip())
    return ops

class I:
    pass

def parse(line):
    s = line.split(';')[0].split('//')[0].strip()
    if not s or s.endswith(':') or s.startswith('.'): return None
    m = re.match(r'([a-z_0-9]+)\s*(.*)$', s)
    op, rest = m.group(1), m.group(2)
    op = re.sub(r'_(e32|e64)$', '', op)
    i = I(); i.op = op; i.text = s
    ops = split_ops(rest)
    mods = ''
    if ops:
        parts = ops[-1].split()
        if len(parts) > 1 and not ops[-1].startswith('hwreg'):
            ops[-1] = parts[0]; mods = ' '.join(parts[1:])
    i.ops = ops; i.mods = mods
    i.dpp = op.endswith('_dpp') or 'row_' in mods or 'quad_perm' in mods
    R = [regs_of(o) for o in ops]
    i.kind = 'other'; i.defs = set(); i.uses = set(); i.passes = 0; i.srcC = set(); i.srcAB = set()
    i.wide_store = False; i.ldsdma = False
    if op.startswith('v_mfma'):
        i.kind = 'mfma'; i.defs = R[0]; i.srcAB = R[1] | R[2]; i.srcC = R[3] if len(R) > 3 else set(); i.uses = i.srcAB | i.srcC
        i.passes = 8 if '32x32' in op else 4
    elif op.startswith('v_'):
        i.kind = 'valu'
        if op.startswith('v_permlane') and 'swap' in op:
            i.defs = R[0] | R[1]; i.uses = R[0] | R[1]
        elif op.startswith('v_cmp'):
            i.defs = R[0]; i.uses = set().union(*R[1:])
        elif op in ('v_add_co_u32', 'v_sub_co_u32', 'v_addc_co_u32', 'v_subb_co_u32', 'v_div_scale_f32', 'v_mad_u64_u32'):
            i.defs = R[0] | R[1]; i.uses = set().union(*R[2:])
        elif op in ('v_fmac_f32', 'v_dot2c_f32_bf16', 'v_fmac_f32_dpp', 'v_writelane_b32'):
            i.defs = R[0]; i.uses = set().union(*R)
        else:
            i.defs = R[0]; i.uses = set().union(*R[1:]) if len(R) > 1 else set()
            if op.startswith('v_cndmask') and len(R) == 3: i.uses |= regs_of('vcc')
            if op.startswith('v_div_fmas'): i.uses |= regs_of('vcc')
            if i.dpp: i.uses |= set()
        i.trans = op.replace('_dpp', '') in TRANS
    elif op.startswith('buffer_') or op.startswith('global_'):
        i.kind = 'vmem'
        lds = 'lds' in mods.split()
        if op in ('buffer_wbl2', 'buffer_inv'):
            pass
        elif 'load' in op and lds:
            i.ldsdma = True; i.uses = set().union(*R) | regs_of('m0')
        elif 'load' in op:
            i.defs = R[0]; i.uses = set().union(*R[1:])
        elif 'store' in op:
            i.uses = set().union(*R)
            if 'x4' in op or 'x3' in op:
                i.wide_store = True
                i.sdata = R[0] if op.startswith('buffer_') else R[1]
        elif 'atomic' in op:
            i.uses = set().union(*R)
            if 'sc0' in mods.split():
                i.defs = R[0]
    elif op.startswith('ds_'):
        i.kind = 'ds'
        if op.startswith('ds_read') or op.startswith('ds_bpermute') or op.startswith('ds_swizzle') or op.startswith('ds_permute'):
            i.defs = R[0]; i.uses = set().union(*R[1:])
        else:
            i.uses = set().union(*R)
    elif op.startswith('s_'):
        i.kind = 'salu'
        if op in ('s_nop', 's_waitcnt', 's_barrier', 's_endpgm', 's_sleep', 's_setprio') or op.startswith('s_cbranch') or op == 's_branch':
            pass
        elif op.startswith('s_cmp') or op.startswith('s_bitcmp'):
            i.uses = set().union(*R)
        else:
            i.defs = R[0] if R else set(); i.uses = set().union(*R[1:]) if len(R) > 1 else set()
            if 'saveexec' in op: i.defs |= regs_of('exec')
    else:
        raise ValueError('unknown instruction: ' + line)
    return i

def isv(r): return r[0] in ('v', 'a')

def fix(lines, verbose=False):
    out = []
    hist = []
    pos = 0
    nins = 0
    def need(i):
        req = 0
        for p, h in hist:
            d = pos - p - 1
            n = 0
            if h.kind == 'valu':
                vd = {r for r in h.defs if isv(r)}
                sd = {r for r in h.defs if not isv(r)}
                if vd:
                    if i.kind == 'valu' and i.dpp and vd & i.uses: n = max(n, 2)
                    if i.kind == 'valu' and i.op.startswith('v_permlane') and vd & i.uses: n = max(n, 2)
                    if i.kind == 'valu' and i.op in ('v_readlane_b32', 'v_readfirstlane_b32') and vd & i.uses: n = max(n, 1)
                    if i.kind == 'mfma' and vd & i.uses: n = max(n, 2)
                    if i.kind == 'valu' and getattr(h, 'trans', False) and vd & (i.uses | i.defs): n = max(n, 1)
                if sd:
                    if i.kind == 'valu' and sd & i.uses:
                        n = max(n, 4 if i.op in ('v_readlane_b32', 'v_writelane_b32', 'v_div_fmas_f32') else 2)
                    if i.kind == 'vmem' and sd & i.uses: n = max(n, 5)
                    if i.kind == 'salu' and sd & i.uses: n = max(n, 1)
            elif h.kind == 'mfma':
                lat = {4: 8, 8: 12}[h.passes]
                if i.kind == 'valu' and h.defs & (i.uses | i.defs): n = max(n, lat)
                if i.kind in ('vmem', 'ds') and h.defs & (i.uses | i.defs): n = max(n, lat)
                if i.kind == 'mfma':
                    if h.defs & i.srcAB: n = max(n, lat)
                    if h.defs & i.srcC and not (h.defs == i.srcC and h.passes == i.passes): n = max(n, lat - 2)
                    if h.defs & i.defs and not (h.defs & i.srcC): n = max(n, lat)
                if i.kind == 'valu' and h.srcC & i.defs: n = max(n, {4: 3, 8: 7}[h.passes])
            elif h.kind == 'vmem':
                if h.wide_store and h.sdata & i.defs: n = max(n, 2 if i.kind == 'valu' else 1)
            elif h.kind == 'salu':
                if ('s', 'm0') in h.defs and i.kind == 'vmem' and i.ldsdma: n = max(n, 1)
            req = max(req, n - d)
        return req
    def flush_need():
        req = 0
        for p, h in hist:
            d = pos - p - 1
            n = 0
            if h.kind == 'valu':
                if any(isv(r) for r in h.defs): n = 2
                if any(not isv(r) for r in h.defs): n = 5
            elif h.kind == 'mfma': n = {4: 8, 8: 12}[h.passes]
            elif h.kind == 'vmem' and h.wide_store: n = 2
            elif h.kind == 'salu' and ('s', 'm0') in h.defs: n = 1
            req = max(req, n - d - 1)
        return req
    def pad(k):
        nonlocal pos, nins
        while k > 0:
            c = min(k, 16)
            out.append(f'  s_nop {c-1}')
            pos += c; k -= c; nins += 1
    for line in lines:
        i = parse(line)
        if i is None:
            out.append(line); continue
        if i.op.startswith('s_cbranch') or i.op == 's_branch':
            pad(flush_need())
        else:
            pad(need(i))
        out.append(line)
        if i.op == 's_nop':
            pos += int(i.ops[0], 0) + 1
        else:
            hist.append((pos, i)); pos += 1
        hist = [(p, h) for p, h in hist if pos - p <= 20]
    if verbose: print('inserted nops:', nins)
    return out

if __name__ == '__main__':
    import sys
    print('\n'.join(fix(open(sys.argv[1]).read().split('\n'), True)))
```

```python
import sys, os
sys.path.insert(0, os.path.dirname(os.path.abspath(__file__)))
import hz

NAME = 'recurrent_scan__gqa_block_cached__geglu_ffn__decode'

HEADER = '''; Kernarg layout for this problem (96 bytes, ptrs only, base s[0:1]):
'''

L_QPART = 0x0000
L_XDT   = 0x0800
L_ML    = 0x3000
L_WF    = 0x3040
L_OPART = 0x3100
L_YPART = 0x3900
L_XN    = 0x6100
L_HT    = 0x7500
L_WG    = 0x7800
L_WU    = 0xC800
LDS_BYTES = 0x11800

W_YIN   = 0x000000
W_MLIN  = 0x100000
W_FPART = 0x200000
W_DBG   = 0x1000000

SCALE = 0x3db504f3
LOG2E = 0x3fb8aa3b

class Gen:
    def __init__(s, W=6, P=30, B=40, WH=8, pol_kv='nt', pol_w='', dbg=False, stamps=False, prio=True):
        s.L = []
        s.W, s.P, s.B, s.WH = W, P, B, WH
        s.pol_kv, s.pol_w = pol_kv, pol_w
        s.dbg = dbg; s.stamps = stamps; s.prio = prio
        s.nlab = 0
    def A(s, t):
        for l in t.split('\n'):
            l = l.strip()
            if l: s.L.append(('  ' + l) if not l.endswith(':') else l)
    def lab(s, base):
        s.nlab += 1
        return f'L_{base}_{s.nlab}'

    def allreduce(s, op, v, t):
        A = s.A
        ins = {'add': 'v_add_f32', 'max': 'v_max_f32'}[op]
        A(f'{ins}_dpp v{v}, v{v}, v{v} quad_perm:[1,0,3,2] row_mask:0xf bank_mask:0xf')
        A(f'{ins}_dpp v{v}, v{v}, v{v} quad_perm:[2,3,0,1] row_mask:0xf bank_mask:0xf')
        A(f'{ins}_dpp v{v}, v{v}, v{v} row_half_mirror row_mask:0xf bank_mask:0xf')
        A(f'{ins}_dpp v{v}, v{v}, v{v} row_mirror row_mask:0xf bank_mask:0xf')
        A(f'v_mov_b32 v{t}, v{v}')
        A(f'v_permlane16_swap_b32 v{v}, v{t}')
        A(f'{ins} v{v}, v{v}, v{t}')
        A(f'v_mov_b32 v{t}, v{v}')
        A(f'v_permlane32_swap_b32 v{v}, v{t}')
        A(f'{ins} v{v}, v{v}, v{t}')

    def reduce_hi3(s, v, t):
        A = s.A
        A(f'v_add_f32_dpp v{v}, v{v}, v{v} row_ror:8 row_mask:0xf bank_mask:0xf')
        A(f'v_mov_b32 v{t}, v{v}')
        A(f'v_permlane16_swap_b32 v{v}, v{t}')
        A(f'v_add_f32 v{v}, v{v}, v{t}')
        A(f'v_mov_b32 v{t}, v{v}')
        A(f'v_permlane32_swap_b32 v{v}, v{t}')
        A(f'v_add_f32 v{v}, v{v}, v{t}')

    def bf16r(s, dst, src, tmp=None):
        s.A(f'v_cvt_pk_bf16_f32 v{dst}, v{src}, v{src}')
        s.A(f'v_lshlrev_b32 v{dst}, 16, v{dst}')

    def srd(s, n, ptr, size):
        s.A(f's_mov_b32 s{n}, s{ptr}\ns_and_b32 s{n+1}, s{ptr+1}, 0xffff\ns_mov_b32 s{n+2}, {hex(size)}\ns_mov_b32 s{n+3}, 0x20000')

    def stamp(s, idx):
        if s.stamps: s.A(f's_memrealtime s[{70+2*idx}:{71+2*idx}]')

    def stamp_store(s, n):
        if not s.stamps: return
        A = s.A
        A('s_waitcnt lgkmcnt(0)')
        A('s_lshl_b32 s90, s2, 3\ns_add_u32 s90, s90, s3\ns_lshl_b32 s90, s90, 6')
        A(f's_add_u32 s90, s90, {hex(W_DBG)}')
        A('v_mov_b32 v1, s90')
        A('s_getreg_b32 s91, hwreg(HW_REG_XCC_ID)')
        A('s_mov_b64 exec, 1')
        for i in range(n):
            A(f'v_mov_b32 v2, s{70+2*i}')
            A(f'global_store_dword v1, v2, s[30:31] offset:{4*i}')
        A('v_mov_b32 v2, s91')
        A('global_store_dword v1, v2, s[30:31] offset:60')
        A('s_mov_b64 exec, -1')

    def masks_Md(s, base, jreg, t1, t2, mod8=False):
        A = s.A
        if mod8: A(f'v_and_b32 v{t1}, 7, v{jreg}')
        else: A(f'v_mov_b32 v{t1}, v{jreg}')
        A(f'v_and_b32 v{t2}, 1, v{t1}')
        A(f'v_cmp_eq_u32 vcc, 1, v{t2}')
        A(f'v_mov_b32 v{t2}, 0xffff')
        A(f'v_mov_b32 v{base}, 0xffff0000')
        A(f'v_cndmask_b32 v{t2}, v{t2}, v{base}, vcc')
        A(f'v_lshrrev_b32 v{t1}, 1, v{t1}')
        for d in range(4):
            A(f'v_cmp_eq_u32 vcc, {d}, v{t1}')
            A(f'v_cndmask_b32 v{base+d}, 0, v{t2}, vcc')

    def build(s):
        A = s.A
        A(f'{NAME}_kernel:')
        A('s_cmp_ge_u32 s2, 256')
        A('s_cbranch_scc1 L_end')
        s.stamp(0)
        A('s_load_dwordx16 s[8:23], s[0:1], 0')
        A('s_load_dwordx8 s[24:31], s[0:1], 64')
        A('v_lshrrev_b32 v1, 6, v0')
        A('v_and_b32 v0, 63, v0')
        A('v_readfirstlane_b32 s3, v1')
        A('s_and_b32 s64, s2, 7\ns_lshr_b32 s68, s2, 3')
        A('s_and_b32 s69, s68, 3\ns_lshl_b32 s69, s69, 3\ns_add_u32 s64, s64, s69')
        A('s_lshr_b32 s65, s68, 2\ns_and_b32 s65, s65, 3')
        A('s_lshr_b32 s66, s68, 4')
        A('s_lshl_b32 s67, s64, 1\ns_add_u32 s67, s67, s66')
        A('s_cmp_ge_u32 s3, 4')
        A('s_cbranch_scc1 L_helper')
        s.streamer()
        A('L_helper:')
        s.helper()
        A('L_end:')
        A('s_endpgm')

    def streamer(s):
        A = s.A
        W, P, B = s.W, s.P, s.B
        RING = 64
        assert RING + 4 * B <= 256
        vKo, vVo = 1, 2
        vM = 4
        vY = 8
        vAcc = 24
        vSc = 32
        vO = 40
        vYp = 44
        vT = 52
        if s.prio: A('s_setprio 2')
        A(f'v_lshrrev_b32 v{vT}, 4, v0')
        A(f'v_lshlrev_b32 v{vT}, 6, v{vT}')
        A(f'v_bfe_u32 v{vT+1}, v0, 2, 2')
        A(f'v_lshlrev_b32 v{vT+1}, 8, v{vT+1}')
        A(f'v_and_b32 v{vT+2}, 3, v0')
        A(f'v_lshlrev_b32 v{vT+2}, 4, v{vT+2}')
        A(f'v_add3_u32 v{vKo}, v{vT}, v{vT+1}, v{vT+2}')
        A(f'v_lshlrev_b32 v{vVo}, 4, v0')
        A('s_lshl_b32 s40, s65, 5\ns_add_u32 s40, s40, s64\ns_lshl_b32 s40, s40, 20')
        A('s_lshl_b32 s41, s66, 19\ns_add_u32 s40, s40, s41')
        A('s_lshl_b32 s41, s3, 12\ns_add_u32 s40, s40, s41')
        A('s_mov_b32 s41, s40')
        A('s_waitcnt lgkmcnt(0)')
        s.srd(32, 10, 0x8000000)
        s.srd(36, 12, 0x8000000)
        state = {'n': 0}
        def issue():
            n = state['n']; state['n'] += 1
            if n >= 256: return
            if n == 128: A('s_mov_b32 s41, s40')
            elif n % 4 == 0 and n > 0: A('s_add_u32 s41, s41, 0x4000')
            r = RING + 4 * (n % B)
            if n < 128:
                A(f'buffer_load_dwordx4 v[{r}:{r+3}], v{vKo}, s[32:35], s41 offen offset:{(n%4)*1024} {s.pol_kv}')
            else:
                A(f'buffer_load_dwordx4 v[{r}:{r+3}], v{vVo}, s[36:39], s41 offen offset:{(n%4)*1024} {s.pol_kv}')
        def paced_issue():
            if state['n'] >= 256: return
            A(f's_waitcnt vmcnt({W-1})')
            issue()
        for _ in range(W): issue()
        A(f'v_and_b32 v{vT}, 15, v0')
        s.masks_Md(vM, vT, vT+1, vT+2)
        A('s_mov_b32 s44, 0x22222222\ns_mov_b32 s45, 0x22222222')
        A('s_mov_b32 s46, 0x44444444\ns_mov_b32 s47, 0x44444444')
        A('s_mov_b32 s48, 0x88888888\ns_mov_b32 s49, 0x88888888')
        for t in range(4):
            m = 0x000F000F << (4 * t)
            A(f's_mov_b32 s{50+2*t}, {hex(m)}\ns_mov_b32 s{51+2*t}, {hex(m)}')
        A(f'v_lshrrev_b32 v{vT}, 4, v0\nv_lshlrev_b32 v{vT}, 2, v{vT}\nv_and_b32 v{vT+1}, 3, v0\nv_add_u32 v{vT}, v{vT}, v{vT+1}\nv_lshlrev_b32 v3, 5, v{vT}')
        for _ in range(P): paced_issue()
        s.stamp(1)
        A('s_barrier')
        s.stamp(2)
        A(f'ds_read_b128 v[8:11], v3 offset:{L_QPART}')
        A(f'ds_read_b128 v[12:15], v3 offset:{L_QPART+16}')
        A(f'ds_read_b128 v[16:19], v3 offset:{L_QPART+512}')
        A(f'ds_read_b128 v[20:23], v3 offset:{L_QPART+512+16}')
        A(f'ds_read_b128 v[24:27], v3 offset:{L_QPART+1024}')
        A(f'ds_read_b128 v[28:31], v3 offset:{L_QPART+1024+16}')
        A(f'ds_read_b128 v[44:47], v3 offset:{L_QPART+1536}')
        A(f'ds_read_b128 v[48:51], v3 offset:{L_QPART+1536+16}')
        paced_issue()
        A('s_waitcnt lgkmcnt(0)')
        for i in range(8):
            A(f'v_add_f32 v{8+i}, v{8+i}, v{16+i}')
            A(f'v_add_f32 v{24+i}, v{24+i}, v{44+i}')
        for i in range(8):
            A(f'v_add_f32 v{8+i}, v{8+i}, v{24+i}')
        for d in range(4):
            A(f'v_cvt_pk_bf16_f32 v{vT+d}, v{8+2*d}, v{9+2*d}')
        if s.dbg:
            A(f's_lshl_b32 s60, s2, 12\ns_lshl_b32 s61, s3, 10\ns_add_u32 s60, s60, s61\ns_add_u32 s60, s60, {hex(W_DBG + 0x100000)}')
            A(f'v_lshlrev_b32 v8, 4, v0\nv_add_u32 v8, s60, v8')
            A(f'global_store_dwordx4 v8, v[{vT}:{vT+3}], s[30:31]')
            A('s_waitcnt vmcnt(0)')
        for t in range(4):
            for d in range(4):
                A(f'v_cndmask_b32 v{vY+4*t+d}, 0, v{vT+d}, s[{50+2*t}:{51+2*t}]')
        paced_issue()
        def post(g):
            a = vAcc + 4 * (g & 1)
            t = vT
            A(f'v_cndmask_b32 v{t}, v{a}, v{a+1}, s[44:45]')
            A(f'v_cndmask_b32 v{t}, v{t}, v{a+2}, s[46:47]')
            A(f'v_cndmask_b32 v{t}, v{t}, v{a+3}, s[48:49]')
            A(f'v_add_f32_dpp v{t}, v{t}, v{t} quad_perm:[1,0,3,2] row_mask:0xf bank_mask:0xf')
            q4 = vSc + (g >> 2)
            if (g & 3) == 0:
                A(f'v_add_f32_dpp v{q4}, v{t}, v{t} quad_perm:[2,3,0,1] row_mask:0xf bank_mask:0xf')
            else:
                A(f'v_add_f32_dpp v{t}, v{t}, v{t} quad_perm:[2,3,0,1] row_mask:0xf bank_mask:0xf')
                A(f'v_cndmask_b32 v{q4}, v{q4}, v{t}, s[{42+2*(g&3)}:{43+2*(g&3)}]')
        def ensure(c):
            allowed = state['n'] - 1 - c
            if allowed < W:
                A(f's_waitcnt vmcnt({max(allowed,0)})')
        for c in range(128):
            g, t = c >> 2, c & 3
            backlog = state['n'] - c
            if backlog <= W:
                paced_issue()
                if state['n'] - 1 - c < W and state['n'] <= 256 and not (state['n'] - 1 - c >= W):
                    pass
            elif c % 8 == 7:
                paced_issue()
            if c > state['n'] - 1 - W or state['n'] >= 256:
                allowed = state['n'] - 1 - c
                A(f's_waitcnt vmcnt({allowed})')
            r = RING + 4 * (c % B)
            a = vAcc + 4 * (g & 1)
            cin = '0' if t == 0 else f'v[{a}:{a+3}]'
            A(f'v_mfma_f32_16x16x32_bf16 v[{a}:{a+3}], v[{r}:{r+3}], v[{vY+4*t}:{vY+4*t+3}], {cin}')
            if t == 1 and g > 0: post(g - 1)
        paced_issue()
        post(31)
        s.stamp(3)
        if s.dbg:
            A(f's_lshl_b32 s60, s2, 13\ns_lshl_b32 s61, s3, 11\ns_add_u32 s60, s60, s61\ns_add_u32 s60, s60, {hex(W_DBG + 0x200000)}')
            A(f'v_lshlrev_b32 v{vT}, 2, v0\nv_add_u32 v{vT}, s60, v{vT}')
            for i in range(8):
                A(f'global_store_dword v{vT}, v{vSc+i}, s[30:31] offset:{256*i}')
            A('s_waitcnt vmcnt(0)')
        def round_pairs():
            for i in range(4):
                A(f'v_cvt_pk_bf16_f32 v{vT+i}, v{vSc+2*i}, v{vSc+2*i+1}')
            for i in range(4):
                A(f'v_lshlrev_b32 v{vSc+2*i}, 16, v{vT+i}')
                A(f'v_and_b32 v{vSc+2*i+1}, 0xffff0000, v{vT+i}')
        round_pairs()
        for i in range(8): A(f'v_mul_f32 v{vSc+i}, {hex(SCALE)}, v{vSc+i}')
        round_pairs()
        paced_issue()
        m, t2 = vT + 4, vT + 5
        A(f'v_max3_f32 v{m}, v{vSc}, v{vSc+1}, v{vSc+2}')
        A(f'v_max3_f32 v{m}, v{m}, v{vSc+3}, v{vSc+4}')
        A(f'v_max3_f32 v{m}, v{m}, v{vSc+5}, v{vSc+6}')
        A(f'v_max_f32 v{m}, v{m}, v{vSc+7}')
        s.allreduce('max', m, t2)
        paced_issue()
        for i in range(8): A(f'v_sub_f32 v{vSc+i}, v{vSc+i}, v{m}')
        for i in range(8): A(f'v_mul_f32 v{vSc+i}, {hex(LOG2E)}, v{vSc+i}')
        for i in range(8): A(f'v_exp_f32 v{vSc+i}, v{vSc+i}')
        l = m + 1
        t3 = vT + 6
        A(f'v_add_f32 v{l}, v{vSc}, v{vSc+1}')
        A(f'v_add_f32 v{t3}, v{vSc+2}, v{vSc+3}')
        A(f'v_add_f32 v{l}, v{l}, v{vSc+4}')
        A(f'v_add_f32 v{t3}, v{t3}, v{vSc+5}')
        A(f'v_add_f32 v{l}, v{l}, v{vSc+6}')
        A(f'v_add_f32 v{t3}, v{t3}, v{vSc+7}')
        A(f'v_add_f32 v{l}, v{l}, v{t3}')
        for i in range(8): A(f'v_cvt_pk_bf16_f32 v{vSc+i}, v{vSc+i}, v{vSc+i}')
        s.allreduce('add', l, t3)
        A(f'v_cmp_eq_u32 vcc, -1, v{m}')
        A(f'v_mov_b32 v{t3}, 0x7fc00000')
        A(f'v_cndmask_b32 v{m}, v{m}, v{t3}, vcc')
        A(f's_lshl_b32 s60, s3, 3\nv_mov_b32 v{t3}, s60')
        A(f'ds_write_b64 v{t3}, v[{m}:{m+1}] offset:{L_ML}')
        def ybuild(c):
            g, t = (c - 128) >> 2, c & 3
            y = vYp + 4 * (c & 1)
            for d in range(4):
                A(f'v_and_b32_dpp v{y+d}, v{vSc+(g>>2)}, v{vM+d} row_newbcast:{4*t+(g&3)} row_mask:0xf bank_mask:0xf')
        ybuild(128)
        for c in range(128, 256):
            backlog = state['n'] - c
            if state['n'] < 256:
                if backlog <= W: paced_issue()
                elif c % 4 == 3: paced_issue()
            if c == 240:
                A(f's_lshl_b32 s60, s3, 2\nv_mov_b32 v{vT}, s60')
                A(f'ds_read_b32 v{vT+1}, v{vT} offset:{L_WF}')
            if c + 1 < 256: ybuild(c + 1)
            if c > state['n'] - 1 - W or state['n'] >= 256:
                allowed = state['n'] - 1 - c
                A(f's_waitcnt vmcnt({allowed})')
            r = RING + 4 * (c % B)
            y = vYp + 4 * (c & 1)
            cin = '0' if c == 128 else f'v[{vO}:{vO+3}]'
            A(f'v_mfma_f32_16x16x32_bf16 v[{vO}:{vO+3}], v[{r}:{r+3}], v[{y}:{y+3}], {cin}')
        s.stamp(4)
        lp, ld = s.lab('wf'), s.lab('wfd')
        A('s_waitcnt lgkmcnt(0)')
        A(f'v_cmp_ne_u32 vcc, -1, v{vT+1}')
        A(f's_cbranch_vccnz {ld}')
        A('s_mov_b32 s61, 0x400000')
        A(f'{lp}:')
        A(f'ds_read_b32 v{vT+1}, v{vT} offset:{L_WF}')
        A('s_waitcnt lgkmcnt(0)')
        A(f'v_cmp_ne_u32 vcc, -1, v{vT+1}')
        A(f's_cbranch_vccnz {ld}')
        A('s_sleep 1')
        A('s_sub_u32 s61, s61, 1\ns_cmp_lg_u32 s61, 0')
        A(f's_cbranch_scc1 {lp}')
        A(f'{ld}:')
        A(f'v_and_b32 v{vT+2}, 3, v0\nv_lshlrev_b32 v{vT+2}, 5, v{vT+2}')
        A(f'v_lshrrev_b32 v{vT+3}, 4, v0\nv_lshlrev_b32 v{vT+3}, 3, v{vT+3}')
        A(f'v_bfe_u32 v{vT+4}, v0, 2, 1')
        A(f'v_add3_u32 v{vT+2}, v{vT+2}, v{vT+3}, v{vT+4}')
        A(f'v_lshlrev_b32 v{vT+2}, 2, v{vT+2}')
        A(f's_lshl_b32 s60, s3, 9\nv_add_u32 v{vT+2}, s60, v{vT+2}')
        for r in range(4): A(f'v_mul_f32 v{vO+r}, v{vO+r}, v{vT+1}')
        A('s_mov_b32 exec_lo, 0x00ff00ff\ns_mov_b32 exec_hi, 0x00ff00ff')
        for r in range(4): A(f'ds_write_b32 v{vT+2}, v{vO+r} offset:{L_OPART+8*r}')
        A('s_mov_b64 exec, -1')
        A('s_waitcnt lgkmcnt(0)')
        A('s_barrier')
        s.stamp(5)
        s.stamp_store(6)
        A('s_endpgm')

    def layernorm(s, xr, out_pairs, tb):
        A = s.A
        f = tb
        a, t = tb + 10, tb + 11
        for i in range(5):
            A(f'v_lshlrev_b32 v{f+2*i}, 16, v{xr+i}')
            A(f'v_and_b32 v{f+2*i+1}, 0xffff0000, v{xr+i}')
        A(f'v_add_f32 v{a}, v{f}, v{f+1}')
        for i in range(2, 10): A(f'v_add_f32 v{a}, v{a}, v{f+i}')
        s.allreduce('add', a, t)
        A(f'v_mul_f32 v{a}, 0x3acccccd, v{a}')
        v, d = tb + 12, tb + 13
        A(f'v_sub_f32 v{d}, v{f}, v{a}\nv_mul_f32 v{v}, v{d}, v{d}')
        for i in range(1, 10):
            A(f'v_sub_f32 v{d}, v{f+i}, v{a}\nv_fmac_f32 v{v}, v{d}, v{d}')
        s.allreduce('add', v, t)
        A(f'v_mul_f32 v{v}, 0x3acccccd, v{v}')
        s.bf16r(v, v)
        A(f'v_add_f32 v{v}, 0x3727c5ac, v{v}')
        s.bf16r(v, v)
        A(f'v_sqrt_f32 v{v}, v{v}')
        s.bf16r(v, v)
        s.bf16r(a, a)
        A(f'v_rcp_f32 v{t}, v{v}')
        for i in range(10):
            A(f'v_sub_f32 v{f+i}, v{f+i}, v{a}')
        for i in range(5):
            A(f'v_cvt_pk_bf16_f32 v{out_pairs+i}, v{f+2*i}, v{f+2*i+1}')
        for i in range(5):
            A(f'v_lshlrev_b32 v{f+2*i}, 16, v{out_pairs+i}')
            A(f'v_and_b32 v{f+2*i+1}, 0xffff0000, v{out_pairs+i}')
        for i in range(10):
            A(f'v_mul_f32 v{d}, v{f+i}, v{t}')
            A(f'v_fma_f32 v{f+i}, -v{d}, v{v}, v{f+i}')
            A(f'v_fma_f32 v{f+i}, v{f+i}, v{t}, v{d}')
        for i in range(5):
            A(f'v_cvt_pk_bf16_f32 v{out_pairs+i}, v{f+2*i}, v{f+2*i+1}')

    def poll_global_counter(s, off, target, vt):
        A = s.A
        lp, ld = s.lab('pc'), s.lab('pcd')
        A('s_mov_b32 s61, 0x100000')
        A(f'v_mov_b32 v{vt}, 0')
        A(f'{lp}:')
        A(f'global_load_dword v{vt+1}, v{vt}, s[28:29] offset:{off} sc1')
        A('s_waitcnt vmcnt(0)')
        A(f'v_cmp_le_u32 vcc, {target}, v{vt+1}') if target <= 64 else (A(f's_mov_b32 s62, {target}'), A(f'v_cmp_le_u32 vcc, s62, v{vt+1}'))
        A(f's_cbranch_vccnz {ld}')
        A('s_sleep 8')
        A('s_sub_u32 s61, s61, 1\ns_cmp_lg_u32 s61, 0')
        A(f's_cbranch_scc1 {lp}')
        A(f'{ld}:')

    def helper(s):
        A = s.A
        WH = s.WH
        DATA = 96
        vM = 4
        vT = 8
        A('s_sub_u32 s63, s3, 4')
        A('s_waitcnt lgkmcnt(0)')
        s.srd(32, 14, 640 * 4096 * 2)
        s.srd(36, 16, 4096 * 640 * 2)
        s.srd(40, 8, 5120)
        s.srd(44, 30, 0x400000)
        A('s_mul_i32 s60, s65, 1280')
        A('v_lshlrev_b32 v1, 2, v0')
        for t in range(5):
            A(f'buffer_load_dword v{16+t}, v1, s[40:43], s60 offen offset:{256*t}')
        A('v_lshrrev_b32 v2, 4, v0\nv_lshlrev_b32 v2, 13, v2\nv_and_b32 v3, 15, v0\nv_lshlrev_b32 v3, 4, v3\nv_add_u32 v2, v2, v3')
        A('s_mul_i32 s60, s63, 1310720\ns_lshl_b32 s61, s64, 8\ns_add_u32 s60, s60, s61')
        st = {'n': 0}
        def issue_wq():
            u = st['n']; st['n'] += 1
            if u >= 40: return
            if u > 0: A('s_add_u32 s60, s60, 0x8000')
            A(f'buffer_load_dwordx4 v[{DATA+4*u}:{DATA+4*u+3}], v2, s[32:35], s60 offen {s.pol_w}')
        for _ in range(WH): issue_wq()
        A('v_and_b32 v9, 15, v0')
        s.masks_Md(vM, 9, 10, 11)
        lsk = s.lab('nopoison')
        A('s_cmp_lg_u32 s63, 0')
        A(f's_cbranch_scc1 {lsk}')
        A(f'v_mov_b32 v9, -1\nv_lshlrev_b32 v10, 2, v0')
        A(f'ds_write_b32 v10, v9 offset:{L_ML}')
        A(f'{lsk}:')
        A(f's_waitcnt vmcnt({WH})')
        s.layernorm(16, 24, 32)
        A('v_and_b32 v9, 1, v0\nv_mul_u32_u24 v9, 320, v9\nv_lshrrev_b32 v10, 1, v0\nv_add_u32 v9, v9, v10\nv_lshlrev_b32 v9, 2, v9')
        A(f's_mul_i32 s61, s63, 2560\ns_add_u32 s61, s61, {L_XDT}\nv_add_u32 v9, s61, v9')
        for t in range(5):
            A(f'v_and_b32 v10, 0xffff, v{24+t}\nv_lshl_or_b32 v10, v10, 16, v10')
            A(f'v_lshrrev_b32 v11, 16, v{24+t}\nv_lshl_or_b32 v11, v11, 16, v11')
            A(f'ds_write_b32 v9, v10 offset:{128*t}')
            A(f'ds_write_b32 v9, v11 offset:{128*t+640}')
        A('v_lshrrev_b32 v9, 4, v0\nv_mul_u32_u24 v9, 640, v9')
        A(f's_mul_i32 s62, s63, 160\ns_add_u32 s61, s61, s62\nv_add_u32 v9, s61, v9')
        A('s_waitcnt lgkmcnt(0)')
        for uu in range(10):
            A(f'ds_read_b128 v[{40+4*uu}:{43+4*uu}], v9 offset:{16*uu}')
        A('s_waitcnt lgkmcnt(0)')
        acc = 80
        for u in range(40):
            if st['n'] < 40:
                A(f's_waitcnt vmcnt({WH-1})')
                issue_wq()
                if u > st['n'] - 1 - WH: A(f's_waitcnt vmcnt({st["n"]-1-u})')
            else:
                A(f's_waitcnt vmcnt({39-u})')
            y = 84 + 4 * (u & 1)
            for d in range(4):
                A(f'v_and_b32 v{y+d}, v{40+u}, v{vM+d}')
            cin = '0' if u == 0 else f'v[{acc}:{acc+3}]'
            A(f'v_mfma_f32_16x16x32_bf16 v[{acc}:{acc+3}], v[{DATA+4*u}:{DATA+4*u+3}], v[{y}:{y+3}], {cin}')
        A('v_lshrrev_b32 v9, 4, v0\nv_lshlrev_b32 v9, 7, v9\nv_and_b32 v10, 15, v0\nv_lshlrev_b32 v10, 2, v10\nv_add_u32 v9, v9, v10')
        A('s_lshl_b32 s61, s63, 9\nv_add_u32 v9, s61, v9')
        A('s_mov_b32 exec_lo, 0x00ff00ff\ns_mov_b32 exec_hi, 0x00ff00ff')
        for r in range(4): A(f'ds_write_b32 v9, v{acc+r} offset:{L_QPART+32*r}')
        A('s_mov_b64 exec, -1')
        A('s_waitcnt lgkmcnt(0)')
        s.stamp(1)
        A('s_barrier')
        lnc = s.lab('noclear')
        A('s_cmp_lg_u32 s63, 3')
        A(f's_cbranch_scc1 {lnc}')
        A('v_mov_b32 v12, -1\nv_mov_b32 v13, -1\nv_mov_b32 v14, -1\nv_mov_b32 v15, -1')
        A(f's_lshl_b32 s60, s2, 7\ns_add_u32 s60, s60, {hex(W_MLIN)}')
        A('v_lshlrev_b32 v9, 4, v0')
        A('s_mov_b64 exec, 1')
        A('buffer_store_dwordx2 v[12:13], v9, s[44:47], s60 offen sc1')
        A('s_mov_b64 exec, -1')
        lnc2 = s.lab('nocons')
        A('s_cmp_ge_u32 s67, 20')
        A(f's_cbranch_scc1 {lnc2}')
        A('s_mul_i32 s60, s65, 20\ns_add_u32 s60, s60, s67\ns_lshl_b32 s60, s60, 13')
        for t in range(8):
            A(f'buffer_store_dwordx4 v[12:15], v9, s[44:47], s60 offen offset:{(t%4)*1024} sc1')
            if t == 3: A('s_add_u32 s60, s60, 4096')
        A(f'{lnc2}:')
        A('s_waitcnt vmcnt(0)')
        A('v_mov_b32 v9, 0\nv_mov_b32 v10, 1')
        A('s_mov_b64 exec, 1')
        A('global_atomic_add v9, v10, s[28:29] sc1')
        A('s_mov_b64 exec, -1')
        A(f'{lnc}:')
        A('v_lshrrev_b32 v2, 4, v0\nv_mul_u32_u24 v2, 1280, v2\nv_and_b32 v3, 15, v0\nv_lshlrev_b32 v3, 4, v3\nv_add_u32 v2, v2, v3')
        A('s_lshl_b32 s60, s64, 7\ns_lshl_b32 s61, s63, 5\ns_add_u32 s60, s60, s61\ns_mul_i32 s60, s60, 1280')
        n = 0
        for u in range(8):
            for cb in range(5):
                if n >= WH: A(f's_waitcnt vmcnt({WH-1})')
                r = DATA + 4 * (u * 5 + cb)
                A(f'buffer_load_dwordx4 v[{r}:{r+3}], v2, s[36:39], s60 offen offset:{cb*256} {s.pol_w}')
                n += 1
            if u < 7: A('s_add_u32 s60, s60, 5120')
        s.stamp(2)
        l_tail, l_w5, l_w7 = s.lab('tail'), s.lab('w5'), s.lab('w7')
        A('s_cmp_eq_u32 s63, 1')
        A(f's_cbranch_scc1 {l_w5}')
        A('s_cmp_eq_u32 s63, 3')
        A(f's_cbranch_scc1 {l_w7}')
        A('s_cmp_eq_u32 s63, 2')
        A(f's_cbranch_scc1 {l_tail}')
        s.ffn(l_tail)
        A(f's_branch {l_tail}')
        A(f'{l_w5}:')
        s.mlx()
        A(f's_branch {l_tail}')
        A(f'{l_w7}:')
        s.consumer_prep(l_tail)
        A(f'{l_tail}:')
        s.tail()

    def ffn(s, l_tail):
        A = s.A
        A('s_cmp_lg_u32 s66, 0')
        A(f's_cbranch_scc1 {l_tail}')
        A('s_and_b32 s60, s2, 7\ns_lshl_b32 s61, s65, 3\ns_add_u32 s60, s60, s61')
        A('s_cmp_ge_u32 s60, 27')
        A(f's_cbranch_scc1 {l_tail}')
        A('s_lshr_b32 s61, s2, 3\ns_and_b32 s61, s61, 3\ns_lshl_b32 s60, s60, 2\ns_add_u32 s68, s60, s61')
        s.srd(48, 20, 640 * 1728 * 2)
        s.srd(52, 22, 640 * 1728 * 2)
        s.srd(56, 24, 1728 * 640 * 2)
        A('v_lshrrev_b32 v9, 1, v0\nv_mul_u32_u24 v9, 3456, v9\nv_and_b32 v10, 1, v0\nv_lshlrev_b32 v10, 4, v10\nv_add_u32 v9, v9, v10')
        A('s_lshl_b32 s60, s68, 5')
        for t in range(20):
            if t >= 4: A(f's_waitcnt vmcnt(7)')
            A(f's_mov_b32 m0, {L_WG + t*1024}')
            A(f'buffer_load_dwordx4 v9, s[48:51], s60 offen {s.pol_w} lds')
            A(f's_mov_b32 m0, {L_WU + t*1024}')
            A(f'buffer_load_dwordx4 v9, s[52:55], s60 offen {s.pol_w} lds')
            if t < 19: A(f's_add_u32 s60, s60, {32*3456}')
        A('v_lshlrev_b32 v1, 2, v0')
        for b in range(4):
            for t in range(5):
                A(f'buffer_load_dword v{16+t}, v1, s[40:43], 0 offen offset:{b*1280 + 256*t}' if b * 1280 + 256 * t < 4096 else
                  f'buffer_load_dword v{16+t}, v1, s[40:43], s69 offen offset:{256*t}')
            if b == 2: A(f's_mov_b32 s69, {3*1280}')
            A('s_waitcnt vmcnt(0)')
            s.layernorm(16, 24, 32)
            for t in range(5):
                A(f'ds_write_b32 v1, v{24+t} offset:{L_XN + b*1280 + 256*t}')
        A('v_lshrrev_b32 v2, 4, v0\nv_mul_u32_u24 v2, 1280, v2\nv_and_b32 v3, 15, v0\nv_lshlrev_b32 v3, 4, v3\nv_add_u32 v2, v2, v3')
        A('s_mul_i32 s62, s68, 20480')
        A('v_and_b32 v9, 3, v0\nv_mul_u32_u24 v9, 1280, v9\nv_lshrrev_b32 v10, 4, v0\nv_lshlrev_b32 v11, 3, v10\nv_add_u32 v9, v9, v11')
        A('v_lshlrev_b32 v10, 2, v10\nv_bfe_u32 v11, v0, 2, 2\nv_add_u32 v10, v10, v11\nv_lshlrev_b32 v10, 5, v10\nv_and_b32 v11, 3, v0\nv_lshlrev_b32 v11, 3, v11\nv_add_u32 v10, v10, v11')
        A(f'v_add_u32 v8, {L_WU - L_WG}, v10')
        A('s_waitcnt vmcnt(0) lgkmcnt(0)')
        ag, au = 12, 16
        for ks in range(20):
            o = 20 + 12 * (ks & 1)
            A(f'ds_read_b64 v[{o}:{o+1}], v9 offset:{L_XN + 64*ks}')
            A(f'ds_read_b64 v[{o+2}:{o+3}], v9 offset:{L_XN + 64*ks + 32}')
            A(f'ds_read_b64_tr_b16 v[{o+4}:{o+5}], v10 offset:{L_WG + 1024*ks}')
            A(f'ds_read_b64_tr_b16 v[{o+6}:{o+7}], v10 offset:{L_WG + 1024*ks + 512}')
            A(f'ds_read_b64_tr_b16 v[{o+8}:{o+9}], v8 offset:{L_WG + 1024*ks}')
            A(f'ds_read_b64_tr_b16 v[{o+10}:{o+11}], v8 offset:{L_WG + 1024*ks + 512}')
            A('s_waitcnt lgkmcnt(0)')
            A(f'v_mfma_f32_16x16x32_bf16 v[{ag}:{ag+3}], v[{o}:{o+3}], v[{o+4}:{o+7}], ' + ('0' if ks == 0 else f'v[{ag}:{ag+3}]'))
            A(f'v_mfma_f32_16x16x32_bf16 v[{au}:{au+3}], v[{o}:{o+3}], v[{o+8}:{o+11}], ' + ('0' if ks == 0 else f'v[{au}:{au+3}]'))
        for r in range(4):
            g_, u_, t0, t1 = ag + r, au + r, 20, 21
            s.bf16r(g_, g_)
            s.bf16r(u_, u_)
            A(f'v_mul_f32 v{t0}, v{g_}, v{g_}\nv_mul_f32 v{t0}, v{t0}, v{g_}')
            A(f'v_mov_b32 v{t1}, 0x3d372713\nv_fma_f32 v{t0}, v{t0}, v{t1}, v{g_}')
            A(f'v_mul_f32 v{t0}, 0x3f4c422a, v{t0}')
            A(f'v_mul_f32 v{t0}, 0x4038aa3b, v{t0}')
            A(f'v_exp_f32 v{t0}, v{t0}')
            A(f'v_add_f32 v{t0}, 1.0, v{t0}')
            A(f'v_rcp_f32 v{t0}, v{t0}')
            A(f'v_fma_f32 v{t0}, v{t0}, -2.0, 1.0')
            A(f'v_add_f32 v{t0}, 1.0, v{t0}')
            A(f'v_mul_f32 v{t1}, 0.5, v{g_}')
            A(f'v_mul_f32 v{t0}, v{t1}, v{t0}')
            s.bf16r(t0, t0)
            A(f'v_mul_f32 v{t0}, v{t0}, v{u_}')
            A(f'v_cvt_pk_bf16_f32 v{g_}, v{t0}, v{t0}')
        A('v_and_b32 v9, 3, v0\nv_lshlrev_b32 v9, 2, v9\nv_bfe_u32 v10, v0, 2, 2\nv_add_u32 v9, v9, v10\nv_lshlrev_b32 v9, 2, v9')
        for r in range(4):
            A(f'ds_write_b32 v9, v{ag+r} offset:{L_HT + 64*r}')
        if s.dbg:
            A(f's_lshl_b32 s60, s68, 10\ns_add_u32 s60, s60, {hex(W_DBG + 0x500000)}')
            A('v_lshlrev_b32 v10, 4, v0\nv_add_u32 v10, s60, v10')
            A(f'global_store_dwordx4 v10, v[{ag}:{ag+3}], s[30:31]')
        A('v_bfe_u32 v9, v0, 3, 1\nv_lshlrev_b32 v9, 2, v9\nv_lshrrev_b32 v10, 4, v0\nv_add_u32 v9, v9, v10\nv_lshlrev_b32 v9, 4, v9')
        A('s_waitcnt lgkmcnt(0)')
        A(f'ds_read_b128 v[12:15], v9 offset:{L_HT}')
        A(f'ds_read_b128 v[16:19], v9 offset:{L_HT + 128}')
        A('v_and_b32 v10, 15, v0')
        s.masks_Md(20, 10, 11, 24, mod8=True)
        A('s_waitcnt lgkmcnt(0)')
        for bp in range(2):
            for u in range(4):
                for d in range(4):
                    A(f'v_and_b32 v{28+16*bp+4*u+d}, v{12+4*bp+u}, v{20+d}')
        A('v_bfe_u32 v9, v0, 3, 1\nv_mul_u32_u24 v9, 640, v9\nv_lshrrev_b32 v10, 4, v0\nv_lshlrev_b32 v10, 5, v10\nv_and_b32 v11, 7, v0\nv_add3_u32 v9, v9, v10, v11\nv_lshlrev_b32 v9, 2, v9')
        for cb in range(5):
            for u in range(4):
                A(f's_add_u32 s60, s62, {u*5120}')
                A(f'buffer_load_dwordx4 v[{60+4*u}:{63+4*u}], v2, s[56:59], s60 offen offset:{cb*256} {s.pol_w}')
            A('s_waitcnt vmcnt(0)')
            for bp in range(2):
                a = 76 + 4 * bp
                for u in range(4):
                    A(f'v_mfma_f32_16x16x32_bf16 v[{a}:{a+3}], v[{60+4*u}:{63+4*u}], v[{28+16*bp+4*u}:{31+16*bp+4*u}], ' + ('0' if u == 0 else f'v[{a}:{a+3}]'))
            for bp in range(2):
                for r in range(4):
                    A(f'ds_write_b32 v9, v{76+4*bp+r} offset:{L_YPART + bp*5120 + cb*512 + r*32}')
        A('s_waitcnt lgkmcnt(0)')
        A('v_lshlrev_b32 v9, 4, v0')
        A(f's_mul_i32 s60, s68, 10240\ns_add_u32 s60, s60, {hex(W_FPART)}')
        for t in range(10):
            r = 12 + 4 * (t % 5)
            A(f'ds_read_b128 v[{r}:{r+3}], v9 offset:{L_YPART + 1024*t}')
            A('s_waitcnt lgkmcnt(0)')
            A(f'buffer_store_dwordx4 v[{r}:{r+3}], v9, s[44:47], s60 offen offset:{(t%4)*1024} sc1')
            if t % 4 == 3: A('s_add_u32 s60, s60, 4096')
            if t == 4: A('s_waitcnt vmcnt(0)')
        A('s_waitcnt vmcnt(0)')
        A('v_mov_b32 v9, 0\nv_mov_b32 v10, 1')
        A('s_mov_b64 exec, 1')
        A('global_atomic_add v9, v10, s[28:29] offset:128 sc1')
        A('s_mov_b64 exec, -1')

    def mlx(s):
        A = s.A
        lp, ld = s.lab('ml'), s.lab('mld')
        A(f'v_and_b32 v9, 3, v0\nv_lshlrev_b32 v9, 3, v9')
        A('s_mov_b32 s61, 0x400000')
        A(f'{lp}:')
        A(f'ds_read_b64 v[10:11], v9 offset:{L_ML}')
        A('s_waitcnt lgkmcnt(0)')
        A('v_cmp_eq_u32 vcc, -1, v10')
        A(f's_cbranch_vccz {ld}')
        A('s_sleep 16')
        A('s_sub_u32 s61, s61, 1\ns_cmp_lg_u32 s61, 0')
        A(f's_cbranch_scc1 {lp}')
        A(f'{ld}:')
        A('v_mov_b32 v12, v10')
        A('v_max_f32_dpp v12, v12, v12 quad_perm:[1,0,3,2] row_mask:0xf bank_mask:0xf')
        A('v_max_f32_dpp v12, v12, v12 quad_perm:[2,3,0,1] row_mask:0xf bank_mask:0xf')
        A(f'v_sub_f32 v13, v10, v12\nv_mul_f32 v13, {hex(LOG2E)}, v13\nv_exp_f32 v13, v13')
        A('v_mul_f32 v13, v13, v11')
        A('v_add_f32_dpp v13, v13, v13 quad_perm:[1,0,3,2] row_mask:0xf bank_mask:0xf')
        A('v_add_f32_dpp v13, v13, v13 quad_perm:[2,3,0,1] row_mask:0xf bank_mask:0xf')
        A('v_mov_b32 v14, 0x7fc00000')
        A('v_cmp_eq_u32 vcc, -1, v12\nv_cndmask_b32 v12, v12, v14, vcc')
        A('v_cmp_eq_u32 vcc, -1, v13\nv_cndmask_b32 v13, v13, v14, vcc')
        s.poll_global_counter(0, 256, 16)
        A(f's_xor_b32 s60, s2, 128\ns_lshl_b32 s60, s60, 7\ns_add_u32 s60, s60, {hex(W_MLIN)}')
        A('v_mov_b32 v9, 0')
        A('s_mov_b64 exec, 1')
        A('buffer_store_dwordx2 v[12:13], v9, s[44:47], s60 offen sc1')
        A('s_mov_b64 exec, -1')
        A(f's_lshl_b32 s60, s2, 7\ns_add_u32 s60, s60, {hex(W_MLIN)}')
        lp, ld = s.lab('mp'), s.lab('mpd')
        A('s_mov_b32 s61, 0x100000')
        A(f'{lp}:')
        A('buffer_load_dwordx2 v[14:15], v9, s[44:47], s60 offen sc1')
        A('s_waitcnt vmcnt(0)')
        A('v_cmp_eq_u32 vcc, -1, v14\nv_cmp_eq_u32 s[70:71], -1, v15' if not s.stamps else 'v_cmp_eq_u32 vcc, -1, v14\nv_cmp_eq_u32 s[92:93], -1, v15')
        A('s_or_b64 vcc, vcc, s[70:71]' if not s.stamps else 's_or_b64 vcc, vcc, s[92:93]')
        A(f's_cbranch_vccz {ld}')
        A('s_sleep 8')
        A('s_sub_u32 s61, s61, 1\ns_cmp_lg_u32 s61, 0')
        A(f's_cbranch_scc1 {lp}')
        A(f'{ld}:')
        A('v_max_f32 v16, v12, v14')
        A(f'v_sub_f32 v17, v12, v16\nv_mul_f32 v17, {hex(LOG2E)}, v17\nv_exp_f32 v17, v17')
        A(f'v_sub_f32 v18, v14, v16\nv_mul_f32 v18, {hex(LOG2E)}, v18\nv_exp_f32 v18, v18')
        A('v_mul_f32 v17, v17, v13\nv_fma_f32 v17, v18, v15, v17')
        A(f'v_sub_f32 v18, v10, v16\nv_mul_f32 v18, {hex(LOG2E)}, v18\nv_exp_f32 v18, v18')
        A('v_rcp_f32 v19, v17')
        A('v_mul_f32 v20, v18, v19\nv_fma_f32 v21, -v20, v17, v18\nv_fma_f32 v20, v21, v19, v20')
        A('v_mov_b32 v14, 0x7fc00000\nv_cmp_eq_u32 vcc, -1, v20\nv_cndmask_b32 v20, v20, v14, vcc')
        A('v_and_b32 v9, 3, v0\nv_lshlrev_b32 v9, 2, v9')
        A(f'ds_write_b32 v9, v20 offset:{L_WF}')
        A('s_waitcnt lgkmcnt(0)')

    def consumer_prep(s, l_tail):
        A = s.A
        A('s_cmp_ge_u32 s67, 20')
        A(f's_cbranch_scc1 {l_tail}')
        s.poll_global_counter(128, 108, 16)
        A(f's_add_u32 s48, s30, {hex(W_FPART)}\ns_addc_u32 s49, s31, 0\ns_and_b32 s49, s49, 0xffff\ns_mov_b32 s50, {108*10240}\ns_mov_b32 s51, 0x20000')
        A('v_lshrrev_b32 v9, 3, v0\nv_mul_u32_u24 v9, 10240, v9\nv_and_b32 v10, 7, v0\nv_lshlrev_b32 v10, 4, v10\nv_add_u32 v9, v9, v10')
        A('s_mul_i32 s60, s65, 2560\ns_lshl_b32 s61, s67, 7\ns_add_u32 s60, s60, s61')
        for r in range(4): A(f'v_mov_b32 v{16+4*13+r}, 0')
        for t in range(14):
            if t == 13: A('s_mov_b64 exec, 0xffffffff')
            A(f'buffer_load_dwordx4 v[{16+4*t}:{19+4*t}], v9, s[48:51], s60 offen sc1')
            if t < 13: A(f's_add_u32 s60, s60, {8*10240}')
        A('s_mov_b64 exec, -1')
        A('s_mul_i32 s60, s65, 1280\ns_lshl_b32 s61, s67, 6\ns_add_u32 s60, s60, s61')
        A('v_and_b32 v10, 7, v0\nv_lshlrev_b32 v10, 3, v10')
        A('buffer_load_dwordx2 v[12:13], v10, s[40:43], s60 offen')
        A('s_waitcnt vmcnt(0)')
        for t in range(1, 14):
            for r in range(4): A(f'v_add_f32 v{16+r}, v{16+r}, v{16+4*t+r}')
        for r in range(4): s.reduce_hi3(16 + r, 20)
        for r in range(4):
            f = 16 + r
            s.bf16r(f, f)
            A(f'v_mul_f32 v20, 0xbfb8aa3b, v{f}\nv_exp_f32 v20, v20\nv_add_f32 v20, 1.0, v20\nv_rcp_f32 v21, v20')
            A(f'v_mul_f32 v22, v{f}, v21\nv_fma_f32 v23, -v22, v20, v{f}\nv_fma_f32 v23, v23, v21, v22')
            A(f'v_cmp_class_f32 vcc, v20, 0x200' if False else 'v_cmp_u_f32 vcc, v23, v23')
            A(f'v_cndmask_b32 v22, v23, v22, vcc')
            s.bf16r(88 + r, 22)
        A('v_lshlrev_b32 v92, 16, v12\nv_and_b32 v93, 0xffff0000, v12\nv_lshlrev_b32 v94, 16, v13\nv_and_b32 v95, 0xffff0000, v13')

    def tail(s):
        A = s.A
        DATA = 96
        vM = 4
        A('v_lshrrev_b32 v9, 4, v0\nv_lshlrev_b32 v9, 7, v9\ns_lshl_b32 s60, s63, 5\nv_add_u32 v9, s60, v9')
        A('v_lshrrev_b32 v10, 4, v0\nv_lshlrev_b32 v10, 7, v10\nv_and_b32 v11, 15, v0\nv_lshlrev_b32 v11, 2, v11\nv_add_u32 v10, v10, v11')
        A('s_mul_i32 s60, s63, 2560\nv_add_u32 v10, s60, v10')
        A('s_waitcnt vmcnt(0)')
        s.stamp(3)
        A('s_barrier')
        s.stamp(4)
        for w in range(4):
            A(f'ds_read_b128 v[{16+8*w}:{19+8*w}], v9 offset:{L_OPART + 512*w}')
            A(f'ds_read_b128 v[{20+8*w}:{23+8*w}], v9 offset:{L_OPART + 512*w + 16}')
        A('s_waitcnt lgkmcnt(0)')
        for u in range(8):
            A(f'v_add_f32 v{16+u}, v{16+u}, v{24+u}')
            A(f'v_add_f32 v{32+u}, v{32+u}, v{40+u}')
            A(f'v_add_f32 v{16+u}, v{16+u}, v{32+u}')
            A(f'v_cvt_pk_bf16_f32 v{16+u}, v{16+u}, v{16+u}')
        if s.dbg:
            A(f's_lshl_b32 s60, s2, 13\ns_lshl_b32 s61, s63, 11\ns_add_u32 s60, s60, s61\ns_add_u32 s60, s60, {hex(W_DBG + 0x600000)}')
            A('v_lshlrev_b32 v48, 5, v0\nv_add_u32 v48, s60, v48')
            A('global_store_dwordx4 v48, v[16:19], s[30:31]\nglobal_store_dwordx4 v48, v[20:23], s[30:31] offset:16')
            A('s_waitcnt vmcnt(0)')
        acc = 48
        for u in range(8):
            y = 68 + 4 * (u & 1)
            for d in range(4): A(f'v_and_b32 v{y+d}, v{16+u}, v{vM+d}')
            for cb in range(5):
                r = DATA + 4 * (u * 5 + cb)
                a = acc + 4 * cb
                A(f'v_mfma_f32_16x16x32_bf16 v[{a}:{a+3}], v[{r}:{r+3}], v[{y}:{y+3}], ' + ('0' if u == 0 else f'v[{a}:{a+3}]'))
        A('s_mov_b32 exec_lo, 0x00ff00ff\ns_mov_b32 exec_hi, 0x00ff00ff')
        for cb in range(5):
            for r in range(4):
                A(f'ds_write_b32 v10, v{acc+4*cb+r} offset:{L_YPART + 512*cb + 32*r}')
        A('s_mov_b64 exec, -1')
        A('s_waitcnt lgkmcnt(0)')
        A('s_barrier')
        s.stamp(5)
        l_fin, l_done = s.lab('fin'), s.lab('done')
        A('s_cmp_eq_u32 s63, 3')
        A(f's_cbranch_scc1 {l_fin}')
        A('s_lshl_b32 s60, s63, 6\nv_add_u32 v9, s60, v0')
        A('v_cmp_gt_u32 vcc, 160, v9')
        A('s_and_saveexec_b64 s[60:61], vcc')
        A(f's_cbranch_execz {l_done}')
        A('v_lshlrev_b32 v10, 4, v9')
        for w in range(4):
            A(f'ds_read_b128 v[{16+4*w}:{19+4*w}], v10 offset:{L_YPART + 2560*w}')
        A('v_lshrrev_b32 v11, 3, v9\nv_lshlrev_b32 v11, 13, v11\nv_and_b32 v12, 7, v9\nv_lshlrev_b32 v12, 4, v12\nv_add_u32 v11, v11, v12')
        A('s_mul_i32 s62, s65, 163840\ns_lshl_b32 s69, s67, 7\ns_add_u32 s62, s62, s69')
        A('v_mov_b32 v12, 0x7fc00000')
        A('s_waitcnt lgkmcnt(0)')
        for r in range(4):
            A(f'v_add_f32 v{16+r}, v{16+r}, v{20+r}')
            A(f'v_add_f32 v{24+r}, v{24+r}, v{28+r}')
            A(f'v_add_f32 v{16+r}, v{16+r}, v{24+r}')
            A(f'v_cmp_eq_u32 vcc, -1, v{16+r}')
            A(f'v_cndmask_b32 v{16+r}, v{16+r}, v12, vcc')
        A('buffer_store_dwordx4 v[16:19], v11, s[44:47], s62 offen sc1')
        A(f'{l_done}:')
        s.stamp(6)
        s.stamp_store(7)
        A('s_endpgm')
        A(f'{l_fin}:')
        l_nf = s.lab('nofin')
        A('s_cmp_ge_u32 s67, 20')
        A(f's_cbranch_scc1 {l_nf}')
        A('s_mul_i32 s60, s65, 20\ns_add_u32 s60, s60, s67\ns_lshl_b32 s60, s60, 13')
        A('s_add_u32 s62, s60, 4096')
        A('v_lshlrev_b32 v9, 4, v0')
        lp, ld = s.lab('fp'), s.lab('fpd')
        A('s_mov_b32 s61, 0x100000')
        A(f'{lp}:')
        for t in range(8):
            A(f'buffer_load_dwordx4 v[{16+4*t}:{19+4*t}], v9, s[44:47], {"s60" if t < 4 else "s62"} offen offset:{(t%4)*1024} sc1')
        A('s_waitcnt vmcnt(0)')
        A('v_max3_u32 v48, v16, v17, v18')
        for i in range(19, 47, 2): A(f'v_max3_u32 v48, v48, v{i}, v{i+1}')
        A('v_max_u32 v48, v48, v47')
        A('v_cmp_eq_u32 vcc, -1, v48')
        A(f's_cbranch_vccz {ld}')
        A('s_sub_u32 s61, s61, 1\ns_cmp_lg_u32 s61, 0')
        A(f's_cbranch_scc1 {lp}')
        A(f'{ld}:')
        for r in range(4):
            A(f'v_add_f32 v{16+r}, v{16+r}, v{20+r}')
            A(f'v_add_f32 v{24+r}, v{24+r}, v{28+r}')
            A(f'v_add_f32 v{32+r}, v{32+r}, v{36+r}')
            A(f'v_add_f32 v{40+r}, v{40+r}, v{44+r}')
            A(f'v_add_f32 v{16+r}, v{16+r}, v{24+r}')
            A(f'v_add_f32 v{32+r}, v{32+r}, v{40+r}')
            A(f'v_add_f32 v{16+r}, v{16+r}, v{32+r}')
        for r in range(4): s.reduce_hi3(16 + r, 20 + r)
        for r in range(4):
            s.bf16r(16 + r, 16 + r)
            A(f'v_mul_f32 v{16+r}, v{16+r}, v{88+r}')
            s.bf16r(16 + r, 16 + r)
            A(f'v_add_f32 v{16+r}, v{16+r}, v{92+r}')
        A('v_cvt_pk_bf16_f32 v16, v16, v17\nv_cvt_pk_bf16_f32 v17, v18, v19')
        s.srd(48, 26, 5120)
        A('s_mul_i32 s60, s65, 1280\ns_lshl_b32 s61, s67, 6\ns_add_u32 s60, s60, s61')
        A('v_lshlrev_b32 v10, 3, v0')
        A('s_mov_b64 exec, 0xff')
        A('buffer_store_dwordx2 v[16:17], v10, s[48:51], s60 offen')
        A('s_mov_b64 exec, -1')
        A(f'{l_nf}:')
        s.stamp(6)
        s.stamp_store(7)

    def text(s):
        s.build()
        body = hz.fix(s.L)
        out = [HEADER + f'; @launch grid=(256,1,1) block=(512,1,1) lds={LDS_BYTES}',
               '.amdgcn_target "amdgcn-amd-amdhsa--gfx950"', '.text', f'.globl {NAME}_kernel', '.p2align 8',
               f'.type {NAME}_kernel,@function']
        out += body
        out += ['.section .rodata,"a"', '.p2align 6', f'.amdhsa_kernel {NAME}_kernel',
                '  .amdhsa_next_free_vgpr 256', '  .amdhsa_next_free_sgpr 96', '  .amdhsa_accum_offset 256',
                '  .amdhsa_group_segment_fixed_size 0', '  .amdhsa_kernarg_size 96', '  .amdhsa_user_sgpr_count 2',
                '  .amdhsa_user_sgpr_kernarg_segment_ptr 1', '  .amdhsa_system_sgpr_workgroup_id_x 1',
                '  .amdhsa_float_denorm_mode_32 3',
                '.end_amdhsa_kernel']
        return '\n'.join(out) + '\n'

if __name__ == '__main__':
    import argparse
    ap = argparse.ArgumentParser()
    ap.add_argument('-o', default='cdna_kernels/' + NAME + '.s')
    ap.add_argument('--cfg', default='{}')
    a = ap.parse_args()
    g = Gen(**eval(a.cfg))
    open(a.o, 'w').write(g.text())
    print('wrote', a.o)
```

```python
import sys, os
sys.path.insert(0, os.path.dirname(os.path.abspath(__file__)))
import hz

NAME = 'recurrent_scan__gqa_block_cached__geglu_ffn__decode'

HEADER = '''; Kernarg layout for this problem (96 bytes, ptrs only, base s[0:1]):
;   offset  24: d_in[3] A_wq  shape=(640, 4096) dtype=bfloat16
;   offset  32: d_in[4] A_wo  shape=(4096, 640) dtype=bfloat16
;   offset  80: d_debug   256 bytes (zero at launch; holds two arrival counters)
;   offset  88: d_ws      workspace (hand-off mailboxes)
; One workgroup per (batch, head, key-half): waves 0-3 stream K then V, waves 4-7 do the projections / FFN / hand-offs.
'''

L_QP    = 0x0000
L_XN    = 0x2000
L_ML    = 0x3400
L_WF    = 0x3440
L_FLAG  = 0x3480
L_QB    = 0x3500
L_HT    = 0x3600
L_OPART = 0x3700
L_YPART = 0x3F00
L_WG    = 0x6800
L_WU    = 0xB800
LDS_BYTES = 0x10800

W_YIN   = 0x000000
W_MLIN  = 0x100000
W_NONCE = 0x180000
W_FPART = 0x200000
W_QIN   = 0x320000
W_FIN   = 0x420000
WS_SIZE = 0x500000
W_DBG   = 0x1000000

SCALE = 0x3db504f3
LOG2E = 0x3fb8aa3b

class Gen:
    def __init__(s, W=6, P=30, B=40, WO=3, WF=5, pol_kv='nt', pol_w='nt', pol_x='nt', pol_hl='sc1', pol_hs='sc1', dbg=False, stamps=False, prio=True, skip='', cons_wait=True, psleep=8, pol_n='sc1', fine=False, qsleep=0, fine2=False):
        s.fine2 = fine2
        s.fine = fine; s.qsleep = qsleep
        s.pol_n = pol_n
        s.cons_wait = cons_wait; s.psleep = psleep
        s.skip = skip.split(',')
        s.L = []
        s.W, s.P, s.B, s.WO, s.WF = W, P, B, WO, WF
        s.pol_x, s.pol_hl, s.pol_hs = pol_x, pol_hl, pol_hs
        s.pol_kv, s.pol_w = pol_kv, pol_w
        s.dbg = dbg; s.stamps = stamps; s.prio = prio
        s.nlab = 0
    def A(s, t):
        for l in t.split('\n'):
            l = l.strip()
            if l: s.L.append(('  ' + l) if not l.endswith(':') else l)
    def lab(s, base):
        s.nlab += 1
        return f'L_{base}_{s.nlab}'

    def allreduce(s, op, v, t):
        A = s.A
        ins = {'add': 'v_add_f32', 'max': 'v_max_f32'}[op]
        A(f'{ins}_dpp v{v}, v{v}, v{v} quad_perm:[1,0,3,2] row_mask:0xf bank_mask:0xf')
        A(f'{ins}_dpp v{v}, v{v}, v{v} quad_perm:[2,3,0,1] row_mask:0xf bank_mask:0xf')
        A(f'{ins}_dpp v{v}, v{v}, v{v} row_half_mirror row_mask:0xf bank_mask:0xf')
        A(f'{ins}_dpp v{v}, v{v}, v{v} row_mirror row_mask:0xf bank_mask:0xf')
        A(f'v_mov_b32 v{t}, v{v}')
        A(f'v_permlane16_swap_b32 v{v}, v{t}')
        A(f'{ins} v{v}, v{v}, v{t}')
        A(f'v_mov_b32 v{t}, v{v}')
        A(f'v_permlane32_swap_b32 v{v}, v{t}')
        A(f'{ins} v{v}, v{v}, v{t}')

    def reduce_hi3(s, v, t):
        A = s.A
        A(f'v_add_f32_dpp v{v}, v{v}, v{v} row_ror:8 row_mask:0xf bank_mask:0xf')
        A(f'v_mov_b32 v{t}, v{v}')
        A(f'v_permlane16_swap_b32 v{v}, v{t}')
        A(f'v_add_f32 v{v}, v{v}, v{t}')
        A(f'v_mov_b32 v{t}, v{v}')
        A(f'v_permlane32_swap_b32 v{v}, v{t}')
        A(f'v_add_f32 v{v}, v{v}, v{t}')

    def bf16r(s, dst, src, tmp=None):
        s.A(f'v_cvt_pk_bf16_f32 v{dst}, v{src}, v{src}')
        s.A(f'v_lshlrev_b32 v{dst}, 16, v{dst}')

    def srd(s, n, ptr, size):
        s.A(f's_mov_b32 s{n}, s{ptr}\ns_and_b32 s{n+1}, s{ptr+1}, 0xffff\ns_mov_b32 s{n+2}, {hex(size)}\ns_mov_b32 s{n+3}, 0x20000')

    def stamp(s, idx):
        if s.stamps: s.A(f's_memrealtime s[{70+2*idx}:{71+2*idx}]')

    def stamp_store(s, n):
        if not s.stamps: return
        A = s.A
        A('s_waitcnt lgkmcnt(0)')
        A('s_lshl_b32 s90, s2, 3\ns_add_u32 s90, s90, s3\ns_lshl_b32 s90, s90, 6')
        A(f's_add_u32 s90, s90, {hex(W_DBG)}')
        A('v_mov_b32 v1, s90')
        A('s_getreg_b32 s91, hwreg(HW_REG_XCC_ID)')
        A('s_mov_b64 exec, 1')
        for i in range(n):
            A(f'v_mov_b32 v2, s{70+2*i}')
            A(f'global_store_dword v1, v2, s[30:31] offset:{4*i}')
        A('v_mov_b32 v2, s91')
        A('global_store_dword v1, v2, s[30:31] offset:60')
        if s.fine2:
            A('v_mov_b32 v2, s97')
            A('global_store_dword v1, v2, s[30:31] offset:56')
        A('s_mov_b64 exec, -1')

    def masks_Md(s, base, jreg, t1, t2, mod8=False):
        A = s.A
        if mod8: A(f'v_and_b32 v{t1}, 7, v{jreg}')
        else: A(f'v_mov_b32 v{t1}, v{jreg}')
        A(f'v_and_b32 v{t2}, 1, v{t1}')
        A(f'v_cmp_eq_u32 vcc, 1, v{t2}')
        A(f'v_mov_b32 v{t2}, 0xffff')
        A(f'v_mov_b32 v{base}, 0xffff0000')
        A(f'v_cndmask_b32 v{t2}, v{t2}, v{base}, vcc')
        A(f'v_lshrrev_b32 v{t1}, 1, v{t1}')
        for d in range(4):
            A(f'v_cmp_eq_u32 vcc, {d}, v{t1}')
            A(f'v_cndmask_b32 v{base+d}, 0, v{t2}, vcc')

    def build(s):
        A = s.A
        A(f'{NAME}_kernel:')
        A('s_cmp_ge_u32 s2, 256')
        A('s_cbranch_scc1 L_end')
        s.stamp(0)
        A('s_load_dwordx16 s[8:23], s[0:1], 0')
        A('s_load_dwordx8 s[24:31], s[0:1], 64')
        A('v_lshrrev_b32 v1, 6, v0')
        A('v_and_b32 v0, 63, v0')
        A('v_readfirstlane_b32 s3, v1')
        lni = s.lab('noinit')
        A('s_cmp_lg_u32 s3, 0')
        A(f's_cbranch_scc1 {lni}')
        A('v_mov_b32 v2, -1\nv_cmp_gt_u32 vcc, 32, v0\nv_cndmask_b32 v2, 0, v2, vcc\nv_lshlrev_b32 v3, 2, v0')
        A(f'ds_write_b32 v3, v2 offset:{L_ML}')
        A(f'{lni}:')
        A('s_and_b32 s64, s2, 7\ns_lshr_b32 s68, s2, 3')
        A('s_and_b32 s69, s68, 3\ns_lshl_b32 s69, s69, 3\ns_add_u32 s64, s64, s69')
        A('s_lshr_b32 s65, s68, 2\ns_and_b32 s65, s65, 3')
        A('s_lshr_b32 s66, s68, 4')
        A('s_lshl_b32 s67, s64, 1\ns_add_u32 s67, s67, s66')
        A('s_waitcnt lgkmcnt(0)')
        A('s_barrier')
        A('s_cmp_ge_u32 s3, 4')
        A('s_cbranch_scc1 L_helper')
        s.streamer()
        A('L_helper:')
        s.helper()
        A('L_end:')
        A('s_endpgm')

    def streamer(s):
        A = s.A
        W, P, B = s.W, s.P, s.B
        RING = 64
        assert RING + 4 * B <= 256
        vKo, vVo = 1, 2
        vM = 4
        vY = 8
        vAcc = 24
        vSc = 32
        vO = 40
        vYp = 44
        vT = 52
        if s.prio: A('s_setprio 2')
        A(f'v_lshrrev_b32 v{vT}, 4, v0')
        A(f'v_lshlrev_b32 v{vT}, 6, v{vT}')
        A(f'v_bfe_u32 v{vT+1}, v0, 2, 2')
        A(f'v_lshlrev_b32 v{vT+1}, 8, v{vT+1}')
        A(f'v_and_b32 v{vT+2}, 3, v0')
        A(f'v_lshlrev_b32 v{vT+2}, 4, v{vT+2}')
        A(f'v_add3_u32 v{vKo}, v{vT}, v{vT+1}, v{vT+2}')
        A(f'v_lshlrev_b32 v{vVo}, 4, v0')
        A('s_lshl_b32 s40, s65, 5\ns_add_u32 s40, s40, s64\ns_lshl_b32 s40, s40, 20')
        A('s_lshl_b32 s41, s66, 19\ns_add_u32 s40, s40, s41')
        A('s_lshl_b32 s41, s3, 12\ns_add_u32 s40, s40, s41')
        A('s_mov_b32 s41, s40')
        A('s_waitcnt lgkmcnt(0)')
        s.srd(32, 10, 0x8000000)
        s.srd(36, 12, 0x8000000)
        state = {'n': 0}
        def issue():
            n = state['n']; state['n'] += 1
            if n >= 256: return
            if n == 128: A('s_mov_b32 s41, s40')
            elif n % 4 == 0 and n > 0: A('s_add_u32 s41, s41, 0x4000')
            r = RING + 4 * (n % B)
            if n < 128:
                A(f'buffer_load_dwordx4 v[{r}:{r+3}], v{vKo}, s[32:35], s41 offen offset:{(n%4)*1024} {s.pol_kv}')
            else:
                A(f'buffer_load_dwordx4 v[{r}:{r+3}], v{vVo}, s[36:39], s41 offen offset:{(n%4)*1024} {s.pol_kv}')
        def paced_issue():
            if state['n'] >= 256: return
            A(f's_waitcnt vmcnt({W-1})')
            issue()
        for _ in range(W): issue()
        A(f'v_and_b32 v{vT}, 15, v0')
        s.masks_Md(vM, vT, vT+1, vT+2)
        A('s_mov_b32 s44, 0x22222222\ns_mov_b32 s45, 0x22222222')
        A('s_mov_b32 s46, 0x44444444\ns_mov_b32 s47, 0x44444444')
        A('s_mov_b32 s48, 0x88888888\ns_mov_b32 s49, 0x88888888')
        for t in range(4):
            m = 0x000F000F << (4 * t)
            A(f's_mov_b32 s{50+2*t}, {hex(m)}\ns_mov_b32 s{51+2*t}, {hex(m)}')
        A(f'v_lshrrev_b32 v{vT}, 4, v0\nv_lshlrev_b32 v{vT}, 2, v{vT}\nv_and_b32 v{vT+1}, 3, v0\nv_add_u32 v{vT}, v{vT}, v{vT+1}\nv_lshlrev_b32 v3, 4, v{vT}')
        for pi in range(P):
            paced_issue()
            if s.fine and pi % 6 == 5 and pi // 6 < 4: s.stamp(3 + pi // 6)
        s.stamp(1)
        A('s_barrier')
        s.stamp(2)
        A(f'ds_read_b128 v[{vT}:{vT+3}], v3 offset:{L_QB}')
        A('s_waitcnt lgkmcnt(0)')
        if s.dbg:
            A(f's_lshl_b32 s60, s2, 12\ns_lshl_b32 s61, s3, 10\ns_add_u32 s60, s60, s61\ns_add_u32 s60, s60, {hex(W_DBG + 0x100000)}')
            A(f'v_lshlrev_b32 v8, 4, v0\nv_add_u32 v8, s60, v8')
            A(f'global_store_dwordx4 v8, v[{vT}:{vT+3}], s[30:31]')
            A('s_waitcnt vmcnt(0)')
        for t in range(4):
            for d in range(4):
                A(f'v_cndmask_b32 v{vY+4*t+d}, 0, v{vT+d}, s[{50+2*t}:{51+2*t}]')
        paced_issue()
        def post(g):
            a = vAcc + 4 * (g & 1)
            t = vT
            A(f'v_cndmask_b32 v{t}, v{a}, v{a+1}, s[44:45]')
            A(f'v_cndmask_b32 v{t}, v{t}, v{a+2}, s[46:47]')
            A(f'v_cndmask_b32 v{t}, v{t}, v{a+3}, s[48:49]')
            A(f'v_add_f32_dpp v{t}, v{t}, v{t} quad_perm:[1,0,3,2] row_mask:0xf bank_mask:0xf')
            q4 = vSc + (g >> 2)
            if (g & 3) == 0:
                A(f'v_add_f32_dpp v{q4}, v{t}, v{t} quad_perm:[2,3,0,1] row_mask:0xf bank_mask:0xf')
            else:
                A(f'v_add_f32_dpp v{t}, v{t}, v{t} quad_perm:[2,3,0,1] row_mask:0xf bank_mask:0xf')
                A(f'v_cndmask_b32 v{q4}, v{q4}, v{t}, s[{42+2*(g&3)}:{43+2*(g&3)}]')
        def ensure(c):
            allowed = state['n'] - 1 - c
            if allowed < W:
                A(f's_waitcnt vmcnt({max(allowed,0)})')
        for c in range(128):
            g, t = c >> 2, c & 3
            backlog = state['n'] - c
            if backlog <= W:
                paced_issue()
                if state['n'] - 1 - c < W and state['n'] <= 256 and not (state['n'] - 1 - c >= W):
                    pass
            elif c % 8 == 7:
                paced_issue()
            if c > state['n'] - 1 - W or state['n'] >= 256:
                allowed = state['n'] - 1 - c
                A(f's_waitcnt vmcnt({allowed})')
            r = RING + 4 * (c % B)
            a = vAcc + 4 * (g & 1)
            cin = '0' if t == 0 else f'v[{a}:{a+3}]'
            A(f'v_mfma_f32_16x16x32_bf16 v[{a}:{a+3}], v[{r}:{r+3}], v[{vY+4*t}:{vY+4*t+3}], {cin}')
            if t == 1 and g > 0: post(g - 1)
        paced_issue()
        post(31)
        if not s.fine: s.stamp(3)
        if s.dbg:
            A(f's_lshl_b32 s60, s2, 13\ns_lshl_b32 s61, s3, 11\ns_add_u32 s60, s60, s61\ns_add_u32 s60, s60, {hex(W_DBG + 0x200000)}')
            A(f'v_lshlrev_b32 v{vT}, 2, v0\nv_add_u32 v{vT}, s60, v{vT}')
            for i in range(8):
                A(f'global_store_dword v{vT}, v{vSc+i}, s[30:31] offset:{256*i}')
            A('s_waitcnt vmcnt(0)')
        def round_pairs():
            for i in range(4):
                A(f'v_cvt_pk_bf16_f32 v{vT+i}, v{vSc+2*i}, v{vSc+2*i+1}')
            for i in range(4):
                A(f'v_lshlrev_b32 v{vSc+2*i}, 16, v{vT+i}')
                A(f'v_and_b32 v{vSc+2*i+1}, 0xffff0000, v{vT+i}')
        round_pairs()
        for i in range(8): A(f'v_mul_f32 v{vSc+i}, {hex(SCALE)}, v{vSc+i}')
        round_pairs()
        paced_issue()
        m, t2 = vT + 4, vT + 5
        A(f'v_max3_f32 v{m}, v{vSc}, v{vSc+1}, v{vSc+2}')
        A(f'v_max3_f32 v{m}, v{m}, v{vSc+3}, v{vSc+4}')
        A(f'v_max3_f32 v{m}, v{m}, v{vSc+5}, v{vSc+6}')
        A(f'v_max_f32 v{m}, v{m}, v{vSc+7}')
        s.allreduce('max', m, t2)
        paced_issue()
        for i in range(8): A(f'v_sub_f32 v{vSc+i}, v{vSc+i}, v{m}')
        for i in range(8): A(f'v_mul_f32 v{vSc+i}, {hex(LOG2E)}, v{vSc+i}')
        for i in range(8): A(f'v_exp_f32 v{vSc+i}, v{vSc+i}')
        l = m + 1
        t3 = vT + 6
        A(f'v_add_f32 v{l}, v{vSc}, v{vSc+1}')
        A(f'v_add_f32 v{t3}, v{vSc+2}, v{vSc+3}')
        A(f'v_add_f32 v{l}, v{l}, v{vSc+4}')
        A(f'v_add_f32 v{t3}, v{t3}, v{vSc+5}')
        A(f'v_add_f32 v{l}, v{l}, v{vSc+6}')
        A(f'v_add_f32 v{t3}, v{t3}, v{vSc+7}')
        A(f'v_add_f32 v{l}, v{l}, v{t3}')
        for i in range(8): A(f'v_cvt_pk_bf16_f32 v{vSc+i}, v{vSc+i}, v{vSc+i}')
        s.allreduce('add', l, t3)
        A(f'v_cmp_eq_u32 vcc, -1, v{m}')
        A(f'v_mov_b32 v{t3}, 0x7fc00000')
        A(f'v_cndmask_b32 v{m}, v{m}, v{t3}, vcc')
        A(f's_lshl_b32 s60, s3, 3\nv_mov_b32 v{t3}, s60')
        A(f'ds_write_b64 v{t3}, v[{m}:{m+1}] offset:{L_ML}')
        def ybuild(c):
            g, t = (c - 128) >> 2, c & 3
            y = vYp + 4 * (c & 1)
            for d in range(4):
                A(f'v_and_b32_dpp v{y+d}, v{vSc+(g>>2)}, v{vM+d} row_newbcast:{4*t+(g&3)} row_mask:0xf bank_mask:0xf')
        ybuild(128)
        for c in range(128, 256):
            backlog = state['n'] - c
            if state['n'] < 256:
                if backlog <= W: paced_issue()
                elif c % 4 == 3: paced_issue()
            if c == 240:
                A(f's_lshl_b32 s60, s3, 2\nv_mov_b32 v{vT}, s60')
                A(f'ds_read_b32 v{vT+1}, v{vT} offset:{L_WF}')
            if c + 1 < 256: ybuild(c + 1)
            if c > state['n'] - 1 - W or state['n'] >= 256:
                allowed = state['n'] - 1 - c
                A(f's_waitcnt vmcnt({allowed})')
            r = RING + 4 * (c % B)
            y = vYp + 4 * (c & 1)
            cin = '0' if c == 128 else f'v[{vO}:{vO+3}]'
            A(f'v_mfma_f32_16x16x32_bf16 v[{vO}:{vO+3}], v[{r}:{r+3}], v[{y}:{y+3}], {cin}')
        if not s.fine: s.stamp(4)
        lp, ld = s.lab('wf'), s.lab('wfd')
        A('s_waitcnt lgkmcnt(0)')
        A(f'v_cmp_ne_u32 vcc, -1, v{vT+1}')
        A(f's_cbranch_vccnz {ld}')
        A('s_mov_b32 s61, 0x400000')
        A(f'{lp}:')
        A(f'ds_read_b32 v{vT+1}, v{vT} offset:{L_WF}')
        A('s_waitcnt lgkmcnt(0)')
        A(f'v_cmp_ne_u32 vcc, -1, v{vT+1}')
        A(f's_cbranch_vccnz {ld}')
        A('s_sleep 1')
        A('s_sub_u32 s61, s61, 1\ns_cmp_lg_u32 s61, 0')
        A(f's_cbranch_scc1 {lp}')
        A(f'{ld}:')
        A(f'v_and_b32 v{vT+2}, 3, v0\nv_lshlrev_b32 v{vT+2}, 5, v{vT+2}')
        A(f'v_lshrrev_b32 v{vT+3}, 4, v0\nv_lshlrev_b32 v{vT+3}, 3, v{vT+3}')
        A(f'v_bfe_u32 v{vT+4}, v0, 2, 1')
        A(f'v_add3_u32 v{vT+2}, v{vT+2}, v{vT+3}, v{vT+4}')
        A(f'v_lshlrev_b32 v{vT+2}, 2, v{vT+2}')
        A(f's_lshl_b32 s60, s3, 9\nv_add_u32 v{vT+2}, s60, v{vT+2}')
        for r in range(4): A(f'v_mul_f32 v{vO+r}, v{vO+r}, v{vT+1}')
        A('s_mov_b32 exec_lo, 0x00ff00ff\ns_mov_b32 exec_hi, 0x00ff00ff')
        for r in range(4): A(f'ds_write_b32 v{vT+2}, v{vO+r} offset:{L_OPART+8*r}')
        A('s_mov_b64 exec, -1')
        A('s_waitcnt lgkmcnt(0)')
        A('s_barrier')
        if not s.fine: s.stamp(5)
        s.stamp_store(7 if s.fine else 6)
        A('s_endpgm')

    def layernorm(s, xr, out_pairs, tb):
        A = s.A
        f = tb
        a, t = tb + 10, tb + 11
        for i in range(5):
            A(f'v_lshlrev_b32 v{f+2*i}, 16, v{xr+i}')
            A(f'v_and_b32 v{f+2*i+1}, 0xffff0000, v{xr+i}')
        A(f'v_add_f32 v{a}, v{f}, v{f+1}')
        for i in range(2, 10): A(f'v_add_f32 v{a}, v{a}, v{f+i}')
        s.allreduce('add', a, t)
        A(f'v_mul_f32 v{a}, 0x3acccccd, v{a}')
        v, d = tb + 12, tb + 13
        A(f'v_sub_f32 v{d}, v{f}, v{a}\nv_mul_f32 v{v}, v{d}, v{d}')
        for i in range(1, 10):
            A(f'v_sub_f32 v{d}, v{f+i}, v{a}\nv_fmac_f32 v{v}, v{d}, v{d}')
        s.allreduce('add', v, t)
        A(f'v_mul_f32 v{v}, 0x3acccccd, v{v}')
        s.bf16r(v, v)
        A(f'v_add_f32 v{v}, 0x3727c5ac, v{v}')
        s.bf16r(v, v)
        A(f'v_sqrt_f32 v{v}, v{v}')
        s.bf16r(v, v)
        s.bf16r(a, a)
        A(f'v_rcp_f32 v{t}, v{v}')
        for i in range(10):
            A(f'v_sub_f32 v{f+i}, v{f+i}, v{a}')
        for i in range(5):
            A(f'v_cvt_pk_bf16_f32 v{out_pairs+i}, v{f+2*i}, v{f+2*i+1}')
        for i in range(5):
            A(f'v_lshlrev_b32 v{f+2*i}, 16, v{out_pairs+i}')
            A(f'v_and_b32 v{f+2*i+1}, 0xffff0000, v{out_pairs+i}')
        for i in range(10):
            A(f'v_mul_f32 v{d}, v{f+i}, v{t}')
            A(f'v_fma_f32 v{f+i}, -v{d}, v{v}, v{f+i}')
            A(f'v_fma_f32 v{f+i}, v{f+i}, v{t}, v{d}')
        for i in range(5):
            A(f'v_cvt_pk_bf16_f32 v{out_pairs+i}, v{f+2*i}, v{f+2*i+1}')

    def poll_global_counter(s, off, target, vt):
        A = s.A
        lp, ld = s.lab('pc'), s.lab('pcd')
        A('s_mov_b32 s61, 0x100000')
        A(f'v_mov_b32 v{vt}, 0')
        A(f'{lp}:')
        A(f'global_load_dword v{vt+1}, v{vt}, s[28:29] offset:{off} sc1')
        A('s_waitcnt vmcnt(0)')
        A(f'v_cmp_le_u32 vcc, {target}, v{vt+1}') if target <= 64 else (A(f's_mov_b32 s62, {target}'), A(f'v_cmp_le_u32 vcc, s62, v{vt+1}'))
        A(f's_cbranch_vccnz {ld}')
        A(f's_sleep {s.psleep}')
        A('s_sub_u32 s61, s61, 1\ns_cmp_lg_u32 s61, 0')
        A(f's_cbranch_scc1 {lp}')
        A(f'{ld}:')

    def lds_flag_wait(s, off, vt):
        A = s.A
        lp, ld = s.lab('fl'), s.lab('fld')
        A(f'v_and_b32 v{vt}, 3, v0\nv_lshlrev_b32 v{vt}, 2, v{vt}')
        A('s_mov_b32 s61, 0x1000000')
        A(f'{lp}:')
        A(f'ds_read_b32 v{vt+1}, v{vt} offset:{off}')
        A('s_waitcnt lgkmcnt(0)')
        A(f'v_cmp_ne_u32 vcc, s59, v{vt+1}')
        A(f's_cbranch_vccz {ld}')
        A('s_sub_u32 s61, s61, 1\ns_cmp_lg_u32 s61, 0')
        A(f's_cbranch_scc1 {lp}')
        A(f'{ld}:')

    def tag_poll(s, n, reg, loads, sleep=0):
        A = s.A
        lp, ld = s.lab('tp'), s.lab('tpd')
        A('s_mov_b32 s61, 0x100000')
        A(f'{lp}:')
        for l in loads: A(l)
        A('s_waitcnt vmcnt(0)')
        tags = [reg + 4 * i + k for i in range(n) for k in (1, 3)]
        t = reg + 4 * n
        A(f'v_min_u32 v{t}, v{tags[0]}, v{tags[1]}\nv_max_u32 v{t+1}, v{tags[0]}, v{tags[1]}')
        for i in range(2, len(tags), 2):
            A(f'v_min3_u32 v{t}, v{t}, v{tags[i]}, v{tags[i+1]}')
            A(f'v_max3_u32 v{t+1}, v{t+1}, v{tags[i]}, v{tags[i+1]}')
        A(f'v_cmp_ne_u32 vcc, s58, v{t}')
        A(f'v_cmp_ne_u32 s[92:93], s58, v{t+1}')
        A('s_or_b64 vcc, vcc, s[92:93]')
        A(f's_cbranch_vccz {ld}')
        if sleep: A(f's_sleep {sleep}')
        A('s_sub_u32 s61, s61, 1\ns_cmp_lg_u32 s61, 0')
        A(f's_cbranch_scc1 {lp}')
        A(f'{ld}:')

    def helper(s):
        A = s.A
        DATA = 96
        vM = 4
        A('s_sub_u32 s63, s3, 4')
        A('s_waitcnt lgkmcnt(0)')
        s.srd(32, 14, 640 * 4096 * 2)
        s.srd(40, 8, 5120)
        s.srd(44, 30, WS_SIZE)
        A('s_mul_i32 s60, s63, 1280')
        A('v_lshlrev_b32 v1, 2, v0')
        for t in range(5):
            A(f'buffer_load_dword v{16+t}, v1, s[40:43], s60 offen offset:{256*t} {s.pol_x}')
        A(f'v_mov_b32 v3, 0\ns_mov_b32 s60, {hex(W_NONCE)}')
        A(f'buffer_load_dword v21, v3, s[44:47], s60 offen {s.pol_n}')
        A('v_lshrrev_b32 v2, 4, v0\nv_lshlrev_b32 v2, 13, v2\nv_and_b32 v3, 15, v0\nv_lshlrev_b32 v3, 4, v3\nv_add_u32 v2, v2, v3')
        A('s_lshl_b32 s57, s65, 1\ns_add_u32 s57, s57, s66')
        A('s_mul_i32 s56, s57, 80\ns_mul_i32 s60, s63, 20\ns_add_u32 s56, s56, s60')
        A('s_lshl_b32 s60, s56, 13\ns_lshl_b32 s61, s64, 8\ns_add_u32 s60, s60, s61')
        for u in range(5):
            if 'wq' not in s.skip: A(f'buffer_load_dwordx4 v[{DATA+4*u}:{DATA+4*u+3}], v2, s[32:35], s60 offen {s.pol_w}')
            else: A(f'buffer_load_dword v{DATA+4*u}, v1, s[40:43], 0 offen')
            if u < 4: A('s_add_u32 s60, s60, 0x8000')
        s.srd(36, 16, 4096 * 640 * 2)
        A('v_and_b32 v9, 15, v0')
        s.masks_Md(vM, 9, 10, 11, mod8=True)
        A('s_waitcnt vmcnt(5)')
        if s.fine2: s.stamp(1)
        A('v_readfirstlane_b32 s58, v21')
        A('s_add_u32 s58, s58, 1')
        A('s_mov_b32 s59, 1')
        s.layernorm(16, 24, 32)
        A(f's_mul_i32 s60, s63, 1280\nv_add_u32 v9, s60, v1')
        for t in range(5):
            A(f'ds_write_b32 v9, v{24+t} offset:{L_XN + 256*t}')
        A(f's_lshl_b32 s60, s63, 2\nv_mov_b32 v9, s60\nv_mov_b32 v10, s59')
        A(f'ds_write_b32 v9, v10 offset:{L_FLAG}')
        A('v_bfe_u32 v12, v0, 3, 1\nv_mul_u32_u24 v12, 1280, v12\nv_lshrrev_b32 v13, 4, v0\nv_lshlrev_b32 v13, 1, v13\nv_add_u32 v12, v12, v13')
        A('s_lshl_b32 s60, s56, 1\nv_add_u32 v12, s60, v12')
        if s.fine2: s.stamp(2)
        s.lds_flag_wait(L_FLAG, 14)
        if s.fine2: s.stamp(3)
        for bp in range(2):
            for u in range(5):
                A(f'ds_read_u16 v{40+5*bp+u}, v12 offset:{L_XN + bp*2560 + u*8}')
        A('v_bfe_u32 v9, v0, 3, 1\nv_lshlrev_b32 v9, 9, v9\nv_lshrrev_b32 v10, 4, v0\nv_lshlrev_b32 v10, 7, v10\nv_and_b32 v11, 7, v0\nv_lshlrev_b32 v11, 2, v11\nv_add3_u32 v9, v9, v10, v11')
        A('s_lshl_b32 s60, s63, 11\nv_add_u32 v9, s60, v9')
        A('s_waitcnt lgkmcnt(0)')
        for k in range(10): A(f'v_lshl_or_b32 v{40+k}, v{40+k}, 16, v{40+k}')
        A('s_waitcnt vmcnt(0)')
        if s.fine2: s.stamp(4)
        for u in range(5):
            for bp in range(2):
                y = 60 + 4 * ((2 * u + bp) & 3)
                for d in range(4): A(f'v_and_b32 v{y+d}, v{40+5*bp+u}, v{vM+d}')
                a = 52 + 4 * bp
                A(f'v_mfma_f32_16x16x32_bf16 v[{a}:{a+3}], v[{DATA+4*u}:{DATA+4*u+3}], v[{y}:{y+3}], ' + ('0' if u == 0 else f'v[{a}:{a+3}]'))
        for bp in range(2):
            for r in range(4):
                A(f'ds_write_b32 v9, v{52+4*bp+r} offset:{L_QP + bp*1024 + r*32}')
        A(f's_lshl_b32 s60, s63, 2\nv_mov_b32 v10, s60\nv_mov_b32 v11, s59')
        A(f'ds_write_b32 v10, v11 offset:{L_FLAG + 16}')
        A('s_lshl_b32 s60, s64, 2\ns_add_u32 s60, s60, s63\ns_lshl_b32 s60, s60, 13\ns_lshl_b32 s62, s57, 10\ns_add_u32 s60, s60, s62')
        A(f's_add_u32 s62, s60, {hex(W_QIN)}')
        A('v_lshlrev_b32 v13, 4, v0')
        A('s_lshl_b32 s60, s63, 9\nv_lshlrev_b32 v12, 3, v0\nv_add_u32 v12, s60, v12')
        s.lds_flag_wait(L_FLAG + 16, 14)
        for w in range(4):
            A(f'ds_read_b64 v[{16+2*w}:{17+2*w}], v12 offset:{L_QP + 2048*w}')
        A('s_waitcnt lgkmcnt(0)')
        A('v_add_f32 v16, v16, v18\nv_add_f32 v17, v17, v19\nv_add_f32 v20, v20, v22\nv_add_f32 v21, v21, v23')
        A('v_add_f32 v24, v16, v20\nv_add_f32 v26, v17, v21\nv_mov_b32 v25, s58\nv_mov_b32 v27, s58')
        if 'qs' not in s.skip: A(f'buffer_store_dwordx4 v[24:27], v13, s[44:47], s62 offen {s.pol_hs}')
        if s.fine2: s.stamp(5)
        lq = s.lab('noq')
        A('s_cmp_lg_u32 s63, 0')
        A(f's_cbranch_scc1 {lq}')
        A(f's_lshl_b32 s60, s64, 2\ns_add_u32 s60, s60, s65\ns_lshl_b32 s60, s60, 13\ns_add_u32 s60, s60, {hex(W_QIN)}\ns_add_u32 s62, s60, 4096')
        if 'qg' not in s.skip: s.tag_poll(8, 16, [f'buffer_load_dwordx4 v[{16+4*t}:{19+4*t}], v13, s[44:47], {"s60" if t < 4 else "s62"} offen offset:{(t%4)*1024} {s.pol_hl}' for t in range(8)], sleep=s.qsleep)
        for k in (0, 2):
            A(f'v_add_f32 v{16+k}, v{16+k}, v{20+k}\nv_add_f32 v{24+k}, v{24+k}, v{28+k}\nv_add_f32 v{32+k}, v{32+k}, v{36+k}\nv_add_f32 v{40+k}, v{40+k}, v{44+k}')
            A(f'v_add_f32 v{16+k}, v{16+k}, v{24+k}\nv_add_f32 v{32+k}, v{32+k}, v{40+k}\nv_add_f32 v{16+k}, v{16+k}, v{32+k}')
        A('v_cvt_pk_bf16_f32 v16, v16, v18')
        A(f'ds_write_b32 v1, v16 offset:{L_QB}')
        if s.fine2:
            A('s_waitcnt lgkmcnt(0)')
            s.stamp(6)
            A('s_waitcnt lgkmcnt(0)')
            A('s_sub_u32 s83, 0x100000, s61')
            A('s_mov_b32 s97, s83')
        A(f'{lq}:')
        A('s_waitcnt lgkmcnt(0)')
        if not s.fine2: s.stamp(1)
        A('s_barrier')
        lnc = s.lab('noclear')
        A('s_cmp_lg_u32 s63, 3')
        A(f's_cbranch_scc1 {lnc}')
        A('v_mov_b32 v12, -1\nv_mov_b32 v13, -1\nv_mov_b32 v14, -1\nv_mov_b32 v15, -1')
        A(f's_lshl_b32 s60, s2, 7\ns_add_u32 s60, s60, {hex(W_MLIN)}')
        A('v_lshlrev_b32 v9, 4, v0')
        A('s_mov_b64 exec, 1')
        A(f'buffer_store_dwordx2 v[12:13], v9, s[44:47], s60 offen {s.pol_hs}')
        A('s_mov_b64 exec, -1')
        lnc2 = s.lab('nocons')
        A('s_cmp_ge_u32 s67, 20')
        A(f's_cbranch_scc1 {lnc2}')
        A('s_mul_i32 s60, s65, 20\ns_add_u32 s60, s60, s67\ns_lshl_b32 s60, s60, 13')
        for t in range(8):
            A(f'buffer_store_dwordx4 v[12:15], v9, s[44:47], s60 offen offset:{(t%4)*1024} {s.pol_hs}')
            if t == 3: A('s_add_u32 s60, s60, 4096')
        A(f'{lnc2}:')
        A('s_waitcnt vmcnt(0)')
        A('v_mov_b32 v9, 0\nv_mov_b32 v10, 1')
        A('s_mov_b64 exec, 1')
        A('global_atomic_add v9, v10, s[28:29] sc1')
        A('s_mov_b64 exec, -1')
        A(f'{lnc}:')
        l_wo = s.lab('wo')
        A('s_cmp_lg_u32 s63, 0')
        A(f's_cbranch_scc1 {l_wo}')
        s.ffn(l_wo)
        A(f'{l_wo}:')
        A('v_lshrrev_b32 v2, 4, v0\nv_mul_u32_u24 v2, 1280, v2\nv_and_b32 v3, 15, v0\nv_lshlrev_b32 v3, 4, v3\nv_add_u32 v2, v2, v3')
        A('s_lshl_b32 s60, s64, 7\ns_lshl_b32 s61, s63, 5\ns_add_u32 s60, s60, s61\ns_mul_i32 s60, s60, 1280')
        n = 0
        for u in range(8):
            for cb in range(5):
                if n >= s.WO: A(f's_waitcnt vmcnt({s.WO-1})')
                r = DATA + 4 * (u * 5 + cb)
                if 'wo' not in s.skip: A(f'buffer_load_dwordx4 v[{r}:{r+3}], v2, s[36:39], s60 offen offset:{cb*256} {s.pol_w}')
                n += 1
            if u < 7: A('s_add_u32 s60, s60, 5120')
        if not s.fine2: s.stamp(2)
        l_tail, l_w7 = s.lab('tail'), s.lab('w7')
        A('s_cmp_eq_u32 s63, 3')
        A(f's_cbranch_scc1 {l_w7}')
        A('s_cmp_lg_u32 s63, 1')
        A(f's_cbranch_scc1 {l_tail}')
        s.mlx()
        A(f's_branch {l_tail}')
        A(f'{l_w7}:')
        s.consumer_prep(l_tail)
        A(f'{l_tail}:')
        s.tail()

    def ffn(s, l_skip):
        A = s.A
        DATA = 96
        if 'ffn' in s.skip: return
        A('s_cmp_lg_u32 s66, 0')
        A(f's_cbranch_scc1 {l_skip}')
        A('s_and_b32 s54, s2, 7\ns_lshl_b32 s61, s65, 3\ns_add_u32 s54, s54, s61')
        A('s_cmp_ge_u32 s54, 27')
        A(f's_cbranch_scc1 {l_skip}')
        A('s_lshr_b32 s55, s2, 3\ns_and_b32 s55, s55, 3')
        A('s_lshl_b32 s68, s54, 2\ns_add_u32 s68, s68, s55')
        s.srd(48, 20, 640 * 1728 * 2)
        A('s_mov_b32 s72, s22\ns_and_b32 s73, s23, 0xffff\ns_mov_b32 s74, %s\ns_mov_b32 s75, 0x20000' % hex(640 * 1728 * 2) if not s.stamps else
          's_mov_b32 s84, s22\ns_and_b32 s85, s23, 0xffff\ns_mov_b32 s86, %s\ns_mov_b32 s87, 0x20000' % hex(640 * 1728 * 2))
        su = 72 if not s.stamps else 84
        A('s_mov_b32 s76, s24\ns_and_b32 s77, s25, 0xffff\ns_mov_b32 s78, %s\ns_mov_b32 s79, 0x20000' % hex(1728 * 640 * 2) if not s.stamps else
          's_mov_b32 s88, s24\ns_and_b32 s89, s25, 0xffff\ns_mov_b32 s90, %s\ns_mov_b32 s91, 0x20000' % hex(1728 * 640 * 2))
        sd = 76 if not s.stamps else 88
        A('v_lshrrev_b32 v9, 3, v0\nv_mul_u32_u24 v9, 3456, v9\nv_and_b32 v10, 7, v0\nv_lshlrev_b32 v10, 4, v10\nv_add_u32 v9, v9, v10')
        A(f's_mul_i32 s60, s55, {160*3456}\ns_lshl_b32 s61, s54, 7\ns_add_u32 s60, s60, s61')
        n = 0
        for t in range(20):
            for m, (srd, base) in enumerate(((f's[48:51]', L_WG), (f's[{su}:{su+3}]', L_WU))):
                if n >= s.WF: A(f's_waitcnt vmcnt({s.WF-1})')
                A(f's_mov_b32 m0, {base + t*1024}')
                A(f'buffer_load_dwordx4 v9, {srd}, s60 offen {s.pol_w} lds')
                n += 1
            if t < 19: A(f's_add_u32 s60, s60, {8*3456}')
        A('v_lshrrev_b32 v2, 4, v0\nv_mul_u32_u24 v2, 1280, v2\nv_and_b32 v3, 15, v0\nv_lshlrev_b32 v3, 4, v3\nv_add_u32 v2, v2, v3')
        A('s_mul_i32 s62, s68, 20480')
        for u in range(4):
            for cb in range(5):
                A(f's_waitcnt vmcnt({s.WF-1})')
                r = DATA + 4 * (u * 5 + cb)
                A(f'buffer_load_dwordx4 v[{r}:{r+3}], v2, s[{sd}:{sd+3}], s62 offen offset:{cb*256} {s.pol_w}')
            if u < 3: A('s_add_u32 s62, s62, 5120')
        A('v_and_b32 v9, 3, v0\nv_mul_u32_u24 v9, 1280, v9\nv_lshrrev_b32 v10, 4, v0\nv_lshlrev_b32 v11, 3, v10\nv_add_u32 v9, v9, v11')
        A('s_mul_i32 s60, s55, 320\nv_add_u32 v9, s60, v9')
        A('v_lshlrev_b32 v10, 2, v10\nv_bfe_u32 v11, v0, 2, 2\nv_add_u32 v10, v10, v11\nv_lshlrev_b32 v10, 7, v10\nv_and_b32 v11, 3, v0\nv_lshlrev_b32 v11, 3, v11\nv_add_u32 v10, v10, v11')
        A(f'v_add_u32 v8, {L_WU - L_WG}, v10')
        A(f's_waitcnt vmcnt(20)')
        ag, au = 12, 28
        for ks in range(5):
            o = 44
            A(f'ds_read_b64 v[{o}:{o+1}], v9 offset:{L_XN + 64*ks}')
            A(f'ds_read_b64 v[{o+2}:{o+3}], v9 offset:{L_XN + 64*ks + 32}')
            for ct in range(4):
                q = 48 + 8 * ct
                A(f'ds_read_b64_tr_b16 v[{q}:{q+1}], v10 offset:{L_WG + 4096*ks + 32*ct}')
                A(f'ds_read_b64_tr_b16 v[{q+2}:{q+3}], v10 offset:{L_WG + 4096*ks + 32*ct + 2048}')
                A(f'ds_read_b64_tr_b16 v[{q+4}:{q+5}], v8 offset:{L_WG + 4096*ks + 32*ct}')
                A(f'ds_read_b64_tr_b16 v[{q+6}:{q+7}], v8 offset:{L_WG + 4096*ks + 32*ct + 2048}')
            A('s_waitcnt lgkmcnt(0)')
            for ct in range(4):
                q = 48 + 8 * ct
                A(f'v_mfma_f32_16x16x32_bf16 v[{ag+4*ct}:{ag+4*ct+3}], v[{o}:{o+3}], v[{q}:{q+3}], ' + ('0' if ks == 0 else f'v[{ag+4*ct}:{ag+4*ct+3}]'))
                A(f'v_mfma_f32_16x16x32_bf16 v[{au+4*ct}:{au+4*ct+3}], v[{o}:{o+3}], v[{q+4}:{q+7}], ' + ('0' if ks == 0 else f'v[{au+4*ct}:{au+4*ct+3}]'))
        A('s_mov_b32 s60, 0xffff0000\ns_mov_b32 s61, 0')
        A('s_mov_b32 s82, 0\ns_mov_b32 s83, 0xffff' if not s.stamps else 's_mov_b32 s92, 0\ns_mov_b32 s93, 0xffff')
        m2 = 's[82:83]' if not s.stamps else 's[92:93]'
        A('s_mov_b32 s94, 0\ns_mov_b32 s95, 0xffff0000')
        A('v_lshlrev_b32 v9, 4, v0')
        A(f's_lshl_b32 s62, s54, 14\ns_lshl_b32 s69, s55, 10\ns_add_u32 s62, s62, s69\ns_add_u32 s62, s62, {hex(W_FIN)}')
        for ct in range(4):
            o = 48 + 4 * ct
            for base, dst in ((ag, o), (au, o + 2)):
                a = base + 4 * ct
                A(f'v_cndmask_b32 v{dst}, v{a}, v{a+1}, s[60:61]')
                A(f'v_cndmask_b32 v{dst}, v{dst}, v{a+2}, {m2}')
                A(f'v_cndmask_b32 v{dst}, v{dst}, v{a+3}, s[94:95]')
            A(f'v_mov_b32 v{o+1}, s58\nv_mov_b32 v{o+3}, s58')
            A(f'buffer_store_dwordx4 v[{o}:{o+3}], v9, s[44:47], s62 offen {s.pol_hs}')
            if ct < 3: A('s_add_u32 s62, s62, 4096')
        A(f's_lshl_b32 s60, s68, 12\ns_add_u32 s60, s60, {hex(W_FIN)}')
        s.tag_poll(4, 12, [f'buffer_load_dwordx4 v[{12+4*t}:{15+4*t}], v9, s[44:47], s60 offen offset:{t*1024} {s.pol_hl}' for t in range(4)], sleep=2)
        A('v_add_f32 v12, v12, v16\nv_add_f32 v20, v20, v24\nv_add_f32 v12, v12, v20')
        A('v_add_f32 v14, v14, v18\nv_add_f32 v22, v22, v26\nv_add_f32 v14, v14, v22')
        g_, u_, t0, t1 = 12, 14, 20, 21
        s.bf16r(g_, g_)
        s.bf16r(u_, u_)
        A(f'v_mul_f32 v{t0}, v{g_}, v{g_}\nv_mul_f32 v{t0}, v{t0}, v{g_}')
        A(f'v_mov_b32 v{t1}, 0x3d372713\nv_fma_f32 v{t0}, v{t0}, v{t1}, v{g_}')
        A(f'v_mul_f32 v{t0}, 0x3f4c422a, v{t0}')
        A(f'v_mul_f32 v{t0}, 0x4038aa3b, v{t0}')
        A(f'v_exp_f32 v{t0}, v{t0}')
        A(f'v_add_f32 v{t0}, 1.0, v{t0}')
        A(f'v_rcp_f32 v{t0}, v{t0}')
        A(f'v_fma_f32 v{t0}, v{t0}, -2.0, 1.0')
        A(f'v_add_f32 v{t0}, 1.0, v{t0}')
        A(f'v_mul_f32 v{t1}, 0.5, v{g_}')
        A(f'v_mul_f32 v{t0}, v{t1}, v{t0}')
        s.bf16r(t0, t0)
        A(f'v_mul_f32 v{t0}, v{t0}, v{u_}')
        A(f'v_cvt_pk_bf16_f32 v{g_}, v{t0}, v{t0}')
        A('v_lshrrev_b32 v9, 4, v0\nv_lshlrev_b32 v9, 6, v9\nv_and_b32 v10, 3, v0\nv_lshlrev_b32 v10, 4, v10\nv_bfe_u32 v11, v0, 2, 2\nv_lshlrev_b32 v11, 2, v11\nv_add3_u32 v9, v9, v10, v11')
        A(f'ds_write_b32 v9, v{g_} offset:{L_HT}')
        if s.dbg:
            A(f's_lshl_b32 s60, s68, 8\ns_add_u32 s60, s60, {hex(W_DBG + 0x500000)}')
            A('v_lshlrev_b32 v10, 2, v0\nv_add_u32 v10, s60, v10')
            A(f'global_store_dword v10, v{g_}, s[30:31]')
        A('v_bfe_u32 v9, v0, 3, 1\nv_lshlrev_b32 v9, 2, v9\nv_lshrrev_b32 v10, 4, v0\nv_add_u32 v9, v9, v10\nv_lshlrev_b32 v9, 4, v9')
        A('s_waitcnt lgkmcnt(0)')
        A(f'ds_read_b128 v[12:15], v9 offset:{L_HT}')
        A(f'ds_read_b128 v[16:19], v9 offset:{L_HT + 128}')
        A('v_bfe_u32 v9, v0, 3, 1\nv_mul_u32_u24 v9, 640, v9\nv_lshrrev_b32 v10, 4, v0\nv_lshlrev_b32 v10, 5, v10\nv_and_b32 v11, 7, v0\nv_add3_u32 v9, v9, v10, v11\nv_lshlrev_b32 v9, 2, v9')
        A('s_waitcnt vmcnt(0) lgkmcnt(0)')
        for u in range(4):
            for bp in range(2):
                y = 60 + 4 * ((2 * u + bp) & 3)
                for d in range(4): A(f'v_and_b32 v{y+d}, v{12+4*bp+u}, v{4+d}')
                for cb in range(5):
                    a = 20 + 8 * cb + 4 * bp
                    r = DATA + 4 * (u * 5 + cb)
                    A(f'v_mfma_f32_16x16x32_bf16 v[{a}:{a+3}], v[{r}:{r+3}], v[{y}:{y+3}], ' + ('0' if u == 0 else f'v[{a}:{a+3}]'))
        for cb in range(5):
            for bp in range(2):
                for r in range(4):
                    A(f'ds_write_b32 v9, v{20+8*cb+4*bp+r} offset:{L_YPART + bp*5120 + cb*512 + r*32}')
        A('s_waitcnt lgkmcnt(0)')
        A('v_lshlrev_b32 v9, 4, v0')
        A(f's_mul_i32 s60, s68, 10240\ns_add_u32 s60, s60, {hex(W_FPART)}')
        for t in range(10):
            A(f'ds_read_b128 v[{12+4*t}:{15+4*t}], v9 offset:{L_YPART + 1024*t}')
        A('s_waitcnt lgkmcnt(0)')
        for t in range(10):
            A(f'buffer_store_dwordx4 v[{12+4*t}:{15+4*t}], v9, s[44:47], s60 offen offset:{(t%4)*1024} {s.pol_hs}')
            if t % 4 == 3: A('s_add_u32 s60, s60, 4096')
        A('s_waitcnt vmcnt(0)')
        A('v_mov_b32 v9, 0\nv_mov_b32 v10, 1')
        A('s_mov_b64 exec, 1')
        A('global_atomic_add v9, v10, s[28:29] offset:128 sc1')
        A('s_mov_b64 exec, -1')

    def mlx(s):
        A = s.A
        if 'mlx' in s.skip:
            A('v_mov_b32 v20, 1.0\nv_and_b32 v9, 3, v0\nv_lshlrev_b32 v9, 2, v9')
            A(f'ds_write_b32 v9, v20 offset:{L_WF}')
            A('s_waitcnt lgkmcnt(0)')
            return
        lp, ld = s.lab('ml'), s.lab('mld')
        A(f'v_and_b32 v9, 3, v0\nv_lshlrev_b32 v9, 3, v9')
        A('s_mov_b32 s61, 0x400000')
        A(f'{lp}:')
        A(f'ds_read_b64 v[10:11], v9 offset:{L_ML}')
        A('s_waitcnt lgkmcnt(0)')
        A('v_cmp_eq_u32 vcc, -1, v10')
        A(f's_cbranch_vccz {ld}')
        A('s_sleep 16')
        A('s_sub_u32 s61, s61, 1\ns_cmp_lg_u32 s61, 0')
        A(f's_cbranch_scc1 {lp}')
        A(f'{ld}:')
        A('v_mov_b32 v12, v10')
        A('v_max_f32_dpp v12, v12, v12 quad_perm:[1,0,3,2] row_mask:0xf bank_mask:0xf')
        A('v_max_f32_dpp v12, v12, v12 quad_perm:[2,3,0,1] row_mask:0xf bank_mask:0xf')
        A(f'v_sub_f32 v13, v10, v12\nv_mul_f32 v13, {hex(LOG2E)}, v13\nv_exp_f32 v13, v13')
        A('v_mul_f32 v13, v13, v11')
        A('v_add_f32_dpp v13, v13, v13 quad_perm:[1,0,3,2] row_mask:0xf bank_mask:0xf')
        A('v_add_f32_dpp v13, v13, v13 quad_perm:[2,3,0,1] row_mask:0xf bank_mask:0xf')
        A('v_mov_b32 v14, 0x7fc00000')
        A('v_cmp_eq_u32 vcc, -1, v12\nv_cndmask_b32 v12, v12, v14, vcc')
        A('v_cmp_eq_u32 vcc, -1, v13\nv_cndmask_b32 v13, v13, v14, vcc')
        s.poll_global_counter(0, 256, 16)
        lnn = s.lab('nononce')
        A('s_cmp_lg_u32 s2, 0')
        A(f's_cbranch_scc1 {lnn}')
        A(f'v_mov_b32 v16, 0\nv_mov_b32 v17, s58\ns_mov_b32 s60, {hex(W_NONCE)}')
        A('s_mov_b64 exec, 1')
        A('buffer_store_dword v17, v16, s[44:47], s60 offen sc1')
        A('s_mov_b64 exec, -1')
        A(f'{lnn}:')
        A(f's_xor_b32 s60, s2, 128\ns_lshl_b32 s60, s60, 7\ns_add_u32 s60, s60, {hex(W_MLIN)}')
        A('v_mov_b32 v9, 0')
        A('s_mov_b64 exec, 1')
        A(f'buffer_store_dwordx2 v[12:13], v9, s[44:47], s60 offen {s.pol_hs}')
        A('s_mov_b64 exec, -1')
        A(f's_lshl_b32 s60, s2, 7\ns_add_u32 s60, s60, {hex(W_MLIN)}')
        lp, ld = s.lab('mp'), s.lab('mpd')
        A('s_mov_b32 s61, 0x100000')
        A(f'{lp}:')
        A(f'buffer_load_dwordx2 v[14:15], v9, s[44:47], s60 offen {s.pol_hl}')
        A('s_waitcnt vmcnt(0)')
        A('v_cmp_eq_u32 vcc, -1, v14\nv_cmp_eq_u32 s[92:93], -1, v15')
        A('s_or_b64 vcc, vcc, s[92:93]')
        A(f's_cbranch_vccz {ld}')
        A('s_sleep 8')
        A('s_sub_u32 s61, s61, 1\ns_cmp_lg_u32 s61, 0')
        A(f's_cbranch_scc1 {lp}')
        A(f'{ld}:')
        A('v_max_f32 v16, v12, v14')
        A(f'v_sub_f32 v17, v12, v16\nv_mul_f32 v17, {hex(LOG2E)}, v17\nv_exp_f32 v17, v17')
        A(f'v_sub_f32 v18, v14, v16\nv_mul_f32 v18, {hex(LOG2E)}, v18\nv_exp_f32 v18, v18')
        A('v_mul_f32 v17, v17, v13\nv_fma_f32 v17, v18, v15, v17')
        A(f'v_sub_f32 v18, v10, v16\nv_mul_f32 v18, {hex(LOG2E)}, v18\nv_exp_f32 v18, v18')
        A('v_rcp_f32 v19, v17')
        A('v_mul_f32 v20, v18, v19\nv_fma_f32 v21, -v20, v17, v18\nv_fma_f32 v20, v21, v19, v20')
        A('v_mov_b32 v14, 0x7fc00000\nv_cmp_eq_u32 vcc, -1, v20\nv_cndmask_b32 v20, v20, v14, vcc')
        A('v_and_b32 v9, 3, v0\nv_lshlrev_b32 v9, 2, v9')
        A(f'ds_write_b32 v9, v20 offset:{L_WF}')
        A('s_waitcnt lgkmcnt(0)')

    def consumer_prep(s, l_tail):
        A = s.A
        A('s_cmp_ge_u32 s67, 20')
        A(f's_cbranch_scc1 {l_tail}')
        if s.cons_wait:
            lp, ld = s.lab('cw'), s.lab('cwd')
            A(f'v_and_b32 v9, 3, v0\nv_lshlrev_b32 v9, 3, v9')
            A('s_mov_b32 s61, 0x400000')
            A(f'{lp}:')
            A(f'ds_read_b32 v10, v9 offset:{L_ML}')
            A('s_waitcnt lgkmcnt(0)')
            A('v_cmp_eq_u32 vcc, -1, v10')
            A(f's_cbranch_vccz {ld}')
            A('s_sleep 16')
            A('s_sub_u32 s61, s61, 1\ns_cmp_lg_u32 s61, 0')
            A(f's_cbranch_scc1 {lp}')
            A(f'{ld}:')
        if 'ffn' not in s.skip: s.poll_global_counter(128, 108, 16)
        A(f's_add_u32 s48, s30, {hex(W_FPART)}\ns_addc_u32 s49, s31, 0\ns_and_b32 s49, s49, 0xffff\ns_mov_b32 s50, {108*10240}\ns_mov_b32 s51, 0x20000')
        A('v_lshrrev_b32 v9, 3, v0\nv_mul_u32_u24 v9, 10240, v9\nv_and_b32 v10, 7, v0\nv_lshlrev_b32 v10, 4, v10\nv_add_u32 v9, v9, v10')
        A('s_mul_i32 s60, s65, 2560\ns_lshl_b32 s61, s67, 7\ns_add_u32 s60, s60, s61')
        for r in range(4): A(f'v_mov_b32 v{16+4*13+r}, 0')
        for t in range(14):
            if t == 13: A('s_mov_b64 exec, 0xffffffff')
            A(f'buffer_load_dwordx4 v[{16+4*t}:{19+4*t}], v9, s[48:51], s60 offen {s.pol_hl}')
            if t < 13: A(f's_add_u32 s60, s60, {8*10240}')
        A('s_mov_b64 exec, -1')
        A('s_mul_i32 s60, s65, 1280\ns_lshl_b32 s61, s67, 6\ns_add_u32 s60, s60, s61')
        A('v_and_b32 v10, 7, v0\nv_lshlrev_b32 v10, 3, v10')
        A(f'buffer_load_dwordx2 v[12:13], v10, s[40:43], s60 offen {s.pol_x}')
        A('s_waitcnt vmcnt(0)')
        for t in range(1, 14):
            for r in range(4): A(f'v_add_f32 v{16+r}, v{16+r}, v{16+4*t+r}')
        for r in range(4): s.reduce_hi3(16 + r, 20)
        for r in range(4):
            f = 16 + r
            s.bf16r(f, f)
            A(f'v_mul_f32 v20, 0xbfb8aa3b, v{f}\nv_exp_f32 v20, v20\nv_add_f32 v20, 1.0, v20\nv_rcp_f32 v21, v20')
            A(f'v_mul_f32 v22, v{f}, v21\nv_fma_f32 v23, -v22, v20, v{f}\nv_fma_f32 v23, v23, v21, v22')
            A(f'v_cmp_class_f32 vcc, v20, 0x200' if False else 'v_cmp_u_f32 vcc, v23, v23')
            A(f'v_cndmask_b32 v22, v23, v22, vcc')
            s.bf16r(88 + r, 22)
        A('v_lshlrev_b32 v92, 16, v12\nv_and_b32 v93, 0xffff0000, v12\nv_lshlrev_b32 v94, 16, v13\nv_and_b32 v95, 0xffff0000, v13')

    def tail(s):
        A = s.A
        DATA = 96
        vM = 4
        A('v_lshrrev_b32 v9, 4, v0\nv_lshlrev_b32 v9, 7, v9\ns_lshl_b32 s60, s63, 5\nv_add_u32 v9, s60, v9')
        A('v_lshrrev_b32 v10, 4, v0\nv_lshlrev_b32 v10, 7, v10\nv_and_b32 v11, 15, v0\nv_lshlrev_b32 v11, 2, v11\nv_add_u32 v10, v10, v11')
        A('s_mul_i32 s60, s63, 2560\nv_add_u32 v10, s60, v10')
        A('s_waitcnt vmcnt(0)')
        if not s.fine2: s.stamp(3)
        A('s_barrier')
        if not s.fine2: s.stamp(4)
        for w in range(4):
            A(f'ds_read_b128 v[{16+8*w}:{19+8*w}], v9 offset:{L_OPART + 512*w}')
            A(f'ds_read_b128 v[{20+8*w}:{23+8*w}], v9 offset:{L_OPART + 512*w + 16}')
        A('s_waitcnt lgkmcnt(0)')
        for u in range(8):
            A(f'v_add_f32 v{16+u}, v{16+u}, v{24+u}')
            A(f'v_add_f32 v{32+u}, v{32+u}, v{40+u}')
            A(f'v_add_f32 v{16+u}, v{16+u}, v{32+u}')
            A(f'v_cvt_pk_bf16_f32 v{16+u}, v{16+u}, v{16+u}')
        if s.dbg:
            A(f's_lshl_b32 s60, s2, 13\ns_lshl_b32 s61, s63, 11\ns_add_u32 s60, s60, s61\ns_add_u32 s60, s60, {hex(W_DBG + 0x600000)}')
            A('v_lshlrev_b32 v48, 5, v0\nv_add_u32 v48, s60, v48')
            A('global_store_dwordx4 v48, v[16:19], s[30:31]\nglobal_store_dwordx4 v48, v[20:23], s[30:31] offset:16')
            A('s_waitcnt vmcnt(0)')
        acc = 48
        for u in range(8):
            y = 68 + 4 * (u & 1)
            for d in range(4): A(f'v_and_b32 v{y+d}, v{16+u}, v{vM+d}')
            for cb in range(5):
                r = DATA + 4 * (u * 5 + cb)
                a = acc + 4 * cb
                A(f'v_mfma_f32_16x16x32_bf16 v[{a}:{a+3}], v[{r}:{r+3}], v[{y}:{y+3}], ' + ('0' if u == 0 else f'v[{a}:{a+3}]'))
        A('s_mov_b32 exec_lo, 0x00ff00ff\ns_mov_b32 exec_hi, 0x00ff00ff')
        for cb in range(5):
            for r in range(4):
                A(f'ds_write_b32 v10, v{acc+4*cb+r} offset:{L_YPART + 512*cb + 32*r}')
        A('s_mov_b64 exec, -1')
        A('s_waitcnt lgkmcnt(0)')
        A('s_barrier')
        if not s.fine2: s.stamp(5)
        l_fin, l_done = s.lab('fin'), s.lab('done')
        A('s_cmp_eq_u32 s63, 3')
        A(f's_cbranch_scc1 {l_fin}')
        A('s_lshl_b32 s60, s63, 6\nv_add_u32 v9, s60, v0')
        A('v_cmp_gt_u32 vcc, 160, v9')
        A('s_and_saveexec_b64 s[60:61], vcc')
        A(f's_cbranch_execz {l_done}')
        A('v_lshlrev_b32 v10, 4, v9')
        for w in range(4):
            A(f'ds_read_b128 v[{16+4*w}:{19+4*w}], v10 offset:{L_YPART + 2560*w}')
        A('v_lshrrev_b32 v11, 3, v9\nv_lshlrev_b32 v11, 13, v11\nv_and_b32 v12, 7, v9\nv_lshlrev_b32 v12, 4, v12\nv_add_u32 v11, v11, v12')
        A('s_mul_i32 s62, s65, 163840\ns_lshl_b32 s69, s67, 7\ns_add_u32 s62, s62, s69')
        A('v_mov_b32 v12, 0x7fc00000')
        A('s_waitcnt lgkmcnt(0)')
        for r in range(4):
            A(f'v_add_f32 v{16+r}, v{16+r}, v{20+r}')
            A(f'v_add_f32 v{24+r}, v{24+r}, v{28+r}')
            A(f'v_add_f32 v{16+r}, v{16+r}, v{24+r}')
            A(f'v_cmp_eq_u32 vcc, -1, v{16+r}')
            A(f'v_cndmask_b32 v{16+r}, v{16+r}, v12, vcc')
        A(f'buffer_store_dwordx4 v[16:19], v11, s[44:47], s62 offen {s.pol_hs}')
        A(f'{l_done}:')
        if not s.fine2: s.stamp(6)
        s.stamp_store(7)
        A('s_endpgm')
        A(f'{l_fin}:')
        l_nf = s.lab('nofin')
        A('s_cmp_ge_u32 s67, 20')
        A(f's_cbranch_scc1 {l_nf}')
        A('s_mul_i32 s60, s65, 20\ns_add_u32 s60, s60, s67\ns_lshl_b32 s60, s60, 13')
        A('s_add_u32 s62, s60, 4096')
        A('v_lshlrev_b32 v9, 4, v0')
        lp, ld = s.lab('fp'), s.lab('fpd')
        A('s_mov_b32 s61, 0x100000')
        A(f'{lp}:')
        for t in range(8):
            A(f'buffer_load_dwordx4 v[{16+4*t}:{19+4*t}], v9, s[44:47], {"s60" if t < 4 else "s62"} offen offset:{(t%4)*1024} {s.pol_hl}')
        A('s_waitcnt vmcnt(0)')
        A('v_max3_u32 v48, v16, v17, v18')
        for i in range(19, 47, 2): A(f'v_max3_u32 v48, v48, v{i}, v{i+1}')
        A('v_max_u32 v48, v48, v47')
        A('v_cmp_eq_u32 vcc, -1, v48')
        A(f's_cbranch_vccz {ld}')
        A('s_sub_u32 s61, s61, 1\ns_cmp_lg_u32 s61, 0')
        A(f's_cbranch_scc1 {lp}')
        A(f'{ld}:')
        for r in range(4):
            A(f'v_add_f32 v{16+r}, v{16+r}, v{20+r}')
            A(f'v_add_f32 v{24+r}, v{24+r}, v{28+r}')
            A(f'v_add_f32 v{32+r}, v{32+r}, v{36+r}')
            A(f'v_add_f32 v{40+r}, v{40+r}, v{44+r}')
            A(f'v_add_f32 v{16+r}, v{16+r}, v{24+r}')
            A(f'v_add_f32 v{32+r}, v{32+r}, v{40+r}')
            A(f'v_add_f32 v{16+r}, v{16+r}, v{32+r}')
        for r in range(4): s.reduce_hi3(16 + r, 20 + r)
        for r in range(4):
            s.bf16r(16 + r, 16 + r)
            A(f'v_mul_f32 v{16+r}, v{16+r}, v{88+r}')
            s.bf16r(16 + r, 16 + r)
            A(f'v_add_f32 v{16+r}, v{16+r}, v{92+r}')
        A('v_cvt_pk_bf16_f32 v16, v16, v17\nv_cvt_pk_bf16_f32 v17, v18, v19')
        s.srd(48, 26, 5120)
        A('s_mul_i32 s60, s65, 1280\ns_lshl_b32 s61, s67, 6\ns_add_u32 s60, s60, s61')
        A('v_lshlrev_b32 v10, 3, v0')
        A('s_mov_b64 exec, 0xff')
        A('buffer_store_dwordx2 v[16:17], v10, s[48:51], s60 offen')
        A('s_mov_b64 exec, -1')
        A(f'{l_nf}:')
        if not s.fine2: s.stamp(6)
        s.stamp_store(7)

    def text(s):
        s.build()
        body = hz.fix(s.L)
        out = [HEADER + f'; @launch grid=(256,1,1) block=(512,1,1) lds={LDS_BYTES}',
               '.amdgcn_target "amdgcn-amd-amdhsa--gfx950"', '.text', f'.globl {NAME}_kernel', '.p2align 8',
               f'.type {NAME}_kernel,@function']
        out += body
        out += ['.section .rodata,"a"', '.p2align 6', f'.amdhsa_kernel {NAME}_kernel',
                '  .amdhsa_next_free_vgpr 256', '  .amdhsa_next_free_sgpr ' + ('100' if s.fine2 else '96'), '  .amdhsa_accum_offset 256',
                '  .amdhsa_group_segment_fixed_size 0', '  .amdhsa_kernarg_size 96', '  .amdhsa_user_sgpr_count 2',
                '  .amdhsa_user_sgpr_kernarg_segment_ptr 1', '  .amdhsa_system_sgpr_workgroup_id_x 1',
                '  .amdhsa_float_denorm_mode_32 3',
                '.end_amdhsa_kernel']
        return '\n'.join(out) + '\n'

if __name__ == '__main__':
    import argparse
    ap = argparse.ArgumentParser()
    ap.add_argument('-o', default='cdna_kernels/' + NAME + '.s')
    ap.add_argument('--cfg', default='{}')
    a = ap.parse_args()
    g = Gen(**eval(a.cfg))
    open(a.o, 'w').write(g.text())
    print('wrote', a.o)
```

```python
import sys, os
sys.path.insert(0, os.path.dirname(os.path.abspath(__file__)))
import hz

NAME = 'recurrent_scan__gqa_block_cached__geglu_ffn__decode'

HEADER = '''; Kernarg layout for this problem (96 bytes, ptrs only, base s[0:1]):
;   offset  32: d_in[4] A_wo  shape=(4096, 640) dtype=bfloat16
;   offset  88: d_ws      workspace: q, FFN partials, hand-off mailboxes
; Launch 2: one workgroup per (batch, head, key-half): waves 0-3 stream K then V, waves 4-7 hold wo and do the hand-offs.
'''

L_ML    = 0x0000
L_WF    = 0x0040
L_OPART = 0x0100
L_YPART = 0x0900
LDS_B   = 0x3100
A_XN    = 0x0000
A_PART  = 0x1400
A_HT    = 0x5400
A_T     = 0x5800
LDS_A   = 0x19800

W_YIN   = 0x000000
W_MLIN  = 0x100000
W_Q     = 0x180000
W_FPART = 0x200000
WS_SIZE = 0x320000
W_DBG   = 0x1000000

SCALE = 0x3db504f3
LOG2E = 0x3fb8aa3b

class Gen:
    def __init__(s, W=6, B=12, WO=2, pol_kv='nt', pol_w='', pol_a='', pol_hl='sc1', pol_hs='sc1', dbg=False, stamps=False, prio=True,
                 skip='', pfp=16, pfwo=True, stampsA=False):
        s.L = []
        s.W, s.B, s.WO = W, B, WO
        s.pol_kv, s.pol_w, s.pol_a, s.pol_hl, s.pol_hs = pol_kv, pol_w, pol_a, pol_hl, pol_hs
        s.dbg = dbg; s.stamps = stamps; s.prio = prio; s.skip = skip.split(',')
        s.pfp, s.pfwo, s.stampsA = pfp, pfwo, stampsA
        s.nlab = 0
    def A(s, t):
        for l in t.split('\n'):
            l = l.strip()
            if l: s.L.append(('  ' + l) if not l.endswith(':') else l)
    def lab(s, base):
        s.nlab += 1
        return f'L_{base}_{s.nlab}'

    def allreduce(s, op, v, t):
        A = s.A
        ins = {'add': 'v_add_f32', 'max': 'v_max_f32'}[op]
        A(f'{ins}_dpp v{v}, v{v}, v{v} quad_perm:[1,0,3,2] row_mask:0xf bank_mask:0xf')
        A(f'{ins}_dpp v{v}, v{v}, v{v} quad_perm:[2,3,0,1] row_mask:0xf bank_mask:0xf')
        A(f'{ins}_dpp v{v}, v{v}, v{v} row_half_mirror row_mask:0xf bank_mask:0xf')
        A(f'{ins}_dpp v{v}, v{v}, v{v} row_mirror row_mask:0xf bank_mask:0xf')
        A(f'v_mov_b32 v{t}, v{v}')
        A(f'v_permlane16_swap_b32 v{v}, v{t}')
        A(f'{ins} v{v}, v{v}, v{t}')
        A(f'v_mov_b32 v{t}, v{v}')
        A(f'v_permlane32_swap_b32 v{v}, v{t}')
        A(f'{ins} v{v}, v{v}, v{t}')

    def reduce_hi3(s, v, t):
        A = s.A
        A(f'v_add_f32_dpp v{v}, v{v}, v{v} row_ror:8 row_mask:0xf bank_mask:0xf')
        A(f'v_mov_b32 v{t}, v{v}')
        A(f'v_permlane16_swap_b32 v{v}, v{t}')
        A(f'v_add_f32 v{v}, v{v}, v{t}')
        A(f'v_mov_b32 v{t}, v{v}')
        A(f'v_permlane32_swap_b32 v{v}, v{t}')
        A(f'v_add_f32 v{v}, v{v}, v{t}')

    def bf16r(s, dst, src):
        s.A(f'v_cvt_pk_bf16_f32 v{dst}, v{src}, v{src}')
        s.A(f'v_lshlrev_b32 v{dst}, 16, v{dst}')

    def srd(s, n, ptr, size):
        s.A(f's_mov_b32 s{n}, s{ptr}\ns_and_b32 s{n+1}, s{ptr+1}, 0xffff\ns_mov_b32 s{n+2}, {hex(size)}\ns_mov_b32 s{n+3}, 0x20000')

    def stamp(s, idx, on=None):
        if (s.stamps if on is None else on): s.A(f's_memrealtime s[{70+2*idx}:{71+2*idx}]')

    def stamp_store(s, n, base=W_DBG, on=None):
        if not (s.stamps if on is None else on): return
        A = s.A
        A('s_waitcnt lgkmcnt(0)')
        A('s_lshl_b32 s90, s2, 3\ns_add_u32 s90, s90, s3\ns_lshl_b32 s90, s90, 6')
        A(f's_add_u32 s90, s90, {hex(base)}')
        A('v_mov_b32 v1, s90')
        A('s_getreg_b32 s91, hwreg(HW_REG_XCC_ID)')
        A('s_mov_b64 exec, 1')
        for i in range(n):
            A(f'v_mov_b32 v2, s{70+2*i}')
            A(f'global_store_dword v1, v2, s[30:31] offset:{4*i}')
        A('v_mov_b32 v2, s91')
        A('global_store_dword v1, v2, s[30:31] offset:60')
        A('s_mov_b64 exec, -1')

    def masks_Md(s, base, jreg, t1, t2, mod8=False):
        A = s.A
        if mod8: A(f'v_and_b32 v{t1}, 7, v{jreg}')
        else: A(f'v_mov_b32 v{t1}, v{jreg}')
        A(f'v_and_b32 v{t2}, 1, v{t1}')
        A(f'v_cmp_eq_u32 vcc, 1, v{t2}')
        A(f'v_mov_b32 v{t2}, 0xffff')
        A(f'v_mov_b32 v{base}, 0xffff0000')
        A(f'v_cndmask_b32 v{t2}, v{t2}, v{base}, vcc')
        A(f'v_lshrrev_b32 v{t1}, 1, v{t1}')
        for d in range(4):
            A(f'v_cmp_eq_u32 vcc, {d}, v{t1}')
            A(f'v_cndmask_b32 v{base+d}, 0, v{t2}, vcc')

    def layernorm(s, xr, out_pairs, tb):
        A = s.A
        f = tb
        a, t = tb + 10, tb + 11
        for i in range(5):
            A(f'v_lshlrev_b32 v{f+2*i}, 16, v{xr+i}')
            A(f'v_and_b32 v{f+2*i+1}, 0xffff0000, v{xr+i}')
        A(f'v_add_f32 v{a}, v{f}, v{f+1}\nv_add_f32 v{t}, v{f+2}, v{f+3}')
        for i in range(4, 10, 2): A(f'v_add_f32 v{a}, v{a}, v{f+i}\nv_add_f32 v{t}, v{t}, v{f+i+1}')
        A(f'v_add_f32 v{a}, v{a}, v{t}')
        s.allreduce('add', a, t)
        A(f'v_mul_f32 v{a}, 0x3acccccd, v{a}')
        v, d = tb + 12, tb + 13
        A(f'v_sub_f32 v{d}, v{f}, v{a}\nv_mul_f32 v{v}, v{d}, v{d}')
        for i in range(1, 10):
            A(f'v_sub_f32 v{d}, v{f+i}, v{a}\nv_fmac_f32 v{v}, v{d}, v{d}')
        s.allreduce('add', v, t)
        A(f'v_mul_f32 v{v}, 0x3acccccd, v{v}')
        s.bf16r(v, v)
        A(f'v_add_f32 v{v}, 0x3727c5ac, v{v}')
        s.bf16r(v, v)
        A(f'v_sqrt_f32 v{v}, v{v}')
        s.bf16r(v, v)
        s.bf16r(a, a)
        A(f'v_rcp_f32 v{t}, v{v}')
        for i in range(10):
            A(f'v_sub_f32 v{f+i}, v{f+i}, v{a}')
        for i in range(5):
            A(f'v_cvt_pk_bf16_f32 v{out_pairs+i}, v{f+2*i}, v{f+2*i+1}')
        for i in range(5):
            A(f'v_lshlrev_b32 v{f+2*i}, 16, v{out_pairs+i}')
            A(f'v_and_b32 v{f+2*i+1}, 0xffff0000, v{out_pairs+i}')
        for i in range(10):
            A(f'v_mul_f32 v{d}, v{f+i}, v{t}')
            A(f'v_fma_f32 v{f+i}, -v{d}, v{v}, v{f+i}')
            A(f'v_fma_f32 v{f+i}, v{f+i}, v{t}, v{d}')
        for i in range(5):
            A(f'v_cvt_pk_bf16_f32 v{out_pairs+i}, v{f+2*i}, v{f+2*i+1}')

    def entry(s, label, endlab):
        A = s.A
        A(f'{label}:')
        A('s_cmp_ge_u32 s2, 256')
        A(f's_cbranch_scc1 {endlab}')

    def pointers(s):
        A = s.A
        A('s_load_dwordx16 s[8:23], s[0:1], 0')
        A('s_load_dwordx8 s[24:31], s[0:1], 64')
        A('v_lshrrev_b32 v1, 6, v0')
        A('v_and_b32 v0, 63, v0')
        A('v_readfirstlane_b32 s3, v1')

    def select_group_reg(s, dst, a):
        A = s.A
        A(f'v_cndmask_b32 v{dst}, v{a}, v{a+1}, s[60:61]')
        A(f'v_cndmask_b32 v{dst}, v{dst}, v{a+2}, s[62:63]')
        A(f'v_cndmask_b32 v{dst}, v{dst}, v{a+3}, s[64:65]')
    def group_masks(s):
        s.A('s_mov_b32 s60, 0xffff0000\ns_mov_b32 s61, 0\ns_mov_b32 s62, 0\ns_mov_b32 s63, 0xffff\ns_mov_b32 s64, 0\ns_mov_b32 s65, 0xffff0000')

    def prep_ln(s, nafter):
        A = s.A
        l = s.lab('noln')
        A('s_cmp_ge_u32 s3, 4')
        A(f's_cbranch_scc1 {l}')
        A(f's_waitcnt vmcnt({nafter})')
        s.layernorm(16, 24, 32)
        A('s_mul_i32 s58, s3, 1280\nv_add_u32 v9, s58, v1')
        for t in range(5):
            A(f'ds_write_b32 v9, v{24+t} offset:{A_XN + 256*t}')
        A(f'{l}:')

    def prep_xloads(s):
        A = s.A
        l = s.lab('nox')
        A('v_lshlrev_b32 v1, 2, v0')
        A('s_cmp_ge_u32 s3, 4')
        A(f's_cbranch_scc1 {l}')
        A('s_mul_i32 s58, s3, 1280')
        for t in range(5):
            A(f'buffer_load_dword v{16+t}, v1, s[32:35], s58 offen offset:{256*t}')
        A(f'{l}:')

    def prep(s):
        A = s.A
        s.entry('prep_kernel', 'L_prep_end')
        s.stamp(0, s.stampsA)
        s.pointers()
        A('s_and_b32 s66, s2, 7')
        A('s_waitcnt lgkmcnt(0)')
        s.srd(32, 8, 5120)
        s.srd(36, 30, WS_SIZE)
        A('s_cmp_lt_u32 s2, 64')
        A('s_cbranch_scc1 L_prep_q')
        A('s_cmp_ge_u32 s2, 192')
        A('s_cbranch_scc1 L_prep_idle')
        A('s_sub_u32 s67, s2, 64\ns_lshr_b32 s67, s67, 3')
        A('s_lshr_b32 s68, s67, 2\ns_lshl_b32 s68, s68, 3\ns_add_u32 s68, s68, s66')
        A('s_cmp_ge_u32 s68, 27')
        A('s_cbranch_scc1 L_prep_idle')
        s.prep_ffn()
        A('L_prep_q:')
        s.prep_q()
        A('L_prep_idle:')
        s.prep_idle()
        A('L_prep_end:')
        A('s_endpgm')

    def prep_q(s):
        A = s.A
        s.srd(40, 14, 640 * 4096 * 2)
        s.prep_xloads()
        A('v_lshrrev_b32 v2, 3, v0\nv_lshlrev_b32 v2, 13, v2\nv_and_b32 v3, 7, v0\nv_lshlrev_b32 v3, 4, v3\nv_add_u32 v2, v2, v3')
        A('s_lshl_b32 s54, s3, 16\ns_lshl_b32 s55, s2, 7\ns_add_u32 s54, s54, s55')
        A(f's_lshl_b32 s55, s3, 10\ns_add_u32 s55, s55, {A_T}')
        for i in range(10):
            A('s_mov_b32 m0, s55')
            A(f'buffer_load_dwordx4 v2, s[40:43], s54 offen {s.pol_a} lds')
            if i < 9: A('s_add_u32 s54, s54, 0x80000\ns_add_u32 s55, s55, 8192')
        s.prep_ln(10)
        A('s_and_b32 s56, s3, 3\ns_lshr_b32 s57, s3, 2')
        A('v_and_b32 v9, 3, v0\nv_mul_u32_u24 v9, 1280, v9\nv_lshrrev_b32 v10, 4, v0\nv_lshlrev_b32 v11, 3, v10\nv_add_u32 v9, v9, v11')
        A('s_mul_i32 s58, s56, 320\nv_add_u32 v9, s58, v9')
        A('v_lshlrev_b32 v10, 2, v10\nv_bfe_u32 v11, v0, 2, 2\nv_add_u32 v10, v10, v11\nv_lshlrev_b32 v10, 7, v10\nv_and_b32 v11, 3, v0\nv_lshlrev_b32 v11, 3, v11\nv_add_u32 v10, v10, v11')
        A('s_mul_i32 s58, s56, 20480\ns_lshl_b32 s59, s57, 6\ns_add_u32 s58, s58, s59\nv_add_u32 v10, s58, v10')
        A('s_waitcnt vmcnt(0) lgkmcnt(0)')
        A('s_barrier')
        s.stamp(1, s.stampsA)
        for ks in range(5):
            o = 20 + 12 * (ks & 1)
            A(f'ds_read_b64 v[{o}:{o+1}], v9 offset:{A_XN + 64*ks}')
            A(f'ds_read_b64 v[{o+2}:{o+3}], v9 offset:{A_XN + 64*ks + 32}')
            for c in range(2):
                A(f'ds_read_b64_tr_b16 v[{o+4+4*c}:{o+5+4*c}], v10 offset:{A_T + 4096*ks + 32*c}')
                A(f'ds_read_b64_tr_b16 v[{o+6+4*c}:{o+7+4*c}], v10 offset:{A_T + 4096*ks + 32*c + 2048}')
            if ks >= 1:
                p = 20 + 12 * ((ks - 1) & 1)
                A('s_waitcnt lgkmcnt(6)')
                for c in range(2):
                    A(f'v_mfma_f32_16x16x32_bf16 v[{12+4*c}:{15+4*c}], v[{p}:{p+3}], v[{p+4+4*c}:{p+7+4*c}], ' + ('0' if ks == 1 else f'v[{12+4*c}:{15+4*c}]'))
        p = 20 + 12 * (4 & 1)
        A('s_waitcnt lgkmcnt(0)')
        for c in range(2):
            A(f'v_mfma_f32_16x16x32_bf16 v[{12+4*c}:{15+4*c}], v[{p}:{p+3}], v[{p+4+4*c}:{p+7+4*c}], v[{12+4*c}:{15+4*c}]')
        A('s_lshl_b32 s58, s56, 12\ns_lshl_b32 s59, s57, 11\ns_add_u32 s58, s58, s59\nv_lshlrev_b32 v9, 4, v0\nv_add_u32 v11, s58, v9')
        A(f'ds_write_b128 v11, v[12:15] offset:{A_PART}')
        A(f'ds_write_b128 v11, v[16:19] offset:{A_PART + 1024}')
        s.group_masks()
        A('s_waitcnt lgkmcnt(0)')
        A('s_barrier')
        A('s_cmp_ge_u32 s3, 4')
        A('s_cbranch_scc1 L_prep_fin')
        A('s_lshl_b32 s58, s3, 10\nv_add_u32 v11, s58, v9')
        for kg in range(4):
            A(f'ds_read_b128 v[{12+4*kg}:{15+4*kg}], v11 offset:{A_PART + 4096*kg}')
        A('s_waitcnt lgkmcnt(0)')
        for r in range(4):
            A(f'v_add_f32 v{12+r}, v{12+r}, v{16+r}\nv_add_f32 v{20+r}, v{20+r}, v{24+r}\nv_add_f32 v{12+r}, v{12+r}, v{20+r}')
        s.select_group_reg(16, 12)
        A('v_cvt_pk_bf16_f32 v16, v16, v16')
        A('v_lshrrev_b32 v9, 4, v0\nv_lshlrev_b32 v9, 13, v9\nv_and_b32 v10, 15, v0\nv_lshlrev_b32 v10, 1, v10\nv_add_u32 v9, v9, v10')
        A(f's_lshl_b32 s58, s2, 7\ns_lshl_b32 s59, s3, 5\ns_add_u32 s58, s58, s59\ns_add_u32 s58, s58, {hex(W_Q)}')
        A('buffer_store_short v16, v9, s[36:39], s58 offen')
        A('s_branch L_prep_fin')

    def prep_ffn(s):
        A = s.A
        A('s_and_b32 s69, s67, 3\ns_lshl_b32 s68, s68, 2\ns_add_u32 s68, s68, s69')
        s.srd(40, 20, 640 * 1728 * 2)
        s.srd(44, 22, 640 * 1728 * 2)
        s.srd(48, 24, 1728 * 640 * 2)
        s.prep_xloads()
        A('v_lshrrev_b32 v2, 1, v0\nv_mul_u32_u24 v2, 3456, v2\nv_and_b32 v3, 1, v0\nv_lshlrev_b32 v3, 4, v3\nv_add_u32 v2, v2, v3')
        A('s_and_b32 s56, s3, 3\ns_lshr_b32 s57, s3, 2')
        A(f's_mul_i32 s52, s56, {5*32*3456}\ns_lshl_b32 s53, s68, 5\ns_add_u32 s52, s52, s53')
        A(f's_mul_i32 s53, s56, 5120\ns_mul_i32 s54, s57, 20480\ns_add_u32 s53, s53, s54\ns_add_u32 s53, s53, {A_T}')
        lu, ld = s.lab('up'), s.lab('dmad')
        A('s_cmp_eq_u32 s57, 1')
        A(f's_cbranch_scc1 {lu}')
        for i in range(5):
            A('s_mov_b32 m0, s53')
            A(f'buffer_load_dwordx4 v2, s[40:43], s52 offen {s.pol_a} lds')
            if i < 4: A(f's_add_u32 s52, s52, {32*3456}\ns_add_u32 s53, s53, 1024')
        A(f's_branch {ld}')
        A(f'{lu}:')
        for i in range(5):
            A('s_mov_b32 m0, s53')
            A(f'buffer_load_dwordx4 v2, s[44:47], s52 offen {s.pol_a} lds')
            if i < 4: A(f's_add_u32 s52, s52, {32*3456}\ns_add_u32 s53, s53, 1024')
        A(f'{ld}:')
        lw = s.lab('nowd')
        A('v_lshrrev_b32 v3, 4, v0\nv_mul_u32_u24 v3, 1280, v3\nv_and_b32 v4, 15, v0\nv_lshlrev_b32 v4, 4, v4\nv_add_u32 v3, v3, v4')
        A('s_min_u32 s52, s3, 4\ns_lshl_b32 s52, s52, 8\ns_mul_i32 s53, s68, 20480\ns_add_u32 s52, s52, s53')
        for u in range(4):
            A(f'buffer_load_dwordx4 v[{64+4*u}:{67+4*u}], v3, s[48:51], s52 offen {s.pol_a}')
            if u < 3: A('s_add_u32 s52, s52, 5120')
        s.prep_ln(9)
        A('v_and_b32 v9, 3, v0\nv_mul_u32_u24 v9, 1280, v9\nv_lshrrev_b32 v10, 4, v0\nv_lshlrev_b32 v11, 3, v10\nv_add_u32 v9, v9, v11')
        A('s_mul_i32 s58, s56, 320\nv_add_u32 v9, s58, v9')
        A('v_lshlrev_b32 v10, 2, v10\nv_bfe_u32 v11, v0, 2, 2\nv_add_u32 v10, v10, v11\nv_lshlrev_b32 v10, 5, v10\nv_and_b32 v11, 3, v0\nv_lshlrev_b32 v11, 3, v11\nv_add_u32 v10, v10, v11')
        A('s_mul_i32 s58, s56, 5120\ns_mul_i32 s59, s57, 20480\ns_add_u32 s58, s58, s59\nv_add_u32 v10, s58, v10')
        A('v_and_b32 v12, 15, v0')
        s.masks_Md(4, 12, 13, 14, mod8=True)
        A('s_waitcnt vmcnt(4) lgkmcnt(0)')
        A('s_barrier')
        s.stamp(1, s.stampsA)
        for ks in range(5):
            o = 20 + 8 * ks
            A(f'ds_read_b64 v[{o}:{o+1}], v9 offset:{A_XN + 64*ks}')
            A(f'ds_read_b64 v[{o+2}:{o+3}], v9 offset:{A_XN + 64*ks + 32}')
            A(f'ds_read_b64_tr_b16 v[{o+4}:{o+5}], v10 offset:{A_T + 1024*ks}')
            A(f'ds_read_b64_tr_b16 v[{o+6}:{o+7}], v10 offset:{A_T + 1024*ks + 512}')
            if ks == 2: A('s_waitcnt lgkmcnt(4)')
        for ks in range(5):
            o = 20 + 8 * ks
            A(f's_waitcnt lgkmcnt({min(4*(4-ks), 8) if ks >= 2 else 0})' if False else 's_waitcnt lgkmcnt(0)' if ks == 0 else '')
            A(f'v_mfma_f32_16x16x32_bf16 v[12:15], v[{o}:{o+3}], v[{o+4}:{o+7}], ' + ('0' if ks == 0 else 'v[12:15]'))
        A('s_lshl_b32 s58, s3, 10\nv_lshlrev_b32 v9, 4, v0\nv_add_u32 v11, s58, v9')
        A(f'ds_write_b128 v11, v[12:15] offset:{A_PART}')
        s.group_masks()
        A('s_waitcnt lgkmcnt(0)')
        A('s_barrier')
        lh = s.lab('noh')
        A('s_cmp_lg_u32 s3, 0')
        A(f's_cbranch_scc1 {lh}')
        for k in range(8):
            A(f'ds_read_b128 v[{12+4*k}:{15+4*k}], v9 offset:{A_PART + 1024*k}')
        A('s_waitcnt lgkmcnt(0)')
        for m in range(2):
            b = 12 + 16 * m
            for r in range(4):
                A(f'v_add_f32 v{b+r}, v{b+r}, v{b+4+r}\nv_add_f32 v{b+8+r}, v{b+8+r}, v{b+12+r}\nv_add_f32 v{b+r}, v{b+r}, v{b+8+r}')
        s.select_group_reg(44, 12)
        s.select_group_reg(45, 28)
        g_, u_, t0, t1 = 44, 45, 46, 47
        s.bf16r(g_, g_)
        s.bf16r(u_, u_)
        A(f'v_mul_f32 v{t0}, v{g_}, v{g_}\nv_mul_f32 v{t0}, v{t0}, v{g_}')
        A(f'v_mov_b32 v{t1}, 0x3d372713\nv_fma_f32 v{t0}, v{t0}, v{t1}, v{g_}')
        A(f'v_mul_f32 v{t0}, 0x3f4c422a, v{t0}')
        A(f'v_mul_f32 v{t0}, 0x4038aa3b, v{t0}')
        A(f'v_exp_f32 v{t0}, v{t0}')
        A(f'v_add_f32 v{t0}, 1.0, v{t0}')
        A(f'v_rcp_f32 v{t0}, v{t0}')
        A(f'v_fma_f32 v{t0}, v{t0}, -2.0, 1.0')
        A(f'v_add_f32 v{t0}, 1.0, v{t0}')
        A(f'v_mul_f32 v{t1}, 0.5, v{g_}')
        A(f'v_mul_f32 v{t0}, v{t1}, v{t0}')
        s.bf16r(t0, t0)
        A(f'v_mul_f32 v{t0}, v{t0}, v{u_}')
        A(f'v_cvt_pk_bf16_f32 v{g_}, v{t0}, v{t0}')
        A('v_lshrrev_b32 v9, 4, v0\nv_lshlrev_b32 v9, 6, v9\nv_and_b32 v10, 3, v0\nv_lshlrev_b32 v10, 4, v10\nv_bfe_u32 v11, v0, 2, 2\nv_lshlrev_b32 v11, 2, v11\nv_add3_u32 v9, v9, v10, v11')
        A(f'ds_write_b32 v9, v{g_} offset:{A_HT}')
        if s.dbg:
            A(f's_lshl_b32 s58, s68, 8\ns_add_u32 s58, s58, {hex(W_DBG + 0x500000)}')
            A('v_lshlrev_b32 v10, 2, v0\nv_add_u32 v10, s58, v10')
            A(f'global_store_dword v10, v{g_}, s[30:31]')
        A(f'{lh}:')
        A('v_bfe_u32 v9, v0, 3, 1\nv_lshlrev_b32 v9, 2, v9\nv_lshrrev_b32 v10, 4, v0\nv_add_u32 v9, v9, v10\nv_lshlrev_b32 v9, 4, v9')
        A('s_waitcnt lgkmcnt(0)')
        A('s_barrier')
        A('s_cmp_ge_u32 s3, 5')
        A('s_cbranch_scc1 L_prep_fin')
        A(f'ds_read_b128 v[12:15], v9 offset:{A_HT}')
        A(f'ds_read_b128 v[16:19], v9 offset:{A_HT + 128}')
        A('v_bfe_u32 v9, v0, 3, 1\nv_mul_u32_u24 v9, 640, v9\nv_lshrrev_b32 v10, 4, v0\nv_lshlrev_b32 v10, 5, v10\nv_and_b32 v11, 7, v0\nv_add3_u32 v9, v9, v10, v11\nv_lshlrev_b32 v9, 2, v9')
        A(f's_mul_i32 s58, s68, 10240\ns_lshl_b32 s59, s3, 9\ns_add_u32 s58, s58, s59\ns_add_u32 s58, s58, {hex(W_FPART)}\ns_add_u32 s59, s58, 5120')
        A('s_waitcnt vmcnt(0) lgkmcnt(0)')
        for u in range(4):
            for bp in range(2):
                y = 28 + 4 * ((2 * u + bp) & 3)
                for d in range(4): A(f'v_and_b32 v{y+d}, v{12+4*bp+u}, v{4+d}')
                a = 20 + 4 * bp
                A(f'v_mfma_f32_16x16x32_bf16 v[{a}:{a+3}], v[{64+4*u}:{67+4*u}], v[{y}:{y+3}], ' + ('0' if u == 0 else f'v[{a}:{a+3}]'))
        for bp in range(2):
            for r in range(4):
                A(f'buffer_store_dword v{20+4*bp+r}, v9, s[36:39], {"s58" if bp == 0 else "s59"} offen offset:{32*r}')
        A('s_branch L_prep_fin')

    def prep_idle(s):
        A = s.A
        l1, l2 = s.lab('i1'), s.lab('i2')
        A('s_cmp_ge_u32 s2, 192')
        A(f's_cbranch_scc1 {l1}')
        A('s_sub_u32 s67, s67, 12\ns_mul_i32 s67, s67, 5\ns_add_u32 s67, s67, s66\ns_add_u32 s67, s67, 61')
        A(f's_branch {l2}')
        A(f'{l1}:')
        A('s_sub_u32 s67, s2, 192')
        A(f'{l2}:')
        A('v_mov_b32 v12, -1\nv_mov_b32 v13, -1\nv_mov_b32 v14, -1\nv_mov_b32 v15, -1\nv_lshlrev_b32 v9, 4, v0')
        lc = s.lab('noclr')
        A('s_cmp_ge_u32 s67, 80')
        A(f's_cbranch_scc1 {lc}')
        A('s_lshl_b32 s40, s67, 13\ns_lshl_b32 s41, s3, 10\ns_add_u32 s40, s40, s41')
        A('buffer_store_dwordx4 v[12:15], v9, s[36:39], s40 offen')
        A(f'{lc}:')
        lm = s.lab('noml')
        A('s_cmp_ge_u32 s67, 64')
        A(f's_cbranch_scc1 {lm}')
        A('s_cmp_lg_u32 s3, 0')
        A(f's_cbranch_scc1 {lm}')
        A(f's_lshl_b32 s40, s67, 9\ns_add_u32 s40, s40, {hex(W_MLIN)}\nv_lshlrev_b32 v10, 7, v0')
        A('s_mov_b64 exec, 0xf')
        A('buffer_store_dwordx2 v[12:13], v10, s[36:39], s40 offen')
        A('s_mov_b64 exec, -1')
        A(f'{lm}:')
        A('s_lshl_b32 s44, s67, 3\ns_add_u32 s44, s44, s3')
        n = 0
        if s.pfwo:
            s.srd(40, 16, 4096 * 640 * 2)
            A('s_lshl_b32 s45, s44, 10')
            for k in range(8):
                A(f's_min_u32 s46, s45, {4096*640*2 - 1024}')
                A(f'buffer_load_dwordx4 v[{16+4*(n%40)}:{19+4*(n%40)}], v9, s[40:43], s46 offen')
                A(f's_add_u32 s45, s45, {672*1024}')
                n += 1
        if s.pfp:
            s.srd(40, 10, 0x8000000)
            per = 32 // s.pfp
            total = 256 * per * 16
            sh = {1: 0, 2: 1, 4: 2}[per]
            for k in range(-(-total // 672)):
                A(f's_add_u32 s45, s44, {672*k}\ns_lshr_b32 s46, s45, 4\ns_and_b32 s45, s45, 15\ns_lshl_b32 s45, s45, 10')
                A(f's_lshr_b32 s47, s46, {sh}\ns_lshl_b32 s47, s47, 19\ns_add_u32 s45, s45, s47')
                if per > 1: A(f's_and_b32 s46, s46, {per-1}\ns_mul_i32 s46, s46, {s.pfp << 14}\ns_add_u32 s45, s45, s46')
                A(f's_add_u32 s45, s45, {3 << 14}')
                A('s_min_u32 s45, s45, 0x7fffc00')
                A(f'buffer_load_dwordx4 v[{16+4*(n%40)}:{19+4*(n%40)}], v9, s[40:43], s45 offen')
                n += 1
        A('L_prep_fin:')
        s.stamp(2, s.stampsA)
        A('s_waitcnt vmcnt(0)')
        s.stamp(3, s.stampsA)
        s.stamp_store(4, base=W_DBG + 0x40000, on=s.stampsA)

    def main(s):
        A = s.A
        s.entry(f'{NAME}_kernel', 'L_end')
        s.stamp(0)
        s.pointers()
        lni = s.lab('noinit')
        A('s_cmp_lg_u32 s3, 0')
        A(f's_cbranch_scc1 {lni}')
        A('v_mov_b32 v2, -1\nv_lshlrev_b32 v3, 2, v0')
        A(f'ds_write_b32 v3, v2 offset:{L_ML}')
        A(f'{lni}:')
        A('s_and_b32 s64, s2, 7\ns_lshr_b32 s68, s2, 3')
        A('s_and_b32 s69, s68, 3\ns_lshl_b32 s69, s69, 3\ns_add_u32 s64, s64, s69')
        A('s_lshr_b32 s65, s68, 2\ns_and_b32 s65, s65, 3')
        A('s_lshr_b32 s66, s68, 4')
        A('s_lshl_b32 s67, s64, 1\ns_add_u32 s67, s67, s66')
        A('s_waitcnt lgkmcnt(0)')
        A('s_barrier')
        A('s_cmp_ge_u32 s3, 4')
        A('s_cbranch_scc1 L_helper')
        s.streamer()
        A('L_helper:')
        s.helper()
        A('L_end:')
        A('s_endpgm')

    def streamer(s):
        A = s.A
        W, B = s.W, s.B
        RING = 64
        assert RING + 4 * B <= 256 and B > W + 3
        vKo, vVo = 1, 2
        vM = 4; vY = 8; vAcc = 24; vSc = 32; vO = 40; vYp = 44; vT = 52
        if s.prio: A('s_setprio 2')
        s.srd(44, 30, WS_SIZE)
        s.srd(32, 10, 0x8000000)
        s.srd(36, 12, 0x8000000)
        A(f'v_lshrrev_b32 v{vT}, 4, v0\nv_lshlrev_b32 v{vT+3}, 2, v{vT}\nv_and_b32 v{vT+2}, 3, v0\nv_add_u32 v{vT+3}, v{vT+3}, v{vT+2}\nv_lshlrev_b32 v3, 4, v{vT+3}')
        A(f's_lshl_b32 s60, s65, 13\ns_lshl_b32 s61, s64, 8\ns_add_u32 s60, s60, s61\ns_add_u32 s60, s60, {hex(W_Q)}')
        A(f'buffer_load_dwordx4 v[56:59], v3, s[44:47], s60 offen')
        A(f'v_lshlrev_b32 v{vT}, 6, v{vT}')
        A(f'v_bfe_u32 v{vT+1}, v0, 2, 2')
        A(f'v_lshlrev_b32 v{vT+1}, 8, v{vT+1}')
        A(f'v_lshlrev_b32 v{vT+2}, 4, v{vT+2}')
        A(f'v_add3_u32 v{vKo}, v{vT}, v{vT+1}, v{vT+2}')
        A(f'v_lshlrev_b32 v{vVo}, 4, v0')
        A('s_lshl_b32 s40, s65, 5\ns_add_u32 s40, s40, s64\ns_lshl_b32 s40, s40, 20')
        A('s_lshl_b32 s41, s66, 19\ns_add_u32 s40, s40, s41')
        A('s_lshl_b32 s41, s3, 12\ns_add_u32 s40, s40, s41')
        A('s_mov_b32 s41, s40')
        state = {'n': 0}
        def issue():
            n = state['n']; state['n'] += 1
            if n >= 256: return
            if n == 128: A('s_mov_b32 s41, s40')
            elif n % 4 == 0 and n > 0: A('s_add_u32 s41, s41, 0x4000')
            r = RING + 4 * (n % B)
            if n < 128:
                A(f'buffer_load_dwordx4 v[{r}:{r+3}], v{vKo}, s[32:35], s41 offen offset:{(n%4)*1024} {s.pol_kv}')
            else:
                A(f'buffer_load_dwordx4 v[{r}:{r+3}], v{vVo}, s[36:39], s41 offen offset:{(n%4)*1024} {s.pol_kv}')
        def paced_issue():
            if state['n'] >= 256: return
            A(f's_waitcnt vmcnt({W-1})')
            issue()
        for _ in range(W): issue()
        A(f'v_and_b32 v{vT}, 15, v0')
        s.masks_Md(vM, vT, vT+1, vT+2)
        A('s_mov_b32 s44, 0x22222222\ns_mov_b32 s45, 0x22222222')
        A('s_mov_b32 s46, 0x44444444\ns_mov_b32 s47, 0x44444444')
        A('s_mov_b32 s48, 0x88888888\ns_mov_b32 s49, 0x88888888')
        for t in range(4):
            m = 0x000F000F << (4 * t)
            A(f's_mov_b32 s{50+2*t}, {hex(m)}\ns_mov_b32 s{51+2*t}, {hex(m)}')
        A(f's_waitcnt vmcnt({W})')
        s.stamp(1)
        if s.dbg:
            A(f's_lshl_b32 s60, s2, 12\ns_lshl_b32 s61, s3, 10\ns_add_u32 s60, s60, s61\ns_add_u32 s60, s60, {hex(W_DBG + 0x100000)}')
            A(f'v_lshlrev_b32 v8, 4, v0\nv_add_u32 v8, s60, v8')
            A(f'global_store_dwordx4 v8, v[56:59], s[30:31]')
            A('s_waitcnt vmcnt(0)')
        for t in range(4):
            for d in range(4):
                A(f'v_cndmask_b32 v{vY+4*t+d}, 0, v{56+d}, s[{50+2*t}:{51+2*t}]')
        s.stamp(2)
        def post(g):
            a = vAcc + 4 * (g & 1)
            t = vT
            A(f'v_cndmask_b32 v{t}, v{a}, v{a+1}, s[44:45]')
            A(f'v_cndmask_b32 v{t}, v{t}, v{a+2}, s[46:47]')
            A(f'v_cndmask_b32 v{t}, v{t}, v{a+3}, s[48:49]')
            A(f'v_add_f32_dpp v{t}, v{t}, v{t} quad_perm:[1,0,3,2] row_mask:0xf bank_mask:0xf')
            q4 = vSc + (g >> 2)
            if (g & 3) == 0:
                A(f'v_add_f32_dpp v{q4}, v{t}, v{t} quad_perm:[2,3,0,1] row_mask:0xf bank_mask:0xf')
            else:
                A(f'v_add_f32_dpp v{t}, v{t}, v{t} quad_perm:[2,3,0,1] row_mask:0xf bank_mask:0xf')
                A(f'v_cndmask_b32 v{q4}, v{q4}, v{t}, s[{42+2*(g&3)}:{43+2*(g&3)}]')
        def ensure(c):
            if c > state['n'] - 1 - W or state['n'] >= 256:
                A(f's_waitcnt vmcnt({state["n"] - 1 - c})')
        for c in range(128):
            g, t = c >> 2, c & 3
            if state['n'] - c <= W: paced_issue()
            ensure(c)
            r = RING + 4 * (c % B)
            a = vAcc + 4 * (g & 1)
            cin = '0' if t == 0 else f'v[{a}:{a+3}]'
            A(f'v_mfma_f32_16x16x32_bf16 v[{a}:{a+3}], v[{r}:{r+3}], v[{vY+4*t}:{vY+4*t+3}], {cin}')
            if t == 1 and g > 0: post(g - 1)
        paced_issue()
        post(31)
        s.stamp(3)
        if s.dbg:
            A(f's_lshl_b32 s60, s2, 13\ns_lshl_b32 s61, s3, 11\ns_add_u32 s60, s60, s61\ns_add_u32 s60, s60, {hex(W_DBG + 0x200000)}')
            A(f'v_lshlrev_b32 v{vT}, 2, v0\nv_add_u32 v{vT}, s60, v{vT}')
            for i in range(8):
                A(f'global_store_dword v{vT}, v{vSc+i}, s[30:31] offset:{256*i}')
            A('s_waitcnt vmcnt(0)')
        def round_pairs():
            for i in range(4):
                A(f'v_cvt_pk_bf16_f32 v{vT+i}, v{vSc+2*i}, v{vSc+2*i+1}')
            for i in range(4):
                A(f'v_lshlrev_b32 v{vSc+2*i}, 16, v{vT+i}')
                A(f'v_and_b32 v{vSc+2*i+1}, 0xffff0000, v{vT+i}')
        round_pairs()
        for i in range(8): A(f'v_mul_f32 v{vSc+i}, {hex(SCALE)}, v{vSc+i}')
        round_pairs()
        m, t2 = vT + 4, vT + 5
        A(f'v_max3_f32 v{m}, v{vSc}, v{vSc+1}, v{vSc+2}')
        A(f'v_max3_f32 v{m}, v{m}, v{vSc+3}, v{vSc+4}')
        A(f'v_max3_f32 v{m}, v{m}, v{vSc+5}, v{vSc+6}')
        A(f'v_max_f32 v{m}, v{m}, v{vSc+7}')
        s.allreduce('max', m, t2)
        paced_issue()
        for i in range(8): A(f'v_sub_f32 v{vSc+i}, v{vSc+i}, v{m}')
        for i in range(8): A(f'v_mul_f32 v{vSc+i}, {hex(LOG2E)}, v{vSc+i}')
        for i in range(8): A(f'v_exp_f32 v{vSc+i}, v{vSc+i}')
        l = m + 1
        t3 = vT + 6
        A(f'v_add_f32 v{l}, v{vSc}, v{vSc+1}')
        A(f'v_add_f32 v{t3}, v{vSc+2}, v{vSc+3}')
        A(f'v_add_f32 v{l}, v{l}, v{vSc+4}')
        A(f'v_add_f32 v{t3}, v{t3}, v{vSc+5}')
        A(f'v_add_f32 v{l}, v{l}, v{vSc+6}')
        A(f'v_add_f32 v{t3}, v{t3}, v{vSc+7}')
        A(f'v_add_f32 v{l}, v{l}, v{t3}')
        for i in range(8): A(f'v_cvt_pk_bf16_f32 v{vSc+i}, v{vSc+i}, v{vSc+i}')
        s.allreduce('add', l, t3)
        paced_issue()
        A(f'v_cmp_eq_u32 vcc, -1, v{m}')
        A(f'v_mov_b32 v{t3}, 0x7fc00000')
        A(f'v_cndmask_b32 v{m}, v{m}, v{t3}, vcc')
        A(f's_lshl_b32 s60, s3, 3\nv_mov_b32 v{t3}, s60')
        A(f'ds_write_b64 v{t3}, v[{m}:{m+1}] offset:{L_ML}')
        def ybuild(c):
            g, t = (c - 128) >> 2, c & 3
            y = vYp + 4 * (c & 1)
            for d in range(4):
                A(f'v_and_b32_dpp v{y+d}, v{vSc+(g>>2)}, v{vM+d} row_newbcast:{4*t+(g&3)} row_mask:0xf bank_mask:0xf')
        ybuild(128)
        for c in range(128, 256):
            if state['n'] < 256 and state['n'] - c <= W: paced_issue()
            if c == 240:
                A(f's_lshl_b32 s60, s3, 2\nv_mov_b32 v{vT}, s60')
                A(f'ds_read_b32 v{vT+1}, v{vT} offset:{L_WF}')
            if c == 244:
                A(f'v_and_b32 v{vT+2}, 3, v0\nv_lshlrev_b32 v{vT+2}, 5, v{vT+2}')
                A(f'v_lshrrev_b32 v{vT+3}, 4, v0\nv_lshlrev_b32 v{vT+3}, 3, v{vT+3}')
                A(f'v_bfe_u32 v{vT+4}, v0, 2, 1')
                A(f'v_add3_u32 v{vT+2}, v{vT+2}, v{vT+3}, v{vT+4}')
                A(f'v_lshlrev_b32 v{vT+2}, 2, v{vT+2}')
                A(f's_lshl_b32 s60, s3, 9\nv_add_u32 v{vT+2}, s60, v{vT+2}')
            if c + 1 < 256: ybuild(c + 1)
            ensure(c)
            r = RING + 4 * (c % B)
            y = vYp + 4 * (c & 1)
            cin = '0' if c == 128 else f'v[{vO}:{vO+3}]'
            A(f'v_mfma_f32_16x16x32_bf16 v[{vO}:{vO+3}], v[{r}:{r+3}], v[{y}:{y+3}], {cin}')
        s.stamp(4)
        lp, ld = s.lab('wf'), s.lab('wfd')
        A('s_waitcnt lgkmcnt(0)')
        A(f'v_cmp_ne_u32 vcc, -1, v{vT+1}')
        A(f's_cbranch_vccnz {ld}')
        A('s_mov_b32 s61, 0x400000')
        A(f'{lp}:')
        A(f'ds_read_b32 v{vT+1}, v{vT} offset:{L_WF}')
        A('s_waitcnt lgkmcnt(0)')
        A(f'v_cmp_ne_u32 vcc, -1, v{vT+1}')
        A(f's_cbranch_vccnz {ld}')
        A('s_sleep 1')
        A('s_sub_u32 s61, s61, 1\ns_cmp_lg_u32 s61, 0')
        A(f's_cbranch_scc1 {lp}')
        A(f'{ld}:')
        for r in range(4): A(f'v_mul_f32 v{vO+r}, v{vO+r}, v{vT+1}')
        A('s_mov_b32 exec_lo, 0x00ff00ff\ns_mov_b32 exec_hi, 0x00ff00ff')
        for r in range(4): A(f'ds_write_b32 v{vT+2}, v{vO+r} offset:{L_OPART+8*r}')
        A('s_mov_b64 exec, -1')
        A('s_waitcnt lgkmcnt(0)')
        A('s_barrier')
        s.stamp(5)
        s.stamp_store(6)
        A('s_endpgm')

    def helper(s):
        A = s.A
        DATA = 96
        vM = 4
        A('s_sub_u32 s63, s3, 4')
        s.srd(36, 16, 4096 * 640 * 2)
        s.srd(40, 8, 5120)
        s.srd(44, 30, WS_SIZE)
        A('v_and_b32 v9, 15, v0')
        s.masks_Md(vM, 9, 10, 11, mod8=True)
        l_wo = s.lab('wo')
        A('s_cmp_lg_u32 s63, 3')
        A(f's_cbranch_scc1 {l_wo}')
        s.consumer_prep(l_wo)
        A(f'{l_wo}:')
        A('v_lshrrev_b32 v2, 4, v0\nv_mul_u32_u24 v2, 1280, v2\nv_and_b32 v3, 15, v0\nv_lshlrev_b32 v3, 4, v3\nv_add_u32 v2, v2, v3')
        A('s_lshl_b32 s60, s64, 7\ns_lshl_b32 s61, s63, 5\ns_add_u32 s60, s60, s61\ns_mul_i32 s60, s60, 1280')
        n = 0
        for u in range(8):
            for cb in range(5):
                if n >= s.WO: A(f's_waitcnt vmcnt({s.WO-1})')
                r = DATA + 4 * (u * 5 + cb)
                if 'wo' not in s.skip: A(f'buffer_load_dwordx4 v[{r}:{r+3}], v2, s[36:39], s60 offen offset:{cb*256} {s.pol_w}')
                n += 1
            if u < 7: A('s_add_u32 s60, s60, 5120')
        s.stamp(2)
        l_tail = s.lab('tail')
        A('s_cmp_lg_u32 s63, 1')
        A(f's_cbranch_scc1 {l_tail}')
        s.mlx()
        A(f'{l_tail}:')
        s.tail()

    def mlx(s):
        A = s.A
        lp, ld = s.lab('ml'), s.lab('mld')
        A(f'v_and_b32 v9, 3, v0\nv_lshlrev_b32 v9, 3, v9')
        A('s_mov_b32 s61, 0x400000')
        A(f'{lp}:')
        A(f'ds_read_b64 v[10:11], v9 offset:{L_ML}')
        A('s_waitcnt lgkmcnt(0)')
        A('v_cmp_eq_u32 vcc, -1, v10')
        A(f's_cbranch_vccz {ld}')
        A('s_sleep 16')
        A('s_sub_u32 s61, s61, 1\ns_cmp_lg_u32 s61, 0')
        A(f's_cbranch_scc1 {lp}')
        A(f'{ld}:')
        A('v_mov_b32 v12, v10')
        A('v_max_f32_dpp v12, v12, v12 quad_perm:[1,0,3,2] row_mask:0xf bank_mask:0xf')
        A('v_max_f32_dpp v12, v12, v12 quad_perm:[2,3,0,1] row_mask:0xf bank_mask:0xf')
        A(f'v_sub_f32 v13, v10, v12\nv_mul_f32 v13, {hex(LOG2E)}, v13\nv_exp_f32 v13, v13')
        A('v_mul_f32 v13, v13, v11')
        A('v_add_f32_dpp v13, v13, v13 quad_perm:[1,0,3,2] row_mask:0xf bank_mask:0xf')
        A('v_add_f32_dpp v13, v13, v13 quad_perm:[2,3,0,1] row_mask:0xf bank_mask:0xf')
        A('v_mov_b32 v14, 0x7fc00000')
        A('v_cmp_eq_u32 vcc, -1, v12\nv_cndmask_b32 v12, v12, v14, vcc')
        A('v_cmp_eq_u32 vcc, -1, v13\nv_cndmask_b32 v13, v13, v14, vcc')
        A(f's_xor_b32 s60, s2, 128\ns_lshl_b32 s60, s60, 7\ns_add_u32 s60, s60, {hex(W_MLIN)}')
        A('v_mov_b32 v9, 0')
        A('s_mov_b64 exec, 1')
        A(f'buffer_store_dwordx2 v[12:13], v9, s[44:47], s60 offen {s.pol_hs}')
        A('s_mov_b64 exec, -1')
        A(f's_lshl_b32 s60, s2, 7\ns_add_u32 s60, s60, {hex(W_MLIN)}')
        lp, ld = s.lab('mp'), s.lab('mpd')
        A('s_mov_b32 s61, 0x100000')
        A(f'{lp}:')
        A('s_sleep 24')
        A(f'buffer_load_dwordx2 v[14:15], v9, s[44:47], s60 offen {s.pol_hl}')
        A('s_waitcnt vmcnt(0)')
        A('v_cmp_eq_u32 vcc, -1, v14\nv_cmp_eq_u32 s[92:93], -1, v15')
        A('s_or_b64 vcc, vcc, s[92:93]')
        A(f's_cbranch_vccz {ld}')
        A('s_sub_u32 s61, s61, 1\ns_cmp_lg_u32 s61, 0')
        A(f's_cbranch_scc1 {lp}')
        A(f'{ld}:')
        A('v_max_f32 v16, v12, v14')
        A(f'v_sub_f32 v17, v12, v16\nv_mul_f32 v17, {hex(LOG2E)}, v17\nv_exp_f32 v17, v17')
        A(f'v_sub_f32 v18, v14, v16\nv_mul_f32 v18, {hex(LOG2E)}, v18\nv_exp_f32 v18, v18')
        A('v_mul_f32 v17, v17, v13\nv_fma_f32 v17, v18, v15, v17')
        A(f'v_sub_f32 v18, v10, v16\nv_mul_f32 v18, {hex(LOG2E)}, v18\nv_exp_f32 v18, v18')
        A('v_rcp_f32 v19, v17')
        A('v_mul_f32 v20, v18, v19\nv_fma_f32 v21, -v20, v17, v18\nv_fma_f32 v20, v21, v19, v20')
        A('v_mov_b32 v14, 0x7fc00000\nv_cmp_eq_u32 vcc, -1, v20\nv_cndmask_b32 v20, v20, v14, vcc')
        A('v_and_b32 v9, 3, v0\nv_lshlrev_b32 v9, 2, v9')
        A(f'ds_write_b32 v9, v20 offset:{L_WF}')
        A('s_waitcnt lgkmcnt(0)')

    def consumer_prep(s, l_out):
        A = s.A
        A('s_cmp_ge_u32 s67, 20')
        A(f's_cbranch_scc1 {l_out}')
        A('v_lshrrev_b32 v9, 3, v0\nv_mul_u32_u24 v9, 10240, v9\nv_and_b32 v10, 7, v0\nv_lshlrev_b32 v10, 4, v10\nv_add_u32 v9, v9, v10')
        A(f's_mul_i32 s60, s65, 2560\ns_lshl_b32 s61, s67, 7\ns_add_u32 s60, s60, s61\ns_add_u32 s60, s60, {hex(W_FPART)}')
        for r in range(4): A(f'v_mov_b32 v{16+4*13+r}, 0')
        for t in range(14):
            if t == 13: A('s_mov_b64 exec, 0xffffffff')
            if t >= 4 and t % 2 == 0: A('s_waitcnt vmcnt(2)')
            A(f'buffer_load_dwordx4 v[{16+4*t}:{19+4*t}], v9, s[44:47], s60 offen')
            if t < 13: A(f's_add_u32 s60, s60, {8*10240}')
        A('s_mov_b64 exec, -1')
        A('s_mul_i32 s60, s65, 1280\ns_lshl_b32 s61, s67, 6\ns_add_u32 s60, s60, s61')
        A('v_and_b32 v10, 7, v0\nv_lshlrev_b32 v10, 3, v10')
        A(f'buffer_load_dwordx2 v[12:13], v10, s[40:43], s60 offen')
        A('s_waitcnt vmcnt(0)')
        for t in range(1, 14):
            for r in range(4): A(f'v_add_f32 v{16+r}, v{16+r}, v{16+4*t+r}')
        for r in range(4): s.reduce_hi3(16 + r, 20)
        for r in range(4):
            f = 16 + r
            s.bf16r(f, f)
            A(f'v_mul_f32 v20, 0xbfb8aa3b, v{f}\nv_exp_f32 v20, v20\nv_add_f32 v20, 1.0, v20\nv_rcp_f32 v21, v20')
            A(f'v_mul_f32 v22, v{f}, v21\nv_fma_f32 v23, -v22, v20, v{f}\nv_fma_f32 v23, v23, v21, v22')
            A('v_cmp_u_f32 vcc, v23, v23')
            A(f'v_cndmask_b32 v22, v23, v22, vcc')
            s.bf16r(88 + r, 22)
        A('v_lshlrev_b32 v92, 16, v12\nv_and_b32 v93, 0xffff0000, v12\nv_lshlrev_b32 v94, 16, v13\nv_and_b32 v95, 0xffff0000, v13')

    def tail(s):
        A = s.A
        DATA = 96
        vM = 4
        A('v_lshrrev_b32 v9, 4, v0\nv_lshlrev_b32 v9, 7, v9\ns_lshl_b32 s60, s63, 5\nv_add_u32 v9, s60, v9')
        A('v_lshrrev_b32 v10, 4, v0\nv_lshlrev_b32 v10, 7, v10\nv_and_b32 v11, 15, v0\nv_lshlrev_b32 v11, 2, v11\nv_add_u32 v10, v10, v11')
        A('s_mul_i32 s60, s63, 2560\nv_add_u32 v10, s60, v10')
        A('s_lshl_b32 s60, s63, 6\nv_add_u32 v76, s60, v0')
        A('v_lshrrev_b32 v77, 3, v76\nv_lshlrev_b32 v77, 13, v77\nv_and_b32 v78, 7, v76\nv_lshlrev_b32 v78, 4, v78\nv_add_u32 v77, v77, v78')
        A('v_lshlrev_b32 v78, 4, v76')
        A('s_mul_i32 s62, s65, 163840\ns_lshl_b32 s69, s67, 7\ns_add_u32 s62, s62, s69')
        A('s_waitcnt vmcnt(0)')
        s.stamp(3)
        A('s_barrier')
        s.stamp(4)
        for w in range(4):
            A(f'ds_read_b128 v[{16+8*w}:{19+8*w}], v9 offset:{L_OPART + 512*w}')
            A(f'ds_read_b128 v[{20+8*w}:{23+8*w}], v9 offset:{L_OPART + 512*w + 16}')
        A('s_waitcnt lgkmcnt(0)')
        def osum(u):
            A(f'v_add_f32 v{16+u}, v{16+u}, v{24+u}')
            A(f'v_add_f32 v{32+u}, v{32+u}, v{40+u}')
            A(f'v_add_f32 v{16+u}, v{16+u}, v{32+u}')
            A(f'v_cvt_pk_bf16_f32 v{16+u}, v{16+u}, v{16+u}')
        acc = 48
        if s.dbg:
            for u in range(8): osum(u)
            A(f's_lshl_b32 s60, s2, 13\ns_lshl_b32 s61, s63, 11\ns_add_u32 s60, s60, s61\ns_add_u32 s60, s60, {hex(W_DBG + 0x600000)}')
            A('v_lshlrev_b32 v48, 5, v0\nv_add_u32 v48, s60, v48')
            A('global_store_dwordx4 v48, v[16:19], s[30:31]\nglobal_store_dwordx4 v48, v[20:23], s[30:31] offset:16')
            A('s_waitcnt vmcnt(0)')
        else:
            osum(0); osum(1)
        for u in range(8):
            y = 68 + 4 * (u & 1)
            for d in range(4): A(f'v_and_b32 v{y+d}, v{16+u}, v{vM+d}')
            if not s.dbg and u + 2 < 8: osum(u + 2)
            for cb in range(5):
                r = DATA + 4 * (u * 5 + cb)
                a = acc + 4 * cb
                A(f'v_mfma_f32_16x16x32_bf16 v[{a}:{a+3}], v[{r}:{r+3}], v[{y}:{y+3}], ' + ('0' if u == 0 else f'v[{a}:{a+3}]'))
        A('s_mov_b32 exec_lo, 0x00ff00ff\ns_mov_b32 exec_hi, 0x00ff00ff')
        for cb in range(5):
            for r in range(4):
                A(f'ds_write_b32 v10, v{acc+4*cb+r} offset:{L_YPART + 512*cb + 32*r}')
        A('s_mov_b64 exec, -1')
        A('s_waitcnt lgkmcnt(0)')
        A('s_barrier')
        s.stamp(5)
        l_fin, l_done = s.lab('fin'), s.lab('done')
        A('s_cmp_eq_u32 s63, 3')
        A(f's_cbranch_scc1 {l_fin}')
        A('v_cmp_gt_u32 vcc, 160, v76')
        A('s_and_saveexec_b64 s[60:61], vcc')
        A(f's_cbranch_execz {l_done}')
        for w in range(4):
            A(f'ds_read_b128 v[{16+4*w}:{19+4*w}], v78 offset:{L_YPART + 2560*w}')
        A('v_mov_b32 v12, 0x7fc00000')
        A('s_waitcnt lgkmcnt(0)')
        for r in range(4):
            A(f'v_add_f32 v{16+r}, v{16+r}, v{20+r}')
            A(f'v_add_f32 v{24+r}, v{24+r}, v{28+r}')
            A(f'v_add_f32 v{16+r}, v{16+r}, v{24+r}')
            A(f'v_cmp_eq_u32 vcc, -1, v{16+r}')
            A(f'v_cndmask_b32 v{16+r}, v{16+r}, v12, vcc')
        A(f'buffer_store_dwordx4 v[16:19], v77, s[44:47], s62 offen {s.pol_hs}')
        A(f'{l_done}:')
        s.stamp(6)
        s.stamp_store(7)
        A('s_endpgm')
        A(f'{l_fin}:')
        l_nf = s.lab('nofin')
        A('s_cmp_ge_u32 s67, 20')
        A(f's_cbranch_scc1 {l_nf}')
        A('s_mul_i32 s60, s65, 20\ns_add_u32 s60, s60, s67\ns_lshl_b32 s60, s60, 13')
        A('s_add_u32 s62, s60, 4096')
        A('v_lshlrev_b32 v9, 4, v0')
        s.srd(48, 26, 5120)
        A('s_mul_i32 s52, s65, 1280\ns_lshl_b32 s53, s67, 6\ns_add_u32 s52, s52, s53')
        A('v_lshlrev_b32 v10, 3, v0')
        lp, ld = s.lab('fp'), s.lab('fpd')
        A('s_mov_b32 s61, 0x100000')
        A(f'{lp}:')
        for t in range(8):
            A(f'buffer_load_dwordx4 v[{16+4*t}:{19+4*t}], v9, s[44:47], {"s60" if t < 4 else "s62"} offen offset:{(t%4)*1024} {s.pol_hl}')
        A('s_waitcnt vmcnt(0)')
        A('v_max3_u32 v48, v16, v17, v18')
        for i in range(19, 47, 2): A(f'v_max3_u32 v48, v48, v{i}, v{i+1}')
        A('v_max_u32 v48, v48, v47')
        A('v_cmp_eq_u32 vcc, -1, v48')
        A(f's_cbranch_vccz {ld}')
        A('s_sub_u32 s61, s61, 1\ns_cmp_lg_u32 s61, 0')
        A(f's_cbranch_scc1 {lp}')
        A(f'{ld}:')
        for r in range(4):
            A(f'v_add_f32 v{16+r}, v{16+r}, v{20+r}')
            A(f'v_add_f32 v{24+r}, v{24+r}, v{28+r}')
            A(f'v_add_f32 v{32+r}, v{32+r}, v{36+r}')
            A(f'v_add_f32 v{40+r}, v{40+r}, v{44+r}')
        for r in range(4):
            A(f'v_add_f32 v{16+r}, v{16+r}, v{24+r}')
            A(f'v_add_f32 v{32+r}, v{32+r}, v{40+r}')
        for r in range(4):
            A(f'v_add_f32 v{16+r}, v{16+r}, v{32+r}')
        for r in range(4): A(f'v_add_f32_dpp v{16+r}, v{16+r}, v{16+r} row_ror:8 row_mask:0xf bank_mask:0xf')
        for r in range(4): A(f'v_mov_b32 v{20+r}, v{16+r}')
        for r in range(4): A(f'v_permlane16_swap_b32 v{16+r}, v{20+r}')
        for r in range(4): A(f'v_add_f32 v{16+r}, v{16+r}, v{20+r}')
        for r in range(4): A(f'v_mov_b32 v{20+r}, v{16+r}')
        for r in range(4): A(f'v_permlane32_swap_b32 v{16+r}, v{20+r}')
        for r in range(4): A(f'v_add_f32 v{16+r}, v{16+r}, v{20+r}')
        for r in range(4): A(f'v_cvt_pk_bf16_f32 v{16+r}, v{16+r}, v{16+r}')
        for r in range(4): A(f'v_lshlrev_b32 v{16+r}, 16, v{16+r}')
        for r in range(4): A(f'v_mul_f32 v{16+r}, v{16+r}, v{88+r}')
        for r in range(4): A(f'v_cvt_pk_bf16_f32 v{16+r}, v{16+r}, v{16+r}')
        for r in range(4): A(f'v_lshlrev_b32 v{16+r}, 16, v{16+r}')
        for r in range(4): A(f'v_add_f32 v{16+r}, v{16+r}, v{92+r}')
        A('v_cvt_pk_bf16_f32 v16, v16, v17\nv_cvt_pk_bf16_f32 v17, v18, v19')
        A('s_mov_b64 exec, 0xff')
        A('buffer_store_dwordx2 v[16:17], v10, s[48:51], s52 offen')
        A('s_mov_b64 exec, -1')
        A(f'{l_nf}:')
        s.stamp(6)
        s.stamp_store(7)

    def text(s):
        s.main()
        bodyB = hz.fix(s.L); s.L = []
        s.prep()
        bodyA = hz.fix(s.L)
        def kd(name, nv):
            return [f'.amdhsa_kernel {name}', f'  .amdhsa_next_free_vgpr {nv}', '  .amdhsa_next_free_sgpr 96', f'  .amdhsa_accum_offset {nv}',
                    '  .amdhsa_group_segment_fixed_size 0', '  .amdhsa_kernarg_size 96', '  .amdhsa_user_sgpr_count 2',
                    '  .amdhsa_user_sgpr_kernarg_segment_ptr 1', '  .amdhsa_system_sgpr_workgroup_id_x 1',
                    '  .amdhsa_float_denorm_mode_32 3', '.end_amdhsa_kernel']
        out = [HEADER + f'; @launch kernel=prep_kernel grid=(256,1,1) block=(512,1,1) lds={LDS_A}\n'
                        f'; @launch kernel={NAME}_kernel grid=(256,1,1) block=(512,1,1) lds={LDS_B}',
               '.amdgcn_target "amdgcn-amd-amdhsa--gfx950"', '.text', f'.globl {NAME}_kernel', '.p2align 8', f'.type {NAME}_kernel,@function']
        out += bodyB
        out += ['.globl prep_kernel', '.p2align 8', '.type prep_kernel,@function']
        out += bodyA
        out += ['.section .rodata,"a"', '.p2align 6'] + kd(f'{NAME}_kernel', 256) + ['.p2align 6'] + kd('prep_kernel', 192)
        return '\n'.join(out) + '\n'

if __name__ == '__main__':
    import argparse
    ap = argparse.ArgumentParser()
    ap.add_argument('-o', default='cdna_kernels/' + NAME + '.s')
    ap.add_argument('--cfg', default='{}')
    a = ap.parse_args()
    g = Gen(**eval(a.cfg))
    open(a.o, 'w').write(g.text())
    print('wrote', a.o)
```

```python
import sys, os
sys.path.insert(0, os.path.dirname(os.path.abspath(__file__)))
import hz

NAME = 'recurrent_scan__gqa_block_cached__geglu_ffn__decode'

HEADER = '''; Kernarg layout for this problem (96 bytes, ptrs only, base s[0:1]):
;   offset  32: d_in[4] A_wo  shape=(4096, 640) dtype=bfloat16
;   offset  88: d_ws      workspace: q, FFN partials, hand-off mailboxes
; One workgroup per (batch, head, key-half): waves 0-3 stream K then V, waves 4-7 do the projections / FFN / hand-offs.
'''

L_QP    = 0x0000
L_XN    = 0x2000
L_ML    = 0x3400
L_WF    = 0x3440
L_FLAG  = 0x3480
L_QB    = 0x3500
L_HT    = 0x3600
L_OPART = 0x3700
L_YPART = 0x3F00
L_GX    = 0x6700
L_WG    = 0x6800
L_WU    = 0xB800
LDS_BYTES = 0x10800

W_YIN   = 0x000000
W_ML    = 0x140000
W_NONCE = 0x148000
W_FLAGQ = 0x149000
W_FLAGF = 0x14A000
W_FLAGP = 0x14B000
W_Q     = 0x180000
W_FPART = 0x200000
W_FX    = 0x320000
WS_SIZE = 0x360000
W_DBG   = 0x1000000

SCALE = 0x3db504f3
LOG2E = 0x3fb8aa3b

class Gen:
    def __init__(s, W=6, P=30, B=40, WO=3, WF=5, pol_kv='nt', pol_w='', pol_hl='sc1', pol_hs='sc1', dbg=False, stamps=False, prio=True, skip='', W0=None, fineF=False, WO4=None, pol_f=None, pol_q=None, WD=4):
        s.WD = WD
        s.fineF = fineF; s.WO4 = WO4 or WO; s.pol_f = pol_w if pol_f is None else pol_f; s.pol_q = pol_w if pol_q is None else pol_q
        s.L = []
        s.W, s.P, s.B, s.WO, s.WF = W, P, B, WO, WF
        s.W0 = W0 or W
        s.pol_kv, s.pol_w, s.pol_hl, s.pol_hs = pol_kv, pol_w, pol_hl, pol_hs
        s.dbg = dbg; s.stamps = stamps; s.prio = prio; s.skip = skip.split(',')
        s.nlab = 0
    def A(s, t):
        for l in t.split('\n'):
            l = l.strip()
            if l: s.L.append(('  ' + l) if not l.endswith(':') else l)
    def lab(s, base):
        s.nlab += 1
        return f'L_{base}_{s.nlab}'

    def allreduce(s, op, v, t):
        A = s.A
        ins = {'add': 'v_add_f32', 'max': 'v_max_f32'}[op]
        A(f'{ins}_dpp v{v}, v{v}, v{v} quad_perm:[1,0,3,2] row_mask:0xf bank_mask:0xf')
        A(f'{ins}_dpp v{v}, v{v}, v{v} quad_perm:[2,3,0,1] row_mask:0xf bank_mask:0xf')
        A(f'{ins}_dpp v{v}, v{v}, v{v} row_half_mirror row_mask:0xf bank_mask:0xf')
        A(f'{ins}_dpp v{v}, v{v}, v{v} row_mirror row_mask:0xf bank_mask:0xf')
        A(f'v_mov_b32 v{t}, v{v}')
        A(f'v_permlane16_swap_b32 v{v}, v{t}')
        A(f'{ins} v{v}, v{v}, v{t}')
        A(f'v_mov_b32 v{t}, v{v}')
        A(f'v_permlane32_swap_b32 v{v}, v{t}')
        A(f'{ins} v{v}, v{v}, v{t}')

    def reduce_hi3(s, v, t):
        A = s.A
        A(f'v_add_f32_dpp v{v}, v{v}, v{v} row_ror:8 row_mask:0xf bank_mask:0xf')
        A(f'v_mov_b32 v{t}, v{v}')
        A(f'v_permlane16_swap_b32 v{v}, v{t}')
        A(f'v_add_f32 v{v}, v{v}, v{t}')
        A(f'v_mov_b32 v{t}, v{v}')
        A(f'v_permlane32_swap_b32 v{v}, v{t}')
        A(f'v_add_f32 v{v}, v{v}, v{t}')

    def bf16r(s, dst, src):
        s.A(f'v_cvt_pk_bf16_f32 v{dst}, v{src}, v{src}')
        s.A(f'v_lshlrev_b32 v{dst}, 16, v{dst}')

    def srd(s, n, ptr, size):
        s.A(f's_mov_b32 s{n}, s{ptr}\ns_and_b32 s{n+1}, s{ptr+1}, 0xffff\ns_mov_b32 s{n+2}, {hex(size)}\ns_mov_b32 s{n+3}, 0x20000')

    def stamp(s, idx):
        if s.stamps: s.A(f's_memrealtime s[{86+2*idx}:{87+2*idx}]')

    def stamp_store(s, n):
        if not s.stamps: return
        A = s.A
        A('s_waitcnt lgkmcnt(0)')
        A('s_lshl_b32 s100, s2, 3\ns_add_u32 s100, s100, s3\ns_lshl_b32 s100, s100, 6')
        A(f's_add_u32 s100, s100, {hex(W_DBG)}')
        A('v_mov_b32 v1, s100')
        A('s_mov_b64 exec, 1')
        for i in range(n):
            A(f'v_mov_b32 v2, s{86+2*i}')
            A(f'global_store_dword v1, v2, s[30:31] offset:{4*i}')
        A('s_mov_b64 exec, -1')

    def masks_Md(s, base, jreg, t1, t2, mod8=False):
        A = s.A
        if mod8: A(f'v_and_b32 v{t1}, 7, v{jreg}')
        else: A(f'v_mov_b32 v{t1}, v{jreg}')
        A(f'v_and_b32 v{t2}, 1, v{t1}')
        A(f'v_cmp_eq_u32 vcc, 1, v{t2}')
        A(f'v_mov_b32 v{t2}, 0xffff')
        A(f'v_mov_b32 v{base}, 0xffff0000')
        A(f'v_cndmask_b32 v{t2}, v{t2}, v{base}, vcc')
        A(f'v_lshrrev_b32 v{t1}, 1, v{t1}')
        for d in range(4):
            A(f'v_cmp_eq_u32 vcc, {d}, v{t1}')
            A(f'v_cndmask_b32 v{base+d}, 0, v{t2}, vcc')

    def layernorm(s, xr, out_pairs, tb):
        A = s.A
        f = tb
        a, t = tb + 10, tb + 11
        for i in range(5):
            A(f'v_lshlrev_b32 v{f+2*i}, 16, v{xr+i}')
            A(f'v_and_b32 v{f+2*i+1}, 0xffff0000, v{xr+i}')
        A(f'v_add_f32 v{a}, v{f}, v{f+1}\nv_add_f32 v{t}, v{f+2}, v{f+3}')
        for i in range(4, 10, 2): A(f'v_add_f32 v{a}, v{a}, v{f+i}\nv_add_f32 v{t}, v{t}, v{f+i+1}')
        A(f'v_add_f32 v{a}, v{a}, v{t}')
        s.allreduce('add', a, t)
        A(f'v_mul_f32 v{a}, 0x3acccccd, v{a}')
        v, d = tb + 12, tb + 13
        A(f'v_sub_f32 v{d}, v{f}, v{a}\nv_mul_f32 v{v}, v{d}, v{d}')
        for i in range(1, 10):
            A(f'v_sub_f32 v{d}, v{f+i}, v{a}\nv_fmac_f32 v{v}, v{d}, v{d}')
        s.allreduce('add', v, t)
        A(f'v_mul_f32 v{v}, 0x3acccccd, v{v}')
        s.bf16r(v, v)
        A(f'v_add_f32 v{v}, 0x3727c5ac, v{v}')
        s.bf16r(v, v)
        A(f'v_sqrt_f32 v{v}, v{v}')
        s.bf16r(v, v)
        s.bf16r(a, a)
        A(f'v_rcp_f32 v{t}, v{v}')
        for i in range(10):
            A(f'v_sub_f32 v{f+i}, v{f+i}, v{a}')
        for i in range(5):
            A(f'v_cvt_pk_bf16_f32 v{out_pairs+i}, v{f+2*i}, v{f+2*i+1}')
        for i in range(5):
            A(f'v_lshlrev_b32 v{f+2*i}, 16, v{out_pairs+i}')
            A(f'v_and_b32 v{f+2*i+1}, 0xffff0000, v{out_pairs+i}')
        for i in range(10):
            A(f'v_mul_f32 v{d}, v{f+i}, v{t}')
            A(f'v_fma_f32 v{f+i}, -v{d}, v{v}, v{f+i}')
            A(f'v_fma_f32 v{f+i}, v{f+i}, v{t}, v{d}')
        for i in range(5):
            A(f'v_cvt_pk_bf16_f32 v{out_pairs+i}, v{f+2*i}, v{f+2*i+1}')

    def build(s):
        A = s.A
        A(f'{NAME}_kernel:')
        A('s_cmp_ge_u32 s2, 256')
        A('s_cbranch_scc1 L_end')
        s.stamp(0)
        A('s_load_dwordx16 s[8:23], s[0:1], 0')
        A('s_load_dwordx8 s[24:31], s[0:1], 64')
        A('v_lshrrev_b32 v1, 6, v0')
        A('v_and_b32 v0, 63, v0')
        A('v_readfirstlane_b32 s3, v1')
        lni = s.lab('noinit')
        A('s_cmp_lg_u32 s3, 0')
        A(f's_cbranch_scc1 {lni}')
        A('v_mov_b32 v2, -1\nv_cmp_gt_u32 vcc, 32, v0\nv_cndmask_b32 v2, 0, v2, vcc\nv_lshlrev_b32 v3, 2, v0')
        A(f'ds_write_b32 v3, v2 offset:{L_ML}')
        A(f'{lni}:')
        A('s_and_b32 s64, s2, 7\ns_lshr_b32 s68, s2, 3')
        A('s_and_b32 s69, s68, 3\ns_lshl_b32 s69, s69, 3\ns_add_u32 s64, s64, s69')
        A('s_lshr_b32 s65, s68, 2\ns_and_b32 s65, s65, 3')
        A('s_lshr_b32 s66, s68, 4')
        A('s_lshl_b32 s67, s64, 1\ns_add_u32 s67, s67, s66')
        A('s_waitcnt lgkmcnt(0)')
        A('s_barrier')
        A('s_cmp_ge_u32 s3, 4')
        A('s_cbranch_scc1 L_helper')
        s.streamer()
        A('L_helper:')
        s.helper()
        A('L_end:')
        A('s_endpgm')

    def streamer(s):
        A = s.A
        W, P, B, W0 = s.W, s.P, s.B, s.W0
        RING = 64
        assert RING + 4 * B <= 256 and P + W0 + 3 <= B + 1
        vKo, vVo = 1, 2
        vM = 4; vY = 8; vAcc = 24; vSc = 32; vO = 40; vYp = 44; vT = 52
        if s.prio: A('s_setprio 2')
        s.srd(32, 10, 0x8000000)
        s.srd(36, 12, 0x8000000)
        A(f'v_lshrrev_b32 v{vT}, 4, v0')
        A(f'v_lshlrev_b32 v{vT+3}, 2, v{vT}\nv_and_b32 v{vT+2}, 3, v0\nv_add_u32 v{vT+3}, v{vT+3}, v{vT+2}\nv_lshlrev_b32 v3, 4, v{vT+3}')
        A(f'v_lshlrev_b32 v{vT}, 6, v{vT}')
        A(f'v_bfe_u32 v{vT+1}, v0, 2, 2')
        A(f'v_lshlrev_b32 v{vT+1}, 8, v{vT+1}')
        A(f'v_lshlrev_b32 v{vT+2}, 4, v{vT+2}')
        A(f'v_add3_u32 v{vKo}, v{vT}, v{vT+1}, v{vT+2}')
        A(f'v_lshlrev_b32 v{vVo}, 4, v0')
        A('s_lshl_b32 s40, s65, 5\ns_add_u32 s40, s40, s64\ns_lshl_b32 s40, s40, 20')
        A('s_lshl_b32 s41, s66, 19\ns_add_u32 s40, s40, s41')
        A('s_lshl_b32 s41, s3, 12\ns_add_u32 s40, s40, s41')
        A('s_mov_b32 s41, s40')
        state = {'n': 0, 'win': W}
        def issue():
            n = state['n']; state['n'] += 1
            if n >= 256: return
            if n == 128: A('s_mov_b32 s41, s40')
            elif n % 4 == 0 and n > 0: A('s_add_u32 s41, s41, 0x4000')
            r = RING + 4 * (n % B)
            if n < 128:
                A(f'buffer_load_dwordx4 v[{r}:{r+3}], v{vKo}, s[32:35], s41 offen offset:{(n%4)*1024} {s.pol_kv}')
            else:
                A(f'buffer_load_dwordx4 v[{r}:{r+3}], v{vVo}, s[36:39], s41 offen offset:{(n%4)*1024} {s.pol_kv}')
        done = {'upto': -1}
        def paced_issue(w=None):
            w = w or W
            if state['n'] >= 256: return
            A(f's_waitcnt vmcnt({w-1})')
            done['upto'] = max(done['upto'], state['n'] - w)
            issue()
        def ensure(c):
            if c > done['upto']:
                A(f's_waitcnt vmcnt({state["n"] - 1 - c})')
                done['upto'] = c
        for _ in range(W0): issue()
        A(f'v_and_b32 v{vT}, 15, v0')
        s.masks_Md(vM, vT, vT+1, vT+2)
        A('s_mov_b32 s44, 0x22222222\ns_mov_b32 s45, 0x22222222')
        A('s_mov_b32 s46, 0x44444444\ns_mov_b32 s47, 0x44444444')
        A('s_mov_b32 s48, 0x88888888\ns_mov_b32 s49, 0x88888888')
        for t in range(4):
            m = 0x000F000F << (4 * t)
            A(f's_mov_b32 s{50+2*t}, {hex(m)}\ns_mov_b32 s{51+2*t}, {hex(m)}')
        for _ in range(P): paced_issue(W0)
        s.stamp(1)
        A('s_barrier')
        s.stamp(2)
        A(f'ds_read_b128 v[56:59], v3 offset:{L_QB}')
        paced_issue()
        A('s_waitcnt lgkmcnt(0)')
        if s.dbg:
            A(f's_lshl_b32 s60, s2, 12\ns_lshl_b32 s61, s3, 10\ns_add_u32 s60, s60, s61\ns_add_u32 s60, s60, {hex(W_DBG + 0x100000)}')
            A(f'v_lshlrev_b32 v8, 4, v0\nv_add_u32 v8, s60, v8')
            A(f'global_store_dwordx4 v8, v[56:59], s[30:31]')
            A('s_waitcnt vmcnt(0)')
        for t in range(4):
            for d in range(4):
                A(f'v_cndmask_b32 v{vY+4*t+d}, 0, v{56+d}, s[{50+2*t}:{51+2*t}]')
        def post(g):
            a = vAcc + 4 * (g & 1)
            t = vT
            A(f'v_cndmask_b32 v{t}, v{a}, v{a+1}, s[44:45]')
            A(f'v_cndmask_b32 v{t}, v{t}, v{a+2}, s[46:47]')
            A(f'v_cndmask_b32 v{t}, v{t}, v{a+3}, s[48:49]')
            A(f'v_add_f32_dpp v{t}, v{t}, v{t} quad_perm:[1,0,3,2] row_mask:0xf bank_mask:0xf')
            q4 = vSc + (g >> 2)
            if (g & 3) == 0:
                A(f'v_add_f32_dpp v{q4}, v{t}, v{t} quad_perm:[2,3,0,1] row_mask:0xf bank_mask:0xf')
            else:
                A(f'v_add_f32_dpp v{t}, v{t}, v{t} quad_perm:[2,3,0,1] row_mask:0xf bank_mask:0xf')
                A(f'v_cndmask_b32 v{q4}, v{q4}, v{t}, s[{42+2*(g&3)}:{43+2*(g&3)}]')
        for c in range(128):
            g, t = c >> 2, c & 3
            backlog = state['n'] - c
            if backlog <= W: paced_issue()
            elif c % 8 == 7: paced_issue()
            ensure(c)
            r = RING + 4 * (c % B)
            a = vAcc + 4 * (g & 1)
            cin = '0' if t == 0 else f'v[{a}:{a+3}]'
            A(f'v_mfma_f32_16x16x32_bf16 v[{a}:{a+3}], v[{r}:{r+3}], v[{vY+4*t}:{vY+4*t+3}], {cin}')
            if t == 1 and g > 0: post(g - 1)
        paced_issue()
        post(31)
        s.stamp(3)
        if s.dbg:
            A(f's_lshl_b32 s60, s2, 13\ns_lshl_b32 s61, s3, 11\ns_add_u32 s60, s60, s61\ns_add_u32 s60, s60, {hex(W_DBG + 0x200000)}')
            A(f'v_lshlrev_b32 v{vT}, 2, v0\nv_add_u32 v{vT}, s60, v{vT}')
            for i in range(8):
                A(f'global_store_dword v{vT}, v{vSc+i}, s[30:31] offset:{256*i}')
            A('s_waitcnt vmcnt(0)')
        def round_pairs():
            for i in range(4):
                A(f'v_cvt_pk_bf16_f32 v{vT+i}, v{vSc+2*i}, v{vSc+2*i+1}')
            for i in range(4):
                A(f'v_lshlrev_b32 v{vSc+2*i}, 16, v{vT+i}')
                A(f'v_and_b32 v{vSc+2*i+1}, 0xffff0000, v{vT+i}')
        round_pairs()
        for i in range(8): A(f'v_mul_f32 v{vSc+i}, {hex(SCALE)}, v{vSc+i}')
        round_pairs()
        m, t2 = vT + 4, vT + 5
        A(f'v_max3_f32 v{m}, v{vSc}, v{vSc+1}, v{vSc+2}')
        A(f'v_max3_f32 v{m}, v{m}, v{vSc+3}, v{vSc+4}')
        A(f'v_max3_f32 v{m}, v{m}, v{vSc+5}, v{vSc+6}')
        A(f'v_max_f32 v{m}, v{m}, v{vSc+7}')
        s.allreduce('max', m, t2)
        paced_issue()
        for i in range(8): A(f'v_sub_f32 v{vSc+i}, v{vSc+i}, v{m}')
        for i in range(8): A(f'v_mul_f32 v{vSc+i}, {hex(LOG2E)}, v{vSc+i}')
        for i in range(8): A(f'v_exp_f32 v{vSc+i}, v{vSc+i}')
        l = m + 1
        t3 = vT + 6
        A(f'v_add_f32 v{l}, v{vSc}, v{vSc+1}')
        A(f'v_add_f32 v{t3}, v{vSc+2}, v{vSc+3}')
        A(f'v_add_f32 v{l}, v{l}, v{vSc+4}')
        A(f'v_add_f32 v{t3}, v{t3}, v{vSc+5}')
        A(f'v_add_f32 v{l}, v{l}, v{vSc+6}')
        A(f'v_add_f32 v{t3}, v{t3}, v{vSc+7}')
        A(f'v_add_f32 v{l}, v{l}, v{t3}')
        for i in range(8): A(f'v_cvt_pk_bf16_f32 v{vSc+i}, v{vSc+i}, v{vSc+i}')
        s.allreduce('add', l, t3)
        paced_issue()
        A(f'v_cmp_eq_u32 vcc, -1, v{m}')
        A(f'v_mov_b32 v{t3}, 0x7fc00000')
        A(f'v_cndmask_b32 v{m}, v{m}, v{t3}, vcc')
        A(f's_lshl_b32 s60, s3, 3\nv_mov_b32 v{t3}, s60')
        A(f'ds_write_b64 v{t3}, v[{m}:{m+1}] offset:{L_ML}')
        def ybuild(c):
            g, t = (c - 128) >> 2, c & 3
            y = vYp + 4 * (c & 1)
            for d in range(4):
                A(f'v_and_b32_dpp v{y+d}, v{vSc+(g>>2)}, v{vM+d} row_newbcast:{4*t+(g&3)} row_mask:0xf bank_mask:0xf')
        ybuild(128)
        for c in range(128, 256):
            if state['n'] < 256:
                if state['n'] - c <= W: paced_issue()
                elif c % 4 == 3: paced_issue()
            if c == 240:
                A(f's_lshl_b32 s60, s3, 2\nv_mov_b32 v{vT}, s60')
                A(f'ds_read_b32 v{vT+1}, v{vT} offset:{L_WF}')
            if c == 244:
                A(f'v_and_b32 v{vT+2}, 3, v0\nv_lshlrev_b32 v{vT+2}, 5, v{vT+2}')
                A(f'v_lshrrev_b32 v{vT+3}, 4, v0\nv_lshlrev_b32 v{vT+3}, 3, v{vT+3}')
                A(f'v_bfe_u32 v{vT+4}, v0, 2, 1')
                A(f'v_add3_u32 v{vT+2}, v{vT+2}, v{vT+3}, v{vT+4}')
                A(f'v_lshlrev_b32 v{vT+2}, 2, v{vT+2}')
                A(f's_lshl_b32 s60, s3, 9\nv_add_u32 v{vT+2}, s60, v{vT+2}')
            if c + 1 < 256: ybuild(c + 1)
            ensure(c)
            r = RING + 4 * (c % B)
            y = vYp + 4 * (c & 1)
            cin = '0' if c == 128 else f'v[{vO}:{vO+3}]'
            A(f'v_mfma_f32_16x16x32_bf16 v[{vO}:{vO+3}], v[{r}:{r+3}], v[{y}:{y+3}], {cin}')
        s.stamp(4)
        lp, ld = s.lab('wf'), s.lab('wfd')
        A('s_waitcnt lgkmcnt(0)')
        A(f'v_cmp_ne_u32 vcc, -1, v{vT+1}')
        A(f's_cbranch_vccnz {ld}')
        A('s_mov_b32 s61, 0x400000')
        A(f'{lp}:')
        A(f'ds_read_b32 v{vT+1}, v{vT} offset:{L_WF}')
        A('s_waitcnt lgkmcnt(0)')
        A(f'v_cmp_ne_u32 vcc, -1, v{vT+1}')
        A(f's_cbranch_vccnz {ld}')
        A('s_sleep 1')
        A('s_sub_u32 s61, s61, 1\ns_cmp_lg_u32 s61, 0')
        A(f's_cbranch_scc1 {lp}')
        A(f'{ld}:')
        for r in range(4): A(f'v_mul_f32 v{vO+r}, v{vO+r}, v{vT+1}')
        A('s_mov_b32 exec_lo, 0x00ff00ff\ns_mov_b32 exec_hi, 0x00ff00ff')
        for r in range(4): A(f'ds_write_b32 v{vT+2}, v{vO+r} offset:{L_OPART+8*r}')
        A('s_mov_b64 exec, -1')
        A('s_waitcnt lgkmcnt(0)')
        A('s_barrier')
        s.stamp(5)
        s.stamp_store(6)
        A('s_endpgm')

    def lds_flag_wait(s, off, vt):
        A = s.A
        lp, ld = s.lab('fl'), s.lab('fld')
        A(f'v_and_b32 v{vt}, 3, v0\nv_lshlrev_b32 v{vt}, 2, v{vt}')
        A('s_mov_b32 s61, 0x1000000')
        A(f'{lp}:')
        A(f'ds_read_b32 v{vt+1}, v{vt} offset:{off}')
        A('s_waitcnt lgkmcnt(0)')
        A(f'v_cmp_ne_u32 vcc, 1, v{vt+1}')
        A(f's_cbranch_vccz {ld}')
        A('s_sub_u32 s61, s61, 1\ns_cmp_lg_u32 s61, 0')
        A(f's_cbranch_scc1 {lp}')
        A(f'{ld}:')

    def spoll(s, n, check, sleep=1):
        A = s.A
        lp, ld = s.lab('sp'), s.lab('spd')
        A('s_add_u32 s4, s30, s60\ns_addc_u32 s5, s31, 0')
        A('s_mov_b32 s61, 0x200000')
        A(f'{lp}:')
        A(f's_load_dwordx{n} s[76:{76+n-1}], s[4:5], 0 glc')
        A('s_waitcnt lgkmcnt(0)')
        A(f's_xor_b32 s6, s{76+check[0]}, s58')
        for c in check[1:]: A(f's_xor_b32 s7, s{76+c}, s58\ns_or_b32 s6, s6, s7')
        A('s_cmp_eq_u32 s6, 0')
        A(f's_cbranch_scc1 {ld}')
        if sleep: A(f's_sleep {sleep}')
        A('s_sub_u32 s61, s61, 1\ns_cmp_lg_u32 s61, 0')
        A(f's_cbranch_scc1 {lp}')
        A(f'{ld}:')

    def flag_store(s, lanes, vaddr, soff):
        A = s.A
        A(f'v_mov_b32 v15, s58')
        A(f's_mov_b64 exec, {lanes}')
        A(f'buffer_store_dword v15, v{vaddr}, s[44:47], {soff} offen sc1')
        A('s_mov_b64 exec, -1')

    def helper(s):
        A = s.A
        DATA = 96
        vM = 4
        A('s_sub_u32 s63, s3, 4')
        A('s_mov_b32 s59, 0')
        A(f's_add_u32 s4, s30, {hex(W_NONCE)}\ns_addc_u32 s5, s31, 0')
        A('s_load_dword s58, s[4:5], 0')
        s.srd(32, 14, 640 * 4096 * 2)
        s.srd(40, 8, 5120)
        s.srd(44, 30, WS_SIZE)
        A('s_mul_i32 s60, s63, 1280')
        A('v_lshlrev_b32 v1, 2, v0')
        for t in range(5):
            A(f'buffer_load_dword v{16+t}, v1, s[40:43], s60 offen offset:{256*t}')
        A('v_lshrrev_b32 v2, 4, v0\nv_lshlrev_b32 v2, 13, v2\nv_and_b32 v3, 15, v0\nv_lshlrev_b32 v3, 4, v3\nv_add_u32 v2, v2, v3')
        A('s_lshl_b32 s57, s65, 1\ns_add_u32 s57, s57, s66')
        A('s_mul_i32 s56, s57, 80\ns_mul_i32 s60, s63, 20\ns_add_u32 s56, s56, s60')
        A('s_lshl_b32 s60, s56, 13\ns_lshl_b32 s61, s64, 8\ns_add_u32 s60, s60, s61')
        for u in range(5):
            A(f'buffer_load_dwordx4 v[{DATA+4*u}:{DATA+4*u+3}], v2, s[32:35], s60 offen {s.pol_q}')
            if u < 4: A('s_add_u32 s60, s60, 0x8000')
        s.srd(36, 16, 4096 * 640 * 2)
        A('v_and_b32 v9, 15, v0')
        s.masks_Md(vM, 9, 10, 11, mod8=True)
        A('s_waitcnt vmcnt(5) lgkmcnt(0)')
        A('s_add_u32 s58, s58, 1')
        s.layernorm(16, 24, 32)
        A(f's_mul_i32 s60, s63, 1280\nv_add_u32 v9, s60, v1')
        for t in range(5):
            A(f'ds_write_b32 v9, v{24+t} offset:{L_XN + 256*t}')
        A(f's_lshl_b32 s60, s63, 2\nv_mov_b32 v9, s60\nv_mov_b32 v10, 1')
        A(f'ds_write_b32 v9, v10 offset:{L_FLAG}')
        A('v_bfe_u32 v12, v0, 3, 1\nv_mul_u32_u24 v12, 1280, v12\nv_lshrrev_b32 v13, 4, v0\nv_lshlrev_b32 v13, 1, v13\nv_add_u32 v12, v12, v13')
        A('s_lshl_b32 s60, s56, 1\nv_add_u32 v12, s60, v12')
        s.lds_flag_wait(L_FLAG, 14)
        for bp in range(2):
            for u in range(5):
                A(f'ds_read_u16 v{40+5*bp+u}, v12 offset:{L_XN + bp*2560 + u*8}')
        A('v_bfe_u32 v9, v0, 3, 1\nv_lshlrev_b32 v9, 9, v9\nv_lshrrev_b32 v10, 4, v0\nv_lshlrev_b32 v10, 7, v10\nv_and_b32 v11, 7, v0\nv_lshlrev_b32 v11, 2, v11\nv_add3_u32 v9, v9, v10, v11')
        A('s_lshl_b32 s60, s63, 11\nv_add_u32 v9, s60, v9')
        A('s_waitcnt lgkmcnt(0)')
        for k in range(10): A(f'v_lshl_or_b32 v{40+k}, v{40+k}, 16, v{40+k}')
        A('s_waitcnt vmcnt(0)')
        for u in range(5):
            for bp in range(2):
                y = 60 + 4 * ((2 * u + bp) & 3)
                for d in range(4): A(f'v_and_b32 v{y+d}, v{40+5*bp+u}, v{vM+d}')
                a = 52 + 4 * bp
                A(f'v_mfma_f32_16x16x32_bf16 v[{a}:{a+3}], v[{DATA+4*u}:{DATA+4*u+3}], v[{y}:{y+3}], ' + ('0' if u == 0 else f'v[{a}:{a+3}]'))
        for bp in range(2):
            for r in range(4):
                A(f'ds_write_b32 v9, v{52+4*bp+r} offset:{L_QP + bp*1024 + r*32}')
        A(f's_lshl_b32 s60, s63, 2\nv_mov_b32 v10, s60\nv_mov_b32 v11, 1')
        A(f'ds_write_b32 v10, v11 offset:{L_FLAG + 16}')
        A('s_lshl_b32 s69, s64, 2\ns_add_u32 s69, s69, s63\ns_lshl_b32 s69, s69, 3\ns_add_u32 s69, s69, s57')
        A(f's_lshl_b32 s62, s69, 9\ns_add_u32 s62, s62, {hex(W_Q)}')
        A('v_lshlrev_b32 v13, 3, v0')
        A('s_lshl_b32 s60, s63, 9\nv_add_u32 v12, s60, v13')
        s.lds_flag_wait(L_FLAG + 16, 14)
        for w in range(4):
            A(f'ds_read_b64 v[{16+2*w}:{17+2*w}], v12 offset:{L_QP + 2048*w}')
        A('s_waitcnt lgkmcnt(0)')
        A('v_add_f32 v16, v16, v18\nv_add_f32 v17, v17, v19\nv_add_f32 v20, v20, v22\nv_add_f32 v21, v21, v23')
        A('v_add_f32 v24, v16, v20\nv_add_f32 v25, v17, v21')
        A(f'buffer_store_dwordx2 v[24:25], v13, s[44:47], s62 offen {s.pol_hs}')
        A(f's_lshl_b32 s62, s69, 2\ns_add_u32 s62, s62, {hex(W_FLAGQ)}\nv_mov_b32 v14, 0')
        A('s_waitcnt vmcnt(0)')
        s.flag_store('1', 14, 's62')
        lq = s.lab('noq')
        A('s_cmp_lg_u32 s63, 0')
        A(f's_cbranch_scc1 {lq}')
        A(f's_lshl_b32 s69, s64, 2\ns_add_u32 s69, s69, s65')
        A(f's_lshl_b32 s60, s69, 5\ns_add_u32 s60, s60, {hex(W_FLAGQ)}')
        s.spoll(8, list(range(8)))
        A(f's_lshl_b32 s60, s69, 12\ns_add_u32 s60, s60, {hex(W_Q)}')
        A('v_lshlrev_b32 v13, 4, v0')
        for t in range(4):
            A(f'buffer_load_dwordx4 v[{16+4*t}:{19+4*t}], v13, s[44:47], s60 offen offset:{t*1024} {s.pol_hl}')
        A('v_and_b32 v12, 31, v0\nv_lshlrev_b32 v12, 3, v12')
        A('s_waitcnt vmcnt(0)')
        for k in range(4):
            A(f'v_add_f32 v{16+k}, v{16+k}, v{20+k}\nv_add_f32 v{24+k}, v{24+k}, v{28+k}')
        for k in range(4): A(f'v_add_f32 v{16+k}, v{16+k}, v{24+k}')
        for k in range(4): A(f'v_mov_b32 v{20+k}, v{16+k}')
        for k in range(4): A(f'v_permlane32_swap_b32 v{16+k}, v{20+k}')
        for k in range(4): A(f'v_add_f32 v{16+k}, v{16+k}, v{20+k}')
        A('v_cvt_pk_bf16_f32 v16, v16, v17\nv_cvt_pk_bf16_f32 v17, v18, v19')
        A(f'ds_write_b64 v12, v[16:17] offset:{L_QB}')
        A(f'{lq}:')
        A('s_waitcnt lgkmcnt(0)')
        s.stamp(1)
        A('s_barrier')
        l_wo = s.lab('wo')
        s.ffn(l_wo)
        A(f'{l_wo}:')
        A('v_lshrrev_b32 v2, 4, v0\nv_mul_u32_u24 v2, 1280, v2\nv_and_b32 v3, 15, v0\nv_lshlrev_b32 v3, 4, v3\nv_add_u32 v2, v2, v3')
        A('s_lshl_b32 s60, s64, 7\ns_lshl_b32 s61, s63, 5\ns_add_u32 s60, s60, s61\ns_mul_i32 s60, s60, 1280')
        def wo_loads(win):
            n = 0
            for u in range(8):
                for cb in range(5):
                    if n >= win: A(f's_waitcnt vmcnt({win-1})')
                    r = DATA + 4 * (u * 5 + cb)
                    if 'wo' not in s.skip: A(f'buffer_load_dwordx4 v[{r}:{r+3}], v2, s[36:39], s60 offen offset:{cb*256} {s.pol_w}')
                    n += 1
                if u < 7: A('s_add_u32 s60, s60, 5120')
        if s.WO4 != s.WO:
            l4, l5 = s.lab('wo4'), s.lab('wod')
            A('s_cmp_eq_u32 s59, 1')
            A(f's_cbranch_scc1 {l4}')
            wo_loads(s.WO)
            A(f's_branch {l5}')
            A(f'{l4}:')
            wo_loads(s.WO4)
            A(f'{l5}:')
        else:
            wo_loads(s.WO)
        s.stamp(2)
        l_tail, l_w7 = s.lab('tail'), s.lab('w7')
        A('s_cmp_eq_u32 s63, 3')
        A(f's_cbranch_scc1 {l_w7}')
        A('s_cmp_lg_u32 s63, 1')
        A(f's_cbranch_scc1 {l_tail}')
        s.mlx()
        A(f's_branch {l_tail}')
        A(f'{l_w7}:')
        s.consumer_prep(l_tail)
        A(f'{l_tail}:')
        s.tail()

    def ffn(s, l_skip):
        A = s.A
        DATA = 96
        if 'ffn' in s.skip: return
        A('s_cmp_lg_u32 s66, 0')
        A(f's_cbranch_scc1 {l_skip}')
        A('s_and_b32 s70, s2, 7\ns_lshl_b32 s61, s65, 3\ns_add_u32 s70, s70, s61')
        A('s_cmp_ge_u32 s70, 27')
        A(f's_cbranch_scc1 {l_skip}')
        A('s_lshr_b32 s71, s2, 3\ns_and_b32 s71, s71, 3')
        A('s_lshl_b32 s68, s70, 2\ns_add_u32 s68, s68, s71')
        s.srd(48, 20, 640 * 1728 * 2)
        s.srd(52, 22, 640 * 1728 * 2)
        s.srd(72, 24, 1728 * 640 * 2)
        A('v_lshrrev_b32 v9, 3, v0\nv_mul_u32_u24 v9, 3456, v9\nv_and_b32 v10, 7, v0\nv_lshlrev_b32 v10, 4, v10\nv_add_u32 v9, v9, v10')
        A(f's_mul_i32 s60, s71, {160*3456}\ns_lshl_b32 s61, s70, 7\ns_add_u32 s60, s60, s61\ns_mul_i32 s61, s63, {40*3456}\ns_add_u32 s60, s60, s61')
        A(f's_mul_i32 s62, s63, 5120\ns_add_u32 s69, s62, {L_WU}\ns_add_u32 s62, s62, {L_WG}')
        n = 0
        for t in range(5):
            for srd, mreg in (('s[48:51]', 's62'), ('s[52:55]', 's69')):
                if n >= s.WF: A(f's_waitcnt vmcnt({s.WF-1})')
                A(f's_mov_b32 m0, {mreg}')
                A(f'buffer_load_dwordx4 v9, {srd}, s60 offen {s.pol_f} lds')
                n += 1
            if t < 4: A(f's_add_u32 s60, s60, {8*3456}\ns_add_u32 s62, s62, 1024\ns_add_u32 s69, s69, 1024')
        lw4 = s.lab('w4')
        A('s_cmp_eq_u32 s63, 0')
        A(f's_cbranch_scc1 {lw4}')
        A('s_waitcnt vmcnt(0)')
        A(f's_lshl_b32 s60, s63, 2\nv_mov_b32 v10, s60\nv_mov_b32 v11, 1')
        A(f'ds_write_b32 v10, v11 offset:{L_FLAG + 32}')
        A(f's_branch {l_skip}')
        A(f'{lw4}:')
        A('s_mov_b32 s59, 1')
        A('v_and_b32 v9, 3, v0\nv_mul_u32_u24 v9, 1280, v9\nv_lshrrev_b32 v10, 4, v0\nv_lshlrev_b32 v11, 3, v10\nv_add_u32 v9, v9, v11')
        A('s_mul_i32 s60, s71, 320\nv_add_u32 v9, s60, v9')
        A('v_lshlrev_b32 v10, 2, v10\nv_bfe_u32 v11, v0, 2, 2\nv_add_u32 v10, v10, v11\nv_lshlrev_b32 v10, 7, v10\nv_and_b32 v11, 3, v0\nv_lshlrev_b32 v11, 3, v11\nv_add_u32 v10, v10, v11')
        A(f'v_add_u32 v8, {L_WU - L_WG}, v10')
        A('s_waitcnt vmcnt(0)')
        A(f'v_mov_b32 v12, 0\nv_mov_b32 v13, 1\nds_write_b32 v12, v13 offset:{L_FLAG + 32}')
        s.lds_flag_wait(L_FLAG + 32, 14)
        if s.fineF: s.stamp(3)
        ag, au = 12, 28
        for ks in range(5):
            o = 44
            A(f'ds_read_b64 v[{o}:{o+1}], v9 offset:{L_XN + 64*ks}')
            A(f'ds_read_b64 v[{o+2}:{o+3}], v9 offset:{L_XN + 64*ks + 32}')
            for ct in range(4):
                q = 48 + 8 * ct
                A(f'ds_read_b64_tr_b16 v[{q}:{q+1}], v10 offset:{L_WG + 4096*ks + 32*ct}')
                A(f'ds_read_b64_tr_b16 v[{q+2}:{q+3}], v10 offset:{L_WG + 4096*ks + 32*ct + 2048}')
                A(f'ds_read_b64_tr_b16 v[{q+4}:{q+5}], v8 offset:{L_WG + 4096*ks + 32*ct}')
                A(f'ds_read_b64_tr_b16 v[{q+6}:{q+7}], v8 offset:{L_WG + 4096*ks + 32*ct + 2048}')
                if ct == 2: A('s_waitcnt lgkmcnt(6)')
            A('s_waitcnt lgkmcnt(0)')
            for ct in range(4):
                q = 48 + 8 * ct
                A(f'v_mfma_f32_16x16x32_bf16 v[{ag+4*ct}:{ag+4*ct+3}], v[{o}:{o+3}], v[{q}:{q+3}], ' + ('0' if ks == 0 else f'v[{ag+4*ct}:{ag+4*ct+3}]'))
                A(f'v_mfma_f32_16x16x32_bf16 v[{au+4*ct}:{au+4*ct+3}], v[{o}:{o+3}], v[{q+4}:{q+7}], ' + ('0' if ks == 0 else f'v[{au+4*ct}:{au+4*ct+3}]'))
        A('s_mov_b32 s76, 0xffff0000\ns_mov_b32 s77, 0\ns_mov_b32 s78, 0\ns_mov_b32 s79, 0xffff\ns_mov_b32 s80, 0\ns_mov_b32 s81, 0xffff0000')
        A('v_lshlrev_b32 v9, 3, v0')
        A(f's_lshl_b32 s62, s70, 13\ns_lshl_b32 s69, s71, 9\ns_add_u32 s62, s62, s69\ns_add_u32 s62, s62, {hex(W_FX)}')
        for ct in range(4):
            o = 48 + 2 * ct
            for base, dst in ((ag, o), (au, o + 1)):
                a = base + 4 * ct
                A(f'v_cndmask_b32 v{dst}, v{a}, v{a+1}, s[76:77]')
                A(f'v_cndmask_b32 v{dst}, v{dst}, v{a+2}, s[78:79]')
                A(f'v_cndmask_b32 v{dst}, v{dst}, v{a+3}, s[80:81]')
            A(f'buffer_store_dwordx2 v[{o}:{o+1}], v9, s[44:47], s62 offen {s.pol_hs}')
            if ct < 3: A('s_add_u32 s62, s62, 2048')
        A('v_lshrrev_b32 v2, 4, v0\nv_mul_u32_u24 v2, 1280, v2\nv_and_b32 v3, 15, v0\nv_lshlrev_b32 v3, 4, v3\nv_add_u32 v2, v2, v3')
        A('s_mul_i32 s60, s68, 20480')
        for u in range(4):
            for cb in range(5):
                r = DATA + 4 * (u * 5 + cb)
                A(f'buffer_load_dwordx4 v[{r}:{r+3}], v2, s[72:75], s60 offen offset:{cb*256} {s.pol_f}')
            if u < 3: A('s_add_u32 s60, s60, 5120')
        A(f's_lshl_b32 s62, s70, 7\ns_lshl_b32 s69, s71, 2\ns_add_u32 s62, s62, s69\ns_add_u32 s62, s62, {hex(W_FLAGF)}\nv_lshlrev_b32 v14, 4, v0')
        A('s_waitcnt vmcnt(20)')
        s.flag_store('0xf', 14, 's62')
        if s.fineF: s.stamp(4)
        A(f's_lshl_b32 s60, s70, 7\ns_lshl_b32 s69, s71, 4\ns_add_u32 s60, s60, s69\ns_add_u32 s60, s60, {hex(W_FLAGF)}')
        s.spoll(4, [0, 1, 2, 3], sleep=2)
        A(f's_lshl_b32 s60, s68, 11\ns_add_u32 s60, s60, {hex(W_FX)}')
        for t in range(4):
            A(f'buffer_load_dwordx2 v[{12+2*t}:{13+2*t}], v9, s[44:47], s60 offen offset:{t*512} {s.pol_hl}')
        A('s_waitcnt vmcnt(0)')
        if s.fineF: s.stamp(5)
        A('v_add_f32 v12, v12, v14\nv_add_f32 v16, v16, v18\nv_add_f32 v12, v12, v16')
        A('v_add_f32 v13, v13, v15\nv_add_f32 v17, v17, v19\nv_add_f32 v14, v13, v17')
        g_, u_, t0, t1 = 12, 14, 20, 21
        s.bf16r(g_, g_)
        s.bf16r(u_, u_)
        A(f'v_mul_f32 v{t0}, v{g_}, v{g_}\nv_mul_f32 v{t0}, v{t0}, v{g_}')
        A(f'v_mov_b32 v{t1}, 0x3d372713\nv_fma_f32 v{t0}, v{t0}, v{t1}, v{g_}')
        A(f'v_mul_f32 v{t0}, 0x3f4c422a, v{t0}')
        A(f'v_mul_f32 v{t0}, 0x4038aa3b, v{t0}')
        A(f'v_exp_f32 v{t0}, v{t0}')
        A(f'v_add_f32 v{t0}, 1.0, v{t0}')
        A(f'v_rcp_f32 v{t0}, v{t0}')
        A(f'v_fma_f32 v{t0}, v{t0}, -2.0, 1.0')
        A(f'v_add_f32 v{t0}, 1.0, v{t0}')
        A(f'v_mul_f32 v{t1}, 0.5, v{g_}')
        A(f'v_mul_f32 v{t0}, v{t1}, v{t0}')
        s.bf16r(t0, t0)
        A(f'v_mul_f32 v{t0}, v{t0}, v{u_}')
        A(f'v_cvt_pk_bf16_f32 v{g_}, v{t0}, v{t0}')
        A('v_lshrrev_b32 v9, 4, v0\nv_lshlrev_b32 v9, 6, v9\nv_and_b32 v10, 3, v0\nv_lshlrev_b32 v10, 4, v10\nv_bfe_u32 v11, v0, 2, 2\nv_lshlrev_b32 v11, 2, v11\nv_add3_u32 v9, v9, v10, v11')
        A(f'ds_write_b32 v9, v{g_} offset:{L_HT}')
        if s.dbg:
            A(f's_lshl_b32 s60, s68, 8\ns_add_u32 s60, s60, {hex(W_DBG + 0x500000)}')
            A('v_lshlrev_b32 v10, 2, v0\nv_add_u32 v10, s60, v10')
            A(f'global_store_dword v10, v{g_}, s[30:31]')
        A('v_bfe_u32 v9, v0, 3, 1\nv_lshlrev_b32 v9, 2, v9\nv_lshrrev_b32 v10, 4, v0\nv_add_u32 v9, v9, v10\nv_lshlrev_b32 v9, 4, v9')
        A('s_waitcnt lgkmcnt(0)')
        A(f'ds_read_b128 v[12:15], v9 offset:{L_HT}')
        A(f'ds_read_b128 v[16:19], v9 offset:{L_HT + 128}')
        A('v_bfe_u32 v9, v0, 3, 1\nv_mul_u32_u24 v9, 640, v9\nv_lshrrev_b32 v10, 4, v0\nv_lshlrev_b32 v10, 5, v10\nv_and_b32 v11, 7, v0\nv_add3_u32 v9, v9, v10, v11\nv_lshlrev_b32 v9, 2, v9')
        A('s_waitcnt vmcnt(0) lgkmcnt(0)')
        for u in range(4):
            for bp in range(2):
                y = 60 + 4 * ((2 * u + bp) & 3)
                for d in range(4): A(f'v_and_b32 v{y+d}, v{12+4*bp+u}, v{4+d}')
                for cb in range(5):
                    a = 20 + 8 * cb + 4 * bp
                    r = DATA + 4 * (u * 5 + cb)
                    A(f'v_mfma_f32_16x16x32_bf16 v[{a}:{a+3}], v[{r}:{r+3}], v[{y}:{y+3}], ' + ('0' if u == 0 else f'v[{a}:{a+3}]'))
        for cb in range(5):
            for bp in range(2):
                for r in range(4):
                    A(f'ds_write_b32 v9, v{20+8*cb+4*bp+r} offset:{L_YPART + bp*5120 + cb*512 + r*32}')
        A('s_waitcnt lgkmcnt(0)')
        A('v_lshlrev_b32 v9, 4, v0')
        A(f's_mul_i32 s60, s68, 10240\ns_add_u32 s60, s60, {hex(W_FPART)}')
        for t in range(10):
            A(f'ds_read_b128 v[{12+4*t}:{15+4*t}], v9 offset:{L_YPART + 1024*t}')
        A('s_waitcnt lgkmcnt(0)')
        for t in range(10):
            A(f'buffer_store_dwordx4 v[{12+4*t}:{15+4*t}], v9, s[44:47], s60 offen offset:{(t%4)*1024} {s.pol_hs}')
            if t % 4 == 3: A('s_add_u32 s60, s60, 4096')
        A(f's_lshl_b32 s62, s68, 2\ns_add_u32 s62, s62, {hex(W_FLAGP)}\nv_mov_b32 v9, 0')
        A('s_waitcnt vmcnt(0)')
        s.flag_store('1', 9, 's62')
        if s.fineF: s.stamp(6)

    def wait_ml(s):
        A = s.A
        lp, ld = s.lab('ml'), s.lab('mld')
        A(f'v_and_b32 v9, 3, v0\nv_lshlrev_b32 v9, 3, v9')
        A('s_mov_b32 s61, 0x400000')
        A(f'{lp}:')
        A(f'ds_read_b64 v[10:11], v9 offset:{L_ML}')
        A('s_waitcnt lgkmcnt(0)')
        A('v_cmp_eq_u32 vcc, -1, v10')
        A(f's_cbranch_vccz {ld}')
        A('s_sleep 16')
        A('s_sub_u32 s61, s61, 1\ns_cmp_lg_u32 s61, 0')
        A(f's_cbranch_scc1 {lp}')
        A(f'{ld}:')

    def mlx(s):
        A = s.A
        s.wait_ml()
        A('v_mov_b32 v12, v10')
        A('v_max_f32_dpp v12, v12, v12 quad_perm:[1,0,3,2] row_mask:0xf bank_mask:0xf')
        A('v_max_f32_dpp v12, v12, v12 quad_perm:[2,3,0,1] row_mask:0xf bank_mask:0xf')
        A(f'v_sub_f32 v14, v10, v12\nv_mul_f32 v14, {hex(LOG2E)}, v14\nv_exp_f32 v14, v14')
        A('v_mul_f32 v14, v14, v11')
        A('v_add_f32_dpp v14, v14, v14 quad_perm:[1,0,3,2] row_mask:0xf bank_mask:0xf')
        A('v_add_f32_dpp v14, v14, v14 quad_perm:[2,3,0,1] row_mask:0xf bank_mask:0xf')
        A('v_mov_b32 v13, s58\nv_mov_b32 v15, s58')
        A(f's_xor_b32 s60, s2, 128\ns_lshl_b32 s60, s60, 7\ns_add_u32 s60, s60, {hex(W_ML)}')
        A('v_mov_b32 v9, 0')
        A('s_mov_b64 exec, 1')
        A(f'buffer_store_dwordx4 v[12:15], v9, s[44:47], s60 offen {s.pol_hs}')
        A('s_mov_b64 exec, -1')
        A(f's_lshl_b32 s60, s2, 7\ns_add_u32 s60, s60, {hex(W_ML)}')
        s.spoll(4, [1, 3], sleep=4)
        A('v_mov_b32 v22, s76\nv_mov_b32 v23, s78')
        A('v_max_f32 v16, v12, v22')
        A(f'v_sub_f32 v17, v12, v16\nv_mul_f32 v17, {hex(LOG2E)}, v17\nv_exp_f32 v17, v17')
        A(f'v_sub_f32 v18, v22, v16\nv_mul_f32 v18, {hex(LOG2E)}, v18\nv_exp_f32 v18, v18')
        A('v_mul_f32 v17, v17, v14\nv_fma_f32 v17, v18, v23, v17')
        A(f'v_sub_f32 v18, v10, v16\nv_mul_f32 v18, {hex(LOG2E)}, v18\nv_exp_f32 v18, v18')
        A('v_rcp_f32 v19, v17')
        A('v_mul_f32 v20, v18, v19\nv_fma_f32 v21, -v20, v17, v18\nv_fma_f32 v20, v21, v19, v20')
        A('v_mov_b32 v14, 0x7fc00000\nv_cmp_eq_u32 vcc, -1, v20\nv_cndmask_b32 v20, v20, v14, vcc')
        A('v_and_b32 v9, 3, v0\nv_lshlrev_b32 v9, 2, v9')
        A(f'ds_write_b32 v9, v20 offset:{L_WF}')
        A('s_waitcnt lgkmcnt(0)')

    def consumer_prep(s, l_tail):
        A = s.A
        A('s_cmp_ge_u32 s67, 20')
        A(f's_cbranch_scc1 {l_tail}')
        if 'ffn' not in s.skip:
            s.wait_ml()
            lp, ld = s.lab('fc'), s.lab('fcd')
            A(f'v_lshlrev_b32 v9, 2, v0\ns_mov_b32 s60, {hex(W_FLAGP)}\ns_mov_b32 s61, 0x100000')
            A(f'{lp}:')
            A(f'buffer_load_dword v10, v9, s[44:47], s60 offen {s.pol_hl}')
            A(f'buffer_load_dword v11, v9, s[44:47], s60 offen offset:256 {s.pol_hl}')
            A('s_waitcnt vmcnt(0)')
            A('v_cmp_ne_u32 vcc, s58, v10')
            A('v_cmp_ne_u32 s[76:77], s58, v11')
            A('s_and_b32 s77, s77, 0xfff')
            A('s_or_b64 vcc, vcc, s[76:77]')
            A(f's_cbranch_vccz {ld}')
            A('s_sleep 32')
            A('s_sub_u32 s61, s61, 1\ns_cmp_lg_u32 s61, 0')
            A(f's_cbranch_scc1 {lp}')
            A(f'{ld}:')
        A('v_lshrrev_b32 v9, 3, v0\nv_mul_u32_u24 v9, 10240, v9\nv_and_b32 v10, 7, v0\nv_lshlrev_b32 v10, 4, v10\nv_add_u32 v9, v9, v10')
        A(f's_mul_i32 s60, s65, 2560\ns_lshl_b32 s61, s67, 7\ns_add_u32 s60, s60, s61\ns_add_u32 s60, s60, {hex(W_FPART)}')
        for r in range(4): A(f'v_mov_b32 v{16+4*13+r}, 0')
        for t in range(14):
            if t == 13: A('s_mov_b64 exec, 0xffffffff')
            if t >= 4 and t % 2 == 0: A('s_waitcnt vmcnt(2)')
            A(f'buffer_load_dwordx4 v[{16+4*t}:{19+4*t}], v9, s[44:47], s60 offen {s.pol_hl}')
            if t < 13: A(f's_add_u32 s60, s60, {8*10240}')
        A('s_mov_b64 exec, -1')
        A('s_mul_i32 s60, s65, 1280\ns_lshl_b32 s61, s67, 6\ns_add_u32 s60, s60, s61')
        A('v_and_b32 v10, 15, v0\nv_lshlrev_b32 v10, 2, v10')
        A(f'buffer_load_dword v12, v10, s[40:43], s60 offen')
        A('s_waitcnt vmcnt(0)')
        for t in range(1, 14):
            for r in range(4): A(f'v_add_f32 v{16+r}, v{16+r}, v{16+4*t+r}')
        for r in range(4): s.reduce_hi3(16 + r, 20)
        for r in range(4):
            f = 16 + r
            s.bf16r(f, f)
            A(f'v_mul_f32 v20, 0xbfb8aa3b, v{f}\nv_exp_f32 v20, v20\nv_add_f32 v20, 1.0, v20\nv_rcp_f32 v21, v20')
            A(f'v_mul_f32 v22, v{f}, v21\nv_fma_f32 v23, -v22, v20, v{f}\nv_fma_f32 v23, v23, v21, v22')
            A('v_cmp_u_f32 vcc, v23, v23')
            A(f'v_cndmask_b32 v22, v23, v22, vcc')
            s.bf16r(24 + r, 22)
        A('v_and_b32 v9, 7, v0\nv_lshlrev_b32 v9, 4, v9')
        A(f'ds_write_b128 v9, v[24:27] offset:{L_GX}')
        A('v_and_b32 v9, 15, v0\nv_lshlrev_b32 v9, 3, v9')
        A('s_waitcnt lgkmcnt(0)')
        A(f'ds_read_b64 v[88:89], v9 offset:{L_GX}')
        A('v_lshlrev_b32 v92, 16, v12\nv_and_b32 v93, 0xffff0000, v12')
        A('s_waitcnt lgkmcnt(0)')

    def tail(s):
        A = s.A
        DATA = 96
        vM = 4
        A('v_lshrrev_b32 v9, 4, v0\nv_lshlrev_b32 v9, 7, v9\ns_lshl_b32 s60, s63, 5\nv_add_u32 v9, s60, v9')
        A('v_lshrrev_b32 v10, 4, v0\nv_lshlrev_b32 v10, 7, v10\nv_and_b32 v11, 15, v0\nv_lshlrev_b32 v11, 2, v11\nv_add_u32 v10, v10, v11')
        A('s_mul_i32 s60, s63, 2560\nv_add_u32 v10, s60, v10')
        A('s_lshl_b32 s60, s63, 6\nv_add_u32 v76, s60, v0')
        A('v_lshrrev_b32 v77, 3, v76\nv_lshlrev_b32 v77, 14, v77\nv_and_b32 v78, 7, v76\nv_lshlrev_b32 v78, 5, v78\nv_add_u32 v77, v77, v78')
        A('v_lshlrev_b32 v78, 4, v76')
        A('s_mul_i32 s62, s65, 327680\ns_lshl_b32 s69, s67, 8\ns_add_u32 s62, s62, s69')
        A('s_waitcnt vmcnt(0)')
        if not s.fineF: s.stamp(3)
        A('s_barrier')
        if not s.fineF: s.stamp(4)
        for w in range(4):
            A(f'ds_read_b128 v[{16+8*w}:{19+8*w}], v9 offset:{L_OPART + 512*w}')
            A(f'ds_read_b128 v[{20+8*w}:{23+8*w}], v9 offset:{L_OPART + 512*w + 16}')
        A('s_waitcnt lgkmcnt(0)')
        def osum(u):
            A(f'v_add_f32 v{16+u}, v{16+u}, v{24+u}')
            A(f'v_add_f32 v{32+u}, v{32+u}, v{40+u}')
            A(f'v_add_f32 v{16+u}, v{16+u}, v{32+u}')
            A(f'v_cvt_pk_bf16_f32 v{16+u}, v{16+u}, v{16+u}')
        acc = 48
        if s.dbg:
            for u in range(8): osum(u)
            A(f's_lshl_b32 s60, s2, 13\ns_lshl_b32 s61, s63, 11\ns_add_u32 s60, s60, s61\ns_add_u32 s60, s60, {hex(W_DBG + 0x600000)}')
            A('v_lshlrev_b32 v48, 5, v0\nv_add_u32 v48, s60, v48')
            A('global_store_dwordx4 v48, v[16:19], s[30:31]\nglobal_store_dwordx4 v48, v[20:23], s[30:31] offset:16')
            A('s_waitcnt vmcnt(0)')
        else:
            osum(0); osum(1)
        for u in range(8):
            y = 68 + 4 * (u & 1)
            for d in range(4): A(f'v_and_b32 v{y+d}, v{16+u}, v{vM+d}')
            if not s.dbg and u + 2 < 8: osum(u + 2)
            for cb in range(5):
                r = DATA + 4 * (u * 5 + cb)
                a = acc + 4 * cb
                A(f'v_mfma_f32_16x16x32_bf16 v[{a}:{a+3}], v[{r}:{r+3}], v[{y}:{y+3}], ' + ('0' if u == 0 else f'v[{a}:{a+3}]'))
        A('s_mov_b32 exec_lo, 0x00ff00ff\ns_mov_b32 exec_hi, 0x00ff00ff')
        for cb in range(5):
            for r in range(4):
                A(f'ds_write_b32 v10, v{acc+4*cb+r} offset:{L_YPART + 512*cb + 32*r}')
        A('s_mov_b64 exec, -1')
        A('s_waitcnt lgkmcnt(0)')
        A('s_barrier')
        if not s.fineF: s.stamp(5)
        l_fin, l_done = s.lab('fin'), s.lab('done')
        A('s_cmp_eq_u32 s63, 3')
        A(f's_cbranch_scc1 {l_fin}')
        A('v_cmp_gt_u32 vcc, 160, v76')
        A('s_and_saveexec_b64 s[60:61], vcc')
        A(f's_cbranch_execz {l_done}')
        for w in range(4):
            A(f'ds_read_b128 v[{16+4*w}:{19+4*w}], v78 offset:{L_YPART + 2560*w}')
        A('v_mov_b32 v33, s58\nv_mov_b32 v35, s58\nv_mov_b32 v37, s58\nv_mov_b32 v39, s58')
        A('s_waitcnt lgkmcnt(0)')
        for r in range(4):
            A(f'v_add_f32 v{16+r}, v{16+r}, v{20+r}')
            A(f'v_add_f32 v{24+r}, v{24+r}, v{28+r}')
        for r in range(4):
            A(f'v_add_f32 v{32+2*r}, v{16+r}, v{24+r}')
        A(f'buffer_store_dwordx4 v[32:35], v77, s[44:47], s62 offen {s.pol_hs}')
        A(f'buffer_store_dwordx4 v[36:39], v77, s[44:47], s62 offen offset:16 {s.pol_hs}')
        A(f'{l_done}:')
        if not s.fineF: s.stamp(6)
        s.stamp_store(7)
        A('s_endpgm')
        A(f'{l_fin}:')
        l_nf = s.lab('nofin')
        A('s_cmp_ge_u32 s67, 20')
        A(f's_cbranch_scc1 {l_nf}')
        A('s_mul_i32 s60, s65, 20\ns_add_u32 s60, s60, s67\ns_lshl_b32 s60, s60, 14')
        for k in range(1, 4): A(f's_add_u32 s{80+k}, s60, {4096*k}')
        A('s_mov_b32 s80, s60')
        A('v_lshlrev_b32 v9, 4, v0')
        s.srd(48, 26, 5120)
        A('s_mul_i32 s52, s65, 1280\ns_lshl_b32 s53, s67, 6\ns_add_u32 s52, s52, s53')
        A('v_lshlrev_b32 v10, 2, v0')
        lp, ld = s.lab('fp'), s.lab('fpd')
        A('s_mov_b32 s61, 0x100000')
        A(f'{lp}:')
        for t in range(16):
            A(f'buffer_load_dwordx4 v[{16+4*t}:{19+4*t}], v9, s[44:47], s{80+t//4} offen offset:{(t%4)*1024} {s.pol_hl}')
        tags = [16 + 4 * t + k for t in range(16) for k in (1, 3)]
        A('s_waitcnt vmcnt(12)')
        A(f'v_min_u32 v80, v{tags[0]}, v{tags[1]}\nv_max_u32 v81, v{tags[0]}, v{tags[1]}')
        for i in range(2, 32, 2):
            if i in (8, 16, 24): A(f's_waitcnt vmcnt({12 - i//2})')
            A(f'v_min3_u32 v80, v80, v{tags[i]}, v{tags[i+1]}')
            A(f'v_max3_u32 v81, v81, v{tags[i]}, v{tags[i+1]}')
        A('v_cmp_ne_u32 vcc, s58, v80')
        A('v_cmp_ne_u32 s[76:77], s58, v81')
        A('s_or_b64 vcc, vcc, s[76:77]')
        A(f's_cbranch_vccz {ld}')
        A('s_sub_u32 s61, s61, 1\ns_cmp_lg_u32 s61, 0')
        A(f's_cbranch_scc1 {lp}')
        A(f'{ld}:')
        step = 1
        while step < 16:
            for t in range(0, 16, 2 * step):
                for k in (0, 2): A(f'v_add_f32 v{16+4*t+k}, v{16+4*t+k}, v{16+4*(t+step)+k}')
            step *= 2
        for k in (0, 2): A(f'v_mov_b32 v{20+k}, v{16+k}')
        for k in (0, 2): A(f'v_permlane16_swap_b32 v{16+k}, v{20+k}')
        for k in (0, 2): A(f'v_add_f32 v{16+k}, v{16+k}, v{20+k}')
        for k in (0, 2): A(f'v_mov_b32 v{20+k}, v{16+k}')
        for k in (0, 2): A(f'v_permlane32_swap_b32 v{16+k}, v{20+k}')
        for k in (0, 2): A(f'v_add_f32 v{16+k}, v{16+k}, v{20+k}')
        A('v_cvt_pk_bf16_f32 v16, v16, v18')
        A('v_lshlrev_b32 v17, 16, v16\nv_and_b32 v18, 0xffff0000, v16')
        A('v_mul_f32 v17, v17, v88\nv_mul_f32 v18, v18, v89')
        A('v_cvt_pk_bf16_f32 v16, v17, v18')
        A('v_lshlrev_b32 v17, 16, v16\nv_and_b32 v18, 0xffff0000, v16')
        A('v_add_f32 v17, v17, v92\nv_add_f32 v18, v18, v93')
        A('v_cvt_pk_bf16_f32 v16, v17, v18')
        A('s_mov_b64 exec, 0xffff')
        A('buffer_store_dword v16, v10, s[48:51], s52 offen')
        A('s_mov_b64 exec, -1')
        A('s_or_b32 s60, s65, s67\ns_cmp_lg_u32 s60, 0')
        A(f's_cbranch_scc1 {l_nf}')
        A(f'v_mov_b32 v9, 0\nv_mov_b32 v11, s58\ns_mov_b32 s60, {hex(W_NONCE)}')
        A('s_mov_b64 exec, 1')
        A('buffer_store_dword v11, v9, s[44:47], s60 offen sc1')
        A('s_mov_b64 exec, -1')
        A(f'{l_nf}:')
        if not s.fineF: s.stamp(6)
        s.stamp_store(7)

    def text(s):
        s.build()
        body = hz.fix(s.L)
        out = [HEADER + f'; @launch grid=(256,1,1) block=(512,1,1) lds={LDS_BYTES}',
               '.amdgcn_target "amdgcn-amd-amdhsa--gfx950"', '.text', f'.globl {NAME}_kernel', '.p2align 8',
               f'.type {NAME}_kernel,@function']
        out += body
        out += ['.section .rodata,"a"', '.p2align 6', f'.amdhsa_kernel {NAME}_kernel',
                '  .amdhsa_next_free_vgpr 256', '  .amdhsa_next_free_sgpr 102', '  .amdhsa_accum_offset 256',
                '  .amdhsa_group_segment_fixed_size 0', '  .amdhsa_kernarg_size 96', '  .amdhsa_user_sgpr_count 2',
                '  .amdhsa_user_sgpr_kernarg_segment_ptr 1', '  .amdhsa_system_sgpr_workgroup_id_x 1',
                '  .amdhsa_float_denorm_mode_32 3',
                '.end_amdhsa_kernel']
        return '\n'.join(out) + '\n'

if __name__ == '__main__':
    import argparse
    ap = argparse.ArgumentParser()
    ap.add_argument('-o', default='cdna_kernels/' + NAME + '.s')
    ap.add_argument('--cfg', default='{}')
    a = ap.parse_args()
    g = Gen(**eval(a.cfg))
    open(a.o, 'w').write(g.text())
    print('wrote', a.o)
```

```python
import sys, os
sys.path.insert(0, os.path.dirname(os.path.abspath(__file__)))
import hz

NAME = 'recurrent_scan__gqa_block_cached__geglu_ffn__decode'

HEADER = '''; Kernarg layout for this problem (96 bytes, ptrs only, base s[0:1]):
;   offset  32: d_in[4] A_wo  shape=(4096, 640) dtype=bfloat16
;   offset  88: d_ws      workspace: q, FFN partials, hand-off mailboxes
; One workgroup per (batch, head, key-half): waves 0-3 stream K then V, waves 4-7 do the projections / FFN / hand-offs.
'''

L_QP    = 0x0000
L_XN    = 0x2000
L_ML    = 0x3400
L_WF    = 0x3440
L_FLAG  = 0x3480
L_QB    = 0x3500
L_HT    = 0x3600
L_OPART = 0x3700
L_YPART = 0x3F00
L_GX    = 0x6700
L_WG    = 0x6800
L_WU    = 0xB800
LDS_BYTES = 0x10800

W_YIN   = 0x000000
W_ML    = 0x140000
W_NONCE = 0x148000
W_FLAGQ = 0x149000
W_FLAGF = 0x14A000
W_FLAGP = 0x14B000
W_Q     = 0x180000
W_FPART = 0x200000
W_FX    = 0x320000
WS_SIZE = 0x360000
W_DBG   = 0x1000000

SCALE = 0x3db504f3
LOG2E = 0x3fb8aa3b

class Gen:
    def __init__(s, W=6, P=30, B=40, WO=3, WF=5, pol_kv='nt', pol_w='', pol_hl='sc1', pol_hs='sc1', dbg=False, stamps=False, prio=True, skip='', W0=None, fineF=False, WO4=None, pol_f=None, pol_q=None, WD=4, boost=0, rot=False):
        s.rot = rot
        s.boost = boost
        s.WD = WD
        s.fineF = fineF; s.WO4 = WO4 or WO; s.pol_f = pol_w if pol_f is None else pol_f; s.pol_q = pol_w if pol_q is None else pol_q
        s.L = []
        s.W, s.P, s.B, s.WO, s.WF = W, P, B, WO, WF
        s.W0 = W0 or W
        s.pol_kv, s.pol_w, s.pol_hl, s.pol_hs = pol_kv, pol_w, pol_hl, pol_hs
        s.dbg = dbg; s.stamps = stamps; s.prio = prio; s.skip = skip.split(',')
        s.nlab = 0
    def A(s, t):
        for l in t.split('\n'):
            l = l.strip()
            if l: s.L.append(('  ' + l) if not l.endswith(':') else l)
    def lab(s, base):
        s.nlab += 1
        return f'L_{base}_{s.nlab}'

    def allreduce(s, op, v, t):
        A = s.A
        ins = {'add': 'v_add_f32', 'max': 'v_max_f32'}[op]
        A(f'{ins}_dpp v{v}, v{v}, v{v} quad_perm:[1,0,3,2] row_mask:0xf bank_mask:0xf')
        A(f'{ins}_dpp v{v}, v{v}, v{v} quad_perm:[2,3,0,1] row_mask:0xf bank_mask:0xf')
        A(f'{ins}_dpp v{v}, v{v}, v{v} row_half_mirror row_mask:0xf bank_mask:0xf')
        A(f'{ins}_dpp v{v}, v{v}, v{v} row_mirror row_mask:0xf bank_mask:0xf')
        A(f'v_mov_b32 v{t}, v{v}')
        A(f'v_permlane16_swap_b32 v{v}, v{t}')
        A(f'{ins} v{v}, v{v}, v{t}')
        A(f'v_mov_b32 v{t}, v{v}')
        A(f'v_permlane32_swap_b32 v{v}, v{t}')
        A(f'{ins} v{v}, v{v}, v{t}')

    def reduce_hi3(s, v, t):
        A = s.A
        A(f'v_add_f32_dpp v{v}, v{v}, v{v} row_ror:8 row_mask:0xf bank_mask:0xf')
        A(f'v_mov_b32 v{t}, v{v}')
        A(f'v_permlane16_swap_b32 v{v}, v{t}')
        A(f'v_add_f32 v{v}, v{v}, v{t}')
        A(f'v_mov_b32 v{t}, v{v}')
        A(f'v_permlane32_swap_b32 v{v}, v{t}')
        A(f'v_add_f32 v{v}, v{v}, v{t}')

    def bf16r(s, dst, src):
        s.A(f'v_cvt_pk_bf16_f32 v{dst}, v{src}, v{src}')
        s.A(f'v_lshlrev_b32 v{dst}, 16, v{dst}')

    def srd(s, n, ptr, size):
        s.A(f's_mov_b32 s{n}, s{ptr}\ns_and_b32 s{n+1}, s{ptr+1}, 0xffff\ns_mov_b32 s{n+2}, {hex(size)}\ns_mov_b32 s{n+3}, 0x20000')

    def stamp(s, idx):
        if s.stamps: s.A(f's_memrealtime s[{86+2*idx}:{87+2*idx}]')

    def stamp_store(s, n):
        if not s.stamps: return
        A = s.A
        A('s_waitcnt lgkmcnt(0)')
        A('s_lshl_b32 s100, s2, 3\ns_add_u32 s100, s100, s3\ns_lshl_b32 s100, s100, 6')
        A(f's_add_u32 s100, s100, {hex(W_DBG)}')
        A('v_mov_b32 v1, s100')
        A('s_mov_b64 exec, 1')
        for i in range(n):
            A(f'v_mov_b32 v2, s{86+2*i}')
            A(f'global_store_dword v1, v2, s[30:31] offset:{4*i}')
        A('s_mov_b64 exec, -1')

    def masks_Md(s, base, jreg, t1, t2, mod8=False):
        A = s.A
        if mod8: A(f'v_and_b32 v{t1}, 7, v{jreg}')
        else: A(f'v_mov_b32 v{t1}, v{jreg}')
        A(f'v_and_b32 v{t2}, 1, v{t1}')
        A(f'v_cmp_eq_u32 vcc, 1, v{t2}')
        A(f'v_mov_b32 v{t2}, 0xffff')
        A(f'v_mov_b32 v{base}, 0xffff0000')
        A(f'v_cndmask_b32 v{t2}, v{t2}, v{base}, vcc')
        A(f'v_lshrrev_b32 v{t1}, 1, v{t1}')
        for d in range(4):
            A(f'v_cmp_eq_u32 vcc, {d}, v{t1}')
            A(f'v_cndmask_b32 v{base+d}, 0, v{t2}, vcc')

    def layernorm(s, xr, out_pairs, tb):
        A = s.A
        f = tb
        a, t = tb + 10, tb + 11
        for i in range(5):
            A(f'v_lshlrev_b32 v{f+2*i}, 16, v{xr+i}')
            A(f'v_and_b32 v{f+2*i+1}, 0xffff0000, v{xr+i}')
        A(f'v_add_f32 v{a}, v{f}, v{f+1}\nv_add_f32 v{t}, v{f+2}, v{f+3}')
        for i in range(4, 10, 2): A(f'v_add_f32 v{a}, v{a}, v{f+i}\nv_add_f32 v{t}, v{t}, v{f+i+1}')
        A(f'v_add_f32 v{a}, v{a}, v{t}')
        s.allreduce('add', a, t)
        A(f'v_mul_f32 v{a}, 0x3acccccd, v{a}')
        v, d = tb + 12, tb + 13
        A(f'v_sub_f32 v{d}, v{f}, v{a}\nv_mul_f32 v{v}, v{d}, v{d}')
        for i in range(1, 10):
            A(f'v_sub_f32 v{d}, v{f+i}, v{a}\nv_fmac_f32 v{v}, v{d}, v{d}')
        s.allreduce('add', v, t)
        A(f'v_mul_f32 v{v}, 0x3acccccd, v{v}')
        s.bf16r(v, v)
        A(f'v_add_f32 v{v}, 0x3727c5ac, v{v}')
        s.bf16r(v, v)
        A(f'v_sqrt_f32 v{v}, v{v}')
        s.bf16r(v, v)
        s.bf16r(a, a)
        A(f'v_rcp_f32 v{t}, v{v}')
        for i in range(10):
            A(f'v_sub_f32 v{f+i}, v{f+i}, v{a}')
        for i in range(5):
            A(f'v_cvt_pk_bf16_f32 v{out_pairs+i}, v{f+2*i}, v{f+2*i+1}')
        for i in range(5):
            A(f'v_lshlrev_b32 v{f+2*i}, 16, v{out_pairs+i}')
            A(f'v_and_b32 v{f+2*i+1}, 0xffff0000, v{out_pairs+i}')
        for i in range(10):
            A(f'v_mul_f32 v{d}, v{f+i}, v{t}')
            A(f'v_fma_f32 v{f+i}, -v{d}, v{v}, v{f+i}')
            A(f'v_fma_f32 v{f+i}, v{f+i}, v{t}, v{d}')
        for i in range(5):
            A(f'v_cvt_pk_bf16_f32 v{out_pairs+i}, v{f+2*i}, v{f+2*i+1}')

    def build(s):
        A = s.A
        A(f'{NAME}_kernel:')
        A('s_cmp_ge_u32 s2, 256')
        A('s_cbranch_scc1 L_end')
        s.stamp(0)
        A('s_load_dwordx16 s[8:23], s[0:1], 0')
        A('s_load_dwordx8 s[24:31], s[0:1], 64')
        A('v_lshrrev_b32 v1, 6, v0')
        A('v_and_b32 v0, 63, v0')
        A('v_readfirstlane_b32 s3, v1')
        lni = s.lab('noinit')
        A('s_cmp_lg_u32 s3, 0')
        A(f's_cbranch_scc1 {lni}')
        A('v_mov_b32 v2, -1\nv_cmp_gt_u32 vcc, 32, v0\nv_cndmask_b32 v2, 0, v2, vcc\nv_lshlrev_b32 v3, 2, v0')
        A(f'ds_write_b32 v3, v2 offset:{L_ML}')
        A(f'{lni}:')
        A('s_and_b32 s64, s2, 7\ns_lshr_b32 s68, s2, 3')
        A('s_and_b32 s69, s68, 3\ns_lshl_b32 s69, s69, 3\ns_add_u32 s64, s64, s69')
        A('s_lshr_b32 s65, s68, 2\ns_and_b32 s65, s65, 3')
        A('s_lshr_b32 s66, s68, 4')
        A('s_lshl_b32 s67, s64, 1\ns_add_u32 s67, s67, s66')
        A('s_cmp_eq_u32 s66, 1\ns_cselect_b32 s84, s64, 99')
        A('s_waitcnt lgkmcnt(0)')
        A('s_cmp_ge_u32 s3, 4')
        A('s_cbranch_scc1 L_helper')
        s.streamer()
        A('L_helper:')
        s.helper()
        A('L_end:')
        A('s_endpgm')

    def streamer(s):
        A = s.A
        W, P, B, W0 = s.W, s.P, s.B, s.W0
        RING = 64
        assert RING + 4 * B <= 256 and P + W0 + 3 <= B + 1
        vKo, vVo = 1, 2
        vM = 4; vY = 8; vAcc = 24; vSc = 32; vO = 40; vYp = 44; vT = 52
        if s.prio: A('s_setprio 2')
        s.srd(32, 10, 0x8000000)
        s.srd(36, 12, 0x8000000)
        A(f'v_lshrrev_b32 v{vT}, 4, v0')
        A(f'v_lshlrev_b32 v{vT+3}, 2, v{vT}\nv_and_b32 v{vT+2}, 3, v0\nv_add_u32 v{vT+3}, v{vT+3}, v{vT+2}\nv_lshlrev_b32 v3, 4, v{vT+3}')
        A(f'v_lshlrev_b32 v{vT}, 6, v{vT}')
        A(f'v_bfe_u32 v{vT+1}, v0, 2, 2')
        A(f'v_lshlrev_b32 v{vT+1}, 8, v{vT+1}')
        A(f'v_lshlrev_b32 v{vT+2}, 4, v{vT+2}')
        A(f'v_add3_u32 v{vKo}, v{vT}, v{vT+1}, v{vT+2}')
        A(f'v_lshlrev_b32 v{vVo}, 4, v0')
        A('s_lshl_b32 s40, s65, 5\ns_add_u32 s40, s40, s64\ns_lshl_b32 s40, s40, 20')
        A('s_lshl_b32 s41, s66, 19\ns_add_u32 s40, s40, s41')
        A('s_lshl_b32 s41, s3, 12\ns_add_u32 s40, s40, s41')
        A('s_mov_b32 s41, s40')
        state = {'n': 0, 'win': W}
        def issue():
            n = state['n']; state['n'] += 1
            if n >= 256: return
            if n == 128: A('s_mov_b32 s41, s40')
            elif n % 4 == 0 and n > 0: A('s_add_u32 s41, s41, 0x4000')
            r = RING + 4 * (n % B)
            if n < 128:
                A(f'buffer_load_dwordx4 v[{r}:{r+3}], v{vKo}, s[32:35], s41 offen offset:{(n%4)*1024} {s.pol_kv}')
            else:
                A(f'buffer_load_dwordx4 v[{r}:{r+3}], v{vVo}, s[36:39], s41 offen offset:{(n%4)*1024} {s.pol_kv}')
        done = {'upto': -1}
        def paced_issue(w=None):
            w = w or W
            if state['n'] >= 256: return
            A(f's_waitcnt vmcnt({w-1})')
            done['upto'] = max(done['upto'], state['n'] - w)
            issue()
        def ensure(c):
            if c > done['upto']:
                A(f's_waitcnt vmcnt({state["n"] - 1 - c})')
                done['upto'] = c
        for _ in range(W0): issue()
        A('s_barrier')
        A(f'v_and_b32 v{vT}, 15, v0')
        s.masks_Md(vM, vT, vT+1, vT+2)
        A('s_mov_b32 s44, 0x22222222\ns_mov_b32 s45, 0x22222222')
        A('s_mov_b32 s46, 0x44444444\ns_mov_b32 s47, 0x44444444')
        A('s_mov_b32 s48, 0x88888888\ns_mov_b32 s49, 0x88888888')
        for t in range(4):
            m = 0x000F000F << (4 * t)
            A(f's_mov_b32 s{50+2*t}, {hex(m)}\ns_mov_b32 s{51+2*t}, {hex(m)}')
        for _ in range(P): paced_issue(W0)
        s.stamp(1)
        A('s_barrier')
        s.stamp(2)
        A(f'ds_read_b128 v[56:59], v3 offset:{L_QB}')
        paced_issue()
        A('s_waitcnt lgkmcnt(0)')
        if s.dbg:
            A(f's_lshl_b32 s60, s2, 12\ns_lshl_b32 s61, s3, 10\ns_add_u32 s60, s60, s61\ns_add_u32 s60, s60, {hex(W_DBG + 0x100000)}')
            A(f'v_lshlrev_b32 v8, 4, v0\nv_add_u32 v8, s60, v8')
            A(f'global_store_dwordx4 v8, v[56:59], s[30:31]')
            A('s_waitcnt vmcnt(0)')
        for t in range(4):
            for d in range(4):
                A(f'v_cndmask_b32 v{vY+4*t+d}, 0, v{56+d}, s[{50+2*t}:{51+2*t}]')
        def post(g):
            a = vAcc + 4 * (g & 1)
            t = vT
            A(f'v_cndmask_b32 v{t}, v{a}, v{a+1}, s[44:45]')
            A(f'v_cndmask_b32 v{t}, v{t}, v{a+2}, s[46:47]')
            A(f'v_cndmask_b32 v{t}, v{t}, v{a+3}, s[48:49]')
            A(f'v_add_f32_dpp v{t}, v{t}, v{t} quad_perm:[1,0,3,2] row_mask:0xf bank_mask:0xf')
            q4 = vSc + (g >> 2)
            if (g & 3) == 0:
                A(f'v_add_f32_dpp v{q4}, v{t}, v{t} quad_perm:[2,3,0,1] row_mask:0xf bank_mask:0xf')
            else:
                A(f'v_add_f32_dpp v{t}, v{t}, v{t} quad_perm:[2,3,0,1] row_mask:0xf bank_mask:0xf')
                A(f'v_cndmask_b32 v{q4}, v{q4}, v{t}, s[{42+2*(g&3)}:{43+2*(g&3)}]')
        if s.boost:
            A('s_and_b32 s58, s2, 7\ns_lshl_b32 s59, s65, 3\ns_add_u32 s58, s58, s59\ns_cmp_lt_u32 s58, 27\ns_cselect_b32 s58, 1, 0')
            A('s_cmp_eq_u32 s66, 0\ns_cselect_b32 s58, s58, 0')
        def boosted_issue():
            lb = s.lab('bo')
            A(f's_waitcnt vmcnt({W})')
            A('s_cmp_eq_u32 s58, 1')
            A(f's_cbranch_scc1 {lb}')
            A(f's_waitcnt vmcnt({W-1})')
            A(f'{lb}:')
            done['upto'] = max(done['upto'], state['n'] - (W + 1))
            issue()
        for c in range(128):
            g, t = c >> 2, c & 3
            backlog = state['n'] - c
            if s.boost and c < s.boost and backlog <= W + 1: boosted_issue()
            elif backlog <= W: paced_issue()
            elif backlog > W + 1 and c % 8 == 7: (boosted_issue() if (s.boost and c < s.boost) else paced_issue())
            ensure(c)
            r = RING + 4 * (c % B)
            a = vAcc + 4 * (g & 1)
            cin = '0' if t == 0 else f'v[{a}:{a+3}]'
            A(f'v_mfma_f32_16x16x32_bf16 v[{a}:{a+3}], v[{r}:{r+3}], v[{vY+4*t}:{vY+4*t+3}], {cin}')
            if t == 1 and g > 0: post(g - 1)
        paced_issue()
        post(31)
        s.stamp(3)
        if s.dbg:
            A(f's_lshl_b32 s60, s2, 13\ns_lshl_b32 s61, s3, 11\ns_add_u32 s60, s60, s61\ns_add_u32 s60, s60, {hex(W_DBG + 0x200000)}')
            A(f'v_lshlrev_b32 v{vT}, 2, v0\nv_add_u32 v{vT}, s60, v{vT}')
            for i in range(8):
                A(f'global_store_dword v{vT}, v{vSc+i}, s[30:31] offset:{256*i}')
            A('s_waitcnt vmcnt(0)')
        def round_pairs():
            for i in range(4):
                A(f'v_cvt_pk_bf16_f32 v{vT+i}, v{vSc+2*i}, v{vSc+2*i+1}')
            for i in range(4):
                A(f'v_lshlrev_b32 v{vSc+2*i}, 16, v{vT+i}')
                A(f'v_and_b32 v{vSc+2*i+1}, 0xffff0000, v{vT+i}')
        round_pairs()
        for i in range(8): A(f'v_mul_f32 v{vSc+i}, {hex(SCALE)}, v{vSc+i}')
        round_pairs()
        m, t2 = vT + 4, vT + 5
        A(f'v_max3_f32 v{m}, v{vSc}, v{vSc+1}, v{vSc+2}')
        A(f'v_max3_f32 v{m}, v{m}, v{vSc+3}, v{vSc+4}')
        A(f'v_max3_f32 v{m}, v{m}, v{vSc+5}, v{vSc+6}')
        A(f'v_max_f32 v{m}, v{m}, v{vSc+7}')
        s.allreduce('max', m, t2)
        paced_issue()
        for i in range(8): A(f'v_sub_f32 v{vSc+i}, v{vSc+i}, v{m}')
        for i in range(8): A(f'v_mul_f32 v{vSc+i}, {hex(LOG2E)}, v{vSc+i}')
        for i in range(8): A(f'v_exp_f32 v{vSc+i}, v{vSc+i}')
        l = m + 1
        t3 = vT + 6
        A(f'v_add_f32 v{l}, v{vSc}, v{vSc+1}')
        A(f'v_add_f32 v{t3}, v{vSc+2}, v{vSc+3}')
        A(f'v_add_f32 v{l}, v{l}, v{vSc+4}')
        A(f'v_add_f32 v{t3}, v{t3}, v{vSc+5}')
        A(f'v_add_f32 v{l}, v{l}, v{vSc+6}')
        A(f'v_add_f32 v{t3}, v{t3}, v{vSc+7}')
        A(f'v_add_f32 v{l}, v{l}, v{t3}')
        for i in range(8): A(f'v_cvt_pk_bf16_f32 v{vSc+i}, v{vSc+i}, v{vSc+i}')
        s.allreduce('add', l, t3)
        paced_issue()
        A(f'v_cmp_eq_u32 vcc, -1, v{m}')
        A(f'v_mov_b32 v{t3}, 0x7fc00000')
        A(f'v_cndmask_b32 v{m}, v{m}, v{t3}, vcc')
        A(f's_lshl_b32 s60, s3, 3\nv_mov_b32 v{t3}, s60')
        A(f'ds_write_b64 v{t3}, v[{m}:{m+1}] offset:{L_ML}')
        def ybuild(c):
            g, t = (c - 128) >> 2, c & 3
            y = vYp + 4 * (c & 1)
            for d in range(4):
                A(f'v_and_b32_dpp v{y+d}, v{vSc+(g>>2)}, v{vM+d} row_newbcast:{4*t+(g&3)} row_mask:0xf bank_mask:0xf')
        ybuild(128)
        for c in range(128, 256):
            if state['n'] < 256:
                if state['n'] - c <= W: paced_issue()
                elif c % 4 == 3: paced_issue()
            if c == 240:
                A(f's_lshl_b32 s60, s3, 2\nv_mov_b32 v{vT}, s60')
                A(f'ds_read_b32 v{vT+1}, v{vT} offset:{L_WF}')
            if c == 244:
                A(f'v_and_b32 v{vT+2}, 3, v0\nv_lshlrev_b32 v{vT+2}, 5, v{vT+2}')
                A(f'v_lshrrev_b32 v{vT+3}, 4, v0\nv_lshlrev_b32 v{vT+3}, 3, v{vT+3}')
                if s.rot:
                    A(f'v_add_u32 v{vT+2}, v{vT+2}, v{vT+3}')
                    A(f's_lshl_b32 s60, s65, 1\ns_add_u32 s60, s60, s66')
                    A(f'v_bfe_u32 v{vT+4}, v0, 2, 1\nv_subrev_u32 v{vT+4}, s60, v{vT+4}')
                    for r4 in range(4):
                        A(f'v_add_u32 v{vT+8+r4}, {2*r4}, v{vT+4}\nv_and_b32 v{vT+8+r4}, 7, v{vT+8+r4}\nv_add_u32 v{vT+8+r4}, v{vT+8+r4}, v{vT+2}\nv_lshlrev_b32 v{vT+8+r4}, 2, v{vT+8+r4}')
                        A(f's_lshl_b32 s60, s3, 9\nv_add_u32 v{vT+8+r4}, s60, v{vT+8+r4}')
                else:
                    A(f'v_bfe_u32 v{vT+4}, v0, 2, 1')
                    A(f'v_add3_u32 v{vT+2}, v{vT+2}, v{vT+3}, v{vT+4}')
                    A(f'v_lshlrev_b32 v{vT+2}, 2, v{vT+2}')
                    A(f's_lshl_b32 s60, s3, 9\nv_add_u32 v{vT+2}, s60, v{vT+2}')
            if c + 1 < 256: ybuild(c + 1)
            ensure(c)
            r = RING + 4 * (c % B)
            y = vYp + 4 * (c & 1)
            cin = '0' if c == 128 else f'v[{vO}:{vO+3}]'
            A(f'v_mfma_f32_16x16x32_bf16 v[{vO}:{vO+3}], v[{r}:{r+3}], v[{y}:{y+3}], {cin}')
        s.stamp(4)
        lp, ld = s.lab('wf'), s.lab('wfd')
        A('s_waitcnt lgkmcnt(0)')
        A(f'v_cmp_ne_u32 vcc, -1, v{vT+1}')
        A(f's_cbranch_vccnz {ld}')
        A('s_mov_b32 s61, 0x400000')
        A(f'{lp}:')
        A(f'ds_read_b32 v{vT+1}, v{vT} offset:{L_WF}')
        A('s_waitcnt lgkmcnt(0)')
        A(f'v_cmp_ne_u32 vcc, -1, v{vT+1}')
        A(f's_cbranch_vccnz {ld}')
        A('s_sleep 1')
        A('s_sub_u32 s61, s61, 1\ns_cmp_lg_u32 s61, 0')
        A(f's_cbranch_scc1 {lp}')
        A(f'{ld}:')
        for r in range(4): A(f'v_mul_f32 v{vO+r}, v{vO+r}, v{vT+1}')
        A('s_mov_b32 exec_lo, 0x00ff00ff\ns_mov_b32 exec_hi, 0x00ff00ff')
        if s.rot:
            for r in range(4): A(f'ds_write_b32 v{vT+8+r}, v{vO+r} offset:{L_OPART}')
        else:
            for r in range(4): A(f'ds_write_b32 v{vT+2}, v{vO+r} offset:{L_OPART+8*r}')
        A('s_mov_b64 exec, -1')
        A('s_waitcnt lgkmcnt(0)')
        A('s_barrier')
        s.stamp(5)
        s.stamp_store(6)
        A('s_endpgm')

    def lds_flag_wait(s, off, vt):
        A = s.A
        lp, ld = s.lab('fl'), s.lab('fld')
        A(f'v_and_b32 v{vt}, 3, v0\nv_lshlrev_b32 v{vt}, 2, v{vt}')
        A('s_mov_b32 s61, 0x1000000')
        A(f'{lp}:')
        A(f'ds_read_b32 v{vt+1}, v{vt} offset:{off}')
        A('s_waitcnt lgkmcnt(0)')
        A(f'v_cmp_ne_u32 vcc, 1, v{vt+1}')
        A(f's_cbranch_vccz {ld}')
        A('s_sub_u32 s61, s61, 1\ns_cmp_lg_u32 s61, 0')
        A(f's_cbranch_scc1 {lp}')
        A(f'{ld}:')

    def spoll(s, n, check, sleep=1):
        A = s.A
        lp, ld = s.lab('sp'), s.lab('spd')
        A('s_add_u32 s4, s30, s60\ns_addc_u32 s5, s31, 0')
        A('s_mov_b32 s61, 0x200000')
        A(f'{lp}:')
        A(f's_load_dwordx{n} s[76:{76+n-1}], s[4:5], 0 glc')
        A('s_waitcnt lgkmcnt(0)')
        A(f's_xor_b32 s6, s{76+check[0]}, s58')
        for c in check[1:]: A(f's_xor_b32 s7, s{76+c}, s58\ns_or_b32 s6, s6, s7')
        A('s_cmp_eq_u32 s6, 0')
        A(f's_cbranch_scc1 {ld}')
        if sleep: A(f's_sleep {sleep}')
        A('s_sub_u32 s61, s61, 1\ns_cmp_lg_u32 s61, 0')
        A(f's_cbranch_scc1 {lp}')
        A(f'{ld}:')

    def flag_store(s, lanes, vaddr, soff):
        A = s.A
        A(f'v_mov_b32 v15, s58')
        A(f's_mov_b64 exec, {lanes}')
        A(f'buffer_store_dword v15, v{vaddr}, s[44:47], {soff} offen sc1')
        A('s_mov_b64 exec, -1')

    def helper(s):
        A = s.A
        DATA = 96
        vM = 4
        A('s_sub_u32 s63, s3, 4')
        A('s_mov_b32 s59, 0')
        A(f's_add_u32 s4, s30, {hex(W_NONCE)}\ns_addc_u32 s5, s31, 0')
        A('s_load_dword s58, s[4:5], 0')
        s.srd(32, 14, 640 * 4096 * 2)
        s.srd(40, 8, 5120)
        s.srd(44, 30, WS_SIZE)
        A('s_mul_i32 s60, s63, 1280')
        A('v_lshlrev_b32 v1, 2, v0')
        for t in range(5):
            A(f'buffer_load_dword v{16+t}, v1, s[40:43], s60 offen offset:{256*t}')
        A('v_lshrrev_b32 v2, 4, v0\nv_lshlrev_b32 v2, 13, v2\nv_and_b32 v3, 15, v0\nv_lshlrev_b32 v3, 4, v3\nv_add_u32 v2, v2, v3')
        A('s_lshl_b32 s57, s65, 1\ns_add_u32 s57, s57, s66')
        A('s_mul_i32 s56, s57, 80\ns_mul_i32 s60, s63, 20\ns_add_u32 s56, s56, s60')
        A('s_lshl_b32 s60, s56, 13\ns_lshl_b32 s61, s64, 8\ns_add_u32 s60, s60, s61')
        for u in range(5):
            A(f'buffer_load_dwordx4 v[{DATA+4*u}:{DATA+4*u+3}], v2, s[32:35], s60 offen {s.pol_q}')
            if u < 4: A('s_add_u32 s60, s60, 0x8000')
        A('s_barrier')
        s.srd(36, 16, 4096 * 640 * 2)
        A('v_and_b32 v9, 15, v0')
        s.masks_Md(vM, 9, 10, 11, mod8=True)
        A('s_waitcnt vmcnt(5) lgkmcnt(0)')
        A('s_add_u32 s58, s58, 1')
        s.layernorm(16, 24, 32)
        A(f's_mul_i32 s60, s63, 1280\nv_add_u32 v9, s60, v1')
        for t in range(5):
            A(f'ds_write_b32 v9, v{24+t} offset:{L_XN + 256*t}')
        A(f's_lshl_b32 s60, s63, 2\nv_mov_b32 v9, s60\nv_mov_b32 v10, 1')
        A(f'ds_write_b32 v9, v10 offset:{L_FLAG}')
        A('v_bfe_u32 v12, v0, 3, 1\nv_mul_u32_u24 v12, 1280, v12\nv_lshrrev_b32 v13, 4, v0\nv_lshlrev_b32 v13, 1, v13\nv_add_u32 v12, v12, v13')
        A('s_lshl_b32 s60, s56, 1\nv_add_u32 v12, s60, v12')
        s.lds_flag_wait(L_FLAG, 14)
        for bp in range(2):
            for u in range(5):
                A(f'ds_read_u16 v{40+5*bp+u}, v12 offset:{L_XN + bp*2560 + u*8}')
        A('v_bfe_u32 v9, v0, 3, 1\nv_lshlrev_b32 v9, 9, v9\nv_lshrrev_b32 v10, 4, v0\nv_lshlrev_b32 v10, 7, v10\nv_and_b32 v11, 7, v0\nv_lshlrev_b32 v11, 2, v11\nv_add3_u32 v9, v9, v10, v11')
        A('s_lshl_b32 s60, s63, 11\nv_add_u32 v9, s60, v9')
        A('s_waitcnt lgkmcnt(0)')
        for k in range(10): A(f'v_lshl_or_b32 v{40+k}, v{40+k}, 16, v{40+k}')
        A('s_waitcnt vmcnt(0)')
        for u in range(5):
            for bp in range(2):
                y = 60 + 4 * ((2 * u + bp) & 3)
                for d in range(4): A(f'v_and_b32 v{y+d}, v{40+5*bp+u}, v{vM+d}')
                a = 52 + 4 * bp
                A(f'v_mfma_f32_16x16x32_bf16 v[{a}:{a+3}], v[{DATA+4*u}:{DATA+4*u+3}], v[{y}:{y+3}], ' + ('0' if u == 0 else f'v[{a}:{a+3}]'))
        for bp in range(2):
            for r in range(4):
                A(f'ds_write_b32 v9, v{52+4*bp+r} offset:{L_QP + bp*1024 + r*32}')
        A(f's_lshl_b32 s60, s63, 2\nv_mov_b32 v10, s60\nv_mov_b32 v11, 1')
        A(f'ds_write_b32 v10, v11 offset:{L_FLAG + 16}')
        A('s_lshl_b32 s69, s64, 2\ns_add_u32 s69, s69, s63\ns_lshl_b32 s69, s69, 3\ns_add_u32 s69, s69, s57')
        A(f's_lshl_b32 s62, s69, 9\ns_add_u32 s62, s62, {hex(W_Q)}')
        A('v_lshlrev_b32 v13, 3, v0')
        A('s_lshl_b32 s60, s63, 9\nv_add_u32 v12, s60, v13')
        s.lds_flag_wait(L_FLAG + 16, 14)
        for w in range(4):
            A(f'ds_read_b64 v[{16+2*w}:{17+2*w}], v12 offset:{L_QP + 2048*w}')
        A('s_waitcnt lgkmcnt(0)')
        A('v_add_f32 v16, v16, v18\nv_add_f32 v17, v17, v19\nv_add_f32 v20, v20, v22\nv_add_f32 v21, v21, v23')
        A('v_add_f32 v24, v16, v20\nv_add_f32 v25, v17, v21')
        A(f'buffer_store_dwordx2 v[24:25], v13, s[44:47], s62 offen {s.pol_hs}')
        A(f's_lshl_b32 s62, s69, 2\ns_add_u32 s62, s62, {hex(W_FLAGQ)}\nv_mov_b32 v14, 0')
        A('s_waitcnt vmcnt(0)')
        s.flag_store('1', 14, 's62')
        lq = s.lab('noq')
        A('s_cmp_lg_u32 s63, 0')
        A(f's_cbranch_scc1 {lq}')
        A(f's_lshl_b32 s69, s64, 2\ns_add_u32 s69, s69, s65')
        A(f's_lshl_b32 s60, s69, 5\ns_add_u32 s60, s60, {hex(W_FLAGQ)}')
        s.spoll(8, list(range(8)))
        A(f's_lshl_b32 s60, s69, 12\ns_add_u32 s60, s60, {hex(W_Q)}')
        A('v_lshlrev_b32 v13, 4, v0')
        for t in range(4):
            A(f'buffer_load_dwordx4 v[{16+4*t}:{19+4*t}], v13, s[44:47], s60 offen offset:{t*1024} {s.pol_hl}')
        A('v_and_b32 v12, 31, v0\nv_lshlrev_b32 v12, 3, v12')
        A('s_waitcnt vmcnt(0)')
        for k in range(4):
            A(f'v_add_f32 v{16+k}, v{16+k}, v{20+k}\nv_add_f32 v{24+k}, v{24+k}, v{28+k}')
        for k in range(4): A(f'v_add_f32 v{16+k}, v{16+k}, v{24+k}')
        for k in range(4): A(f'v_mov_b32 v{20+k}, v{16+k}')
        for k in range(4): A(f'v_permlane32_swap_b32 v{16+k}, v{20+k}')
        for k in range(4): A(f'v_add_f32 v{16+k}, v{16+k}, v{20+k}')
        A('v_cvt_pk_bf16_f32 v16, v16, v17\nv_cvt_pk_bf16_f32 v17, v18, v19')
        A(f'ds_write_b64 v12, v[16:17] offset:{L_QB}')
        A(f'{lq}:')
        A('s_waitcnt lgkmcnt(0)')
        s.stamp(1)
        A('s_barrier')
        l_wo = s.lab('wo')
        s.ffn(l_wo)
        A(f'{l_wo}:')
        A('v_lshrrev_b32 v2, 4, v0\nv_mul_u32_u24 v2, 1280, v2\nv_and_b32 v3, 15, v0\nv_lshlrev_b32 v3, 4, v3\nv_add_u32 v2, v2, v3')
        A('s_lshl_b32 s60, s64, 7\ns_lshl_b32 s61, s63, 5\ns_add_u32 s60, s60, s61\ns_mul_i32 s60, s60, 1280')
        if 'wo_v' in s.skip:
            A('s_lshl_b32 s6, s2, 19\ns_add_u32 s72, s12, s6\ns_addc_u32 s73, s13, 0\ns_and_b32 s73, s73, 0xffff\ns_mov_b32 s74, 0x80000\ns_mov_b32 s75, 0x20000')
            A('s_and_b32 s60, s60, 0x3ffff')
        def wo_loads(win):
            n = 0
            for u in range(8):
                for cb in range(5):
                    if n >= win: A(f's_waitcnt vmcnt({win-1})')
                    r = DATA + 4 * (u * 5 + cb)
                    if 'wo_v' in s.skip: A(f'buffer_load_dwordx4 v[{r}:{r+3}], v2, s[72:75], s60 offen offset:{cb*256} nt')
                    elif 'wo' not in s.skip: A(f'buffer_load_dwordx4 v[{r}:{r+3}], v2, s[36:39], s60 offen offset:{cb*256} {s.pol_w}')
                    n += 1
                if u < 7:
                    if s.rot: A(f's_add_u32 s6, s57, {u+1}\ns_and_b32 s6, s6, 7\ns_mul_i32 s6, s6, 5120\ns_add_u32 s60, s7, s6')
                    else: A('s_add_u32 s60, s60, 5120')
        if s.rot:
            A('s_mov_b32 s7, s60\ns_mul_i32 s6, s57, 5120\ns_add_u32 s60, s7, s6')
        if s.WO4 != s.WO:
            l4, l5 = s.lab('wo4'), s.lab('wod')
            A('s_cmp_eq_u32 s59, 1')
            A(f's_cbranch_scc1 {l4}')
            wo_loads(s.WO)
            A(f's_branch {l5}')
            A(f'{l4}:')
            wo_loads(s.WO4)
            A(f'{l5}:')
        else:
            wo_loads(s.WO)
        s.stamp(2)
        l_tail, l_w7 = s.lab('tail'), s.lab('w7')
        A('s_cmp_eq_u32 s63, 3')
        A(f's_cbranch_scc1 {l_w7}')
        A('s_cmp_lg_u32 s63, 1')
        A(f's_cbranch_scc1 {l_tail}')
        s.mlx()
        A(f's_branch {l_tail}')
        A(f'{l_w7}:')
        s.consumer_prep(l_tail)
        A(f'{l_tail}:')
        s.tail()

    def ffn(s, l_skip):
        A = s.A
        DATA = 96
        if 'ffn' in s.skip: return
        A('s_cmp_lg_u32 s66, 0')
        A(f's_cbranch_scc1 {l_skip}')
        A('s_and_b32 s70, s2, 7\ns_lshl_b32 s61, s65, 3\ns_add_u32 s70, s70, s61')
        A('s_cmp_ge_u32 s70, 27')
        A(f's_cbranch_scc1 {l_skip}')
        A('s_lshr_b32 s71, s2, 3\ns_and_b32 s71, s71, 3')
        A('s_lshl_b32 s68, s70, 2\ns_add_u32 s68, s68, s71')
        s.srd(48, 20, 640 * 1728 * 2)
        s.srd(52, 22, 640 * 1728 * 2)
        s.srd(72, 24, 1728 * 640 * 2)
        A('v_lshrrev_b32 v9, 3, v0\nv_mul_u32_u24 v9, 3456, v9\nv_and_b32 v10, 7, v0\nv_lshlrev_b32 v10, 4, v10\nv_add_u32 v9, v9, v10')
        A(f's_mul_i32 s60, s71, {160*3456}\ns_lshl_b32 s61, s70, 7\ns_add_u32 s60, s60, s61\ns_mul_i32 s61, s63, {40*3456}\ns_add_u32 s60, s60, s61')
        A(f's_mul_i32 s62, s63, 5120\ns_add_u32 s69, s62, {L_WU}\ns_add_u32 s62, s62, {L_WG}')
        n = 0
        for t in range(5):
            for srd, mreg in (('s[48:51]', 's62'), ('s[52:55]', 's69')):
                if n >= s.WF: A(f's_waitcnt vmcnt({s.WF-1})')
                A(f's_mov_b32 m0, {mreg}')
                A(f'buffer_load_dwordx4 v9, {srd}, s60 offen {s.pol_f} lds')
                n += 1
            if t < 4: A(f's_add_u32 s60, s60, {8*3456}\ns_add_u32 s62, s62, 1024\ns_add_u32 s69, s69, 1024')
        lw4 = s.lab('w4')
        A('s_cmp_eq_u32 s63, 0')
        A(f's_cbranch_scc1 {lw4}')
        A('s_waitcnt vmcnt(0)')
        A(f's_lshl_b32 s60, s63, 2\nv_mov_b32 v10, s60\nv_mov_b32 v11, 1')
        A(f'ds_write_b32 v10, v11 offset:{L_FLAG + 32}')
        A(f's_branch {l_skip}')
        A(f'{lw4}:')
        A('s_mov_b32 s59, 1')
        A('v_and_b32 v9, 3, v0\nv_mul_u32_u24 v9, 1280, v9\nv_lshrrev_b32 v10, 4, v0\nv_lshlrev_b32 v11, 3, v10\nv_add_u32 v9, v9, v11')
        A('s_mul_i32 s60, s71, 320\nv_add_u32 v9, s60, v9')
        A('v_lshlrev_b32 v10, 2, v10\nv_bfe_u32 v11, v0, 2, 2\nv_add_u32 v10, v10, v11\nv_lshlrev_b32 v10, 7, v10\nv_and_b32 v11, 3, v0\nv_lshlrev_b32 v11, 3, v11\nv_add_u32 v10, v10, v11')
        A(f'v_add_u32 v8, {L_WU - L_WG}, v10')
        A('s_waitcnt vmcnt(0)')
        A(f'v_mov_b32 v12, 0\nv_mov_b32 v13, 1\nds_write_b32 v12, v13 offset:{L_FLAG + 32}')
        s.lds_flag_wait(L_FLAG + 32, 14)
        if s.fineF: s.stamp(3)
        ag, au = 12, 28
        for ks in range(5):
            o = 44
            A(f'ds_read_b64 v[{o}:{o+1}], v9 offset:{L_XN + 64*ks}')
            A(f'ds_read_b64 v[{o+2}:{o+3}], v9 offset:{L_XN + 64*ks + 32}')
            for ct in range(4):
                q = 48 + 8 * ct
                A(f'ds_read_b64_tr_b16 v[{q}:{q+1}], v10 offset:{L_WG + 4096*ks + 32*ct}')
                A(f'ds_read_b64_tr_b16 v[{q+2}:{q+3}], v10 offset:{L_WG + 4096*ks + 32*ct + 2048}')
                A(f'ds_read_b64_tr_b16 v[{q+4}:{q+5}], v8 offset:{L_WG + 4096*ks + 32*ct}')
                A(f'ds_read_b64_tr_b16 v[{q+6}:{q+7}], v8 offset:{L_WG + 4096*ks + 32*ct + 2048}')
                if ct == 2: A('s_waitcnt lgkmcnt(6)')
            A('s_waitcnt lgkmcnt(0)')
            for ct in range(4):
                q = 48 + 8 * ct
                A(f'v_mfma_f32_16x16x32_bf16 v[{ag+4*ct}:{ag+4*ct+3}], v[{o}:{o+3}], v[{q}:{q+3}], ' + ('0' if ks == 0 else f'v[{ag+4*ct}:{ag+4*ct+3}]'))
                A(f'v_mfma_f32_16x16x32_bf16 v[{au+4*ct}:{au+4*ct+3}], v[{o}:{o+3}], v[{q+4}:{q+7}], ' + ('0' if ks == 0 else f'v[{au+4*ct}:{au+4*ct+3}]'))
        A('s_mov_b32 s76, 0xffff0000\ns_mov_b32 s77, 0\ns_mov_b32 s78, 0\ns_mov_b32 s79, 0xffff\ns_mov_b32 s80, 0\ns_mov_b32 s81, 0xffff0000')
        A('v_lshlrev_b32 v9, 3, v0')
        A(f's_lshl_b32 s62, s70, 13\ns_lshl_b32 s69, s71, 9\ns_add_u32 s62, s62, s69\ns_add_u32 s62, s62, {hex(W_FX)}')
        for ct in range(4):
            o = 48 + 2 * ct
            for base, dst in ((ag, o), (au, o + 1)):
                a = base + 4 * ct
                A(f'v_cndmask_b32 v{dst}, v{a}, v{a+1}, s[76:77]')
                A(f'v_cndmask_b32 v{dst}, v{dst}, v{a+2}, s[78:79]')
                A(f'v_cndmask_b32 v{dst}, v{dst}, v{a+3}, s[80:81]')
            A(f'buffer_store_dwordx2 v[{o}:{o+1}], v9, s[44:47], s62 offen {s.pol_hs}')
            if ct < 3: A('s_add_u32 s62, s62, 2048')
        A('v_lshrrev_b32 v2, 4, v0\nv_mul_u32_u24 v2, 1280, v2\nv_and_b32 v3, 15, v0\nv_lshlrev_b32 v3, 4, v3\nv_add_u32 v2, v2, v3')
        A('s_mul_i32 s60, s68, 20480')
        for u in range(4):
            for cb in range(5):
                r = DATA + 4 * (u * 5 + cb)
                A(f'buffer_load_dwordx4 v[{r}:{r+3}], v2, s[72:75], s60 offen offset:{cb*256} {s.pol_f}')
            if u < 3: A('s_add_u32 s60, s60, 5120')
        A(f's_lshl_b32 s62, s70, 7\ns_lshl_b32 s69, s71, 2\ns_add_u32 s62, s62, s69\ns_add_u32 s62, s62, {hex(W_FLAGF)}\nv_lshlrev_b32 v14, 4, v0')
        A('s_waitcnt vmcnt(20)')
        s.flag_store('0xf', 14, 's62')
        if s.fineF: s.stamp(4)
        A(f's_lshl_b32 s60, s70, 7\ns_lshl_b32 s69, s71, 4\ns_add_u32 s60, s60, s69\ns_add_u32 s60, s60, {hex(W_FLAGF)}')
        s.spoll(4, [0, 1, 2, 3], sleep=2)
        A(f's_lshl_b32 s60, s68, 11\ns_add_u32 s60, s60, {hex(W_FX)}')
        for t in range(4):
            A(f'buffer_load_dwordx2 v[{12+2*t}:{13+2*t}], v9, s[44:47], s60 offen offset:{t*512} {s.pol_hl}')
        A('s_waitcnt vmcnt(0)')
        if s.fineF: s.stamp(5)
        A('v_add_f32 v12, v12, v14\nv_add_f32 v16, v16, v18\nv_add_f32 v12, v12, v16')
        A('v_add_f32 v13, v13, v15\nv_add_f32 v17, v17, v19\nv_add_f32 v14, v13, v17')
        g_, u_, t0, t1 = 12, 14, 20, 21
        s.bf16r(g_, g_)
        s.bf16r(u_, u_)
        A(f'v_mul_f32 v{t0}, v{g_}, v{g_}\nv_mul_f32 v{t0}, v{t0}, v{g_}')
        A(f'v_mov_b32 v{t1}, 0x3d372713\nv_fma_f32 v{t0}, v{t0}, v{t1}, v{g_}')
        A(f'v_mul_f32 v{t0}, 0x3f4c422a, v{t0}')
        A(f'v_mul_f32 v{t0}, 0x4038aa3b, v{t0}')
        A(f'v_exp_f32 v{t0}, v{t0}')
        A(f'v_add_f32 v{t0}, 1.0, v{t0}')
        A(f'v_rcp_f32 v{t0}, v{t0}')
        A(f'v_fma_f32 v{t0}, v{t0}, -2.0, 1.0')
        A(f'v_add_f32 v{t0}, 1.0, v{t0}')
        A(f'v_mul_f32 v{t1}, 0.5, v{g_}')
        A(f'v_mul_f32 v{t0}, v{t1}, v{t0}')
        s.bf16r(t0, t0)
        A(f'v_mul_f32 v{t0}, v{t0}, v{u_}')
        A(f'v_cvt_pk_bf16_f32 v{g_}, v{t0}, v{t0}')
        A('v_lshrrev_b32 v9, 4, v0\nv_lshlrev_b32 v9, 6, v9\nv_and_b32 v10, 3, v0\nv_lshlrev_b32 v10, 4, v10\nv_bfe_u32 v11, v0, 2, 2\nv_lshlrev_b32 v11, 2, v11\nv_add3_u32 v9, v9, v10, v11')
        A(f'ds_write_b32 v9, v{g_} offset:{L_HT}')
        if s.dbg:
            A(f's_lshl_b32 s60, s68, 8\ns_add_u32 s60, s60, {hex(W_DBG + 0x500000)}')
            A('v_lshlrev_b32 v10, 2, v0\nv_add_u32 v10, s60, v10')
            A(f'global_store_dword v10, v{g_}, s[30:31]')
        A('v_bfe_u32 v9, v0, 3, 1\nv_lshlrev_b32 v9, 2, v9\nv_lshrrev_b32 v10, 4, v0\nv_add_u32 v9, v9, v10\nv_lshlrev_b32 v9, 4, v9')
        A('s_waitcnt lgkmcnt(0)')
        A(f'ds_read_b128 v[12:15], v9 offset:{L_HT}')
        A(f'ds_read_b128 v[16:19], v9 offset:{L_HT + 128}')
        A('v_bfe_u32 v9, v0, 3, 1\nv_mul_u32_u24 v9, 640, v9\nv_lshrrev_b32 v10, 4, v0\nv_lshlrev_b32 v10, 5, v10\nv_and_b32 v11, 7, v0\nv_add3_u32 v9, v9, v10, v11\nv_lshlrev_b32 v9, 2, v9')
        A('s_waitcnt vmcnt(0) lgkmcnt(0)')
        for u in range(4):
            for bp in range(2):
                y = 60 + 4 * ((2 * u + bp) & 3)
                for d in range(4): A(f'v_and_b32 v{y+d}, v{12+4*bp+u}, v{4+d}')
                for cb in range(5):
                    a = 20 + 8 * cb + 4 * bp
                    r = DATA + 4 * (u * 5 + cb)
                    A(f'v_mfma_f32_16x16x32_bf16 v[{a}:{a+3}], v[{r}:{r+3}], v[{y}:{y+3}], ' + ('0' if u == 0 else f'v[{a}:{a+3}]'))
        for cb in range(5):
            for bp in range(2):
                for r in range(4):
                    A(f'ds_write_b32 v9, v{20+8*cb+4*bp+r} offset:{L_YPART + bp*5120 + cb*512 + r*32}')
        A('s_waitcnt lgkmcnt(0)')
        A('v_lshlrev_b32 v9, 4, v0')
        A(f's_mul_i32 s60, s68, 10240\ns_add_u32 s60, s60, {hex(W_FPART)}')
        for t in range(10):
            A(f'ds_read_b128 v[{12+4*t}:{15+4*t}], v9 offset:{L_YPART + 1024*t}')
        A('s_waitcnt lgkmcnt(0)')
        for t in range(10):
            A(f'buffer_store_dwordx4 v[{12+4*t}:{15+4*t}], v9, s[44:47], s60 offen offset:{(t%4)*1024} {s.pol_hs}')
            if t % 4 == 3: A('s_add_u32 s60, s60, 4096')
        A(f's_lshl_b32 s62, s68, 2\ns_add_u32 s62, s62, {hex(W_FLAGP)}\nv_mov_b32 v9, 0')
        A('s_waitcnt vmcnt(0)')
        s.flag_store('1', 9, 's62')
        if s.fineF: s.stamp(6)

    def wait_ml(s):
        A = s.A
        lp, ld = s.lab('ml'), s.lab('mld')
        A(f'v_and_b32 v9, 3, v0\nv_lshlrev_b32 v9, 3, v9')
        A('s_mov_b32 s61, 0x400000')
        A(f'{lp}:')
        A(f'ds_read_b64 v[10:11], v9 offset:{L_ML}')
        A('s_waitcnt lgkmcnt(0)')
        A('v_cmp_eq_u32 vcc, -1, v10')
        A(f's_cbranch_vccz {ld}')
        A('s_sleep 16')
        A('s_sub_u32 s61, s61, 1\ns_cmp_lg_u32 s61, 0')
        A(f's_cbranch_scc1 {lp}')
        A(f'{ld}:')

    def mlx(s):
        A = s.A
        s.wait_ml()
        A('v_mov_b32 v12, v10')
        A('v_max_f32_dpp v12, v12, v12 quad_perm:[1,0,3,2] row_mask:0xf bank_mask:0xf')
        A('v_max_f32_dpp v12, v12, v12 quad_perm:[2,3,0,1] row_mask:0xf bank_mask:0xf')
        A(f'v_sub_f32 v14, v10, v12\nv_mul_f32 v14, {hex(LOG2E)}, v14\nv_exp_f32 v14, v14')
        A('v_mul_f32 v14, v14, v11')
        A('v_add_f32_dpp v14, v14, v14 quad_perm:[1,0,3,2] row_mask:0xf bank_mask:0xf')
        A('v_add_f32_dpp v14, v14, v14 quad_perm:[2,3,0,1] row_mask:0xf bank_mask:0xf')
        A('v_mov_b32 v13, s58\nv_mov_b32 v15, s58')
        A(f's_xor_b32 s60, s2, 128\ns_lshl_b32 s60, s60, 7\ns_add_u32 s60, s60, {hex(W_ML)}')
        A('v_mov_b32 v9, 0')
        A('s_mov_b64 exec, 1')
        A(f'buffer_store_dwordx4 v[12:15], v9, s[44:47], s60 offen {s.pol_hs}')
        A('s_mov_b64 exec, -1')
        A(f's_lshl_b32 s60, s2, 7\ns_add_u32 s60, s60, {hex(W_ML)}')
        s.spoll(4, [1, 3], sleep=4)
        A('v_mov_b32 v22, s76\nv_mov_b32 v23, s78')
        A('v_max_f32 v16, v12, v22')
        A(f'v_sub_f32 v17, v12, v16\nv_mul_f32 v17, {hex(LOG2E)}, v17\nv_exp_f32 v17, v17')
        A(f'v_sub_f32 v18, v22, v16\nv_mul_f32 v18, {hex(LOG2E)}, v18\nv_exp_f32 v18, v18')
        A('v_mul_f32 v17, v17, v14\nv_fma_f32 v17, v18, v23, v17')
        A(f'v_sub_f32 v18, v10, v16\nv_mul_f32 v18, {hex(LOG2E)}, v18\nv_exp_f32 v18, v18')
        A('v_rcp_f32 v19, v17')
        A('v_mul_f32 v20, v18, v19\nv_fma_f32 v21, -v20, v17, v18\nv_fma_f32 v20, v21, v19, v20')
        A('v_mov_b32 v14, 0x7fc00000\nv_cmp_eq_u32 vcc, -1, v20\nv_cndmask_b32 v20, v20, v14, vcc')
        A('v_and_b32 v9, 3, v0\nv_lshlrev_b32 v9, 2, v9')
        A(f'ds_write_b32 v9, v20 offset:{L_WF}')
        A('s_waitcnt lgkmcnt(0)')

    def consumer_prep(s, l_tail):
        A = s.A
        A('s_cmp_ge_u32 s84, 20')
        A(f's_cbranch_scc1 {l_tail}')
        if 'ffn' not in s.skip:
            s.wait_ml()
            lp, ld = s.lab('fc'), s.lab('fcd')
            A(f'v_lshlrev_b32 v9, 2, v0\ns_mov_b32 s60, {hex(W_FLAGP)}\ns_mov_b32 s61, 0x100000')
            A(f'{lp}:')
            A(f'buffer_load_dword v10, v9, s[44:47], s60 offen {s.pol_hl}')
            A(f'buffer_load_dword v11, v9, s[44:47], s60 offen offset:256 {s.pol_hl}')
            A('s_waitcnt vmcnt(0)')
            A('v_cmp_ne_u32 vcc, s58, v10')
            A('v_cmp_ne_u32 s[76:77], s58, v11')
            A('s_and_b32 s77, s77, 0xfff')
            A('s_or_b64 vcc, vcc, s[76:77]')
            A(f's_cbranch_vccz {ld}')
            A('s_sleep 32')
            A('s_sub_u32 s61, s61, 1\ns_cmp_lg_u32 s61, 0')
            A(f's_cbranch_scc1 {lp}')
            A(f'{ld}:')
        A('v_lshrrev_b32 v9, 3, v0\nv_mul_u32_u24 v9, 10240, v9\nv_and_b32 v10, 7, v0\nv_lshlrev_b32 v10, 4, v10\nv_add_u32 v9, v9, v10')
        A(f's_mul_i32 s60, s65, 2560\ns_lshl_b32 s61, s84, 7\ns_add_u32 s60, s60, s61\ns_add_u32 s60, s60, {hex(W_FPART)}')
        for r in range(4): A(f'v_mov_b32 v{16+4*13+r}, 0')
        for t in range(14):
            if t == 13: A('s_mov_b64 exec, 0xffffffff')
            if t >= 4 and t % 2 == 0: A('s_waitcnt vmcnt(2)')
            A(f'buffer_load_dwordx4 v[{16+4*t}:{19+4*t}], v9, s[44:47], s60 offen {s.pol_hl}')
            if t < 13: A(f's_add_u32 s60, s60, {8*10240}')
        A('s_mov_b64 exec, -1')
        A('s_mul_i32 s60, s65, 1280\ns_lshl_b32 s61, s84, 6\ns_add_u32 s60, s60, s61')
        A('v_and_b32 v10, 15, v0\nv_lshlrev_b32 v10, 2, v10')
        A(f'buffer_load_dword v12, v10, s[40:43], s60 offen')
        A('s_waitcnt vmcnt(0)')
        for t in range(1, 14):
            for r in range(4): A(f'v_add_f32 v{16+r}, v{16+r}, v{16+4*t+r}')
        for r in range(4): s.reduce_hi3(16 + r, 20)
        for r in range(4):
            f = 16 + r
            s.bf16r(f, f)
            A(f'v_mul_f32 v20, 0xbfb8aa3b, v{f}\nv_exp_f32 v20, v20\nv_add_f32 v20, 1.0, v20\nv_rcp_f32 v21, v20')
            A(f'v_mul_f32 v22, v{f}, v21\nv_fma_f32 v23, -v22, v20, v{f}\nv_fma_f32 v23, v23, v21, v22')
            A('v_cmp_u_f32 vcc, v23, v23')
            A(f'v_cndmask_b32 v22, v23, v22, vcc')
            s.bf16r(24 + r, 22)
        A('v_and_b32 v9, 7, v0\nv_lshlrev_b32 v9, 4, v9')
        A(f'ds_write_b128 v9, v[24:27] offset:{L_GX}')
        A('v_and_b32 v9, 15, v0\nv_lshlrev_b32 v9, 3, v9')
        A('s_waitcnt lgkmcnt(0)')
        A(f'ds_read_b64 v[88:89], v9 offset:{L_GX}')
        A('v_lshlrev_b32 v92, 16, v12\nv_and_b32 v93, 0xffff0000, v12')
        A('s_waitcnt lgkmcnt(0)')

    def tail(s):
        A = s.A
        DATA = 96
        vM = 4
        A('v_lshrrev_b32 v9, 4, v0\nv_lshlrev_b32 v9, 7, v9\ns_lshl_b32 s60, s63, 5\nv_add_u32 v9, s60, v9')
        A('v_lshrrev_b32 v10, 4, v0\nv_lshlrev_b32 v10, 7, v10\nv_and_b32 v11, 15, v0\nv_lshlrev_b32 v11, 2, v11\nv_add_u32 v10, v10, v11')
        A('s_mul_i32 s60, s63, 2560\nv_add_u32 v10, s60, v10')
        A('s_lshl_b32 s60, s63, 6\nv_add_u32 v76, s60, v0')
        A('v_lshrrev_b32 v77, 3, v76\nv_lshlrev_b32 v77, 14, v77\nv_and_b32 v78, 7, v76\nv_lshlrev_b32 v78, 5, v78\nv_add_u32 v77, v77, v78')
        A('v_lshlrev_b32 v78, 4, v76')
        A('s_mul_i32 s62, s65, 327680\ns_lshl_b32 s69, s67, 8\ns_add_u32 s62, s62, s69')
        A('s_waitcnt vmcnt(0)')
        if not s.fineF: s.stamp(3)
        A('s_barrier')
        if not s.fineF: s.stamp(4)
        for w in range(4):
            A(f'ds_read_b128 v[{16+8*w}:{19+8*w}], v9 offset:{L_OPART + 512*w}')
            A(f'ds_read_b128 v[{20+8*w}:{23+8*w}], v9 offset:{L_OPART + 512*w + 16}')
        A('s_waitcnt lgkmcnt(0)')
        def osum(u):
            A(f'v_add_f32 v{16+u}, v{16+u}, v{24+u}')
            A(f'v_add_f32 v{32+u}, v{32+u}, v{40+u}')
            A(f'v_add_f32 v{16+u}, v{16+u}, v{32+u}')
            A(f'v_cvt_pk_bf16_f32 v{16+u}, v{16+u}, v{16+u}')
        acc = 48
        if s.dbg:
            for u in range(8): osum(u)
            A(f's_lshl_b32 s60, s2, 13\ns_lshl_b32 s61, s63, 11\ns_add_u32 s60, s60, s61\ns_add_u32 s60, s60, {hex(W_DBG + 0x600000)}')
            A('v_lshlrev_b32 v48, 5, v0\nv_add_u32 v48, s60, v48')
            A('global_store_dwordx4 v48, v[16:19], s[30:31]\nglobal_store_dwordx4 v48, v[20:23], s[30:31] offset:16')
            A('s_waitcnt vmcnt(0)')
        else:
            osum(0); osum(1)
        for u in range(8):
            y = 68 + 4 * (u & 1)
            for d in range(4): A(f'v_and_b32 v{y+d}, v{16+u}, v{vM+d}')
            if not s.dbg and u + 2 < 8: osum(u + 2)
            for cb in range(5):
                r = DATA + 4 * (u * 5 + cb)
                a = acc + 4 * cb
                A(f'v_mfma_f32_16x16x32_bf16 v[{a}:{a+3}], v[{r}:{r+3}], v[{y}:{y+3}], ' + ('0' if u == 0 else f'v[{a}:{a+3}]'))
        A('s_mov_b32 exec_lo, 0x00ff00ff\ns_mov_b32 exec_hi, 0x00ff00ff')
        for cb in range(5):
            for r in range(4):
                A(f'ds_write_b32 v10, v{acc+4*cb+r} offset:{L_YPART + 512*cb + 32*r}')
        A('s_mov_b64 exec, -1')
        A('s_waitcnt lgkmcnt(0)')
        A('s_barrier')
        if not s.fineF: s.stamp(5)
        l_fin, l_done = s.lab('fin'), s.lab('done')
        A('s_cmp_eq_u32 s63, 3')
        A(f's_cbranch_scc1 {l_fin}')
        A('v_cmp_gt_u32 vcc, 160, v76')
        A('s_and_saveexec_b64 s[60:61], vcc')
        A(f's_cbranch_execz {l_done}')
        for w in range(4):
            A(f'ds_read_b128 v[{16+4*w}:{19+4*w}], v78 offset:{L_YPART + 2560*w}')
        A('v_mov_b32 v33, s58\nv_mov_b32 v35, s58\nv_mov_b32 v37, s58\nv_mov_b32 v39, s58')
        A('s_waitcnt lgkmcnt(0)')
        for r in range(4):
            A(f'v_add_f32 v{16+r}, v{16+r}, v{20+r}')
            A(f'v_add_f32 v{24+r}, v{24+r}, v{28+r}')
        for r in range(4):
            A(f'v_add_f32 v{32+2*r}, v{16+r}, v{24+r}')
        A(f'buffer_store_dwordx4 v[32:35], v77, s[44:47], s62 offen {s.pol_hs}')
        A(f'buffer_store_dwordx4 v[36:39], v77, s[44:47], s62 offen offset:16 {s.pol_hs}')
        A(f'{l_done}:')
        if not s.fineF: s.stamp(6)
        s.stamp_store(7)
        A('s_endpgm')
        A(f'{l_fin}:')
        l_nf = s.lab('nofin')
        A('s_cmp_ge_u32 s84, 20')
        A(f's_cbranch_scc1 {l_nf}')
        A('s_mul_i32 s60, s65, 20\ns_add_u32 s60, s60, s84\ns_lshl_b32 s60, s60, 14')
        for k in range(1, 4): A(f's_add_u32 s{80+k}, s60, {4096*k}')
        A('s_mov_b32 s80, s60')
        A('v_lshlrev_b32 v9, 4, v0')
        s.srd(48, 26, 5120)
        A('s_mul_i32 s52, s65, 1280\ns_lshl_b32 s53, s84, 6\ns_add_u32 s52, s52, s53')
        A('v_lshlrev_b32 v10, 2, v0')
        lp, ld = s.lab('fp'), s.lab('fpd')
        A('s_mov_b32 s61, 0x100000')
        A(f'{lp}:')
        for t in range(16):
            A(f'buffer_load_dwordx4 v[{16+4*t}:{19+4*t}], v9, s[44:47], s{80+t//4} offen offset:{(t%4)*1024} {s.pol_hl}')
        tags = [16 + 4 * t + k for t in range(16) for k in (1, 3)]
        A('s_waitcnt vmcnt(12)')
        A(f'v_min_u32 v80, v{tags[0]}, v{tags[1]}\nv_max_u32 v81, v{tags[0]}, v{tags[1]}')
        for i in range(2, 32, 2):
            if i in (8, 16, 24): A(f's_waitcnt vmcnt({12 - i//2})')
            A(f'v_min3_u32 v80, v80, v{tags[i]}, v{tags[i+1]}')
            A(f'v_max3_u32 v81, v81, v{tags[i]}, v{tags[i+1]}')
        A('v_cmp_ne_u32 vcc, s58, v80')
        A('v_cmp_ne_u32 s[76:77], s58, v81')
        A('s_or_b64 vcc, vcc, s[76:77]')
        A(f's_cbranch_vccz {ld}')
        A('s_sub_u32 s61, s61, 1\ns_cmp_lg_u32 s61, 0')
        A(f's_cbranch_scc1 {lp}')
        A(f'{ld}:')
        step = 1
        while step < 16:
            for t in range(0, 16, 2 * step):
                for k in (0, 2): A(f'v_add_f32 v{16+4*t+k}, v{16+4*t+k}, v{16+4*(t+step)+k}')
            step *= 2
        for k in (0, 2): A(f'v_mov_b32 v{20+k}, v{16+k}')
        for k in (0, 2): A(f'v_permlane16_swap_b32 v{16+k}, v{20+k}')
        for k in (0, 2): A(f'v_add_f32 v{16+k}, v{16+k}, v{20+k}')
        for k in (0, 2): A(f'v_mov_b32 v{20+k}, v{16+k}')
        for k in (0, 2): A(f'v_permlane32_swap_b32 v{16+k}, v{20+k}')
        for k in (0, 2): A(f'v_add_f32 v{16+k}, v{16+k}, v{20+k}')
        A('v_cvt_pk_bf16_f32 v16, v16, v18')
        A('v_lshlrev_b32 v17, 16, v16\nv_and_b32 v18, 0xffff0000, v16')
        A('v_mul_f32 v17, v17, v88\nv_mul_f32 v18, v18, v89')
        A('v_cvt_pk_bf16_f32 v16, v17, v18')
        A('v_lshlrev_b32 v17, 16, v16\nv_and_b32 v18, 0xffff0000, v16')
        A('v_add_f32 v17, v17, v92\nv_add_f32 v18, v18, v93')
        A('v_cvt_pk_bf16_f32 v16, v17, v18')
        A('s_mov_b64 exec, 0xffff')
        A('buffer_store_dword v16, v10, s[48:51], s52 offen')
        A('s_mov_b64 exec, -1')
        A('s_or_b32 s60, s65, s84\ns_cmp_lg_u32 s60, 0')
        A(f's_cbranch_scc1 {l_nf}')
        A(f'v_mov_b32 v9, 0\nv_mov_b32 v11, s58\ns_mov_b32 s60, {hex(W_NONCE)}')
        A('s_mov_b64 exec, 1')
        A('buffer_store_dword v11, v9, s[44:47], s60 offen sc1')
        A('s_mov_b64 exec, -1')
        A(f'{l_nf}:')
        if not s.fineF: s.stamp(6)
        s.stamp_store(7)

    def text(s):
        s.build()
        body = hz.fix(s.L)
        out = [HEADER + f'; @launch grid=(256,1,1) block=(512,1,1) lds={LDS_BYTES}',
               '.amdgcn_target "amdgcn-amd-amdhsa--gfx950"', '.text', f'.globl {NAME}_kernel', '.p2align 8',
               f'.type {NAME}_kernel,@function']
        out += body
        out += ['.section .rodata,"a"', '.p2align 6', f'.amdhsa_kernel {NAME}_kernel',
                '  .amdhsa_next_free_vgpr 256', '  .amdhsa_next_free_sgpr 102', '  .amdhsa_accum_offset 256',
                '  .amdhsa_group_segment_fixed_size 0', '  .amdhsa_kernarg_size 96', '  .amdhsa_user_sgpr_count 2',
                '  .amdhsa_user_sgpr_kernarg_segment_ptr 1', '  .amdhsa_system_sgpr_workgroup_id_x 1',
                '  .amdhsa_float_denorm_mode_32 3',
                '.end_amdhsa_kernel']
        return '\n'.join(out) + '\n'

if __name__ == '__main__':
    import argparse
    ap = argparse.ArgumentParser()
    ap.add_argument('-o', default='cdna_kernels/' + NAME + '.s')
    ap.add_argument('--cfg', default='{}')
    a = ap.parse_args()
    g = Gen(**eval(a.cfg))
    open(a.o, 'w').write(g.text())
    print('wrote', a.o)
```

```python
import sys, os
sys.path.insert(0, os.path.dirname(os.path.abspath(__file__)))
import hz

NAME = 'recurrent_scan__gqa_block_cached__geglu_ffn__decode'

HEADER = '''; Kernarg layout for this problem (96 bytes, ptrs only, base s[0:1]):
;   offset  32: d_in[4] A_wo  shape=(4096, 640) dtype=bfloat16
;   offset  88: d_ws      workspace: q, FFN partials, hand-off mailboxes
; One workgroup per (batch, head, key-half): waves 0-3 stream K then V, waves 4-7 do the projections / FFN / hand-offs.
'''

L_QP    = 0x0000
L_XN    = 0x2000
L_ML    = 0x3400
L_WF    = 0x3440
L_FLAG  = 0x3480
L_QB    = 0x3500
L_HT    = 0x3600
L_OPART = 0x3700
L_YPART = 0x3F00
L_GX    = 0x6700
L_WG    = 0x6800
L_WU    = 0xB800
LDS_BYTES = 0x10800

W_YIN   = 0x000000
W_ML    = 0x140000
W_NONCE = 0x148000
W_FLAGQ = 0x149000
W_FLAGF = 0x14A000
W_FLAGP = 0x14B000
W_Q     = 0x180000
W_FPART = 0x200000
W_FX    = 0x320000
WS_SIZE = 0x360000
W_DBG   = 0x1000000

SCALE = 0x3db504f3
LOG2E = 0x3fb8aa3b

class Gen:
    def __init__(s, W=6, P=30, B=40, WO=3, WF=5, pol_kv='nt', pol_w='', pol_hl='sc1', pol_hs='sc1', dbg=False, stamps=False, prio=True, skip='', W0=None, fineF=False, WO4=None, pol_f=None, pol_q=None, WD=4, boost=0, rot=False, WV=None):
        s.WV = WV or W
        s.rot = rot
        s.boost = boost
        s.WD = WD
        s.fineF = fineF; s.WO4 = WO4 or WO; s.pol_f = pol_w if pol_f is None else pol_f; s.pol_q = pol_w if pol_q is None else pol_q
        s.L = []
        s.W, s.P, s.B, s.WO, s.WF = W, P, B, WO, WF
        s.W0 = W0 or W
        s.pol_kv, s.pol_w, s.pol_hl, s.pol_hs = pol_kv, pol_w, pol_hl, pol_hs
        s.dbg = dbg; s.stamps = stamps; s.prio = prio; s.skip = skip.split(',')
        s.nlab = 0
    def A(s, t):
        for l in t.split('\n'):
            l = l.strip()
            if l: s.L.append(('  ' + l) if not l.endswith(':') else l)
    def lab(s, base):
        s.nlab += 1
        return f'L_{base}_{s.nlab}'

    def allreduce(s, op, v, t):
        A = s.A
        ins = {'add': 'v_add_f32', 'max': 'v_max_f32'}[op]
        A(f'{ins}_dpp v{v}, v{v}, v{v} quad_perm:[1,0,3,2] row_mask:0xf bank_mask:0xf')
        A(f'{ins}_dpp v{v}, v{v}, v{v} quad_perm:[2,3,0,1] row_mask:0xf bank_mask:0xf')
        A(f'{ins}_dpp v{v}, v{v}, v{v} row_half_mirror row_mask:0xf bank_mask:0xf')
        A(f'{ins}_dpp v{v}, v{v}, v{v} row_mirror row_mask:0xf bank_mask:0xf')
        A(f'v_mov_b32 v{t}, v{v}')
        A(f'v_permlane16_swap_b32 v{v}, v{t}')
        A(f'{ins} v{v}, v{v}, v{t}')
        A(f'v_mov_b32 v{t}, v{v}')
        A(f'v_permlane32_swap_b32 v{v}, v{t}')
        A(f'{ins} v{v}, v{v}, v{t}')

    def reduce_hi3(s, v, t):
        A = s.A
        A(f'v_add_f32_dpp v{v}, v{v}, v{v} row_ror:8 row_mask:0xf bank_mask:0xf')
        A(f'v_mov_b32 v{t}, v{v}')
        A(f'v_permlane16_swap_b32 v{v}, v{t}')
        A(f'v_add_f32 v{v}, v{v}, v{t}')
        A(f'v_mov_b32 v{t}, v{v}')
        A(f'v_permlane32_swap_b32 v{v}, v{t}')
        A(f'v_add_f32 v{v}, v{v}, v{t}')

    def bf16r(s, dst, src):
        s.A(f'v_cvt_pk_bf16_f32 v{dst}, v{src}, v{src}')
        s.A(f'v_lshlrev_b32 v{dst}, 16, v{dst}')

    def srd(s, n, ptr, size):
        s.A(f's_mov_b32 s{n}, s{ptr}\ns_and_b32 s{n+1}, s{ptr+1}, 0xffff\ns_mov_b32 s{n+2}, {hex(size)}\ns_mov_b32 s{n+3}, 0x20000')

    def stamp(s, idx):
        if s.stamps: s.A(f's_memrealtime s[{86+2*idx}:{87+2*idx}]')

    def stamp_store(s, n):
        if not s.stamps: return
        A = s.A
        A('s_waitcnt lgkmcnt(0)')
        A('s_lshl_b32 s100, s2, 3\ns_add_u32 s100, s100, s3\ns_lshl_b32 s100, s100, 6')
        A(f's_add_u32 s100, s100, {hex(W_DBG)}')
        A('v_mov_b32 v1, s100')
        A('s_mov_b64 exec, 1')
        for i in range(n):
            A(f'v_mov_b32 v2, s{86+2*i}')
            A(f'global_store_dword v1, v2, s[30:31] offset:{4*i}')
        A('s_mov_b64 exec, -1')

    def masks_Md(s, base, jreg, t1, t2, mod8=False):
        A = s.A
        if mod8: A(f'v_and_b32 v{t1}, 7, v{jreg}')
        else: A(f'v_mov_b32 v{t1}, v{jreg}')
        A(f'v_and_b32 v{t2}, 1, v{t1}')
        A(f'v_cmp_eq_u32 vcc, 1, v{t2}')
        A(f'v_mov_b32 v{t2}, 0xffff')
        A(f'v_mov_b32 v{base}, 0xffff0000')
        A(f'v_cndmask_b32 v{t2}, v{t2}, v{base}, vcc')
        A(f'v_lshrrev_b32 v{t1}, 1, v{t1}')
        for d in range(4):
            A(f'v_cmp_eq_u32 vcc, {d}, v{t1}')
            A(f'v_cndmask_b32 v{base+d}, 0, v{t2}, vcc')

    def layernorm(s, xr, out_pairs, tb):
        A = s.A
        f = tb
        a, t = tb + 10, tb + 11
        for i in range(5):
            A(f'v_lshlrev_b32 v{f+2*i}, 16, v{xr+i}')
            A(f'v_and_b32 v{f+2*i+1}, 0xffff0000, v{xr+i}')
        A(f'v_add_f32 v{a}, v{f}, v{f+1}\nv_add_f32 v{t}, v{f+2}, v{f+3}')
        for i in range(4, 10, 2): A(f'v_add_f32 v{a}, v{a}, v{f+i}\nv_add_f32 v{t}, v{t}, v{f+i+1}')
        A(f'v_add_f32 v{a}, v{a}, v{t}')
        s.allreduce('add', a, t)
        A(f'v_mul_f32 v{a}, 0x3acccccd, v{a}')
        v, d = tb + 12, tb + 13
        A(f'v_sub_f32 v{d}, v{f}, v{a}\nv_mul_f32 v{v}, v{d}, v{d}')
        for i in range(1, 10):
            A(f'v_sub_f32 v{d}, v{f+i}, v{a}\nv_fmac_f32 v{v}, v{d}, v{d}')
        s.allreduce('add', v, t)
        A(f'v_mul_f32 v{v}, 0x3acccccd, v{v}')
        s.bf16r(v, v)
        A(f'v_add_f32 v{v}, 0x3727c5ac, v{v}')
        s.bf16r(v, v)
        A(f'v_sqrt_f32 v{v}, v{v}')
        s.bf16r(v, v)
        s.bf16r(a, a)
        A(f'v_rcp_f32 v{t}, v{v}')
        for i in range(10):
            A(f'v_sub_f32 v{f+i}, v{f+i}, v{a}')
        for i in range(5):
            A(f'v_cvt_pk_bf16_f32 v{out_pairs+i}, v{f+2*i}, v{f+2*i+1}')
        for i in range(5):
            A(f'v_lshlrev_b32 v{f+2*i}, 16, v{out_pairs+i}')
            A(f'v_and_b32 v{f+2*i+1}, 0xffff0000, v{out_pairs+i}')
        for i in range(10):
            A(f'v_mul_f32 v{d}, v{f+i}, v{t}')
            A(f'v_fma_f32 v{f+i}, -v{d}, v{v}, v{f+i}')
            A(f'v_fma_f32 v{f+i}, v{f+i}, v{t}, v{d}')
        for i in range(5):
            A(f'v_cvt_pk_bf16_f32 v{out_pairs+i}, v{f+2*i}, v{f+2*i+1}')

    def build(s):
        A = s.A
        A(f'{NAME}_kernel:')
        A('s_cmp_ge_u32 s2, 256')
        A('s_cbranch_scc1 L_end')
        s.stamp(0)
        A('s_load_dwordx16 s[8:23], s[0:1], 0')
        A('s_load_dwordx8 s[24:31], s[0:1], 64')
        A('v_lshrrev_b32 v1, 6, v0')
        A('v_and_b32 v0, 63, v0')
        A('v_readfirstlane_b32 s3, v1')
        lni = s.lab('noinit')
        A('s_cmp_lg_u32 s3, 0')
        A(f's_cbranch_scc1 {lni}')
        A('v_mov_b32 v2, -1\nv_cmp_gt_u32 vcc, 32, v0\nv_cndmask_b32 v2, 0, v2, vcc\nv_lshlrev_b32 v3, 2, v0')
        A(f'ds_write_b32 v3, v2 offset:{L_ML}')
        A(f'{lni}:')
        A('s_and_b32 s64, s2, 7\ns_lshr_b32 s68, s2, 3')
        A('s_and_b32 s69, s68, 3\ns_lshl_b32 s69, s69, 3\ns_add_u32 s64, s64, s69')
        A('s_lshr_b32 s65, s68, 2\ns_and_b32 s65, s65, 3')
        A('s_lshr_b32 s66, s68, 4')
        A('s_lshl_b32 s67, s64, 1\ns_add_u32 s67, s67, s66')
        A('s_cmp_eq_u32 s66, 1\ns_cselect_b32 s84, s64, 99')
        A('s_waitcnt lgkmcnt(0)')
        A('s_cmp_ge_u32 s3, 4')
        A('s_cbranch_scc1 L_helper')
        s.streamer()
        A('L_helper:')
        s.helper()
        A('L_end:')
        A('s_endpgm')

    def streamer(s):
        A = s.A
        W, P, B, W0 = s.W, s.P, s.B, s.W0
        RING = 64
        assert RING + 4 * B <= 256 and P + W0 + 3 <= B + 1
        vKo, vVo = 1, 2
        vM = 4; vY = 8; vAcc = 24; vSc = 32; vO = 40; vYp = 44; vT = 52
        if s.prio: A('s_setprio 2')
        s.srd(32, 10, 0x8000000)
        s.srd(36, 12, 0x8000000)
        A(f'v_lshrrev_b32 v{vT}, 4, v0')
        A(f'v_lshlrev_b32 v{vT+3}, 2, v{vT}\nv_and_b32 v{vT+2}, 3, v0\nv_add_u32 v{vT+3}, v{vT+3}, v{vT+2}\nv_lshlrev_b32 v3, 4, v{vT+3}')
        A(f'v_lshlrev_b32 v{vT}, 6, v{vT}')
        A(f'v_bfe_u32 v{vT+1}, v0, 2, 2')
        A(f'v_lshlrev_b32 v{vT+1}, 8, v{vT+1}')
        A(f'v_lshlrev_b32 v{vT+2}, 4, v{vT+2}')
        A(f'v_add3_u32 v{vKo}, v{vT}, v{vT+1}, v{vT+2}')
        A(f'v_lshlrev_b32 v{vVo}, 4, v0')
        A('s_lshl_b32 s40, s65, 5\ns_add_u32 s40, s40, s64\ns_lshl_b32 s40, s40, 20')
        A('s_lshl_b32 s41, s66, 19\ns_add_u32 s40, s40, s41')
        A('s_lshl_b32 s41, s3, 12\ns_add_u32 s40, s40, s41')
        A('s_mov_b32 s41, s40')
        state = {'n': 0, 'win': W}
        def issue():
            n = state['n']; state['n'] += 1
            if n >= 256: return
            if n == 128: A('s_mov_b32 s41, s40')
            elif n % 4 == 0 and n > 0: A('s_add_u32 s41, s41, 0x4000')
            r = RING + 4 * (n % B)
            if n < 128:
                A(f'buffer_load_dwordx4 v[{r}:{r+3}], v{vKo}, s[32:35], s41 offen offset:{(n%4)*1024} {s.pol_kv}')
            else:
                A(f'buffer_load_dwordx4 v[{r}:{r+3}], v{vVo}, s[36:39], s41 offen offset:{(n%4)*1024} {s.pol_kv}')
        done = {'upto': -1}
        def paced_issue(w=None):
            w = w or W
            if state['n'] >= 256: return
            A(f's_waitcnt vmcnt({w-1})')
            done['upto'] = max(done['upto'], state['n'] - w)
            issue()
        def ensure(c):
            if c > done['upto']:
                A(f's_waitcnt vmcnt({state["n"] - 1 - c})')
                done['upto'] = c
        for _ in range(W0): issue()
        A('s_barrier')
        A(f'v_and_b32 v{vT}, 15, v0')
        s.masks_Md(vM, vT, vT+1, vT+2)
        A('s_mov_b32 s44, 0x22222222\ns_mov_b32 s45, 0x22222222')
        A('s_mov_b32 s46, 0x44444444\ns_mov_b32 s47, 0x44444444')
        A('s_mov_b32 s48, 0x88888888\ns_mov_b32 s49, 0x88888888')
        for t in range(4):
            m = 0x000F000F << (4 * t)
            A(f's_mov_b32 s{50+2*t}, {hex(m)}\ns_mov_b32 s{51+2*t}, {hex(m)}')
        for _ in range(P): paced_issue(W0)
        s.stamp(1)
        A('s_barrier')
        s.stamp(2)
        A(f'ds_read_b128 v[56:59], v3 offset:{L_QB}')
        paced_issue()
        A('s_waitcnt lgkmcnt(0)')
        if s.dbg:
            A(f's_lshl_b32 s60, s2, 12\ns_lshl_b32 s61, s3, 10\ns_add_u32 s60, s60, s61\ns_add_u32 s60, s60, {hex(W_DBG + 0x100000)}')
            A(f'v_lshlrev_b32 v8, 4, v0\nv_add_u32 v8, s60, v8')
            A(f'global_store_dwordx4 v8, v[56:59], s[30:31]')
            A('s_waitcnt vmcnt(0)')
        for t in range(4):
            for d in range(4):
                A(f'v_cndmask_b32 v{vY+4*t+d}, 0, v{56+d}, s[{50+2*t}:{51+2*t}]')
        def post(g):
            a = vAcc + 4 * (g & 1)
            t = vT
            A(f'v_cndmask_b32 v{t}, v{a}, v{a+1}, s[44:45]')
            A(f'v_cndmask_b32 v{t}, v{t}, v{a+2}, s[46:47]')
            A(f'v_cndmask_b32 v{t}, v{t}, v{a+3}, s[48:49]')
            A(f'v_add_f32_dpp v{t}, v{t}, v{t} quad_perm:[1,0,3,2] row_mask:0xf bank_mask:0xf')
            q4 = vSc + (g >> 2)
            if (g & 3) == 0:
                A(f'v_add_f32_dpp v{q4}, v{t}, v{t} quad_perm:[2,3,0,1] row_mask:0xf bank_mask:0xf')
            else:
                A(f'v_add_f32_dpp v{t}, v{t}, v{t} quad_perm:[2,3,0,1] row_mask:0xf bank_mask:0xf')
                A(f'v_cndmask_b32 v{q4}, v{q4}, v{t}, s[{42+2*(g&3)}:{43+2*(g&3)}]')
        if s.boost:
            A('s_and_b32 s58, s2, 7\ns_lshl_b32 s59, s65, 3\ns_add_u32 s58, s58, s59\ns_cmp_lt_u32 s58, 27\ns_cselect_b32 s58, 1, 0')
            A('s_cmp_eq_u32 s66, 0\ns_cselect_b32 s58, s58, 0')
        def boosted_issue():
            lb = s.lab('bo')
            A(f's_waitcnt vmcnt({W})')
            A('s_cmp_eq_u32 s58, 1')
            A(f's_cbranch_scc1 {lb}')
            A(f's_waitcnt vmcnt({W-1})')
            A(f'{lb}:')
            done['upto'] = max(done['upto'], state['n'] - (W + 1))
            issue()
        for c in range(128):
            g, t = c >> 2, c & 3
            backlog = state['n'] - c
            if s.boost and c < s.boost and backlog <= W + 1: boosted_issue()
            elif backlog <= W: paced_issue()
            elif backlog > W + 1 and c % 8 == 7: (boosted_issue() if (s.boost and c < s.boost) else paced_issue())
            ensure(c)
            r = RING + 4 * (c % B)
            a = vAcc + 4 * (g & 1)
            cin = '0' if t == 0 else f'v[{a}:{a+3}]'
            A(f'v_mfma_f32_16x16x32_bf16 v[{a}:{a+3}], v[{r}:{r+3}], v[{vY+4*t}:{vY+4*t+3}], {cin}')
            if t == 1 and g > 0: post(g - 1)
        paced_issue()
        post(31)
        s.stamp(3)
        if s.dbg:
            A(f's_lshl_b32 s60, s2, 13\ns_lshl_b32 s61, s3, 11\ns_add_u32 s60, s60, s61\ns_add_u32 s60, s60, {hex(W_DBG + 0x200000)}')
            A(f'v_lshlrev_b32 v{vT}, 2, v0\nv_add_u32 v{vT}, s60, v{vT}')
            for i in range(8):
                A(f'global_store_dword v{vT}, v{vSc+i}, s[30:31] offset:{256*i}')
            A('s_waitcnt vmcnt(0)')
        def round_pairs():
            for i in range(4):
                A(f'v_cvt_pk_bf16_f32 v{vT+i}, v{vSc+2*i}, v{vSc+2*i+1}')
            for i in range(4):
                A(f'v_lshlrev_b32 v{vSc+2*i}, 16, v{vT+i}')
                A(f'v_and_b32 v{vSc+2*i+1}, 0xffff0000, v{vT+i}')
        round_pairs()
        for i in range(8): A(f'v_mul_f32 v{vSc+i}, {hex(SCALE)}, v{vSc+i}')
        round_pairs()
        m, t2 = vT + 4, vT + 5
        A(f'v_max3_f32 v{m}, v{vSc}, v{vSc+1}, v{vSc+2}')
        A(f'v_max3_f32 v{m}, v{m}, v{vSc+3}, v{vSc+4}')
        A(f'v_max3_f32 v{m}, v{m}, v{vSc+5}, v{vSc+6}')
        A(f'v_max_f32 v{m}, v{m}, v{vSc+7}')
        s.allreduce('max', m, t2)
        paced_issue()
        for i in range(8): A(f'v_sub_f32 v{vSc+i}, v{vSc+i}, v{m}')
        for i in range(8): A(f'v_mul_f32 v{vSc+i}, {hex(LOG2E)}, v{vSc+i}')
        for i in range(8): A(f'v_exp_f32 v{vSc+i}, v{vSc+i}')
        l = m + 1
        t3 = vT + 6
        A(f'v_add_f32 v{l}, v{vSc}, v{vSc+1}')
        A(f'v_add_f32 v{t3}, v{vSc+2}, v{vSc+3}')
        A(f'v_add_f32 v{l}, v{l}, v{vSc+4}')
        A(f'v_add_f32 v{t3}, v{t3}, v{vSc+5}')
        A(f'v_add_f32 v{l}, v{l}, v{vSc+6}')
        A(f'v_add_f32 v{t3}, v{t3}, v{vSc+7}')
        A(f'v_add_f32 v{l}, v{l}, v{t3}')
        for i in range(8): A(f'v_cvt_pk_bf16_f32 v{vSc+i}, v{vSc+i}, v{vSc+i}')
        s.allreduce('add', l, t3)
        paced_issue()
        A(f'v_cmp_eq_u32 vcc, -1, v{m}')
        A(f'v_mov_b32 v{t3}, 0x7fc00000')
        A(f'v_cndmask_b32 v{m}, v{m}, v{t3}, vcc')
        A(f's_lshl_b32 s60, s3, 3\nv_mov_b32 v{t3}, s60')
        A(f'ds_write_b64 v{t3}, v[{m}:{m+1}] offset:{L_ML}')
        def ybuild(c):
            g, t = (c - 128) >> 2, c & 3
            y = vYp + 4 * (c & 1)
            for d in range(4):
                A(f'v_and_b32_dpp v{y+d}, v{vSc+(g>>2)}, v{vM+d} row_newbcast:{4*t+(g&3)} row_mask:0xf bank_mask:0xf')
        ybuild(128)
        WV = s.WV
        for c in range(128, 256):
            if state['n'] < 256:
                if state['n'] - c <= WV: paced_issue(WV)
                elif c % 4 == 3: paced_issue(WV)
            if c == 240:
                A(f's_lshl_b32 s60, s3, 2\nv_mov_b32 v{vT}, s60')
                A(f'ds_read_b32 v{vT+1}, v{vT} offset:{L_WF}')
            if c == 244:
                A(f'v_and_b32 v{vT+2}, 3, v0\nv_lshlrev_b32 v{vT+2}, 5, v{vT+2}')
                A(f'v_lshrrev_b32 v{vT+3}, 4, v0\nv_lshlrev_b32 v{vT+3}, 3, v{vT+3}')
                if s.rot:
                    A(f'v_add_u32 v{vT+2}, v{vT+2}, v{vT+3}')
                    A(f's_lshl_b32 s60, s65, 1\ns_add_u32 s60, s60, s66')
                    A(f'v_bfe_u32 v{vT+4}, v0, 2, 1\nv_subrev_u32 v{vT+4}, s60, v{vT+4}')
                    for r4 in range(4):
                        A(f'v_add_u32 v{vT+8+r4}, {2*r4}, v{vT+4}\nv_and_b32 v{vT+8+r4}, 7, v{vT+8+r4}\nv_add_u32 v{vT+8+r4}, v{vT+8+r4}, v{vT+2}\nv_lshlrev_b32 v{vT+8+r4}, 2, v{vT+8+r4}')
                        A(f's_lshl_b32 s60, s3, 9\nv_add_u32 v{vT+8+r4}, s60, v{vT+8+r4}')
                else:
                    A(f'v_bfe_u32 v{vT+4}, v0, 2, 1')
                    A(f'v_add3_u32 v{vT+2}, v{vT+2}, v{vT+3}, v{vT+4}')
                    A(f'v_lshlrev_b32 v{vT+2}, 2, v{vT+2}')
                    A(f's_lshl_b32 s60, s3, 9\nv_add_u32 v{vT+2}, s60, v{vT+2}')
            if c + 1 < 256: ybuild(c + 1)
            ensure(c)
            r = RING + 4 * (c % B)
            y = vYp + 4 * (c & 1)
            cin = '0' if c == 128 else f'v[{vO}:{vO+3}]'
            A(f'v_mfma_f32_16x16x32_bf16 v[{vO}:{vO+3}], v[{r}:{r+3}], v[{y}:{y+3}], {cin}')
        s.stamp(4)
        lp, ld = s.lab('wf'), s.lab('wfd')
        A('s_waitcnt lgkmcnt(0)')
        A(f'v_cmp_ne_u32 vcc, -1, v{vT+1}')
        A(f's_cbranch_vccnz {ld}')
        A('s_mov_b32 s61, 0x400000')
        A(f'{lp}:')
        A(f'ds_read_b32 v{vT+1}, v{vT} offset:{L_WF}')
        A('s_waitcnt lgkmcnt(0)')
        A(f'v_cmp_ne_u32 vcc, -1, v{vT+1}')
        A(f's_cbranch_vccnz {ld}')
        A('s_sleep 1')
        A('s_sub_u32 s61, s61, 1\ns_cmp_lg_u32 s61, 0')
        A(f's_cbranch_scc1 {lp}')
        A(f'{ld}:')
        for r in range(4): A(f'v_mul_f32 v{vO+r}, v{vO+r}, v{vT+1}')
        A('s_mov_b32 exec_lo, 0x00ff00ff\ns_mov_b32 exec_hi, 0x00ff00ff')
        if s.rot:
            for r in range(4): A(f'ds_write_b32 v{vT+8+r}, v{vO+r} offset:{L_OPART}')
        else:
            for r in range(4): A(f'ds_write_b32 v{vT+2}, v{vO+r} offset:{L_OPART+8*r}')
        A('s_mov_b64 exec, -1')
        A('s_waitcnt lgkmcnt(0)')
        A('s_barrier')
        s.stamp(5)
        s.stamp_store(6)
        A('s_endpgm')

    def lds_flag_wait(s, off, vt):
        A = s.A
        lp, ld = s.lab('fl'), s.lab('fld')
        A(f'v_and_b32 v{vt}, 3, v0\nv_lshlrev_b32 v{vt}, 2, v{vt}')
        A('s_mov_b32 s61, 0x1000000')
        A(f'{lp}:')
        A(f'ds_read_b32 v{vt+1}, v{vt} offset:{off}')
        A('s_waitcnt lgkmcnt(0)')
        A(f'v_cmp_ne_u32 vcc, 1, v{vt+1}')
        A(f's_cbranch_vccz {ld}')
        A('s_sub_u32 s61, s61, 1\ns_cmp_lg_u32 s61, 0')
        A(f's_cbranch_scc1 {lp}')
        A(f'{ld}:')

    def spoll(s, n, check, sleep=1):
        A = s.A
        lp, ld = s.lab('sp'), s.lab('spd')
        A('s_add_u32 s4, s30, s60\ns_addc_u32 s5, s31, 0')
        A('s_mov_b32 s61, 0x200000')
        A(f'{lp}:')
        A(f's_load_dwordx{n} s[76:{76+n-1}], s[4:5], 0 glc')
        A('s_waitcnt lgkmcnt(0)')
        A(f's_xor_b32 s6, s{76+check[0]}, s58')
        for c in check[1:]: A(f's_xor_b32 s7, s{76+c}, s58\ns_or_b32 s6, s6, s7')
        A('s_cmp_eq_u32 s6, 0')
        A(f's_cbranch_scc1 {ld}')
        if sleep: A(f's_sleep {sleep}')
        A('s_sub_u32 s61, s61, 1\ns_cmp_lg_u32 s61, 0')
        A(f's_cbranch_scc1 {lp}')
        A(f'{ld}:')

    def flag_store(s, lanes, vaddr, soff):
        A = s.A
        A(f'v_mov_b32 v15, s58')
        A(f's_mov_b64 exec, {lanes}')
        A(f'buffer_store_dword v15, v{vaddr}, s[44:47], {soff} offen sc1')
        A('s_mov_b64 exec, -1')

    def helper(s):
        A = s.A
        DATA = 96
        vM = 4
        A('s_sub_u32 s63, s3, 4')
        A('s_mov_b32 s59, 0')
        A(f's_add_u32 s4, s30, {hex(W_NONCE)}\ns_addc_u32 s5, s31, 0')
        A('s_load_dword s58, s[4:5], 0')
        s.srd(32, 14, 640 * 4096 * 2)
        s.srd(40, 8, 5120)
        s.srd(44, 30, WS_SIZE)
        A('s_mul_i32 s60, s63, 1280')
        A('v_lshlrev_b32 v1, 2, v0')
        for t in range(5):
            A(f'buffer_load_dword v{16+t}, v1, s[40:43], s60 offen offset:{256*t}')
        A('v_lshrrev_b32 v2, 4, v0\nv_lshlrev_b32 v2, 13, v2\nv_and_b32 v3, 15, v0\nv_lshlrev_b32 v3, 4, v3\nv_add_u32 v2, v2, v3')
        A('s_lshl_b32 s57, s65, 1\ns_add_u32 s57, s57, s66')
        A('s_mul_i32 s56, s57, 80\ns_mul_i32 s60, s63, 20\ns_add_u32 s56, s56, s60')
        A('s_lshl_b32 s60, s56, 13\ns_lshl_b32 s61, s64, 8\ns_add_u32 s60, s60, s61')
        for u in range(5):
            A(f'buffer_load_dwordx4 v[{DATA+4*u}:{DATA+4*u+3}], v2, s[32:35], s60 offen {s.pol_q}')
            if u < 4: A('s_add_u32 s60, s60, 0x8000')
        A('s_barrier')
        s.srd(36, 16, 4096 * 640 * 2)
        A('v_and_b32 v9, 15, v0')
        s.masks_Md(vM, 9, 10, 11, mod8=True)
        A('s_waitcnt vmcnt(5) lgkmcnt(0)')
        A('s_add_u32 s58, s58, 1')
        s.layernorm(16, 24, 32)
        A(f's_mul_i32 s60, s63, 1280\nv_add_u32 v9, s60, v1')
        for t in range(5):
            A(f'ds_write_b32 v9, v{24+t} offset:{L_XN + 256*t}')
        A(f's_lshl_b32 s60, s63, 2\nv_mov_b32 v9, s60\nv_mov_b32 v10, 1')
        A(f'ds_write_b32 v9, v10 offset:{L_FLAG}')
        A('v_bfe_u32 v12, v0, 3, 1\nv_mul_u32_u24 v12, 1280, v12\nv_lshrrev_b32 v13, 4, v0\nv_lshlrev_b32 v13, 1, v13\nv_add_u32 v12, v12, v13')
        A('s_lshl_b32 s60, s56, 1\nv_add_u32 v12, s60, v12')
        s.lds_flag_wait(L_FLAG, 14)
        for bp in range(2):
            for u in range(5):
                A(f'ds_read_u16 v{40+5*bp+u}, v12 offset:{L_XN + bp*2560 + u*8}')
        A('v_bfe_u32 v9, v0, 3, 1\nv_lshlrev_b32 v9, 9, v9\nv_lshrrev_b32 v10, 4, v0\nv_lshlrev_b32 v10, 7, v10\nv_and_b32 v11, 7, v0\nv_lshlrev_b32 v11, 2, v11\nv_add3_u32 v9, v9, v10, v11')
        A('s_lshl_b32 s60, s63, 11\nv_add_u32 v9, s60, v9')
        A('s_waitcnt lgkmcnt(0)')
        for k in range(10): A(f'v_lshl_or_b32 v{40+k}, v{40+k}, 16, v{40+k}')
        A('s_waitcnt vmcnt(0)')
        for u in range(5):
            for bp in range(2):
                y = 60 + 4 * ((2 * u + bp) & 3)
                for d in range(4): A(f'v_and_b32 v{y+d}, v{40+5*bp+u}, v{vM+d}')
                a = 52 + 4 * bp
                A(f'v_mfma_f32_16x16x32_bf16 v[{a}:{a+3}], v[{DATA+4*u}:{DATA+4*u+3}], v[{y}:{y+3}], ' + ('0' if u == 0 else f'v[{a}:{a+3}]'))
        for bp in range(2):
            for r in range(4):
                A(f'ds_write_b32 v9, v{52+4*bp+r} offset:{L_QP + bp*1024 + r*32}')
        A(f's_lshl_b32 s60, s63, 2\nv_mov_b32 v10, s60\nv_mov_b32 v11, 1')
        A(f'ds_write_b32 v10, v11 offset:{L_FLAG + 16}')
        A('s_lshl_b32 s69, s64, 2\ns_add_u32 s69, s69, s63\ns_lshl_b32 s69, s69, 3\ns_add_u32 s69, s69, s57')
        A(f's_lshl_b32 s62, s69, 9\ns_add_u32 s62, s62, {hex(W_Q)}')
        A('v_lshlrev_b32 v13, 3, v0')
        A('s_lshl_b32 s60, s63, 9\nv_add_u32 v12, s60, v13')
        s.lds_flag_wait(L_FLAG + 16, 14)
        for w in range(4):
            A(f'ds_read_b64 v[{16+2*w}:{17+2*w}], v12 offset:{L_QP + 2048*w}')
        A('s_waitcnt lgkmcnt(0)')
        A('v_add_f32 v16, v16, v18\nv_add_f32 v17, v17, v19\nv_add_f32 v20, v20, v22\nv_add_f32 v21, v21, v23')
        A('v_add_f32 v24, v16, v20\nv_add_f32 v25, v17, v21')
        A(f'buffer_store_dwordx2 v[24:25], v13, s[44:47], s62 offen {s.pol_hs}')
        A(f's_lshl_b32 s62, s69, 2\ns_add_u32 s62, s62, {hex(W_FLAGQ)}\nv_mov_b32 v14, 0')
        A('s_waitcnt vmcnt(0)')
        s.flag_store('1', 14, 's62')
        lq = s.lab('noq')
        A('s_cmp_lg_u32 s63, 0')
        A(f's_cbranch_scc1 {lq}')
        A(f's_lshl_b32 s69, s64, 2\ns_add_u32 s69, s69, s65')
        A(f's_lshl_b32 s60, s69, 5\ns_add_u32 s60, s60, {hex(W_FLAGQ)}')
        s.spoll(8, list(range(8)))
        A(f's_lshl_b32 s60, s69, 12\ns_add_u32 s60, s60, {hex(W_Q)}')
        A('v_lshlrev_b32 v13, 4, v0')
        for t in range(4):
            A(f'buffer_load_dwordx4 v[{16+4*t}:{19+4*t}], v13, s[44:47], s60 offen offset:{t*1024} {s.pol_hl}')
        A('v_and_b32 v12, 31, v0\nv_lshlrev_b32 v12, 3, v12')
        A('s_waitcnt vmcnt(0)')
        for k in range(4):
            A(f'v_add_f32 v{16+k}, v{16+k}, v{20+k}\nv_add_f32 v{24+k}, v{24+k}, v{28+k}')
        for k in range(4): A(f'v_add_f32 v{16+k}, v{16+k}, v{24+k}')
        for k in range(4): A(f'v_mov_b32 v{20+k}, v{16+k}')
        for k in range(4): A(f'v_permlane32_swap_b32 v{16+k}, v{20+k}')
        for k in range(4): A(f'v_add_f32 v{16+k}, v{16+k}, v{20+k}')
        A('v_cvt_pk_bf16_f32 v16, v16, v17\nv_cvt_pk_bf16_f32 v17, v18, v19')
        A(f'ds_write_b64 v12, v[16:17] offset:{L_QB}')
        A(f'{lq}:')
        A('s_waitcnt lgkmcnt(0)')
        s.stamp(1)
        A('s_barrier')
        l_wo = s.lab('wo')
        s.ffn(l_wo)
        A(f'{l_wo}:')
        A('v_lshrrev_b32 v2, 4, v0\nv_mul_u32_u24 v2, 1280, v2\nv_and_b32 v3, 15, v0\nv_lshlrev_b32 v3, 4, v3\nv_add_u32 v2, v2, v3')
        A('s_lshl_b32 s60, s64, 7\ns_lshl_b32 s61, s63, 5\ns_add_u32 s60, s60, s61\ns_mul_i32 s60, s60, 1280')
        if 'wo_v' in s.skip:
            A('s_lshl_b32 s6, s2, 19\ns_add_u32 s72, s12, s6\ns_addc_u32 s73, s13, 0\ns_and_b32 s73, s73, 0xffff\ns_mov_b32 s74, 0x80000\ns_mov_b32 s75, 0x20000')
            A('s_and_b32 s60, s60, 0x3ffff')
        def wo_loads(win):
            n = 0
            for u in range(8):
                for cb in range(5):
                    if n >= win: A(f's_waitcnt vmcnt({win-1})')
                    r = DATA + 4 * (u * 5 + cb)
                    if 'wo_v' in s.skip: A(f'buffer_load_dwordx4 v[{r}:{r+3}], v2, s[72:75], s60 offen offset:{cb*256} nt')
                    elif 'wo' not in s.skip: A(f'buffer_load_dwordx4 v[{r}:{r+3}], v2, s[36:39], s60 offen offset:{cb*256} {s.pol_w}')
                    n += 1
                if u < 7:
                    if s.rot: A(f's_add_u32 s6, s57, {u+1}\ns_and_b32 s6, s6, 7\ns_mul_i32 s6, s6, 5120\ns_add_u32 s60, s7, s6')
                    else: A('s_add_u32 s60, s60, 5120')
        if s.rot:
            A('s_mov_b32 s7, s60\ns_mul_i32 s6, s57, 5120\ns_add_u32 s60, s7, s6')
        if s.WO4 != s.WO:
            l4, l5 = s.lab('wo4'), s.lab('wod')
            A('s_cmp_eq_u32 s59, 1')
            A(f's_cbranch_scc1 {l4}')
            wo_loads(s.WO)
            A(f's_branch {l5}')
            A(f'{l4}:')
            wo_loads(s.WO4)
            A(f'{l5}:')
        else:
            wo_loads(s.WO)
        s.stamp(2)
        l_tail, l_w7 = s.lab('tail'), s.lab('w7')
        A('s_cmp_eq_u32 s63, 3')
        A(f's_cbranch_scc1 {l_w7}')
        A('s_cmp_lg_u32 s63, 1')
        A(f's_cbranch_scc1 {l_tail}')
        s.mlx()
        A(f's_branch {l_tail}')
        A(f'{l_w7}:')
        s.consumer_prep(l_tail)
        A(f'{l_tail}:')
        s.tail()

    def ffn(s, l_skip):
        A = s.A
        DATA = 96
        if 'ffn' in s.skip: return
        A('s_cmp_lg_u32 s66, 0')
        A(f's_cbranch_scc1 {l_skip}')
        A('s_and_b32 s70, s2, 7\ns_lshl_b32 s61, s65, 3\ns_add_u32 s70, s70, s61')
        A('s_cmp_ge_u32 s70, 27')
        A(f's_cbranch_scc1 {l_skip}')
        A('s_lshr_b32 s71, s2, 3\ns_and_b32 s71, s71, 3')
        A('s_lshl_b32 s68, s70, 2\ns_add_u32 s68, s68, s71')
        s.srd(48, 20, 640 * 1728 * 2)
        s.srd(52, 22, 640 * 1728 * 2)
        s.srd(72, 24, 1728 * 640 * 2)
        A('v_lshrrev_b32 v9, 3, v0\nv_mul_u32_u24 v9, 3456, v9\nv_and_b32 v10, 7, v0\nv_lshlrev_b32 v10, 4, v10\nv_add_u32 v9, v9, v10')
        A(f's_mul_i32 s60, s71, {160*3456}\ns_lshl_b32 s61, s70, 7\ns_add_u32 s60, s60, s61\ns_mul_i32 s61, s63, {40*3456}\ns_add_u32 s60, s60, s61')
        A(f's_mul_i32 s62, s63, 5120\ns_add_u32 s69, s62, {L_WU}\ns_add_u32 s62, s62, {L_WG}')
        n = 0
        for t in range(5):
            for srd, mreg in (('s[48:51]', 's62'), ('s[52:55]', 's69')):
                if n >= s.WF: A(f's_waitcnt vmcnt({s.WF-1})')
                A(f's_mov_b32 m0, {mreg}')
                A(f'buffer_load_dwordx4 v9, {srd}, s60 offen {s.pol_f} lds')
                n += 1
            if t < 4: A(f's_add_u32 s60, s60, {8*3456}\ns_add_u32 s62, s62, 1024\ns_add_u32 s69, s69, 1024')
        lw4 = s.lab('w4')
        A('s_cmp_eq_u32 s63, 0')
        A(f's_cbranch_scc1 {lw4}')
        A('s_waitcnt vmcnt(0)')
        A(f's_lshl_b32 s60, s63, 2\nv_mov_b32 v10, s60\nv_mov_b32 v11, 1')
        A(f'ds_write_b32 v10, v11 offset:{L_FLAG + 32}')
        A(f's_branch {l_skip}')
        A(f'{lw4}:')
        A('s_mov_b32 s59, 1')
        A('v_and_b32 v9, 3, v0\nv_mul_u32_u24 v9, 1280, v9\nv_lshrrev_b32 v10, 4, v0\nv_lshlrev_b32 v11, 3, v10\nv_add_u32 v9, v9, v11')
        A('s_mul_i32 s60, s71, 320\nv_add_u32 v9, s60, v9')
        A('v_lshlrev_b32 v10, 2, v10\nv_bfe_u32 v11, v0, 2, 2\nv_add_u32 v10, v10, v11\nv_lshlrev_b32 v10, 7, v10\nv_and_b32 v11, 3, v0\nv_lshlrev_b32 v11, 3, v11\nv_add_u32 v10, v10, v11')
        A(f'v_add_u32 v8, {L_WU - L_WG}, v10')
        A('s_waitcnt vmcnt(0)')
        A(f'v_mov_b32 v12, 0\nv_mov_b32 v13, 1\nds_write_b32 v12, v13 offset:{L_FLAG + 32}')
        s.lds_flag_wait(L_FLAG + 32, 14)
        if s.fineF: s.stamp(3)
        ag, au = 12, 28
        for ks in range(5):
            o = 44
            A(f'ds_read_b64 v[{o}:{o+1}], v9 offset:{L_XN + 64*ks}')
            A(f'ds_read_b64 v[{o+2}:{o+3}], v9 offset:{L_XN + 64*ks + 32}')
            for ct in range(4):
                q = 48 + 8 * ct
                A(f'ds_read_b64_tr_b16 v[{q}:{q+1}], v10 offset:{L_WG + 4096*ks + 32*ct}')
                A(f'ds_read_b64_tr_b16 v[{q+2}:{q+3}], v10 offset:{L_WG + 4096*ks + 32*ct + 2048}')
                A(f'ds_read_b64_tr_b16 v[{q+4}:{q+5}], v8 offset:{L_WG + 4096*ks + 32*ct}')
                A(f'ds_read_b64_tr_b16 v[{q+6}:{q+7}], v8 offset:{L_WG + 4096*ks + 32*ct + 2048}')
                if ct == 2: A('s_waitcnt lgkmcnt(6)')
            A('s_waitcnt lgkmcnt(0)')
            for ct in range(4):
                q = 48 + 8 * ct
                A(f'v_mfma_f32_16x16x32_bf16 v[{ag+4*ct}:{ag+4*ct+3}], v[{o}:{o+3}], v[{q}:{q+3}], ' + ('0' if ks == 0 else f'v[{ag+4*ct}:{ag+4*ct+3}]'))
                A(f'v_mfma_f32_16x16x32_bf16 v[{au+4*ct}:{au+4*ct+3}], v[{o}:{o+3}], v[{q+4}:{q+7}], ' + ('0' if ks == 0 else f'v[{au+4*ct}:{au+4*ct+3}]'))
        A('s_mov_b32 s76, 0xffff0000\ns_mov_b32 s77, 0\ns_mov_b32 s78, 0\ns_mov_b32 s79, 0xffff\ns_mov_b32 s80, 0\ns_mov_b32 s81, 0xffff0000')
        A('v_lshlrev_b32 v9, 3, v0')
        A(f's_lshl_b32 s62, s70, 13\ns_lshl_b32 s69, s71, 9\ns_add_u32 s62, s62, s69\ns_add_u32 s62, s62, {hex(W_FX)}')
        for ct in range(4):
            o = 48 + 2 * ct
            for base, dst in ((ag, o), (au, o + 1)):
                a = base + 4 * ct
                A(f'v_cndmask_b32 v{dst}, v{a}, v{a+1}, s[76:77]')
                A(f'v_cndmask_b32 v{dst}, v{dst}, v{a+2}, s[78:79]')
                A(f'v_cndmask_b32 v{dst}, v{dst}, v{a+3}, s[80:81]')
            A(f'buffer_store_dwordx2 v[{o}:{o+1}], v9, s[44:47], s62 offen {s.pol_hs}')
            if ct < 3: A('s_add_u32 s62, s62, 2048')
        A('v_lshrrev_b32 v2, 4, v0\nv_mul_u32_u24 v2, 1280, v2\nv_and_b32 v3, 15, v0\nv_lshlrev_b32 v3, 4, v3\nv_add_u32 v2, v2, v3')
        A('s_mul_i32 s60, s68, 20480')
        for u in range(4):
            for cb in range(5):
                r = DATA + 4 * (u * 5 + cb)
                A(f'buffer_load_dwordx4 v[{r}:{r+3}], v2, s[72:75], s60 offen offset:{cb*256} {s.pol_f}')
            if u < 3: A('s_add_u32 s60, s60, 5120')
        A(f's_lshl_b32 s62, s70, 7\ns_lshl_b32 s69, s71, 2\ns_add_u32 s62, s62, s69\ns_add_u32 s62, s62, {hex(W_FLAGF)}\nv_lshlrev_b32 v14, 4, v0')
        A('s_waitcnt vmcnt(20)')
        s.flag_store('0xf', 14, 's62')
        if s.fineF: s.stamp(4)
        A(f's_lshl_b32 s60, s70, 7\ns_lshl_b32 s69, s71, 4\ns_add_u32 s60, s60, s69\ns_add_u32 s60, s60, {hex(W_FLAGF)}')
        s.spoll(4, [0, 1, 2, 3], sleep=2)
        A(f's_lshl_b32 s60, s68, 11\ns_add_u32 s60, s60, {hex(W_FX)}')
        for t in range(4):
            A(f'buffer_load_dwordx2 v[{12+2*t}:{13+2*t}], v9, s[44:47], s60 offen offset:{t*512} {s.pol_hl}')
        A('s_waitcnt vmcnt(0)')
        if s.fineF: s.stamp(5)
        A('v_add_f32 v12, v12, v14\nv_add_f32 v16, v16, v18\nv_add_f32 v12, v12, v16')
        A('v_add_f32 v13, v13, v15\nv_add_f32 v17, v17, v19\nv_add_f32 v14, v13, v17')
        g_, u_, t0, t1 = 12, 14, 20, 21
        s.bf16r(g_, g_)
        s.bf16r(u_, u_)
        A(f'v_mul_f32 v{t0}, v{g_}, v{g_}\nv_mul_f32 v{t0}, v{t0}, v{g_}')
        A(f'v_mov_b32 v{t1}, 0x3d372713\nv_fma_f32 v{t0}, v{t0}, v{t1}, v{g_}')
        A(f'v_mul_f32 v{t0}, 0x3f4c422a, v{t0}')
        A(f'v_mul_f32 v{t0}, 0x4038aa3b, v{t0}')
        A(f'v_exp_f32 v{t0}, v{t0}')
        A(f'v_add_f32 v{t0}, 1.0, v{t0}')
        A(f'v_rcp_f32 v{t0}, v{t0}')
        A(f'v_fma_f32 v{t0}, v{t0}, -2.0, 1.0')
        A(f'v_add_f32 v{t0}, 1.0, v{t0}')
        A(f'v_mul_f32 v{t1}, 0.5, v{g_}')
        A(f'v_mul_f32 v{t0}, v{t1}, v{t0}')
        s.bf16r(t0, t0)
        A(f'v_mul_f32 v{t0}, v{t0}, v{u_}')
        A(f'v_cvt_pk_bf16_f32 v{g_}, v{t0}, v{t0}')
        A('v_lshrrev_b32 v9, 4, v0\nv_lshlrev_b32 v9, 6, v9\nv_and_b32 v10, 3, v0\nv_lshlrev_b32 v10, 4, v10\nv_bfe_u32 v11, v0, 2, 2\nv_lshlrev_b32 v11, 2, v11\nv_add3_u32 v9, v9, v10, v11')
        A(f'ds_write_b32 v9, v{g_} offset:{L_HT}')
        if s.dbg:
            A(f's_lshl_b32 s60, s68, 8\ns_add_u32 s60, s60, {hex(W_DBG + 0x500000)}')
            A('v_lshlrev_b32 v10, 2, v0\nv_add_u32 v10, s60, v10')
            A(f'global_store_dword v10, v{g_}, s[30:31]')
        A('v_bfe_u32 v9, v0, 3, 1\nv_lshlrev_b32 v9, 2, v9\nv_lshrrev_b32 v10, 4, v0\nv_add_u32 v9, v9, v10\nv_lshlrev_b32 v9, 4, v9')
        A('s_waitcnt lgkmcnt(0)')
        A(f'ds_read_b128 v[12:15], v9 offset:{L_HT}')
        A(f'ds_read_b128 v[16:19], v9 offset:{L_HT + 128}')
        A('v_bfe_u32 v9, v0, 3, 1\nv_mul_u32_u24 v9, 640, v9\nv_lshrrev_b32 v10, 4, v0\nv_lshlrev_b32 v10, 5, v10\nv_and_b32 v11, 7, v0\nv_add3_u32 v9, v9, v10, v11\nv_lshlrev_b32 v9, 2, v9')
        A('s_waitcnt vmcnt(0) lgkmcnt(0)')
        for u in range(4):
            for bp in range(2):
                y = 60 + 4 * ((2 * u + bp) & 3)
                for d in range(4): A(f'v_and_b32 v{y+d}, v{12+4*bp+u}, v{4+d}')
                for cb in range(5):
                    a = 20 + 8 * cb + 4 * bp
                    r = DATA + 4 * (u * 5 + cb)
                    A(f'v_mfma_f32_16x16x32_bf16 v[{a}:{a+3}], v[{r}:{r+3}], v[{y}:{y+3}], ' + ('0' if u == 0 else f'v[{a}:{a+3}]'))
        for cb in range(5):
            for bp in range(2):
                for r in range(4):
                    A(f'ds_write_b32 v9, v{20+8*cb+4*bp+r} offset:{L_YPART + bp*5120 + cb*512 + r*32}')
        A('s_waitcnt lgkmcnt(0)')
        A('v_lshlrev_b32 v9, 4, v0')
        A(f's_mul_i32 s60, s68, 10240\ns_add_u32 s60, s60, {hex(W_FPART)}')
        for t in range(10):
            A(f'ds_read_b128 v[{12+4*t}:{15+4*t}], v9 offset:{L_YPART + 1024*t}')
        A('s_waitcnt lgkmcnt(0)')
        for t in range(10):
            A(f'buffer_store_dwordx4 v[{12+4*t}:{15+4*t}], v9, s[44:47], s60 offen offset:{(t%4)*1024} {s.pol_hs}')
            if t % 4 == 3: A('s_add_u32 s60, s60, 4096')
        A(f's_lshl_b32 s62, s68, 2\ns_add_u32 s62, s62, {hex(W_FLAGP)}\nv_mov_b32 v9, 0')
        A('s_waitcnt vmcnt(0)')
        s.flag_store('1', 9, 's62')
        if s.fineF: s.stamp(6)

    def wait_ml(s):
        A = s.A
        lp, ld = s.lab('ml'), s.lab('mld')
        A(f'v_and_b32 v9, 3, v0\nv_lshlrev_b32 v9, 3, v9')
        A('s_mov_b32 s61, 0x400000')
        A(f'{lp}:')
        A(f'ds_read_b64 v[10:11], v9 offset:{L_ML}')
        A('s_waitcnt lgkmcnt(0)')
        A('v_cmp_eq_u32 vcc, -1, v10')
        A(f's_cbranch_vccz {ld}')
        A('s_sleep 16')
        A('s_sub_u32 s61, s61, 1\ns_cmp_lg_u32 s61, 0')
        A(f's_cbranch_scc1 {lp}')
        A(f'{ld}:')

    def mlx(s):
        A = s.A
        s.wait_ml()
        A('v_mov_b32 v12, v10')
        A('v_max_f32_dpp v12, v12, v12 quad_perm:[1,0,3,2] row_mask:0xf bank_mask:0xf')
        A('v_max_f32_dpp v12, v12, v12 quad_perm:[2,3,0,1] row_mask:0xf bank_mask:0xf')
        A(f'v_sub_f32 v14, v10, v12\nv_mul_f32 v14, {hex(LOG2E)}, v14\nv_exp_f32 v14, v14')
        A('v_mul_f32 v14, v14, v11')
        A('v_add_f32_dpp v14, v14, v14 quad_perm:[1,0,3,2] row_mask:0xf bank_mask:0xf')
        A('v_add_f32_dpp v14, v14, v14 quad_perm:[2,3,0,1] row_mask:0xf bank_mask:0xf')
        A('v_mov_b32 v13, s58\nv_mov_b32 v15, s58')
        A(f's_xor_b32 s60, s2, 128\ns_lshl_b32 s60, s60, 7\ns_add_u32 s60, s60, {hex(W_ML)}')
        A('v_mov_b32 v9, 0')
        A('s_mov_b64 exec, 1')
        A(f'buffer_store_dwordx4 v[12:15], v9, s[44:47], s60 offen {s.pol_hs}')
        A('s_mov_b64 exec, -1')
        A(f's_lshl_b32 s60, s2, 7\ns_add_u32 s60, s60, {hex(W_ML)}')
        s.spoll(4, [1, 3], sleep=4)
        A('v_mov_b32 v22, s76\nv_mov_b32 v23, s78')
        A('v_max_f32 v16, v12, v22')
        A(f'v_sub_f32 v17, v12, v16\nv_mul_f32 v17, {hex(LOG2E)}, v17\nv_exp_f32 v17, v17')
        A(f'v_sub_f32 v18, v22, v16\nv_mul_f32 v18, {hex(LOG2E)}, v18\nv_exp_f32 v18, v18')
        A('v_mul_f32 v17, v17, v14\nv_fma_f32 v17, v18, v23, v17')
        A(f'v_sub_f32 v18, v10, v16\nv_mul_f32 v18, {hex(LOG2E)}, v18\nv_exp_f32 v18, v18')
        A('v_rcp_f32 v19, v17')
        A('v_mul_f32 v20, v18, v19\nv_fma_f32 v21, -v20, v17, v18\nv_fma_f32 v20, v21, v19, v20')
        A('v_mov_b32 v14, 0x7fc00000\nv_cmp_eq_u32 vcc, -1, v20\nv_cndmask_b32 v20, v20, v14, vcc')
        A('v_and_b32 v9, 3, v0\nv_lshlrev_b32 v9, 2, v9')
        A(f'ds_write_b32 v9, v20 offset:{L_WF}')
        A('s_waitcnt lgkmcnt(0)')

    def consumer_prep(s, l_tail):
        A = s.A
        A('s_cmp_ge_u32 s84, 20')
        A(f's_cbranch_scc1 {l_tail}')
        if 'ffn' not in s.skip:
            s.wait_ml()
            lp, ld = s.lab('fc'), s.lab('fcd')
            A(f'v_lshlrev_b32 v9, 2, v0\ns_mov_b32 s60, {hex(W_FLAGP)}\ns_mov_b32 s61, 0x100000')
            A(f'{lp}:')
            A(f'buffer_load_dword v10, v9, s[44:47], s60 offen {s.pol_hl}')
            A(f'buffer_load_dword v11, v9, s[44:47], s60 offen offset:256 {s.pol_hl}')
            A('s_waitcnt vmcnt(0)')
            A('v_cmp_ne_u32 vcc, s58, v10')
            A('v_cmp_ne_u32 s[76:77], s58, v11')
            A('s_and_b32 s77, s77, 0xfff')
            A('s_or_b64 vcc, vcc, s[76:77]')
            A(f's_cbranch_vccz {ld}')
            A('s_sleep 32')
            A('s_sub_u32 s61, s61, 1\ns_cmp_lg_u32 s61, 0')
            A(f's_cbranch_scc1 {lp}')
            A(f'{ld}:')
        A('v_lshrrev_b32 v9, 3, v0\nv_mul_u32_u24 v9, 10240, v9\nv_and_b32 v10, 7, v0\nv_lshlrev_b32 v10, 4, v10\nv_add_u32 v9, v9, v10')
        A(f's_mul_i32 s60, s65, 2560\ns_lshl_b32 s61, s84, 7\ns_add_u32 s60, s60, s61\ns_add_u32 s60, s60, {hex(W_FPART)}')
        for r in range(4): A(f'v_mov_b32 v{16+4*13+r}, 0')
        for t in range(14):
            if t == 13: A('s_mov_b64 exec, 0xffffffff')
            if t >= 4 and t % 2 == 0: A('s_waitcnt vmcnt(2)')
            A(f'buffer_load_dwordx4 v[{16+4*t}:{19+4*t}], v9, s[44:47], s60 offen {s.pol_hl}')
            if t < 13: A(f's_add_u32 s60, s60, {8*10240}')
        A('s_mov_b64 exec, -1')
        A('s_mul_i32 s60, s65, 1280\ns_lshl_b32 s61, s84, 6\ns_add_u32 s60, s60, s61')
        A('v_and_b32 v10, 15, v0\nv_lshlrev_b32 v10, 2, v10')
        A(f'buffer_load_dword v12, v10, s[40:43], s60 offen')
        A('s_waitcnt vmcnt(0)')
        for t in range(1, 14):
            for r in range(4): A(f'v_add_f32 v{16+r}, v{16+r}, v{16+4*t+r}')
        for r in range(4): s.reduce_hi3(16 + r, 20)
        for r in range(4):
            f = 16 + r
            s.bf16r(f, f)
            A(f'v_mul_f32 v20, 0xbfb8aa3b, v{f}\nv_exp_f32 v20, v20\nv_add_f32 v20, 1.0, v20\nv_rcp_f32 v21, v20')
            A(f'v_mul_f32 v22, v{f}, v21\nv_fma_f32 v23, -v22, v20, v{f}\nv_fma_f32 v23, v23, v21, v22')
            A('v_cmp_u_f32 vcc, v23, v23')
            A(f'v_cndmask_b32 v22, v23, v22, vcc')
            s.bf16r(24 + r, 22)
        A('v_and_b32 v9, 7, v0\nv_lshlrev_b32 v9, 4, v9')
        A(f'ds_write_b128 v9, v[24:27] offset:{L_GX}')
        A('v_and_b32 v9, 15, v0\nv_lshlrev_b32 v9, 3, v9')
        A('s_waitcnt lgkmcnt(0)')
        A(f'ds_read_b64 v[88:89], v9 offset:{L_GX}')
        A('v_lshlrev_b32 v92, 16, v12\nv_and_b32 v93, 0xffff0000, v12')
        A('s_waitcnt lgkmcnt(0)')

    def tail(s):
        A = s.A
        DATA = 96
        vM = 4
        A('v_lshrrev_b32 v9, 4, v0\nv_lshlrev_b32 v9, 7, v9\ns_lshl_b32 s60, s63, 5\nv_add_u32 v9, s60, v9')
        A('v_lshrrev_b32 v10, 4, v0\nv_lshlrev_b32 v10, 7, v10\nv_and_b32 v11, 15, v0\nv_lshlrev_b32 v11, 2, v11\nv_add_u32 v10, v10, v11')
        A('s_mul_i32 s60, s63, 2560\nv_add_u32 v10, s60, v10')
        A('s_lshl_b32 s60, s63, 6\nv_add_u32 v76, s60, v0')
        A('v_lshrrev_b32 v77, 3, v76\nv_lshlrev_b32 v77, 14, v77\nv_and_b32 v78, 7, v76\nv_lshlrev_b32 v78, 5, v78\nv_add_u32 v77, v77, v78')
        A('v_lshlrev_b32 v78, 4, v76')
        A('s_mul_i32 s62, s65, 327680\ns_lshl_b32 s69, s67, 8\ns_add_u32 s62, s62, s69')
        A('s_waitcnt vmcnt(0)')
        if not s.fineF: s.stamp(3)
        A('s_barrier')
        if not s.fineF: s.stamp(4)
        for w in range(4):
            A(f'ds_read_b128 v[{16+8*w}:{19+8*w}], v9 offset:{L_OPART + 512*w}')
            A(f'ds_read_b128 v[{20+8*w}:{23+8*w}], v9 offset:{L_OPART + 512*w + 16}')
        A('s_waitcnt lgkmcnt(0)')
        def osum(u):
            A(f'v_add_f32 v{16+u}, v{16+u}, v{24+u}')
            A(f'v_add_f32 v{32+u}, v{32+u}, v{40+u}')
            A(f'v_add_f32 v{16+u}, v{16+u}, v{32+u}')
            A(f'v_cvt_pk_bf16_f32 v{16+u}, v{16+u}, v{16+u}')
        acc = 48
        if s.dbg:
            for u in range(8): osum(u)
            A(f's_lshl_b32 s60, s2, 13\ns_lshl_b32 s61, s63, 11\ns_add_u32 s60, s60, s61\ns_add_u32 s60, s60, {hex(W_DBG + 0x600000)}')
            A('v_lshlrev_b32 v48, 5, v0\nv_add_u32 v48, s60, v48')
            A('global_store_dwordx4 v48, v[16:19], s[30:31]\nglobal_store_dwordx4 v48, v[20:23], s[30:31] offset:16')
            A('s_waitcnt vmcnt(0)')
        else:
            osum(0); osum(1)
        for u in range(8):
            y = 68 + 4 * (u & 1)
            for d in range(4): A(f'v_and_b32 v{y+d}, v{16+u}, v{vM+d}')
            if not s.dbg and u + 2 < 8: osum(u + 2)
            for cb in range(5):
                r = DATA + 4 * (u * 5 + cb)
                a = acc + 4 * cb
                A(f'v_mfma_f32_16x16x32_bf16 v[{a}:{a+3}], v[{r}:{r+3}], v[{y}:{y+3}], ' + ('0' if u == 0 else f'v[{a}:{a+3}]'))
        A('s_mov_b32 exec_lo, 0x00ff00ff\ns_mov_b32 exec_hi, 0x00ff00ff')
        for cb in range(5):
            for r in range(4):
                A(f'ds_write_b32 v10, v{acc+4*cb+r} offset:{L_YPART + 512*cb + 32*r}')
        A('s_mov_b64 exec, -1')
        A('s_waitcnt lgkmcnt(0)')
        A('s_barrier')
        if not s.fineF: s.stamp(5)
        l_fin, l_done = s.lab('fin'), s.lab('done')
        A('s_cmp_eq_u32 s63, 3')
        A(f's_cbranch_scc1 {l_fin}')
        A('v_cmp_gt_u32 vcc, 160, v76')
        A('s_and_saveexec_b64 s[60:61], vcc')
        A(f's_cbranch_execz {l_done}')
        for w in range(4):
            A(f'ds_read_b128 v[{16+4*w}:{19+4*w}], v78 offset:{L_YPART + 2560*w}')
        A('v_mov_b32 v33, s58\nv_mov_b32 v35, s58\nv_mov_b32 v37, s58\nv_mov_b32 v39, s58')
        A('s_waitcnt lgkmcnt(0)')
        for r in range(4):
            A(f'v_add_f32 v{16+r}, v{16+r}, v{20+r}')
            A(f'v_add_f32 v{24+r}, v{24+r}, v{28+r}')
        for r in range(4):
            A(f'v_add_f32 v{32+2*r}, v{16+r}, v{24+r}')
        A(f'buffer_store_dwordx4 v[32:35], v77, s[44:47], s62 offen {s.pol_hs}')
        A(f'buffer_store_dwordx4 v[36:39], v77, s[44:47], s62 offen offset:16 {s.pol_hs}')
        A(f'{l_done}:')
        if not s.fineF: s.stamp(6)
        s.stamp_store(7)
        A('s_endpgm')
        A(f'{l_fin}:')
        l_nf = s.lab('nofin')
        A('s_cmp_ge_u32 s84, 20')
        A(f's_cbranch_scc1 {l_nf}')
        A('s_mul_i32 s60, s65, 20\ns_add_u32 s60, s60, s84\ns_lshl_b32 s60, s60, 14')
        for k in range(1, 4): A(f's_add_u32 s{80+k}, s60, {4096*k}')
        A('s_mov_b32 s80, s60')
        A('v_lshlrev_b32 v9, 4, v0')
        s.srd(48, 26, 5120)
        A('s_mul_i32 s52, s65, 1280\ns_lshl_b32 s53, s84, 6\ns_add_u32 s52, s52, s53')
        A('v_lshlrev_b32 v10, 2, v0')
        lp, ld = s.lab('fp'), s.lab('fpd')
        A('s_mov_b32 s61, 0x100000')
        A(f'{lp}:')
        for t in range(16):
            A(f'buffer_load_dwordx4 v[{16+4*t}:{19+4*t}], v9, s[44:47], s{80+t//4} offen offset:{(t%4)*1024} {s.pol_hl}')
        tags = [16 + 4 * t + k for t in range(16) for k in (1, 3)]
        A('s_waitcnt vmcnt(12)')
        A(f'v_min_u32 v80, v{tags[0]}, v{tags[1]}\nv_max_u32 v81, v{tags[0]}, v{tags[1]}')
        for i in range(2, 32, 2):
            if i in (8, 16, 24): A(f's_waitcnt vmcnt({12 - i//2})')
            A(f'v_min3_u32 v80, v80, v{tags[i]}, v{tags[i+1]}')
            A(f'v_max3_u32 v81, v81, v{tags[i]}, v{tags[i+1]}')
        A('v_cmp_ne_u32 vcc, s58, v80')
        A('v_cmp_ne_u32 s[76:77], s58, v81')
        A('s_or_b64 vcc, vcc, s[76:77]')
        A(f's_cbranch_vccz {ld}')
        A('s_sub_u32 s61, s61, 1\ns_cmp_lg_u32 s61, 0')
        A(f's_cbranch_scc1 {lp}')
        A(f'{ld}:')
        step = 1
        while step < 16:
            for t in range(0, 16, 2 * step):
                for k in (0, 2): A(f'v_add_f32 v{16+4*t+k}, v{16+4*t+k}, v{16+4*(t+step)+k}')
            step *= 2
        for k in (0, 2): A(f'v_mov_b32 v{20+k}, v{16+k}')
        for k in (0, 2): A(f'v_permlane16_swap_b32 v{16+k}, v{20+k}')
        for k in (0, 2): A(f'v_add_f32 v{16+k}, v{16+k}, v{20+k}')
        for k in (0, 2): A(f'v_mov_b32 v{20+k}, v{16+k}')
        for k in (0, 2): A(f'v_permlane32_swap_b32 v{16+k}, v{20+k}')
        for k in (0, 2): A(f'v_add_f32 v{16+k}, v{16+k}, v{20+k}')
        A('v_cvt_pk_bf16_f32 v16, v16, v18')
        A('v_lshlrev_b32 v17, 16, v16\nv_and_b32 v18, 0xffff0000, v16')
        A('v_mul_f32 v17, v17, v88\nv_mul_f32 v18, v18, v89')
        A('v_cvt_pk_bf16_f32 v16, v17, v18')
        A('v_lshlrev_b32 v17, 16, v16\nv_and_b32 v18, 0xffff0000, v16')
        A('v_add_f32 v17, v17, v92\nv_add_f32 v18, v18, v93')
        A('v_cvt_pk_bf16_f32 v16, v17, v18')
        A('s_mov_b64 exec, 0xffff')
        A('buffer_store_dword v16, v10, s[48:51], s52 offen')
        A('s_mov_b64 exec, -1')
        A('s_or_b32 s60, s65, s84\ns_cmp_lg_u32 s60, 0')
        A(f's_cbranch_scc1 {l_nf}')
        A(f'v_mov_b32 v9, 0\nv_mov_b32 v11, s58\ns_mov_b32 s60, {hex(W_NONCE)}')
        A('s_mov_b64 exec, 1')
        A('buffer_store_dword v11, v9, s[44:47], s60 offen sc1')
        A('s_mov_b64 exec, -1')
        A(f'{l_nf}:')
        if not s.fineF: s.stamp(6)
        s.stamp_store(7)

    def text(s):
        s.build()
        body = hz.fix(s.L)
        out = [HEADER + f'; @launch grid=(256,1,1) block=(512,1,1) lds={LDS_BYTES}',
               '.amdgcn_target "amdgcn-amd-amdhsa--gfx950"', '.text', f'.globl {NAME}_kernel', '.p2align 8',
               f'.type {NAME}_kernel,@function']
        out += body
        out += ['.section .rodata,"a"', '.p2align 6', f'.amdhsa_kernel {NAME}_kernel',
                '  .amdhsa_next_free_vgpr 256', '  .amdhsa_next_free_sgpr 102', '  .amdhsa_accum_offset 256',
                '  .amdhsa_group_segment_fixed_size 0', '  .amdhsa_kernarg_size 96', '  .amdhsa_user_sgpr_count 2',
                '  .amdhsa_user_sgpr_kernarg_segment_ptr 1', '  .amdhsa_system_sgpr_workgroup_id_x 1',
                '  .amdhsa_float_denorm_mode_32 3',
                '.end_amdhsa_kernel']
        return '\n'.join(out) + '\n'

if __name__ == '__main__':
    import argparse
    ap = argparse.ArgumentParser()
    ap.add_argument('-o', default='cdna_kernels/' + NAME + '.s')
    ap.add_argument('--cfg', default='{}')
    a = ap.parse_args()
    g = Gen(**eval(a.cfg))
    open(a.o, 'w').write(g.text())
    print('wrote', a.o)
```

```python
import sys, os
sys.path.insert(0, os.path.dirname(os.path.abspath(__file__)))
import hz

NAME = 'recurrent_scan__gqa_block_cached__geglu_ffn__decode'

HEADER = '''; Kernarg layout for this problem (96 bytes, ptrs only, base s[0:1]):
;   offset  32: d_in[4] A_wo  shape=(4096, 640) dtype=bfloat16
;   offset  88: d_ws      workspace: q, FFN partials, hand-off mailboxes
; One workgroup per (batch, head, key-half): waves 0-3 stream K then V, waves 4-7 do the projections / FFN / hand-offs.
'''

L_QP    = 0x0000
L_XN    = 0x2000
L_ML    = 0x3400
L_WF    = 0x3440
L_FLAG  = 0x3480
L_QB    = 0x3500
L_HT    = 0x3600
L_OPART = 0x3700
L_YPART = 0x3F00
L_GX    = 0x6700
L_WG    = 0x6800
L_WU    = 0xB800
LDS_BYTES = 0x10800

W_YIN   = 0x000000
W_ML    = 0x140000
W_NONCE = 0x148000
W_FLAGQ = 0x149000
W_FLAGF = 0x14A000
W_FLAGP = 0x14B000
W_Q     = 0x180000
W_FPART = 0x200000
W_FX    = 0x320000
WS_SIZE = 0x360000
W_DBG   = 0x1000000

SCALE = 0x3db504f3
LOG2E = 0x3fb8aa3b

class Gen:
    def __init__(s, W=6, P=30, B=40, WO=3, WF=5, pol_kv='nt', pol_w='', pol_hl='sc1', pol_hs='sc1', dbg=False, stamps=False, prio=True, skip='', W0=None, fineF=False, WO4=None, pol_f=None, pol_q=None, WD=4, boost=0, rot=False, WV=None, maskpoll=True):
        s.maskpoll = maskpoll
        s.WV = WV or W
        s.rot = rot
        s.boost = boost
        s.WD = WD
        s.fineF = fineF; s.WO4 = WO4 or WO; s.pol_f = pol_w if pol_f is None else pol_f; s.pol_q = pol_w if pol_q is None else pol_q
        s.L = []
        s.W, s.P, s.B, s.WO, s.WF = W, P, B, WO, WF
        s.W0 = W0 or W
        s.pol_kv, s.pol_w, s.pol_hl, s.pol_hs = pol_kv, pol_w, pol_hl, pol_hs
        s.dbg = dbg; s.stamps = stamps; s.prio = prio; s.skip = skip.split(',')
        s.nlab = 0
    def A(s, t):
        for l in t.split('\n'):
            l = l.strip()
            if l: s.L.append(('  ' + l) if not l.endswith(':') else l)
    def lab(s, base):
        s.nlab += 1
        return f'L_{base}_{s.nlab}'

    def allreduce(s, op, v, t):
        A = s.A
        ins = {'add': 'v_add_f32', 'max': 'v_max_f32'}[op]
        A(f'{ins}_dpp v{v}, v{v}, v{v} quad_perm:[1,0,3,2] row_mask:0xf bank_mask:0xf')
        A(f'{ins}_dpp v{v}, v{v}, v{v} quad_perm:[2,3,0,1] row_mask:0xf bank_mask:0xf')
        A(f'{ins}_dpp v{v}, v{v}, v{v} row_half_mirror row_mask:0xf bank_mask:0xf')
        A(f'{ins}_dpp v{v}, v{v}, v{v} row_mirror row_mask:0xf bank_mask:0xf')
        A(f'v_mov_b32 v{t}, v{v}')
        A(f'v_permlane16_swap_b32 v{v}, v{t}')
        A(f'{ins} v{v}, v{v}, v{t}')
        A(f'v_mov_b32 v{t}, v{v}')
        A(f'v_permlane32_swap_b32 v{v}, v{t}')
        A(f'{ins} v{v}, v{v}, v{t}')

    def reduce_hi3(s, v, t):
        A = s.A
        A(f'v_add_f32_dpp v{v}, v{v}, v{v} row_ror:8 row_mask:0xf bank_mask:0xf')
        A(f'v_mov_b32 v{t}, v{v}')
        A(f'v_permlane16_swap_b32 v{v}, v{t}')
        A(f'v_add_f32 v{v}, v{v}, v{t}')
        A(f'v_mov_b32 v{t}, v{v}')
        A(f'v_permlane32_swap_b32 v{v}, v{t}')
        A(f'v_add_f32 v{v}, v{v}, v{t}')

    def bf16r(s, dst, src):
        s.A(f'v_cvt_pk_bf16_f32 v{dst}, v{src}, v{src}')
        s.A(f'v_lshlrev_b32 v{dst}, 16, v{dst}')

    def srd(s, n, ptr, size):
        s.A(f's_mov_b32 s{n}, s{ptr}\ns_and_b32 s{n+1}, s{ptr+1}, 0xffff\ns_mov_b32 s{n+2}, {hex(size)}\ns_mov_b32 s{n+3}, 0x20000')

    def stamp(s, idx):
        if s.stamps: s.A(f's_memrealtime s[{86+2*idx}:{87+2*idx}]')

    def stamp_store(s, n):
        if not s.stamps: return
        A = s.A
        A('s_waitcnt lgkmcnt(0)')
        A('s_lshl_b32 s100, s2, 3\ns_add_u32 s100, s100, s3\ns_lshl_b32 s100, s100, 6')
        A(f's_add_u32 s100, s100, {hex(W_DBG)}')
        A('v_mov_b32 v1, s100')
        A('s_mov_b64 exec, 1')
        for i in range(n):
            A(f'v_mov_b32 v2, s{86+2*i}')
            A(f'global_store_dword v1, v2, s[30:31] offset:{4*i}')
        A('s_mov_b64 exec, -1')

    def masks_Md(s, base, jreg, t1, t2, mod8=False):
        A = s.A
        if mod8: A(f'v_and_b32 v{t1}, 7, v{jreg}')
        else: A(f'v_mov_b32 v{t1}, v{jreg}')
        A(f'v_and_b32 v{t2}, 1, v{t1}')
        A(f'v_cmp_eq_u32 vcc, 1, v{t2}')
        A(f'v_mov_b32 v{t2}, 0xffff')
        A(f'v_mov_b32 v{base}, 0xffff0000')
        A(f'v_cndmask_b32 v{t2}, v{t2}, v{base}, vcc')
        A(f'v_lshrrev_b32 v{t1}, 1, v{t1}')
        for d in range(4):
            A(f'v_cmp_eq_u32 vcc, {d}, v{t1}')
            A(f'v_cndmask_b32 v{base+d}, 0, v{t2}, vcc')

    def layernorm(s, xr, out_pairs, tb):
        A = s.A
        f = tb
        a, t = tb + 10, tb + 11
        for i in range(5):
            A(f'v_lshlrev_b32 v{f+2*i}, 16, v{xr+i}')
            A(f'v_and_b32 v{f+2*i+1}, 0xffff0000, v{xr+i}')
        A(f'v_add_f32 v{a}, v{f}, v{f+1}\nv_add_f32 v{t}, v{f+2}, v{f+3}')
        for i in range(4, 10, 2): A(f'v_add_f32 v{a}, v{a}, v{f+i}\nv_add_f32 v{t}, v{t}, v{f+i+1}')
        A(f'v_add_f32 v{a}, v{a}, v{t}')
        s.allreduce('add', a, t)
        A(f'v_mul_f32 v{a}, 0x3acccccd, v{a}')
        v, d = tb + 12, tb + 13
        A(f'v_sub_f32 v{d}, v{f}, v{a}\nv_mul_f32 v{v}, v{d}, v{d}')
        for i in range(1, 10):
            A(f'v_sub_f32 v{d}, v{f+i}, v{a}\nv_fmac_f32 v{v}, v{d}, v{d}')
        s.allreduce('add', v, t)
        A(f'v_mul_f32 v{v}, 0x3acccccd, v{v}')
        s.bf16r(v, v)
        A(f'v_add_f32 v{v}, 0x3727c5ac, v{v}')
        s.bf16r(v, v)
        A(f'v_sqrt_f32 v{v}, v{v}')
        s.bf16r(v, v)
        s.bf16r(a, a)
        A(f'v_rcp_f32 v{t}, v{v}')
        for i in range(10):
            A(f'v_sub_f32 v{f+i}, v{f+i}, v{a}')
        for i in range(5):
            A(f'v_cvt_pk_bf16_f32 v{out_pairs+i}, v{f+2*i}, v{f+2*i+1}')
        for i in range(5):
            A(f'v_lshlrev_b32 v{f+2*i}, 16, v{out_pairs+i}')
            A(f'v_and_b32 v{f+2*i+1}, 0xffff0000, v{out_pairs+i}')
        for i in range(10):
            A(f'v_mul_f32 v{d}, v{f+i}, v{t}')
            A(f'v_fma_f32 v{f+i}, -v{d}, v{v}, v{f+i}')
            A(f'v_fma_f32 v{f+i}, v{f+i}, v{t}, v{d}')
        for i in range(5):
            A(f'v_cvt_pk_bf16_f32 v{out_pairs+i}, v{f+2*i}, v{f+2*i+1}')

    def build(s):
        A = s.A
        A(f'{NAME}_kernel:')
        A('s_cmp_ge_u32 s2, 256')
        A('s_cbranch_scc1 L_end')
        s.stamp(0)
        A('s_load_dwordx16 s[8:23], s[0:1], 0')
        A('s_load_dwordx8 s[24:31], s[0:1], 64')
        A('v_lshrrev_b32 v1, 6, v0')
        A('v_and_b32 v0, 63, v0')
        A('v_readfirstlane_b32 s3, v1')
        lni = s.lab('noinit')
        A('s_cmp_lg_u32 s3, 0')
        A(f's_cbranch_scc1 {lni}')
        A('v_mov_b32 v2, -1\nv_cmp_gt_u32 vcc, 32, v0\nv_cndmask_b32 v2, 0, v2, vcc\nv_lshlrev_b32 v3, 2, v0')
        A(f'ds_write_b32 v3, v2 offset:{L_ML}')
        A(f'{lni}:')
        A('s_and_b32 s64, s2, 7\ns_lshr_b32 s68, s2, 3')
        A('s_and_b32 s69, s68, 3\ns_lshl_b32 s69, s69, 3\ns_add_u32 s64, s64, s69')
        A('s_lshr_b32 s65, s68, 2\ns_and_b32 s65, s65, 3')
        A('s_lshr_b32 s66, s68, 4')
        A('s_lshl_b32 s67, s64, 1\ns_add_u32 s67, s67, s66')
        A('s_cmp_eq_u32 s66, 1\ns_cselect_b32 s84, s64, 99')
        A('s_waitcnt lgkmcnt(0)')
        A('s_cmp_ge_u32 s3, 4')
        A('s_cbranch_scc1 L_helper')
        s.streamer()
        A('L_helper:')
        s.helper()
        A('L_end:')
        A('s_endpgm')

    def streamer(s):
        A = s.A
        W, P, B, W0 = s.W, s.P, s.B, s.W0
        RING = 64
        assert RING + 4 * B <= 256 and P + W0 + 3 <= B + 1
        vKo, vVo = 1, 2
        vM = 4; vY = 8; vAcc = 24; vSc = 32; vO = 40; vYp = 44; vT = 52
        if s.prio: A('s_setprio 2')
        s.srd(32, 10, 0x8000000)
        s.srd(36, 12, 0x8000000)
        A(f'v_lshrrev_b32 v{vT}, 4, v0')
        A(f'v_lshlrev_b32 v{vT+3}, 2, v{vT}\nv_and_b32 v{vT+2}, 3, v0\nv_add_u32 v{vT+3}, v{vT+3}, v{vT+2}\nv_lshlrev_b32 v3, 4, v{vT+3}')
        A(f'v_lshlrev_b32 v{vT}, 6, v{vT}')
        A(f'v_bfe_u32 v{vT+1}, v0, 2, 2')
        A(f'v_lshlrev_b32 v{vT+1}, 8, v{vT+1}')
        A(f'v_lshlrev_b32 v{vT+2}, 4, v{vT+2}')
        A(f'v_add3_u32 v{vKo}, v{vT}, v{vT+1}, v{vT+2}')
        A(f'v_lshlrev_b32 v{vVo}, 4, v0')
        A('s_lshl_b32 s40, s65, 5\ns_add_u32 s40, s40, s64\ns_lshl_b32 s40, s40, 20')
        A('s_lshl_b32 s41, s66, 19\ns_add_u32 s40, s40, s41')
        A('s_lshl_b32 s41, s3, 12\ns_add_u32 s40, s40, s41')
        A('s_mov_b32 s41, s40')
        state = {'n': 0, 'win': W}
        def issue():
            n = state['n']; state['n'] += 1
            if n >= 256: return
            if n == 128: A('s_mov_b32 s41, s40')
            elif n % 4 == 0 and n > 0: A('s_add_u32 s41, s41, 0x4000')
            r = RING + 4 * (n % B)
            if n < 128:
                A(f'buffer_load_dwordx4 v[{r}:{r+3}], v{vKo}, s[32:35], s41 offen offset:{(n%4)*1024} {s.pol_kv}')
            else:
                A(f'buffer_load_dwordx4 v[{r}:{r+3}], v{vVo}, s[36:39], s41 offen offset:{(n%4)*1024} {s.pol_kv}')
        done = {'upto': -1}
        def paced_issue(w=None):
            w = w or W
            if state['n'] >= 256: return
            A(f's_waitcnt vmcnt({w-1})')
            done['upto'] = max(done['upto'], state['n'] - w)
            issue()
        def ensure(c):
            if c > done['upto']:
                A(f's_waitcnt vmcnt({state["n"] - 1 - c})')
                done['upto'] = c
        for _ in range(W0): issue()
        A('s_barrier')
        A(f'v_and_b32 v{vT}, 15, v0')
        s.masks_Md(vM, vT, vT+1, vT+2)
        A('s_mov_b32 s44, 0x22222222\ns_mov_b32 s45, 0x22222222')
        A('s_mov_b32 s46, 0x44444444\ns_mov_b32 s47, 0x44444444')
        A('s_mov_b32 s48, 0x88888888\ns_mov_b32 s49, 0x88888888')
        for t in range(4):
            m = 0x000F000F << (4 * t)
            A(f's_mov_b32 s{50+2*t}, {hex(m)}\ns_mov_b32 s{51+2*t}, {hex(m)}')
        for _ in range(P): paced_issue(W0)
        s.stamp(1)
        A('s_barrier')
        s.stamp(2)
        A(f'ds_read_b128 v[56:59], v3 offset:{L_QB}')
        paced_issue()
        A('s_waitcnt lgkmcnt(0)')
        if s.dbg:
            A(f's_lshl_b32 s60, s2, 12\ns_lshl_b32 s61, s3, 10\ns_add_u32 s60, s60, s61\ns_add_u32 s60, s60, {hex(W_DBG + 0x100000)}')
            A(f'v_lshlrev_b32 v8, 4, v0\nv_add_u32 v8, s60, v8')
            A(f'global_store_dwordx4 v8, v[56:59], s[30:31]')
            A('s_waitcnt vmcnt(0)')
        for t in range(4):
            for d in range(4):
                A(f'v_cndmask_b32 v{vY+4*t+d}, 0, v{56+d}, s[{50+2*t}:{51+2*t}]')
        def post(g):
            a = vAcc + 4 * (g & 1)
            t = vT
            A(f'v_cndmask_b32 v{t}, v{a}, v{a+1}, s[44:45]')
            A(f'v_cndmask_b32 v{t}, v{t}, v{a+2}, s[46:47]')
            A(f'v_cndmask_b32 v{t}, v{t}, v{a+3}, s[48:49]')
            A(f'v_add_f32_dpp v{t}, v{t}, v{t} quad_perm:[1,0,3,2] row_mask:0xf bank_mask:0xf')
            q4 = vSc + (g >> 2)
            if (g & 3) == 0:
                A(f'v_add_f32_dpp v{q4}, v{t}, v{t} quad_perm:[2,3,0,1] row_mask:0xf bank_mask:0xf')
            else:
                A(f'v_add_f32_dpp v{t}, v{t}, v{t} quad_perm:[2,3,0,1] row_mask:0xf bank_mask:0xf')
                A(f'v_cndmask_b32 v{q4}, v{q4}, v{t}, s[{42+2*(g&3)}:{43+2*(g&3)}]')
        if s.boost:
            A('s_and_b32 s58, s2, 7\ns_lshl_b32 s59, s65, 3\ns_add_u32 s58, s58, s59\ns_cmp_lt_u32 s58, 27\ns_cselect_b32 s58, 1, 0')
            A('s_cmp_eq_u32 s66, 0\ns_cselect_b32 s58, s58, 0')
        def boosted_issue():
            lb = s.lab('bo')
            A(f's_waitcnt vmcnt({W})')
            A('s_cmp_eq_u32 s58, 1')
            A(f's_cbranch_scc1 {lb}')
            A(f's_waitcnt vmcnt({W-1})')
            A(f'{lb}:')
            done['upto'] = max(done['upto'], state['n'] - (W + 1))
            issue()
        for c in range(128):
            g, t = c >> 2, c & 3
            backlog = state['n'] - c
            if s.boost and c < s.boost and backlog <= W + 1: boosted_issue()
            elif backlog <= W: paced_issue()
            elif backlog > W + 1 and c % 8 == 7: (boosted_issue() if (s.boost and c < s.boost) else paced_issue())
            ensure(c)
            r = RING + 4 * (c % B)
            a = vAcc + 4 * (g & 1)
            cin = '0' if t == 0 else f'v[{a}:{a+3}]'
            A(f'v_mfma_f32_16x16x32_bf16 v[{a}:{a+3}], v[{r}:{r+3}], v[{vY+4*t}:{vY+4*t+3}], {cin}')
            if t == 1 and g > 0: post(g - 1)
        paced_issue()
        post(31)
        s.stamp(3)
        if s.dbg:
            A(f's_lshl_b32 s60, s2, 13\ns_lshl_b32 s61, s3, 11\ns_add_u32 s60, s60, s61\ns_add_u32 s60, s60, {hex(W_DBG + 0x200000)}')
            A(f'v_lshlrev_b32 v{vT}, 2, v0\nv_add_u32 v{vT}, s60, v{vT}')
            for i in range(8):
                A(f'global_store_dword v{vT}, v{vSc+i}, s[30:31] offset:{256*i}')
            A('s_waitcnt vmcnt(0)')
        def round_pairs():
            for i in range(4):
                A(f'v_cvt_pk_bf16_f32 v{vT+i}, v{vSc+2*i}, v{vSc+2*i+1}')
            for i in range(4):
                A(f'v_lshlrev_b32 v{vSc+2*i}, 16, v{vT+i}')
                A(f'v_and_b32 v{vSc+2*i+1}, 0xffff0000, v{vT+i}')
        round_pairs()
        for i in range(8): A(f'v_mul_f32 v{vSc+i}, {hex(SCALE)}, v{vSc+i}')
        round_pairs()
        m, t2 = vT + 4, vT + 5
        A(f'v_max3_f32 v{m}, v{vSc}, v{vSc+1}, v{vSc+2}')
        A(f'v_max3_f32 v{m}, v{m}, v{vSc+3}, v{vSc+4}')
        A(f'v_max3_f32 v{m}, v{m}, v{vSc+5}, v{vSc+6}')
        A(f'v_max_f32 v{m}, v{m}, v{vSc+7}')
        s.allreduce('max', m, t2)
        paced_issue()
        for i in range(8): A(f'v_sub_f32 v{vSc+i}, v{vSc+i}, v{m}')
        for i in range(8): A(f'v_mul_f32 v{vSc+i}, {hex(LOG2E)}, v{vSc+i}')
        for i in range(8): A(f'v_exp_f32 v{vSc+i}, v{vSc+i}')
        l = m + 1
        t3 = vT + 6
        A(f'v_add_f32 v{l}, v{vSc}, v{vSc+1}')
        A(f'v_add_f32 v{t3}, v{vSc+2}, v{vSc+3}')
        A(f'v_add_f32 v{l}, v{l}, v{vSc+4}')
        A(f'v_add_f32 v{t3}, v{t3}, v{vSc+5}')
        A(f'v_add_f32 v{l}, v{l}, v{vSc+6}')
        A(f'v_add_f32 v{t3}, v{t3}, v{vSc+7}')
        A(f'v_add_f32 v{l}, v{l}, v{t3}')
        for i in range(8): A(f'v_cvt_pk_bf16_f32 v{vSc+i}, v{vSc+i}, v{vSc+i}')
        s.allreduce('add', l, t3)
        paced_issue()
        A(f'v_cmp_eq_u32 vcc, -1, v{m}')
        A(f'v_mov_b32 v{t3}, 0x7fc00000')
        A(f'v_cndmask_b32 v{m}, v{m}, v{t3}, vcc')
        A(f's_lshl_b32 s60, s3, 3\nv_mov_b32 v{t3}, s60')
        A(f'ds_write_b64 v{t3}, v[{m}:{m+1}] offset:{L_ML}')
        def ybuild(c):
            g, t = (c - 128) >> 2, c & 3
            y = vYp + 4 * (c & 1)
            for d in range(4):
                A(f'v_and_b32_dpp v{y+d}, v{vSc+(g>>2)}, v{vM+d} row_newbcast:{4*t+(g&3)} row_mask:0xf bank_mask:0xf')
        ybuild(128)
        WV = s.WV
        for c in range(128, 256):
            if state['n'] < 256:
                if state['n'] - c <= WV: paced_issue(WV)
                elif c % 4 == 3: paced_issue(WV)
            if c == 240:
                A(f's_lshl_b32 s60, s3, 2\nv_mov_b32 v{vT}, s60')
                A(f'ds_read_b32 v{vT+1}, v{vT} offset:{L_WF}')
            if c == 244:
                A(f'v_and_b32 v{vT+2}, 3, v0\nv_lshlrev_b32 v{vT+2}, 5, v{vT+2}')
                A(f'v_lshrrev_b32 v{vT+3}, 4, v0\nv_lshlrev_b32 v{vT+3}, 3, v{vT+3}')
                if s.rot:
                    A(f'v_add_u32 v{vT+2}, v{vT+2}, v{vT+3}')
                    A(f's_lshl_b32 s60, s65, 1\ns_add_u32 s60, s60, s66')
                    A(f'v_bfe_u32 v{vT+4}, v0, 2, 1\nv_subrev_u32 v{vT+4}, s60, v{vT+4}')
                    for r4 in range(4):
                        A(f'v_add_u32 v{vT+8+r4}, {2*r4}, v{vT+4}\nv_and_b32 v{vT+8+r4}, 7, v{vT+8+r4}\nv_add_u32 v{vT+8+r4}, v{vT+8+r4}, v{vT+2}\nv_lshlrev_b32 v{vT+8+r4}, 2, v{vT+8+r4}')
                        A(f's_lshl_b32 s60, s3, 9\nv_add_u32 v{vT+8+r4}, s60, v{vT+8+r4}')
                else:
                    A(f'v_bfe_u32 v{vT+4}, v0, 2, 1')
                    A(f'v_add3_u32 v{vT+2}, v{vT+2}, v{vT+3}, v{vT+4}')
                    A(f'v_lshlrev_b32 v{vT+2}, 2, v{vT+2}')
                    A(f's_lshl_b32 s60, s3, 9\nv_add_u32 v{vT+2}, s60, v{vT+2}')
            if c + 1 < 256: ybuild(c + 1)
            ensure(c)
            r = RING + 4 * (c % B)
            y = vYp + 4 * (c & 1)
            cin = '0' if c == 128 else f'v[{vO}:{vO+3}]'
            A(f'v_mfma_f32_16x16x32_bf16 v[{vO}:{vO+3}], v[{r}:{r+3}], v[{y}:{y+3}], {cin}')
        s.stamp(4)
        lp, ld = s.lab('wf'), s.lab('wfd')
        A('s_waitcnt lgkmcnt(0)')
        A(f'v_cmp_ne_u32 vcc, -1, v{vT+1}')
        A(f's_cbranch_vccnz {ld}')
        A('s_mov_b32 s61, 0x400000')
        A(f'{lp}:')
        A(f'ds_read_b32 v{vT+1}, v{vT} offset:{L_WF}')
        A('s_waitcnt lgkmcnt(0)')
        A(f'v_cmp_ne_u32 vcc, -1, v{vT+1}')
        A(f's_cbranch_vccnz {ld}')
        A('s_sleep 1')
        A('s_sub_u32 s61, s61, 1\ns_cmp_lg_u32 s61, 0')
        A(f's_cbranch_scc1 {lp}')
        A(f'{ld}:')
        for r in range(4): A(f'v_mul_f32 v{vO+r}, v{vO+r}, v{vT+1}')
        A('s_mov_b32 exec_lo, 0x00ff00ff\ns_mov_b32 exec_hi, 0x00ff00ff')
        if s.rot:
            for r in range(4): A(f'ds_write_b32 v{vT+8+r}, v{vO+r} offset:{L_OPART}')
        else:
            for r in range(4): A(f'ds_write_b32 v{vT+2}, v{vO+r} offset:{L_OPART+8*r}')
        A('s_mov_b64 exec, -1')
        A('s_waitcnt lgkmcnt(0)')
        A('s_barrier')
        s.stamp(5)
        s.stamp_store(6)
        A('s_endpgm')

    def lds_flag_wait(s, off, vt):
        A = s.A
        lp, ld = s.lab('fl'), s.lab('fld')
        A(f'v_and_b32 v{vt}, 3, v0\nv_lshlrev_b32 v{vt}, 2, v{vt}')
        A('s_mov_b32 s61, 0x1000000')
        A(f'{lp}:')
        A(f'ds_read_b32 v{vt+1}, v{vt} offset:{off}')
        A('s_waitcnt lgkmcnt(0)')
        A(f'v_cmp_ne_u32 vcc, 1, v{vt+1}')
        A(f's_cbranch_vccz {ld}')
        A('s_sub_u32 s61, s61, 1\ns_cmp_lg_u32 s61, 0')
        A(f's_cbranch_scc1 {lp}')
        A(f'{ld}:')

    def spoll(s, n, check, sleep=1):
        A = s.A
        lp, ld = s.lab('sp'), s.lab('spd')
        A('s_add_u32 s4, s30, s60\ns_addc_u32 s5, s31, 0')
        A('s_mov_b32 s61, 0x200000')
        A(f'{lp}:')
        A(f's_load_dwordx{n} s[76:{76+n-1}], s[4:5], 0 glc')
        A('s_waitcnt lgkmcnt(0)')
        A(f's_xor_b32 s6, s{76+check[0]}, s58')
        for c in check[1:]: A(f's_xor_b32 s7, s{76+c}, s58\ns_or_b32 s6, s6, s7')
        A('s_cmp_eq_u32 s6, 0')
        A(f's_cbranch_scc1 {ld}')
        if sleep: A(f's_sleep {sleep}')
        A('s_sub_u32 s61, s61, 1\ns_cmp_lg_u32 s61, 0')
        A(f's_cbranch_scc1 {lp}')
        A(f'{ld}:')

    def flag_store(s, lanes, vaddr, soff):
        A = s.A
        A(f'v_mov_b32 v15, s58')
        A(f's_mov_b64 exec, {lanes}')
        A(f'buffer_store_dword v15, v{vaddr}, s[44:47], {soff} offen sc1')
        A('s_mov_b64 exec, -1')

    def helper(s):
        A = s.A
        DATA = 96
        vM = 4
        A('s_sub_u32 s63, s3, 4')
        A('s_mov_b32 s59, 0')
        A(f's_add_u32 s4, s30, {hex(W_NONCE)}\ns_addc_u32 s5, s31, 0')
        A('s_load_dword s58, s[4:5], 0')
        s.srd(32, 14, 640 * 4096 * 2)
        s.srd(40, 8, 5120)
        s.srd(44, 30, WS_SIZE)
        A('s_mul_i32 s60, s63, 1280')
        A('v_lshlrev_b32 v1, 2, v0')
        for t in range(5):
            A(f'buffer_load_dword v{16+t}, v1, s[40:43], s60 offen offset:{256*t}')
        A('v_lshrrev_b32 v2, 4, v0\nv_lshlrev_b32 v2, 13, v2\nv_and_b32 v3, 15, v0\nv_lshlrev_b32 v3, 4, v3\nv_add_u32 v2, v2, v3')
        A('s_lshl_b32 s57, s65, 1\ns_add_u32 s57, s57, s66')
        A('s_mul_i32 s56, s57, 80\ns_mul_i32 s60, s63, 20\ns_add_u32 s56, s56, s60')
        A('s_lshl_b32 s60, s56, 13\ns_lshl_b32 s61, s64, 8\ns_add_u32 s60, s60, s61')
        for u in range(5):
            A(f'buffer_load_dwordx4 v[{DATA+4*u}:{DATA+4*u+3}], v2, s[32:35], s60 offen {s.pol_q}')
            if u < 4: A('s_add_u32 s60, s60, 0x8000')
        A('s_barrier')
        s.srd(36, 16, 4096 * 640 * 2)
        A('v_and_b32 v9, 15, v0')
        s.masks_Md(vM, 9, 10, 11, mod8=True)
        A('s_waitcnt vmcnt(5) lgkmcnt(0)')
        A('s_add_u32 s58, s58, 1')
        s.layernorm(16, 24, 32)
        A(f's_mul_i32 s60, s63, 1280\nv_add_u32 v9, s60, v1')
        for t in range(5):
            A(f'ds_write_b32 v9, v{24+t} offset:{L_XN + 256*t}')
        A(f's_lshl_b32 s60, s63, 2\nv_mov_b32 v9, s60\nv_mov_b32 v10, 1')
        A(f'ds_write_b32 v9, v10 offset:{L_FLAG}')
        A('v_bfe_u32 v12, v0, 3, 1\nv_mul_u32_u24 v12, 1280, v12\nv_lshrrev_b32 v13, 4, v0\nv_lshlrev_b32 v13, 1, v13\nv_add_u32 v12, v12, v13')
        A('s_lshl_b32 s60, s56, 1\nv_add_u32 v12, s60, v12')
        s.lds_flag_wait(L_FLAG, 14)
        for bp in range(2):
            for u in range(5):
                A(f'ds_read_u16 v{40+5*bp+u}, v12 offset:{L_XN + bp*2560 + u*8}')
        A('v_bfe_u32 v9, v0, 3, 1\nv_lshlrev_b32 v9, 9, v9\nv_lshrrev_b32 v10, 4, v0\nv_lshlrev_b32 v10, 7, v10\nv_and_b32 v11, 7, v0\nv_lshlrev_b32 v11, 2, v11\nv_add3_u32 v9, v9, v10, v11')
        A('s_lshl_b32 s60, s63, 11\nv_add_u32 v9, s60, v9')
        A('s_waitcnt lgkmcnt(0)')
        for k in range(10): A(f'v_lshl_or_b32 v{40+k}, v{40+k}, 16, v{40+k}')
        A('s_waitcnt vmcnt(0)')
        for u in range(5):
            for bp in range(2):
                y = 60 + 4 * ((2 * u + bp) & 3)
                for d in range(4): A(f'v_and_b32 v{y+d}, v{40+5*bp+u}, v{vM+d}')
                a = 52 + 4 * bp
                A(f'v_mfma_f32_16x16x32_bf16 v[{a}:{a+3}], v[{DATA+4*u}:{DATA+4*u+3}], v[{y}:{y+3}], ' + ('0' if u == 0 else f'v[{a}:{a+3}]'))
        for bp in range(2):
            for r in range(4):
                A(f'ds_write_b32 v9, v{52+4*bp+r} offset:{L_QP + bp*1024 + r*32}')
        A(f's_lshl_b32 s60, s63, 2\nv_mov_b32 v10, s60\nv_mov_b32 v11, 1')
        A(f'ds_write_b32 v10, v11 offset:{L_FLAG + 16}')
        A('s_lshl_b32 s69, s64, 2\ns_add_u32 s69, s69, s63\ns_lshl_b32 s69, s69, 3\ns_add_u32 s69, s69, s57')
        A(f's_lshl_b32 s62, s69, 9\ns_add_u32 s62, s62, {hex(W_Q)}')
        A('v_lshlrev_b32 v13, 3, v0')
        A('s_lshl_b32 s60, s63, 9\nv_add_u32 v12, s60, v13')
        s.lds_flag_wait(L_FLAG + 16, 14)
        for w in range(4):
            A(f'ds_read_b64 v[{16+2*w}:{17+2*w}], v12 offset:{L_QP + 2048*w}')
        A('s_waitcnt lgkmcnt(0)')
        A('v_add_f32 v16, v16, v18\nv_add_f32 v17, v17, v19\nv_add_f32 v20, v20, v22\nv_add_f32 v21, v21, v23')
        A('v_add_f32 v24, v16, v20\nv_add_f32 v25, v17, v21')
        A(f'buffer_store_dwordx2 v[24:25], v13, s[44:47], s62 offen {s.pol_hs}')
        A(f's_lshl_b32 s62, s69, 2\ns_add_u32 s62, s62, {hex(W_FLAGQ)}\nv_mov_b32 v14, 0')
        A('s_waitcnt vmcnt(0)')
        s.flag_store('1', 14, 's62')
        lq = s.lab('noq')
        A('s_cmp_lg_u32 s63, 0')
        A(f's_cbranch_scc1 {lq}')
        A(f's_lshl_b32 s69, s64, 2\ns_add_u32 s69, s69, s65')
        A(f's_lshl_b32 s60, s69, 5\ns_add_u32 s60, s60, {hex(W_FLAGQ)}')
        s.spoll(8, list(range(8)))
        A(f's_lshl_b32 s60, s69, 12\ns_add_u32 s60, s60, {hex(W_Q)}')
        A('v_lshlrev_b32 v13, 4, v0')
        for t in range(4):
            A(f'buffer_load_dwordx4 v[{16+4*t}:{19+4*t}], v13, s[44:47], s60 offen offset:{t*1024} {s.pol_hl}')
        A('v_and_b32 v12, 31, v0\nv_lshlrev_b32 v12, 3, v12')
        A('s_waitcnt vmcnt(0)')
        for k in range(4):
            A(f'v_add_f32 v{16+k}, v{16+k}, v{20+k}\nv_add_f32 v{24+k}, v{24+k}, v{28+k}')
        for k in range(4): A(f'v_add_f32 v{16+k}, v{16+k}, v{24+k}')
        for k in range(4): A(f'v_mov_b32 v{20+k}, v{16+k}')
        for k in range(4): A(f'v_permlane32_swap_b32 v{16+k}, v{20+k}')
        for k in range(4): A(f'v_add_f32 v{16+k}, v{16+k}, v{20+k}')
        A('v_cvt_pk_bf16_f32 v16, v16, v17\nv_cvt_pk_bf16_f32 v17, v18, v19')
        A(f'ds_write_b64 v12, v[16:17] offset:{L_QB}')
        A(f'{lq}:')
        A('s_waitcnt lgkmcnt(0)')
        s.stamp(1)
        A('s_barrier')
        l_wo = s.lab('wo')
        s.ffn(l_wo)
        A(f'{l_wo}:')
        A('v_lshrrev_b32 v2, 4, v0\nv_mul_u32_u24 v2, 1280, v2\nv_and_b32 v3, 15, v0\nv_lshlrev_b32 v3, 4, v3\nv_add_u32 v2, v2, v3')
        A('s_lshl_b32 s60, s64, 7\ns_lshl_b32 s61, s63, 5\ns_add_u32 s60, s60, s61\ns_mul_i32 s60, s60, 1280')
        if 'wo_v' in s.skip:
            A('s_lshl_b32 s6, s2, 19\ns_add_u32 s72, s12, s6\ns_addc_u32 s73, s13, 0\ns_and_b32 s73, s73, 0xffff\ns_mov_b32 s74, 0x80000\ns_mov_b32 s75, 0x20000')
            A('s_and_b32 s60, s60, 0x3ffff')
        def wo_loads(win):
            n = 0
            for u in range(8):
                for cb in range(5):
                    if n >= win: A(f's_waitcnt vmcnt({win-1})')
                    r = DATA + 4 * (u * 5 + cb)
                    if 'wo_v' in s.skip: A(f'buffer_load_dwordx4 v[{r}:{r+3}], v2, s[72:75], s60 offen offset:{cb*256} nt')
                    elif 'wo' not in s.skip: A(f'buffer_load_dwordx4 v[{r}:{r+3}], v2, s[36:39], s60 offen offset:{cb*256} {s.pol_w}')
                    n += 1
                if u < 7:
                    if s.rot: A(f's_add_u32 s6, s57, {u+1}\ns_and_b32 s6, s6, 7\ns_mul_i32 s6, s6, 5120\ns_add_u32 s60, s7, s6')
                    else: A('s_add_u32 s60, s60, 5120')
        if s.rot:
            A('s_mov_b32 s7, s60\ns_mul_i32 s6, s57, 5120\ns_add_u32 s60, s7, s6')
        if s.WO4 != s.WO:
            l4, l5 = s.lab('wo4'), s.lab('wod')
            A('s_cmp_eq_u32 s59, 1')
            A(f's_cbranch_scc1 {l4}')
            wo_loads(s.WO)
            A(f's_branch {l5}')
            A(f'{l4}:')
            wo_loads(s.WO4)
            A(f'{l5}:')
        else:
            wo_loads(s.WO)
        s.stamp(2)
        l_tail, l_w7 = s.lab('tail'), s.lab('w7')
        A('s_cmp_eq_u32 s63, 3')
        A(f's_cbranch_scc1 {l_w7}')
        A('s_cmp_lg_u32 s63, 1')
        A(f's_cbranch_scc1 {l_tail}')
        s.mlx()
        A(f's_branch {l_tail}')
        A(f'{l_w7}:')
        s.consumer_prep(l_tail)
        A(f'{l_tail}:')
        s.tail()

    def ffn(s, l_skip):
        A = s.A
        DATA = 96
        if 'ffn' in s.skip: return
        A('s_cmp_lg_u32 s66, 0')
        A(f's_cbranch_scc1 {l_skip}')
        A('s_and_b32 s70, s2, 7\ns_lshl_b32 s61, s65, 3\ns_add_u32 s70, s70, s61')
        A('s_cmp_ge_u32 s70, 27')
        A(f's_cbranch_scc1 {l_skip}')
        A('s_lshr_b32 s71, s2, 3\ns_and_b32 s71, s71, 3')
        A('s_lshl_b32 s68, s70, 2\ns_add_u32 s68, s68, s71')
        s.srd(48, 20, 640 * 1728 * 2)
        s.srd(52, 22, 640 * 1728 * 2)
        s.srd(72, 24, 1728 * 640 * 2)
        A('v_lshrrev_b32 v9, 3, v0\nv_mul_u32_u24 v9, 3456, v9\nv_and_b32 v10, 7, v0\nv_lshlrev_b32 v10, 4, v10\nv_add_u32 v9, v9, v10')
        A(f's_mul_i32 s60, s71, {160*3456}\ns_lshl_b32 s61, s70, 7\ns_add_u32 s60, s60, s61\ns_mul_i32 s61, s63, {40*3456}\ns_add_u32 s60, s60, s61')
        A(f's_mul_i32 s62, s63, 5120\ns_add_u32 s69, s62, {L_WU}\ns_add_u32 s62, s62, {L_WG}')
        n = 0
        for t in range(5):
            for srd, mreg in (('s[48:51]', 's62'), ('s[52:55]', 's69')):
                if n >= s.WF: A(f's_waitcnt vmcnt({s.WF-1})')
                A(f's_mov_b32 m0, {mreg}')
                A(f'buffer_load_dwordx4 v9, {srd}, s60 offen {s.pol_f} lds')
                n += 1
            if t < 4: A(f's_add_u32 s60, s60, {8*3456}\ns_add_u32 s62, s62, 1024\ns_add_u32 s69, s69, 1024')
        lw4 = s.lab('w4')
        A('s_cmp_eq_u32 s63, 0')
        A(f's_cbranch_scc1 {lw4}')
        A('s_waitcnt vmcnt(0)')
        A(f's_lshl_b32 s60, s63, 2\nv_mov_b32 v10, s60\nv_mov_b32 v11, 1')
        A(f'ds_write_b32 v10, v11 offset:{L_FLAG + 32}')
        A(f's_branch {l_skip}')
        A(f'{lw4}:')
        A('s_mov_b32 s59, 1')
        A('v_and_b32 v9, 3, v0\nv_mul_u32_u24 v9, 1280, v9\nv_lshrrev_b32 v10, 4, v0\nv_lshlrev_b32 v11, 3, v10\nv_add_u32 v9, v9, v11')
        A('s_mul_i32 s60, s71, 320\nv_add_u32 v9, s60, v9')
        A('v_lshlrev_b32 v10, 2, v10\nv_bfe_u32 v11, v0, 2, 2\nv_add_u32 v10, v10, v11\nv_lshlrev_b32 v10, 7, v10\nv_and_b32 v11, 3, v0\nv_lshlrev_b32 v11, 3, v11\nv_add_u32 v10, v10, v11')
        A(f'v_add_u32 v8, {L_WU - L_WG}, v10')
        A('s_waitcnt vmcnt(0)')
        A(f'v_mov_b32 v12, 0\nv_mov_b32 v13, 1\nds_write_b32 v12, v13 offset:{L_FLAG + 32}')
        s.lds_flag_wait(L_FLAG + 32, 14)
        if s.fineF: s.stamp(3)
        ag, au = 12, 28
        for ks in range(5):
            o = 44
            A(f'ds_read_b64 v[{o}:{o+1}], v9 offset:{L_XN + 64*ks}')
            A(f'ds_read_b64 v[{o+2}:{o+3}], v9 offset:{L_XN + 64*ks + 32}')
            for ct in range(4):
                q = 48 + 8 * ct
                A(f'ds_read_b64_tr_b16 v[{q}:{q+1}], v10 offset:{L_WG + 4096*ks + 32*ct}')
                A(f'ds_read_b64_tr_b16 v[{q+2}:{q+3}], v10 offset:{L_WG + 4096*ks + 32*ct + 2048}')
                A(f'ds_read_b64_tr_b16 v[{q+4}:{q+5}], v8 offset:{L_WG + 4096*ks + 32*ct}')
                A(f'ds_read_b64_tr_b16 v[{q+6}:{q+7}], v8 offset:{L_WG + 4096*ks + 32*ct + 2048}')
                if ct == 2: A('s_waitcnt lgkmcnt(6)')
            A('s_waitcnt lgkmcnt(0)')
            for ct in range(4):
                q = 48 + 8 * ct
                A(f'v_mfma_f32_16x16x32_bf16 v[{ag+4*ct}:{ag+4*ct+3}], v[{o}:{o+3}], v[{q}:{q+3}], ' + ('0' if ks == 0 else f'v[{ag+4*ct}:{ag+4*ct+3}]'))
                A(f'v_mfma_f32_16x16x32_bf16 v[{au+4*ct}:{au+4*ct+3}], v[{o}:{o+3}], v[{q+4}:{q+7}], ' + ('0' if ks == 0 else f'v[{au+4*ct}:{au+4*ct+3}]'))
        A('s_mov_b32 s76, 0xffff0000\ns_mov_b32 s77, 0\ns_mov_b32 s78, 0\ns_mov_b32 s79, 0xffff\ns_mov_b32 s80, 0\ns_mov_b32 s81, 0xffff0000')
        A('v_lshlrev_b32 v9, 3, v0')
        A(f's_lshl_b32 s62, s70, 13\ns_lshl_b32 s69, s71, 9\ns_add_u32 s62, s62, s69\ns_add_u32 s62, s62, {hex(W_FX)}')
        for ct in range(4):
            o = 48 + 2 * ct
            for base, dst in ((ag, o), (au, o + 1)):
                a = base + 4 * ct
                A(f'v_cndmask_b32 v{dst}, v{a}, v{a+1}, s[76:77]')
                A(f'v_cndmask_b32 v{dst}, v{dst}, v{a+2}, s[78:79]')
                A(f'v_cndmask_b32 v{dst}, v{dst}, v{a+3}, s[80:81]')
            A(f'buffer_store_dwordx2 v[{o}:{o+1}], v9, s[44:47], s62 offen {s.pol_hs}')
            if ct < 3: A('s_add_u32 s62, s62, 2048')
        A('v_lshrrev_b32 v2, 4, v0\nv_mul_u32_u24 v2, 1280, v2\nv_and_b32 v3, 15, v0\nv_lshlrev_b32 v3, 4, v3\nv_add_u32 v2, v2, v3')
        A('s_mul_i32 s60, s68, 20480')
        for u in range(4):
            for cb in range(5):
                r = DATA + 4 * (u * 5 + cb)
                A(f'buffer_load_dwordx4 v[{r}:{r+3}], v2, s[72:75], s60 offen offset:{cb*256} {s.pol_f}')
            if u < 3: A('s_add_u32 s60, s60, 5120')
        A(f's_lshl_b32 s62, s70, 7\ns_lshl_b32 s69, s71, 2\ns_add_u32 s62, s62, s69\ns_add_u32 s62, s62, {hex(W_FLAGF)}\nv_lshlrev_b32 v14, 4, v0')
        A('s_waitcnt vmcnt(20)')
        s.flag_store('0xf', 14, 's62')
        if s.fineF: s.stamp(4)
        A(f's_lshl_b32 s60, s70, 7\ns_lshl_b32 s69, s71, 4\ns_add_u32 s60, s60, s69\ns_add_u32 s60, s60, {hex(W_FLAGF)}')
        s.spoll(4, [0, 1, 2, 3], sleep=2)
        A(f's_lshl_b32 s60, s68, 11\ns_add_u32 s60, s60, {hex(W_FX)}')
        for t in range(4):
            A(f'buffer_load_dwordx2 v[{12+2*t}:{13+2*t}], v9, s[44:47], s60 offen offset:{t*512} {s.pol_hl}')
        A('s_waitcnt vmcnt(0)')
        if s.fineF: s.stamp(5)
        A('v_add_f32 v12, v12, v14\nv_add_f32 v16, v16, v18\nv_add_f32 v12, v12, v16')
        A('v_add_f32 v13, v13, v15\nv_add_f32 v17, v17, v19\nv_add_f32 v14, v13, v17')
        g_, u_, t0, t1 = 12, 14, 20, 21
        s.bf16r(g_, g_)
        s.bf16r(u_, u_)
        A(f'v_mul_f32 v{t0}, v{g_}, v{g_}\nv_mul_f32 v{t0}, v{t0}, v{g_}')
        A(f'v_mov_b32 v{t1}, 0x3d372713\nv_fma_f32 v{t0}, v{t0}, v{t1}, v{g_}')
        A(f'v_mul_f32 v{t0}, 0x3f4c422a, v{t0}')
        A(f'v_mul_f32 v{t0}, 0x4038aa3b, v{t0}')
        A(f'v_exp_f32 v{t0}, v{t0}')
        A(f'v_add_f32 v{t0}, 1.0, v{t0}')
        A(f'v_rcp_f32 v{t0}, v{t0}')
        A(f'v_fma_f32 v{t0}, v{t0}, -2.0, 1.0')
        A(f'v_add_f32 v{t0}, 1.0, v{t0}')
        A(f'v_mul_f32 v{t1}, 0.5, v{g_}')
        A(f'v_mul_f32 v{t0}, v{t1}, v{t0}')
        s.bf16r(t0, t0)
        A(f'v_mul_f32 v{t0}, v{t0}, v{u_}')
        A(f'v_cvt_pk_bf16_f32 v{g_}, v{t0}, v{t0}')
        A('v_lshrrev_b32 v9, 4, v0\nv_lshlrev_b32 v9, 6, v9\nv_and_b32 v10, 3, v0\nv_lshlrev_b32 v10, 4, v10\nv_bfe_u32 v11, v0, 2, 2\nv_lshlrev_b32 v11, 2, v11\nv_add3_u32 v9, v9, v10, v11')
        A(f'ds_write_b32 v9, v{g_} offset:{L_HT}')
        if s.dbg:
            A(f's_lshl_b32 s60, s68, 8\ns_add_u32 s60, s60, {hex(W_DBG + 0x500000)}')
            A('v_lshlrev_b32 v10, 2, v0\nv_add_u32 v10, s60, v10')
            A(f'global_store_dword v10, v{g_}, s[30:31]')
        A('v_bfe_u32 v9, v0, 3, 1\nv_lshlrev_b32 v9, 2, v9\nv_lshrrev_b32 v10, 4, v0\nv_add_u32 v9, v9, v10\nv_lshlrev_b32 v9, 4, v9')
        A('s_waitcnt lgkmcnt(0)')
        A(f'ds_read_b128 v[12:15], v9 offset:{L_HT}')
        A(f'ds_read_b128 v[16:19], v9 offset:{L_HT + 128}')
        A('v_bfe_u32 v9, v0, 3, 1\nv_mul_u32_u24 v9, 640, v9\nv_lshrrev_b32 v10, 4, v0\nv_lshlrev_b32 v10, 5, v10\nv_and_b32 v11, 7, v0\nv_add3_u32 v9, v9, v10, v11\nv_lshlrev_b32 v9, 2, v9')
        A('s_waitcnt vmcnt(0) lgkmcnt(0)')
        for u in range(4):
            for bp in range(2):
                y = 60 + 4 * ((2 * u + bp) & 3)
                for d in range(4): A(f'v_and_b32 v{y+d}, v{12+4*bp+u}, v{4+d}')
                for cb in range(5):
                    a = 20 + 8 * cb + 4 * bp
                    r = DATA + 4 * (u * 5 + cb)
                    A(f'v_mfma_f32_16x16x32_bf16 v[{a}:{a+3}], v[{r}:{r+3}], v[{y}:{y+3}], ' + ('0' if u == 0 else f'v[{a}:{a+3}]'))
        for cb in range(5):
            for bp in range(2):
                for r in range(4):
                    A(f'ds_write_b32 v9, v{20+8*cb+4*bp+r} offset:{L_YPART + bp*5120 + cb*512 + r*32}')
        A('s_waitcnt lgkmcnt(0)')
        A('v_lshlrev_b32 v9, 4, v0')
        A(f's_mul_i32 s60, s68, 10240\ns_add_u32 s60, s60, {hex(W_FPART)}')
        for t in range(10):
            A(f'ds_read_b128 v[{12+4*t}:{15+4*t}], v9 offset:{L_YPART + 1024*t}')
        A('s_waitcnt lgkmcnt(0)')
        for t in range(10):
            A(f'buffer_store_dwordx4 v[{12+4*t}:{15+4*t}], v9, s[44:47], s60 offen offset:{(t%4)*1024} {s.pol_hs}')
            if t % 4 == 3: A('s_add_u32 s60, s60, 4096')
        A(f's_lshl_b32 s62, s68, 2\ns_add_u32 s62, s62, {hex(W_FLAGP)}\nv_mov_b32 v9, 0')
        A('s_waitcnt vmcnt(0)')
        s.flag_store('1', 9, 's62')
        if s.fineF: s.stamp(6)

    def wait_ml(s):
        A = s.A
        lp, ld = s.lab('ml'), s.lab('mld')
        A(f'v_and_b32 v9, 3, v0\nv_lshlrev_b32 v9, 3, v9')
        A('s_mov_b32 s61, 0x400000')
        A(f'{lp}:')
        A(f'ds_read_b64 v[10:11], v9 offset:{L_ML}')
        A('s_waitcnt lgkmcnt(0)')
        A('v_cmp_eq_u32 vcc, -1, v10')
        A(f's_cbranch_vccz {ld}')
        A('s_sleep 16')
        A('s_sub_u32 s61, s61, 1\ns_cmp_lg_u32 s61, 0')
        A(f's_cbranch_scc1 {lp}')
        A(f'{ld}:')

    def mlx(s):
        A = s.A
        s.wait_ml()
        A('v_mov_b32 v12, v10')
        A('v_max_f32_dpp v12, v12, v12 quad_perm:[1,0,3,2] row_mask:0xf bank_mask:0xf')
        A('v_max_f32_dpp v12, v12, v12 quad_perm:[2,3,0,1] row_mask:0xf bank_mask:0xf')
        A(f'v_sub_f32 v14, v10, v12\nv_mul_f32 v14, {hex(LOG2E)}, v14\nv_exp_f32 v14, v14')
        A('v_mul_f32 v14, v14, v11')
        A('v_add_f32_dpp v14, v14, v14 quad_perm:[1,0,3,2] row_mask:0xf bank_mask:0xf')
        A('v_add_f32_dpp v14, v14, v14 quad_perm:[2,3,0,1] row_mask:0xf bank_mask:0xf')
        A('v_mov_b32 v13, s58\nv_mov_b32 v15, s58')
        A(f's_xor_b32 s60, s2, 128\ns_lshl_b32 s60, s60, 7\ns_add_u32 s60, s60, {hex(W_ML)}')
        A('v_mov_b32 v9, 0')
        A('s_mov_b64 exec, 1')
        A(f'buffer_store_dwordx4 v[12:15], v9, s[44:47], s60 offen {s.pol_hs}')
        A('s_mov_b64 exec, -1')
        A(f's_lshl_b32 s60, s2, 7\ns_add_u32 s60, s60, {hex(W_ML)}')
        s.spoll(4, [1, 3], sleep=4)
        A('v_mov_b32 v22, s76\nv_mov_b32 v23, s78')
        A('v_max_f32 v16, v12, v22')
        A(f'v_sub_f32 v17, v12, v16\nv_mul_f32 v17, {hex(LOG2E)}, v17\nv_exp_f32 v17, v17')
        A(f'v_sub_f32 v18, v22, v16\nv_mul_f32 v18, {hex(LOG2E)}, v18\nv_exp_f32 v18, v18')
        A('v_mul_f32 v17, v17, v14\nv_fma_f32 v17, v18, v23, v17')
        A(f'v_sub_f32 v18, v10, v16\nv_mul_f32 v18, {hex(LOG2E)}, v18\nv_exp_f32 v18, v18')
        A('v_rcp_f32 v19, v17')
        A('v_mul_f32 v20, v18, v19\nv_fma_f32 v21, -v20, v17, v18\nv_fma_f32 v20, v21, v19, v20')
        A('v_mov_b32 v14, 0x7fc00000\nv_cmp_eq_u32 vcc, -1, v20\nv_cndmask_b32 v20, v20, v14, vcc')
        A('v_and_b32 v9, 3, v0\nv_lshlrev_b32 v9, 2, v9')
        A(f'ds_write_b32 v9, v20 offset:{L_WF}')
        A('s_waitcnt lgkmcnt(0)')

    def consumer_prep(s, l_tail):
        A = s.A
        A('s_cmp_ge_u32 s84, 20')
        A(f's_cbranch_scc1 {l_tail}')
        if 'ffn' not in s.skip:
            s.wait_ml()
            lp, ld = s.lab('fc'), s.lab('fcd')
            A(f'v_lshlrev_b32 v9, 2, v0\ns_mov_b32 s60, {hex(W_FLAGP)}\ns_mov_b32 s61, 0x100000')
            A(f'{lp}:')
            A(f'buffer_load_dword v10, v9, s[44:47], s60 offen {s.pol_hl}')
            A(f'buffer_load_dword v11, v9, s[44:47], s60 offen offset:256 {s.pol_hl}')
            A('s_waitcnt vmcnt(0)')
            A('v_cmp_ne_u32 vcc, s58, v10')
            A('v_cmp_ne_u32 s[76:77], s58, v11')
            A('s_and_b32 s77, s77, 0xfff')
            A('s_or_b64 vcc, vcc, s[76:77]')
            A(f's_cbranch_vccz {ld}')
            A('s_sleep 32')
            A('s_sub_u32 s61, s61, 1\ns_cmp_lg_u32 s61, 0')
            A(f's_cbranch_scc1 {lp}')
            A(f'{ld}:')
        A('v_lshrrev_b32 v9, 3, v0\nv_mul_u32_u24 v9, 10240, v9\nv_and_b32 v10, 7, v0\nv_lshlrev_b32 v10, 4, v10\nv_add_u32 v9, v9, v10')
        A(f's_mul_i32 s60, s65, 2560\ns_lshl_b32 s61, s84, 7\ns_add_u32 s60, s60, s61\ns_add_u32 s60, s60, {hex(W_FPART)}')
        for r in range(4): A(f'v_mov_b32 v{16+4*13+r}, 0')
        for t in range(14):
            if t == 13: A('s_mov_b64 exec, 0xffffffff')
            if t >= 4 and t % 2 == 0: A('s_waitcnt vmcnt(2)')
            A(f'buffer_load_dwordx4 v[{16+4*t}:{19+4*t}], v9, s[44:47], s60 offen {s.pol_hl}')
            if t < 13: A(f's_add_u32 s60, s60, {8*10240}')
        A('s_mov_b64 exec, -1')
        A('s_mul_i32 s60, s65, 1280\ns_lshl_b32 s61, s84, 6\ns_add_u32 s60, s60, s61')
        A('v_and_b32 v10, 15, v0\nv_lshlrev_b32 v10, 2, v10')
        A(f'buffer_load_dword v12, v10, s[40:43], s60 offen')
        A('s_waitcnt vmcnt(0)')
        for t in range(1, 14):
            for r in range(4): A(f'v_add_f32 v{16+r}, v{16+r}, v{16+4*t+r}')
        for r in range(4): s.reduce_hi3(16 + r, 20)
        for r in range(4):
            f = 16 + r
            s.bf16r(f, f)
            A(f'v_mul_f32 v20, 0xbfb8aa3b, v{f}\nv_exp_f32 v20, v20\nv_add_f32 v20, 1.0, v20\nv_rcp_f32 v21, v20')
            A(f'v_mul_f32 v22, v{f}, v21\nv_fma_f32 v23, -v22, v20, v{f}\nv_fma_f32 v23, v23, v21, v22')
            A('v_cmp_u_f32 vcc, v23, v23')
            A(f'v_cndmask_b32 v22, v23, v22, vcc')
            s.bf16r(24 + r, 22)
        A('v_and_b32 v9, 7, v0\nv_lshlrev_b32 v9, 4, v9')
        A(f'ds_write_b128 v9, v[24:27] offset:{L_GX}')
        A('v_and_b32 v9, 15, v0\nv_lshlrev_b32 v9, 3, v9')
        A('s_waitcnt lgkmcnt(0)')
        A(f'ds_read_b64 v[88:89], v9 offset:{L_GX}')
        A('v_lshlrev_b32 v92, 16, v12\nv_and_b32 v93, 0xffff0000, v12')
        A('s_waitcnt lgkmcnt(0)')

    def tail(s):
        A = s.A
        DATA = 96
        vM = 4
        A('v_lshrrev_b32 v9, 4, v0\nv_lshlrev_b32 v9, 7, v9\ns_lshl_b32 s60, s63, 5\nv_add_u32 v9, s60, v9')
        A('v_lshrrev_b32 v10, 4, v0\nv_lshlrev_b32 v10, 7, v10\nv_and_b32 v11, 15, v0\nv_lshlrev_b32 v11, 2, v11\nv_add_u32 v10, v10, v11')
        A('s_mul_i32 s60, s63, 2560\nv_add_u32 v10, s60, v10')
        A('s_lshl_b32 s60, s63, 6\nv_add_u32 v76, s60, v0')
        A('v_lshrrev_b32 v77, 3, v76\nv_lshlrev_b32 v77, 14, v77\nv_and_b32 v78, 7, v76\nv_lshlrev_b32 v78, 5, v78\nv_add_u32 v77, v77, v78')
        A('v_lshlrev_b32 v78, 4, v76')
        A('s_mul_i32 s62, s65, 327680\ns_lshl_b32 s69, s67, 8\ns_add_u32 s62, s62, s69')
        A('s_waitcnt vmcnt(0)')
        if not s.fineF: s.stamp(3)
        A('s_barrier')
        if not s.fineF: s.stamp(4)
        for w in range(4):
            A(f'ds_read_b128 v[{16+8*w}:{19+8*w}], v9 offset:{L_OPART + 512*w}')
            A(f'ds_read_b128 v[{20+8*w}:{23+8*w}], v9 offset:{L_OPART + 512*w + 16}')
        A('s_waitcnt lgkmcnt(0)')
        def osum(u):
            A(f'v_add_f32 v{16+u}, v{16+u}, v{24+u}')
            A(f'v_add_f32 v{32+u}, v{32+u}, v{40+u}')
            A(f'v_add_f32 v{16+u}, v{16+u}, v{32+u}')
            A(f'v_cvt_pk_bf16_f32 v{16+u}, v{16+u}, v{16+u}')
        acc = 48
        if s.dbg:
            for u in range(8): osum(u)
            A(f's_lshl_b32 s60, s2, 13\ns_lshl_b32 s61, s63, 11\ns_add_u32 s60, s60, s61\ns_add_u32 s60, s60, {hex(W_DBG + 0x600000)}')
            A('v_lshlrev_b32 v48, 5, v0\nv_add_u32 v48, s60, v48')
            A('global_store_dwordx4 v48, v[16:19], s[30:31]\nglobal_store_dwordx4 v48, v[20:23], s[30:31] offset:16')
            A('s_waitcnt vmcnt(0)')
        else:
            osum(0); osum(1)
        for u in range(8):
            y = 68 + 4 * (u & 1)
            for d in range(4): A(f'v_and_b32 v{y+d}, v{16+u}, v{vM+d}')
            if not s.dbg and u + 2 < 8: osum(u + 2)
            for cb in range(5):
                r = DATA + 4 * (u * 5 + cb)
                a = acc + 4 * cb
                A(f'v_mfma_f32_16x16x32_bf16 v[{a}:{a+3}], v[{r}:{r+3}], v[{y}:{y+3}], ' + ('0' if u == 0 else f'v[{a}:{a+3}]'))
        A('s_mov_b32 exec_lo, 0x00ff00ff\ns_mov_b32 exec_hi, 0x00ff00ff')
        for cb in range(5):
            for r in range(4):
                A(f'ds_write_b32 v10, v{acc+4*cb+r} offset:{L_YPART + 512*cb + 32*r}')
        A('s_mov_b64 exec, -1')
        A('s_waitcnt lgkmcnt(0)')
        A('s_barrier')
        if not s.fineF: s.stamp(5)
        l_fin, l_done = s.lab('fin'), s.lab('done')
        A('s_cmp_eq_u32 s63, 3')
        A(f's_cbranch_scc1 {l_fin}')
        A('v_cmp_gt_u32 vcc, 160, v76')
        A('s_and_saveexec_b64 s[60:61], vcc')
        A(f's_cbranch_execz {l_done}')
        for w in range(4):
            A(f'ds_read_b128 v[{16+4*w}:{19+4*w}], v78 offset:{L_YPART + 2560*w}')
        A('v_mov_b32 v33, s58\nv_mov_b32 v35, s58\nv_mov_b32 v37, s58\nv_mov_b32 v39, s58')
        A('s_waitcnt lgkmcnt(0)')
        for r in range(4):
            A(f'v_add_f32 v{16+r}, v{16+r}, v{20+r}')
            A(f'v_add_f32 v{24+r}, v{24+r}, v{28+r}')
        for r in range(4):
            A(f'v_add_f32 v{32+2*r}, v{16+r}, v{24+r}')
        A(f'buffer_store_dwordx4 v[32:35], v77, s[44:47], s62 offen {s.pol_hs}')
        A(f'buffer_store_dwordx4 v[36:39], v77, s[44:47], s62 offen offset:16 {s.pol_hs}')
        A(f'{l_done}:')
        if not s.fineF: s.stamp(6)
        s.stamp_store(7)
        A('s_endpgm')
        A(f'{l_fin}:')
        l_nf = s.lab('nofin')
        A('s_cmp_ge_u32 s84, 20')
        A(f's_cbranch_scc1 {l_nf}')
        A('s_mul_i32 s60, s65, 20\ns_add_u32 s60, s60, s84\ns_lshl_b32 s60, s60, 14')
        for k in range(1, 4): A(f's_add_u32 s{80+k}, s60, {4096*k}')
        A('s_mov_b32 s80, s60')
        A('v_lshlrev_b32 v9, 4, v0')
        s.srd(48, 26, 5120)
        A('s_mul_i32 s52, s65, 1280\ns_lshl_b32 s53, s84, 6\ns_add_u32 s52, s52, s53')
        A('v_lshlrev_b32 v10, 2, v0')
        lp, ld = s.lab('fp'), s.lab('fpd')
        for t in range(16):
            A(f'buffer_load_dwordx4 v[{16+4*t}:{19+4*t}], v9, s[44:47], s{80+t//4} offen offset:{(t%4)*1024} {s.pol_hl}')
        A('s_mov_b32 s61, 0x100000')
        A(f'{lp}:')
        if s.maskpoll:
            A('s_mov_b64 s[54:55], 0')
            for t in range(16):
                A(f's_waitcnt vmcnt({15 - t})' if True else '')
                A(f'v_cmp_ne_u32 vcc, s58, v{17+4*t}')
                A(f'v_cmp_ne_u32 s[76:77], s58, v{19+4*t}')
                A('s_or_b64 vcc, vcc, s[76:77]')
                A(f's_mov_b64 s[{s.MK(t)}:{s.MK(t)+1}], vcc' if False else '')
                ls = s.lab('ok')
                A(f's_cbranch_vccz {ls}')
                A('s_or_b64 s[54:55], s[54:55], vcc')
                A('s_mov_b64 exec, vcc')
                A(f'buffer_load_dwordx4 v[{16+4*t}:{19+4*t}], v9, s[44:47], s{80+t//4} offen offset:{(t%4)*1024} {s.pol_hl}')
                A('s_mov_b64 exec, -1')
                A(f'{ls}:')
            A('s_cmp_eq_u64 s[54:55], 0')
            A(f's_cbranch_scc1 {ld}')
            A('s_waitcnt vmcnt(0)')
            A('s_sub_u32 s61, s61, 1\ns_cmp_lg_u32 s61, 0')
            A(f's_cbranch_scc1 {lp}')
        else:
            tags = [16 + 4 * t + k for t in range(16) for k in (1, 3)]
            A('s_waitcnt vmcnt(12)')
            A(f'v_min_u32 v80, v{tags[0]}, v{tags[1]}\nv_max_u32 v81, v{tags[0]}, v{tags[1]}')
            for i in range(2, 32, 2):
                if i in (8, 16, 24): A(f's_waitcnt vmcnt({12 - i//2})')
                A(f'v_min3_u32 v80, v80, v{tags[i]}, v{tags[i+1]}')
                A(f'v_max3_u32 v81, v81, v{tags[i]}, v{tags[i+1]}')
            A('v_cmp_ne_u32 vcc, s58, v80')
            A('v_cmp_ne_u32 s[76:77], s58, v81')
            A('s_or_b64 vcc, vcc, s[76:77]')
            A(f's_cbranch_vccz {ld}')
            for t in range(16):
                A(f'buffer_load_dwordx4 v[{16+4*t}:{19+4*t}], v9, s[44:47], s{80+t//4} offen offset:{(t%4)*1024} {s.pol_hl}')
            A('s_sub_u32 s61, s61, 1\ns_cmp_lg_u32 s61, 0')
            A(f's_cbranch_scc1 {lp}')
            A('s_waitcnt vmcnt(0)')
        A(f'{ld}:')
        step = 1
        while step < 16:
            for t in range(0, 16, 2 * step):
                for k in (0, 2): A(f'v_add_f32 v{16+4*t+k}, v{16+4*t+k}, v{16+4*(t+step)+k}')
            step *= 2
        for k in (0, 2): A(f'v_mov_b32 v{20+k}, v{16+k}')
        for k in (0, 2): A(f'v_permlane16_swap_b32 v{16+k}, v{20+k}')
        for k in (0, 2): A(f'v_add_f32 v{16+k}, v{16+k}, v{20+k}')
        for k in (0, 2): A(f'v_mov_b32 v{20+k}, v{16+k}')
        for k in (0, 2): A(f'v_permlane32_swap_b32 v{16+k}, v{20+k}')
        for k in (0, 2): A(f'v_add_f32 v{16+k}, v{16+k}, v{20+k}')
        A('v_cvt_pk_bf16_f32 v16, v16, v18')
        A('v_lshlrev_b32 v17, 16, v16\nv_and_b32 v18, 0xffff0000, v16')
        A('v_mul_f32 v17, v17, v88\nv_mul_f32 v18, v18, v89')
        A('v_cvt_pk_bf16_f32 v16, v17, v18')
        A('v_lshlrev_b32 v17, 16, v16\nv_and_b32 v18, 0xffff0000, v16')
        A('v_add_f32 v17, v17, v92\nv_add_f32 v18, v18, v93')
        A('v_cvt_pk_bf16_f32 v16, v17, v18')
        A('s_mov_b64 exec, 0xffff')
        A('buffer_store_dword v16, v10, s[48:51], s52 offen')
        A('s_mov_b64 exec, -1')
        A('s_or_b32 s60, s65, s84\ns_cmp_lg_u32 s60, 0')
        A(f's_cbranch_scc1 {l_nf}')
        A(f'v_mov_b32 v9, 0\nv_mov_b32 v11, s58\ns_mov_b32 s60, {hex(W_NONCE)}')
        A('s_mov_b64 exec, 1')
        A('buffer_store_dword v11, v9, s[44:47], s60 offen sc1')
        A('s_mov_b64 exec, -1')
        A(f'{l_nf}:')
        if not s.fineF: s.stamp(6)
        s.stamp_store(7)

    def text(s):
        s.build()
        body = hz.fix(s.L)
        out = [HEADER + f'; @launch grid=(256,1,1) block=(512,1,1) lds={LDS_BYTES}',
               '.amdgcn_target "amdgcn-amd-amdhsa--gfx950"', '.text', f'.globl {NAME}_kernel', '.p2align 8',
               f'.type {NAME}_kernel,@function']
        out += body
        out += ['.section .rodata,"a"', '.p2align 6', f'.amdhsa_kernel {NAME}_kernel',
                '  .amdhsa_next_free_vgpr 256', '  .amdhsa_next_free_sgpr 102', '  .amdhsa_accum_offset 256',
                '  .amdhsa_group_segment_fixed_size 0', '  .amdhsa_kernarg_size 96', '  .amdhsa_user_sgpr_count 2',
                '  .amdhsa_user_sgpr_kernarg_segment_ptr 1', '  .amdhsa_system_sgpr_workgroup_id_x 1',
                '  .amdhsa_float_denorm_mode_32 3',
                '.end_amdhsa_kernel']
        return '\n'.join(out) + '\n'

if __name__ == '__main__':
    import argparse
    ap = argparse.ArgumentParser()
    ap.add_argument('-o', default='cdna_kernels/' + NAME + '.s')
    ap.add_argument('--cfg', default='{}')
    a = ap.parse_args()
    g = Gen(**eval(a.cfg))
    open(a.o, 'w').write(g.text())
    print('wrote', a.o)
```

```python
import sys, os
sys.path.insert(0, os.path.dirname(os.path.abspath(__file__)))
import hz

NAME = 'recurrent_scan__gqa_block_cached__geglu_ffn__decode'

HEADER = '''; Kernarg layout for this problem (96 bytes, ptrs only, base s[0:1]):
;   offset  32: d_in[4] A_wo  shape=(4096, 640) dtype=bfloat16
;   offset  88: d_ws      workspace: q, FFN partials, hand-off mailboxes
; One workgroup per (batch, head, key-half): waves 0-3 stream K then V, waves 4-7 do the projections / FFN / hand-offs.
'''

L_QP    = 0x0000
L_XN    = 0x2000
L_ML    = 0x3400
L_WF    = 0x3440
L_FLAG  = 0x3480
L_QB    = 0x3500
L_HT    = 0x3600
L_OPART = 0x3700
L_YPART = 0x3F00
L_GX    = 0x6700
L_WG    = 0x6800
L_WU    = 0xB800
LDS_BYTES = 0x10800

W_YIN   = 0x000000
W_ML    = 0x140000
W_NONCE = 0x148000
W_FLAGQ = 0x149000
W_FLAGF = 0x14A000
W_FLAGP = 0x14B000
W_Q     = 0x180000
W_FPART = 0x200000
W_FX    = 0x320000
WS_SIZE = 0x360000
W_DBG   = 0x1000000

SCALE = 0x3db504f3
LOG2E = 0x3fb8aa3b

class Gen:
    def __init__(s, W=6, P=30, B=40, WO=3, WF=5, pol_kv='nt', pol_w='', pol_hl='sc1', pol_hs='sc1', dbg=False, stamps=False, prio=True, skip='', W0=None, fineF=False, WO4=None, pol_f=None, pol_q=None, WD=4, boost=0, rot=False, WV=None, maskpoll=False, pol_fg=None, pol_fp=None, mix=0):
        s.mix = mix
        s.pol_fg = pol_hl if pol_fg is None else pol_fg; s.pol_fp = pol_hs if pol_fp is None else pol_fp
        s.maskpoll = maskpoll
        s.WV = WV or W
        s.rot = rot
        s.boost = boost
        s.WD = WD
        s.fineF = fineF; s.WO4 = WO4 or WO; s.pol_f = pol_w if pol_f is None else pol_f; s.pol_q = pol_w if pol_q is None else pol_q
        s.L = []
        s.W, s.P, s.B, s.WO, s.WF = W, P, B, WO, WF
        s.W0 = W0 or W
        s.pol_kv, s.pol_w, s.pol_hl, s.pol_hs = pol_kv, pol_w, pol_hl, pol_hs
        s.dbg = dbg; s.stamps = stamps; s.prio = prio; s.skip = skip.split(',')
        s.nlab = 0
    def A(s, t):
        for l in t.split('\n'):
            l = l.strip()
            if l: s.L.append(('  ' + l) if not l.endswith(':') else l)
    def lab(s, base):
        s.nlab += 1
        return f'L_{base}_{s.nlab}'

    def allreduce(s, op, v, t):
        A = s.A
        ins = {'add': 'v_add_f32', 'max': 'v_max_f32'}[op]
        A(f'{ins}_dpp v{v}, v{v}, v{v} quad_perm:[1,0,3,2] row_mask:0xf bank_mask:0xf')
        A(f'{ins}_dpp v{v}, v{v}, v{v} quad_perm:[2,3,0,1] row_mask:0xf bank_mask:0xf')
        A(f'{ins}_dpp v{v}, v{v}, v{v} row_half_mirror row_mask:0xf bank_mask:0xf')
        A(f'{ins}_dpp v{v}, v{v}, v{v} row_mirror row_mask:0xf bank_mask:0xf')
        A(f'v_mov_b32 v{t}, v{v}')
        A(f'v_permlane16_swap_b32 v{v}, v{t}')
        A(f'{ins} v{v}, v{v}, v{t}')
        A(f'v_mov_b32 v{t}, v{v}')
        A(f'v_permlane32_swap_b32 v{v}, v{t}')
        A(f'{ins} v{v}, v{v}, v{t}')

    def reduce_hi3(s, v, t):
        A = s.A
        A(f'v_add_f32_dpp v{v}, v{v}, v{v} row_ror:8 row_mask:0xf bank_mask:0xf')
        A(f'v_mov_b32 v{t}, v{v}')
        A(f'v_permlane16_swap_b32 v{v}, v{t}')
        A(f'v_add_f32 v{v}, v{v}, v{t}')
        A(f'v_mov_b32 v{t}, v{v}')
        A(f'v_permlane32_swap_b32 v{v}, v{t}')
        A(f'v_add_f32 v{v}, v{v}, v{t}')

    def bf16r(s, dst, src):
        s.A(f'v_cvt_pk_bf16_f32 v{dst}, v{src}, v{src}')
        s.A(f'v_lshlrev_b32 v{dst}, 16, v{dst}')

    def srd(s, n, ptr, size):
        s.A(f's_mov_b32 s{n}, s{ptr}\ns_and_b32 s{n+1}, s{ptr+1}, 0xffff\ns_mov_b32 s{n+2}, {hex(size)}\ns_mov_b32 s{n+3}, 0x20000')

    def stamp(s, idx):
        if s.stamps: s.A(f's_memrealtime s[{86+2*idx}:{87+2*idx}]')

    def stamp_store(s, n):
        if not s.stamps: return
        A = s.A
        A('s_waitcnt lgkmcnt(0)')
        A('s_lshl_b32 s100, s2, 3\ns_add_u32 s100, s100, s3\ns_lshl_b32 s100, s100, 6')
        A(f's_add_u32 s100, s100, {hex(W_DBG)}')
        A('v_mov_b32 v1, s100')
        A('s_mov_b64 exec, 1')
        for i in range(n):
            A(f'v_mov_b32 v2, s{86+2*i}')
            A(f'global_store_dword v1, v2, s[30:31] offset:{4*i}')
        A('s_mov_b64 exec, -1')

    def masks_Md(s, base, jreg, t1, t2, mod8=False):
        A = s.A
        if mod8: A(f'v_and_b32 v{t1}, 7, v{jreg}')
        else: A(f'v_mov_b32 v{t1}, v{jreg}')
        A(f'v_and_b32 v{t2}, 1, v{t1}')
        A(f'v_cmp_eq_u32 vcc, 1, v{t2}')
        A(f'v_mov_b32 v{t2}, 0xffff')
        A(f'v_mov_b32 v{base}, 0xffff0000')
        A(f'v_cndmask_b32 v{t2}, v{t2}, v{base}, vcc')
        A(f'v_lshrrev_b32 v{t1}, 1, v{t1}')
        for d in range(4):
            A(f'v_cmp_eq_u32 vcc, {d}, v{t1}')
            A(f'v_cndmask_b32 v{base+d}, 0, v{t2}, vcc')

    def layernorm(s, xr, out_pairs, tb):
        A = s.A
        f = tb
        a, t = tb + 10, tb + 11
        for i in range(5):
            A(f'v_lshlrev_b32 v{f+2*i}, 16, v{xr+i}')
            A(f'v_and_b32 v{f+2*i+1}, 0xffff0000, v{xr+i}')
        A(f'v_add_f32 v{a}, v{f}, v{f+1}\nv_add_f32 v{t}, v{f+2}, v{f+3}')
        for i in range(4, 10, 2): A(f'v_add_f32 v{a}, v{a}, v{f+i}\nv_add_f32 v{t}, v{t}, v{f+i+1}')
        A(f'v_add_f32 v{a}, v{a}, v{t}')
        s.allreduce('add', a, t)
        A(f'v_mul_f32 v{a}, 0x3acccccd, v{a}')
        v, d = tb + 12, tb + 13
        A(f'v_sub_f32 v{d}, v{f}, v{a}\nv_mul_f32 v{v}, v{d}, v{d}')
        for i in range(1, 10):
            A(f'v_sub_f32 v{d}, v{f+i}, v{a}\nv_fmac_f32 v{v}, v{d}, v{d}')
        s.allreduce('add', v, t)
        A(f'v_mul_f32 v{v}, 0x3acccccd, v{v}')
        s.bf16r(v, v)
        A(f'v_add_f32 v{v}, 0x3727c5ac, v{v}')
        s.bf16r(v, v)
        A(f'v_sqrt_f32 v{v}, v{v}')
        s.bf16r(v, v)
        s.bf16r(a, a)
        A(f'v_rcp_f32 v{t}, v{v}')
        for i in range(10):
            A(f'v_sub_f32 v{f+i}, v{f+i}, v{a}')
        for i in range(5):
            A(f'v_cvt_pk_bf16_f32 v{out_pairs+i}, v{f+2*i}, v{f+2*i+1}')
        for i in range(5):
            A(f'v_lshlrev_b32 v{f+2*i}, 16, v{out_pairs+i}')
            A(f'v_and_b32 v{f+2*i+1}, 0xffff0000, v{out_pairs+i}')
        for i in range(10):
            A(f'v_mul_f32 v{d}, v{f+i}, v{t}')
            A(f'v_fma_f32 v{f+i}, -v{d}, v{v}, v{f+i}')
            A(f'v_fma_f32 v{f+i}, v{f+i}, v{t}, v{d}')
        for i in range(5):
            A(f'v_cvt_pk_bf16_f32 v{out_pairs+i}, v{f+2*i}, v{f+2*i+1}')

    def build(s):
        A = s.A
        A(f'{NAME}_kernel:')
        A('s_cmp_ge_u32 s2, 256')
        A('s_cbranch_scc1 L_end')
        s.stamp(0)
        A('s_load_dwordx16 s[8:23], s[0:1], 0')
        A('s_load_dwordx8 s[24:31], s[0:1], 64')
        A('v_lshrrev_b32 v1, 6, v0')
        A('v_and_b32 v0, 63, v0')
        A('v_readfirstlane_b32 s3, v1')
        lni = s.lab('noinit')
        A('s_cmp_lg_u32 s3, 0')
        A(f's_cbranch_scc1 {lni}')
        A('v_mov_b32 v2, -1\nv_cmp_gt_u32 vcc, 32, v0\nv_cndmask_b32 v2, 0, v2, vcc\nv_lshlrev_b32 v3, 2, v0')
        A(f'ds_write_b32 v3, v2 offset:{L_ML}')
        A(f'{lni}:')
        A('s_and_b32 s64, s2, 7\ns_lshr_b32 s68, s2, 3')
        A('s_and_b32 s69, s68, 3\ns_lshl_b32 s69, s69, 3\ns_add_u32 s64, s64, s69')
        A('s_lshr_b32 s65, s68, 2\ns_and_b32 s65, s65, 3')
        A('s_lshr_b32 s66, s68, 4')
        A('s_lshl_b32 s67, s64, 1\ns_add_u32 s67, s67, s66')
        A('s_cmp_eq_u32 s66, 1\ns_cselect_b32 s84, s64, 99')
        A('s_waitcnt lgkmcnt(0)')
        A('s_cmp_ge_u32 s3, 4')
        A('s_cbranch_scc1 L_helper')
        s.streamer()
        A('L_helper:')
        s.helper()
        A('L_end:')
        A('s_endpgm')

    def streamer(s):
        A = s.A
        W, P, B, W0 = s.W, s.P, s.B, s.W0
        RING = 64
        assert RING + 4 * B <= 256 and P + W0 + 3 <= B + 1
        vKo, vVo = 1, 2
        vM = 4; vY = 8; vAcc = 24; vSc = 32; vO = 40; vYp = 44; vT = 52
        if s.prio: A('s_setprio 2')
        s.srd(32, 10, 0x8000000)
        s.srd(36, 12, 0x8000000)
        A(f'v_lshrrev_b32 v{vT}, 4, v0')
        A(f'v_lshlrev_b32 v{vT+3}, 2, v{vT}\nv_and_b32 v{vT+2}, 3, v0\nv_add_u32 v{vT+3}, v{vT+3}, v{vT+2}\nv_lshlrev_b32 v3, 4, v{vT+3}')
        A(f'v_lshlrev_b32 v{vT}, 6, v{vT}')
        A(f'v_bfe_u32 v{vT+1}, v0, 2, 2')
        A(f'v_lshlrev_b32 v{vT+1}, 8, v{vT+1}')
        A(f'v_lshlrev_b32 v{vT+2}, 4, v{vT+2}')
        A(f'v_add3_u32 v{vKo}, v{vT}, v{vT+1}, v{vT+2}')
        A(f'v_lshlrev_b32 v{vVo}, 4, v0')
        A('s_lshl_b32 s40, s65, 5\ns_add_u32 s40, s40, s64\ns_lshl_b32 s40, s40, 20')
        A('s_lshl_b32 s41, s66, 19\ns_add_u32 s40, s40, s41')
        A('s_lshl_b32 s41, s3, 12\ns_add_u32 s40, s40, s41')
        A('s_mov_b32 s41, s40')
        state = {'n': 0, 'win': W}
        def issue():
            n = state['n']; state['n'] += 1
            if n >= 256: return
            if n == 128: A('s_mov_b32 s41, s40')
            elif n % 4 == 0 and n > 0: A('s_add_u32 s41, s41, 0x4000')
            r = RING + 4 * (n % B)
            if n < 128:
                A(f'buffer_load_dwordx4 v[{r}:{r+3}], v{vKo}, s[32:35], s41 offen offset:{(n%4)*1024} {s.pol_kv}')
            else:
                A(f'buffer_load_dwordx4 v[{r}:{r+3}], v{vVo}, s[36:39], s41 offen offset:{(n%4)*1024} {s.pol_kv}')
        done = {'upto': -1}
        def paced_issue(w=None):
            w = w or W
            if state['n'] >= 256: return
            A(f's_waitcnt vmcnt({w-1})')
            done['upto'] = max(done['upto'], state['n'] - w)
            issue()
        def ensure(c):
            if c > done['upto']:
                A(f's_waitcnt vmcnt({state["n"] - 1 - c})')
                done['upto'] = c
        for _ in range(W0): issue()
        A('s_barrier')
        A(f'v_and_b32 v{vT}, 15, v0')
        s.masks_Md(vM, vT, vT+1, vT+2)
        A('s_mov_b32 s44, 0x22222222\ns_mov_b32 s45, 0x22222222')
        A('s_mov_b32 s46, 0x44444444\ns_mov_b32 s47, 0x44444444')
        A('s_mov_b32 s48, 0x88888888\ns_mov_b32 s49, 0x88888888')
        for t in range(4):
            m = 0x000F000F << (4 * t)
            A(f's_mov_b32 s{50+2*t}, {hex(m)}\ns_mov_b32 s{51+2*t}, {hex(m)}')
        for _ in range(P): paced_issue(W0)
        s.stamp(1)
        A('s_barrier')
        s.stamp(2)
        A(f'ds_read_b128 v[56:59], v3 offset:{L_QB}')
        paced_issue()
        A('s_waitcnt lgkmcnt(0)')
        if s.dbg:
            A(f's_lshl_b32 s60, s2, 12\ns_lshl_b32 s61, s3, 10\ns_add_u32 s60, s60, s61\ns_add_u32 s60, s60, {hex(W_DBG + 0x100000)}')
            A(f'v_lshlrev_b32 v8, 4, v0\nv_add_u32 v8, s60, v8')
            A(f'global_store_dwordx4 v8, v[56:59], s[30:31]')
            A('s_waitcnt vmcnt(0)')
        for t in range(4):
            for d in range(4):
                A(f'v_cndmask_b32 v{vY+4*t+d}, 0, v{56+d}, s[{50+2*t}:{51+2*t}]')
        def post(g):
            a = vAcc + 4 * (g & 1)
            t = vT
            A(f'v_cndmask_b32 v{t}, v{a}, v{a+1}, s[44:45]')
            A(f'v_cndmask_b32 v{t}, v{t}, v{a+2}, s[46:47]')
            A(f'v_cndmask_b32 v{t}, v{t}, v{a+3}, s[48:49]')
            A(f'v_add_f32_dpp v{t}, v{t}, v{t} quad_perm:[1,0,3,2] row_mask:0xf bank_mask:0xf')
            q4 = vSc + (g >> 2)
            if (g & 3) == 0:
                A(f'v_add_f32_dpp v{q4}, v{t}, v{t} quad_perm:[2,3,0,1] row_mask:0xf bank_mask:0xf')
            else:
                A(f'v_add_f32_dpp v{t}, v{t}, v{t} quad_perm:[2,3,0,1] row_mask:0xf bank_mask:0xf')
                A(f'v_cndmask_b32 v{q4}, v{q4}, v{t}, s[{42+2*(g&3)}:{43+2*(g&3)}]')
        if s.boost or s.mix:
            A(f's_cmp_lt_u32 s3, {s.mix}\ns_cselect_b32 s59, 1, 0')
            A('s_and_b32 s58, s2, 7\ns_lshl_b32 s60, s65, 3\ns_add_u32 s58, s58, s60\ns_cmp_lt_u32 s58, 27\ns_cselect_b32 s58, 1, 0')
            A('s_cmp_eq_u32 s66, 0\ns_cselect_b32 s58, s58, 0')
            if not s.boost: A('s_mov_b32 s58, 0')
            A('s_or_b32 s58, s58, s59')
        def boosted_issue(w=None):
            w = w or W
            if state['n'] >= 256: return
            lb = s.lab('bo')
            A(f's_waitcnt vmcnt({w})')
            A('s_cmp_eq_u32 s58, 1')
            A(f's_cbranch_scc1 {lb}')
            A(f's_waitcnt vmcnt({w-1})')
            A(f'{lb}:')
            done['upto'] = max(done['upto'], state['n'] - (w + 1))
            issue()
        for c in range(128):
            g, t = c >> 2, c & 3
            backlog = state['n'] - c
            if c == s.boost and s.mix: A('s_mov_b32 s58, s59')
            hi = (s.boost and c < s.boost) or s.mix
            if hi and backlog <= W + 1: boosted_issue()
            elif backlog <= W: paced_issue()
            elif backlog > W + 1 and c % 8 == 7: (boosted_issue() if hi else paced_issue())
            ensure(c)
            r = RING + 4 * (c % B)
            a = vAcc + 4 * (g & 1)
            cin = '0' if t == 0 else f'v[{a}:{a+3}]'
            A(f'v_mfma_f32_16x16x32_bf16 v[{a}:{a+3}], v[{r}:{r+3}], v[{vY+4*t}:{vY+4*t+3}], {cin}')
            if t == 1 and g > 0: post(g - 1)
        paced_issue()
        post(31)
        s.stamp(3)
        if s.dbg:
            A(f's_lshl_b32 s60, s2, 13\ns_lshl_b32 s61, s3, 11\ns_add_u32 s60, s60, s61\ns_add_u32 s60, s60, {hex(W_DBG + 0x200000)}')
            A(f'v_lshlrev_b32 v{vT}, 2, v0\nv_add_u32 v{vT}, s60, v{vT}')
            for i in range(8):
                A(f'global_store_dword v{vT}, v{vSc+i}, s[30:31] offset:{256*i}')
            A('s_waitcnt vmcnt(0)')
        def round_pairs():
            for i in range(4):
                A(f'v_cvt_pk_bf16_f32 v{vT+i}, v{vSc+2*i}, v{vSc+2*i+1}')
            for i in range(4):
                A(f'v_lshlrev_b32 v{vSc+2*i}, 16, v{vT+i}')
                A(f'v_and_b32 v{vSc+2*i+1}, 0xffff0000, v{vT+i}')
        round_pairs()
        for i in range(8): A(f'v_mul_f32 v{vSc+i}, {hex(SCALE)}, v{vSc+i}')
        round_pairs()
        m, t2 = vT + 4, vT + 5
        A(f'v_max3_f32 v{m}, v{vSc}, v{vSc+1}, v{vSc+2}')
        A(f'v_max3_f32 v{m}, v{m}, v{vSc+3}, v{vSc+4}')
        A(f'v_max3_f32 v{m}, v{m}, v{vSc+5}, v{vSc+6}')
        A(f'v_max_f32 v{m}, v{m}, v{vSc+7}')
        s.allreduce('max', m, t2)
        paced_issue()
        for i in range(8): A(f'v_sub_f32 v{vSc+i}, v{vSc+i}, v{m}')
        for i in range(8): A(f'v_mul_f32 v{vSc+i}, {hex(LOG2E)}, v{vSc+i}')
        for i in range(8): A(f'v_exp_f32 v{vSc+i}, v{vSc+i}')
        l = m + 1
        t3 = vT + 6
        A(f'v_add_f32 v{l}, v{vSc}, v{vSc+1}')
        A(f'v_add_f32 v{t3}, v{vSc+2}, v{vSc+3}')
        A(f'v_add_f32 v{l}, v{l}, v{vSc+4}')
        A(f'v_add_f32 v{t3}, v{t3}, v{vSc+5}')
        A(f'v_add_f32 v{l}, v{l}, v{vSc+6}')
        A(f'v_add_f32 v{t3}, v{t3}, v{vSc+7}')
        A(f'v_add_f32 v{l}, v{l}, v{t3}')
        for i in range(8): A(f'v_cvt_pk_bf16_f32 v{vSc+i}, v{vSc+i}, v{vSc+i}')
        s.allreduce('add', l, t3)
        paced_issue()
        A(f'v_cmp_eq_u32 vcc, -1, v{m}')
        A(f'v_mov_b32 v{t3}, 0x7fc00000')
        A(f'v_cndmask_b32 v{m}, v{m}, v{t3}, vcc')
        A(f's_lshl_b32 s60, s3, 3\nv_mov_b32 v{t3}, s60')
        A(f'ds_write_b64 v{t3}, v[{m}:{m+1}] offset:{L_ML}')
        def ybuild(c):
            g, t = (c - 128) >> 2, c & 3
            y = vYp + 4 * (c & 1)
            for d in range(4):
                A(f'v_and_b32_dpp v{y+d}, v{vSc+(g>>2)}, v{vM+d} row_newbcast:{4*t+(g&3)} row_mask:0xf bank_mask:0xf')
        ybuild(128)
        WV = s.WV
        for c in range(128, 256):
            if state['n'] < 256:
                if s.mix:
                    if state['n'] - c <= WV + 1: boosted_issue(WV)
                    elif c % 4 == 3: boosted_issue(WV)
                elif state['n'] - c <= WV: paced_issue(WV)
                elif c % 4 == 3: paced_issue(WV)
            if c == 240:
                A(f's_lshl_b32 s60, s3, 2\nv_mov_b32 v{vT}, s60')
                A(f'ds_read_b32 v{vT+1}, v{vT} offset:{L_WF}')
            if c == 244:
                A(f'v_and_b32 v{vT+2}, 3, v0\nv_lshlrev_b32 v{vT+2}, 5, v{vT+2}')
                A(f'v_lshrrev_b32 v{vT+3}, 4, v0\nv_lshlrev_b32 v{vT+3}, 3, v{vT+3}')
                if s.rot:
                    A(f'v_add_u32 v{vT+2}, v{vT+2}, v{vT+3}')
                    A(f's_lshl_b32 s60, s65, 1\ns_add_u32 s60, s60, s66')
                    A(f'v_bfe_u32 v{vT+4}, v0, 2, 1\nv_subrev_u32 v{vT+4}, s60, v{vT+4}')
                    for r4 in range(4):
                        A(f'v_add_u32 v{vT+8+r4}, {2*r4}, v{vT+4}\nv_and_b32 v{vT+8+r4}, 7, v{vT+8+r4}\nv_add_u32 v{vT+8+r4}, v{vT+8+r4}, v{vT+2}\nv_lshlrev_b32 v{vT+8+r4}, 2, v{vT+8+r4}')
                        A(f's_lshl_b32 s60, s3, 9\nv_add_u32 v{vT+8+r4}, s60, v{vT+8+r4}')
                else:
                    A(f'v_bfe_u32 v{vT+4}, v0, 2, 1')
                    A(f'v_add3_u32 v{vT+2}, v{vT+2}, v{vT+3}, v{vT+4}')
                    A(f'v_lshlrev_b32 v{vT+2}, 2, v{vT+2}')
                    A(f's_lshl_b32 s60, s3, 9\nv_add_u32 v{vT+2}, s60, v{vT+2}')
            if c + 1 < 256: ybuild(c + 1)
            ensure(c)
            r = RING + 4 * (c % B)
            y = vYp + 4 * (c & 1)
            cin = '0' if c == 128 else f'v[{vO}:{vO+3}]'
            A(f'v_mfma_f32_16x16x32_bf16 v[{vO}:{vO+3}], v[{r}:{r+3}], v[{y}:{y+3}], {cin}')
        s.stamp(4)
        lp, ld = s.lab('wf'), s.lab('wfd')
        A('s_waitcnt lgkmcnt(0)')
        A(f'v_cmp_ne_u32 vcc, -1, v{vT+1}')
        A(f's_cbranch_vccnz {ld}')
        A('s_mov_b32 s61, 0x400000')
        A(f'{lp}:')
        A(f'ds_read_b32 v{vT+1}, v{vT} offset:{L_WF}')
        A('s_waitcnt lgkmcnt(0)')
        A(f'v_cmp_ne_u32 vcc, -1, v{vT+1}')
        A(f's_cbranch_vccnz {ld}')
        A('s_sleep 1')
        A('s_sub_u32 s61, s61, 1\ns_cmp_lg_u32 s61, 0')
        A(f's_cbranch_scc1 {lp}')
        A(f'{ld}:')
        for r in range(4): A(f'v_mul_f32 v{vO+r}, v{vO+r}, v{vT+1}')
        A('s_mov_b32 exec_lo, 0x00ff00ff\ns_mov_b32 exec_hi, 0x00ff00ff')
        if s.rot:
            for r in range(4): A(f'ds_write_b32 v{vT+8+r}, v{vO+r} offset:{L_OPART}')
        else:
            for r in range(4): A(f'ds_write_b32 v{vT+2}, v{vO+r} offset:{L_OPART+8*r}')
        A('s_mov_b64 exec, -1')
        A('s_waitcnt lgkmcnt(0)')
        A('s_barrier')
        s.stamp(5)
        s.stamp_store(6)
        A('s_endpgm')

    def lds_flag_wait(s, off, vt):
        A = s.A
        lp, ld = s.lab('fl'), s.lab('fld')
        A(f'v_and_b32 v{vt}, 3, v0\nv_lshlrev_b32 v{vt}, 2, v{vt}')
        A('s_mov_b32 s61, 0x1000000')
        A(f'{lp}:')
        A(f'ds_read_b32 v{vt+1}, v{vt} offset:{off}')
        A('s_waitcnt lgkmcnt(0)')
        A(f'v_cmp_ne_u32 vcc, 1, v{vt+1}')
        A(f's_cbranch_vccz {ld}')
        A('s_sub_u32 s61, s61, 1\ns_cmp_lg_u32 s61, 0')
        A(f's_cbranch_scc1 {lp}')
        A(f'{ld}:')

    def spoll(s, n, check, sleep=1):
        A = s.A
        lp, ld = s.lab('sp'), s.lab('spd')
        A('s_add_u32 s4, s30, s60\ns_addc_u32 s5, s31, 0')
        A('s_mov_b32 s61, 0x200000')
        A(f'{lp}:')
        A(f's_load_dwordx{n} s[76:{76+n-1}], s[4:5], 0 glc')
        A('s_waitcnt lgkmcnt(0)')
        A(f's_xor_b32 s6, s{76+check[0]}, s58')
        for c in check[1:]: A(f's_xor_b32 s7, s{76+c}, s58\ns_or_b32 s6, s6, s7')
        A('s_cmp_eq_u32 s6, 0')
        A(f's_cbranch_scc1 {ld}')
        if sleep: A(f's_sleep {sleep}')
        A('s_sub_u32 s61, s61, 1\ns_cmp_lg_u32 s61, 0')
        A(f's_cbranch_scc1 {lp}')
        A(f'{ld}:')

    def flag_store(s, lanes, vaddr, soff):
        A = s.A
        A(f'v_mov_b32 v15, s58')
        A(f's_mov_b64 exec, {lanes}')
        A(f'buffer_store_dword v15, v{vaddr}, s[44:47], {soff} offen sc1')
        A('s_mov_b64 exec, -1')

    def helper(s):
        A = s.A
        DATA = 96
        vM = 4
        A('s_sub_u32 s63, s3, 4')
        A('s_mov_b32 s59, 0')
        A(f's_add_u32 s4, s30, {hex(W_NONCE)}\ns_addc_u32 s5, s31, 0')
        A('s_load_dword s58, s[4:5], 0')
        s.srd(32, 14, 640 * 4096 * 2)
        s.srd(40, 8, 5120)
        s.srd(44, 30, WS_SIZE)
        A('s_mul_i32 s60, s63, 1280')
        A('v_lshlrev_b32 v1, 2, v0')
        for t in range(5):
            A(f'buffer_load_dword v{16+t}, v1, s[40:43], s60 offen offset:{256*t}')
        A('v_lshrrev_b32 v2, 4, v0\nv_lshlrev_b32 v2, 13, v2\nv_and_b32 v3, 15, v0\nv_lshlrev_b32 v3, 4, v3\nv_add_u32 v2, v2, v3')
        A('s_lshl_b32 s57, s65, 1\ns_add_u32 s57, s57, s66')
        A('s_mul_i32 s56, s57, 80\ns_mul_i32 s60, s63, 20\ns_add_u32 s56, s56, s60')
        A('s_lshl_b32 s60, s56, 13\ns_lshl_b32 s61, s64, 8\ns_add_u32 s60, s60, s61')
        for u in range(5):
            A(f'buffer_load_dwordx4 v[{DATA+4*u}:{DATA+4*u+3}], v2, s[32:35], s60 offen {s.pol_q}')
            if u < 4: A('s_add_u32 s60, s60, 0x8000')
        A('s_barrier')
        s.srd(36, 16, 4096 * 640 * 2)
        A('v_and_b32 v9, 15, v0')
        s.masks_Md(vM, 9, 10, 11, mod8=True)
        A('s_waitcnt vmcnt(5) lgkmcnt(0)')
        A('s_add_u32 s58, s58, 1')
        s.layernorm(16, 24, 32)
        A(f's_mul_i32 s60, s63, 1280\nv_add_u32 v9, s60, v1')
        for t in range(5):
            A(f'ds_write_b32 v9, v{24+t} offset:{L_XN + 256*t}')
        A(f's_lshl_b32 s60, s63, 2\nv_mov_b32 v9, s60\nv_mov_b32 v10, 1')
        A(f'ds_write_b32 v9, v10 offset:{L_FLAG}')
        A('v_bfe_u32 v12, v0, 3, 1\nv_mul_u32_u24 v12, 1280, v12\nv_lshrrev_b32 v13, 4, v0\nv_lshlrev_b32 v13, 1, v13\nv_add_u32 v12, v12, v13')
        A('s_lshl_b32 s60, s56, 1\nv_add_u32 v12, s60, v12')
        s.lds_flag_wait(L_FLAG, 14)
        for bp in range(2):
            for u in range(5):
                A(f'ds_read_u16 v{40+5*bp+u}, v12 offset:{L_XN + bp*2560 + u*8}')
        A('v_bfe_u32 v9, v0, 3, 1\nv_lshlrev_b32 v9, 9, v9\nv_lshrrev_b32 v10, 4, v0\nv_lshlrev_b32 v10, 7, v10\nv_and_b32 v11, 7, v0\nv_lshlrev_b32 v11, 2, v11\nv_add3_u32 v9, v9, v10, v11')
        A('s_lshl_b32 s60, s63, 11\nv_add_u32 v9, s60, v9')
        A('s_waitcnt lgkmcnt(0)')
        for k in range(10): A(f'v_lshl_or_b32 v{40+k}, v{40+k}, 16, v{40+k}')
        A('s_waitcnt vmcnt(0)')
        for u in range(5):
            for bp in range(2):
                y = 60 + 4 * ((2 * u + bp) & 3)
                for d in range(4): A(f'v_and_b32 v{y+d}, v{40+5*bp+u}, v{vM+d}')
                a = 52 + 4 * bp
                A(f'v_mfma_f32_16x16x32_bf16 v[{a}:{a+3}], v[{DATA+4*u}:{DATA+4*u+3}], v[{y}:{y+3}], ' + ('0' if u == 0 else f'v[{a}:{a+3}]'))
        for bp in range(2):
            for r in range(4):
                A(f'ds_write_b32 v9, v{52+4*bp+r} offset:{L_QP + bp*1024 + r*32}')
        A(f's_lshl_b32 s60, s63, 2\nv_mov_b32 v10, s60\nv_mov_b32 v11, 1')
        A(f'ds_write_b32 v10, v11 offset:{L_FLAG + 16}')
        A('s_lshl_b32 s69, s64, 2\ns_add_u32 s69, s69, s63\ns_lshl_b32 s69, s69, 3\ns_add_u32 s69, s69, s57')
        A(f's_lshl_b32 s62, s69, 9\ns_add_u32 s62, s62, {hex(W_Q)}')
        A('v_lshlrev_b32 v13, 3, v0')
        A('s_lshl_b32 s60, s63, 9\nv_add_u32 v12, s60, v13')
        s.lds_flag_wait(L_FLAG + 16, 14)
        for w in range(4):
            A(f'ds_read_b64 v[{16+2*w}:{17+2*w}], v12 offset:{L_QP + 2048*w}')
        A('s_waitcnt lgkmcnt(0)')
        A('v_add_f32 v16, v16, v18\nv_add_f32 v17, v17, v19\nv_add_f32 v20, v20, v22\nv_add_f32 v21, v21, v23')
        A('v_add_f32 v24, v16, v20\nv_add_f32 v25, v17, v21')
        A(f'buffer_store_dwordx2 v[24:25], v13, s[44:47], s62 offen {s.pol_hs}')
        A(f's_lshl_b32 s62, s69, 2\ns_add_u32 s62, s62, {hex(W_FLAGQ)}\nv_mov_b32 v14, 0')
        A('s_waitcnt vmcnt(0)')
        s.flag_store('1', 14, 's62')
        lq = s.lab('noq')
        A('s_cmp_lg_u32 s63, 0')
        A(f's_cbranch_scc1 {lq}')
        A(f's_lshl_b32 s69, s64, 2\ns_add_u32 s69, s69, s65')
        A(f's_lshl_b32 s60, s69, 5\ns_add_u32 s60, s60, {hex(W_FLAGQ)}')
        s.spoll(8, list(range(8)))
        A(f's_lshl_b32 s60, s69, 12\ns_add_u32 s60, s60, {hex(W_Q)}')
        A('v_lshlrev_b32 v13, 4, v0')
        for t in range(4):
            A(f'buffer_load_dwordx4 v[{16+4*t}:{19+4*t}], v13, s[44:47], s60 offen offset:{t*1024} {s.pol_hl}')
        A('v_and_b32 v12, 31, v0\nv_lshlrev_b32 v12, 3, v12')
        A('s_waitcnt vmcnt(0)')
        for k in range(4):
            A(f'v_add_f32 v{16+k}, v{16+k}, v{20+k}\nv_add_f32 v{24+k}, v{24+k}, v{28+k}')
        for k in range(4): A(f'v_add_f32 v{16+k}, v{16+k}, v{24+k}')
        for k in range(4): A(f'v_mov_b32 v{20+k}, v{16+k}')
        for k in range(4): A(f'v_permlane32_swap_b32 v{16+k}, v{20+k}')
        for k in range(4): A(f'v_add_f32 v{16+k}, v{16+k}, v{20+k}')
        A('v_cvt_pk_bf16_f32 v16, v16, v17\nv_cvt_pk_bf16_f32 v17, v18, v19')
        A(f'ds_write_b64 v12, v[16:17] offset:{L_QB}')
        A(f'{lq}:')
        A('s_waitcnt lgkmcnt(0)')
        s.stamp(1)
        A('s_barrier')
        l_wo = s.lab('wo')
        s.ffn(l_wo)
        A(f'{l_wo}:')
        A('v_lshrrev_b32 v2, 4, v0\nv_mul_u32_u24 v2, 1280, v2\nv_and_b32 v3, 15, v0\nv_lshlrev_b32 v3, 4, v3\nv_add_u32 v2, v2, v3')
        A('s_lshl_b32 s60, s64, 7\ns_lshl_b32 s61, s63, 5\ns_add_u32 s60, s60, s61\ns_mul_i32 s60, s60, 1280')
        if 'wo_v' in s.skip:
            A('s_lshl_b32 s6, s2, 19\ns_add_u32 s72, s12, s6\ns_addc_u32 s73, s13, 0\ns_and_b32 s73, s73, 0xffff\ns_mov_b32 s74, 0x80000\ns_mov_b32 s75, 0x20000')
            A('s_and_b32 s60, s60, 0x3ffff')
        def wo_loads(win):
            n = 0
            for u in range(8):
                for cb in range(5):
                    if n >= win: A(f's_waitcnt vmcnt({win-1})')
                    r = DATA + 4 * (u * 5 + cb)
                    if 'wo_v' in s.skip: A(f'buffer_load_dwordx4 v[{r}:{r+3}], v2, s[72:75], s60 offen offset:{cb*256} nt')
                    elif 'wo' not in s.skip: A(f'buffer_load_dwordx4 v[{r}:{r+3}], v2, s[36:39], s60 offen offset:{cb*256} {s.pol_w}')
                    n += 1
                if u < 7:
                    if s.rot: A(f's_add_u32 s6, s57, {u+1}\ns_and_b32 s6, s6, 7\ns_mul_i32 s6, s6, 5120\ns_add_u32 s60, s7, s6')
                    else: A('s_add_u32 s60, s60, 5120')
        if s.rot:
            A('s_mov_b32 s7, s60\ns_mul_i32 s6, s57, 5120\ns_add_u32 s60, s7, s6')
        if s.WO4 != s.WO:
            l4, l5 = s.lab('wo4'), s.lab('wod')
            A('s_cmp_eq_u32 s59, 1')
            A(f's_cbranch_scc1 {l4}')
            wo_loads(s.WO)
            A(f's_branch {l5}')
            A(f'{l4}:')
            wo_loads(s.WO4)
            A(f'{l5}:')
        else:
            wo_loads(s.WO)
        s.stamp(2)
        l_tail, l_w7 = s.lab('tail'), s.lab('w7')
        A('s_cmp_eq_u32 s63, 3')
        A(f's_cbranch_scc1 {l_w7}')
        A('s_cmp_lg_u32 s63, 1')
        A(f's_cbranch_scc1 {l_tail}')
        s.mlx()
        A(f's_branch {l_tail}')
        A(f'{l_w7}:')
        s.consumer_prep(l_tail)
        A(f'{l_tail}:')
        s.tail()

    def ffn(s, l_skip):
        A = s.A
        DATA = 96
        if 'ffn' in s.skip: return
        A('s_cmp_lg_u32 s66, 0')
        A(f's_cbranch_scc1 {l_skip}')
        A('s_and_b32 s70, s2, 7\ns_lshl_b32 s61, s65, 3\ns_add_u32 s70, s70, s61')
        A('s_cmp_ge_u32 s70, 27')
        A(f's_cbranch_scc1 {l_skip}')
        A('s_lshr_b32 s71, s2, 3\ns_and_b32 s71, s71, 3')
        A('s_lshl_b32 s68, s70, 2\ns_add_u32 s68, s68, s71')
        s.srd(48, 20, 640 * 1728 * 2)
        s.srd(52, 22, 640 * 1728 * 2)
        s.srd(72, 24, 1728 * 640 * 2)
        A('v_lshrrev_b32 v9, 3, v0\nv_mul_u32_u24 v9, 3456, v9\nv_and_b32 v10, 7, v0\nv_lshlrev_b32 v10, 4, v10\nv_add_u32 v9, v9, v10')
        A(f's_mul_i32 s60, s71, {160*3456}\ns_lshl_b32 s61, s70, 7\ns_add_u32 s60, s60, s61\ns_mul_i32 s61, s63, {40*3456}\ns_add_u32 s60, s60, s61')
        A(f's_mul_i32 s62, s63, 5120\ns_add_u32 s69, s62, {L_WU}\ns_add_u32 s62, s62, {L_WG}')
        n = 0
        for t in range(5):
            for srd, mreg in (('s[48:51]', 's62'), ('s[52:55]', 's69')):
                if n >= s.WF: A(f's_waitcnt vmcnt({s.WF-1})')
                A(f's_mov_b32 m0, {mreg}')
                if 'f_dma' not in s.skip: A(f'buffer_load_dwordx4 v9, {srd}, s60 offen {s.pol_f} lds')
                n += 1
            if t < 4: A(f's_add_u32 s60, s60, {8*3456}\ns_add_u32 s62, s62, 1024\ns_add_u32 s69, s69, 1024')
        lw4 = s.lab('w4')
        A('s_cmp_eq_u32 s63, 0')
        A(f's_cbranch_scc1 {lw4}')
        A('s_waitcnt vmcnt(0)')
        A(f's_lshl_b32 s60, s63, 2\nv_mov_b32 v10, s60\nv_mov_b32 v11, 1')
        A(f'ds_write_b32 v10, v11 offset:{L_FLAG + 32}')
        A(f's_branch {l_skip}')
        A(f'{lw4}:')
        A('s_mov_b32 s59, 1')
        A('v_and_b32 v9, 3, v0\nv_mul_u32_u24 v9, 1280, v9\nv_lshrrev_b32 v10, 4, v0\nv_lshlrev_b32 v11, 3, v10\nv_add_u32 v9, v9, v11')
        A('s_mul_i32 s60, s71, 320\nv_add_u32 v9, s60, v9')
        A('v_lshlrev_b32 v10, 2, v10\nv_bfe_u32 v11, v0, 2, 2\nv_add_u32 v10, v10, v11\nv_lshlrev_b32 v10, 7, v10\nv_and_b32 v11, 3, v0\nv_lshlrev_b32 v11, 3, v11\nv_add_u32 v10, v10, v11')
        A(f'v_add_u32 v8, {L_WU - L_WG}, v10')
        A('s_waitcnt vmcnt(0)')
        A(f'v_mov_b32 v12, 0\nv_mov_b32 v13, 1\nds_write_b32 v12, v13 offset:{L_FLAG + 32}')
        s.lds_flag_wait(L_FLAG + 32, 14)
        if s.fineF: s.stamp(3)
        ag, au = 12, 28
        for ks in range(5):
            o = 44
            A(f'ds_read_b64 v[{o}:{o+1}], v9 offset:{L_XN + 64*ks}')
            A(f'ds_read_b64 v[{o+2}:{o+3}], v9 offset:{L_XN + 64*ks + 32}')
            for ct in range(4):
                q = 48 + 8 * ct
                A(f'ds_read_b64_tr_b16 v[{q}:{q+1}], v10 offset:{L_WG + 4096*ks + 32*ct}')
                A(f'ds_read_b64_tr_b16 v[{q+2}:{q+3}], v10 offset:{L_WG + 4096*ks + 32*ct + 2048}')
                A(f'ds_read_b64_tr_b16 v[{q+4}:{q+5}], v8 offset:{L_WG + 4096*ks + 32*ct}')
                A(f'ds_read_b64_tr_b16 v[{q+6}:{q+7}], v8 offset:{L_WG + 4096*ks + 32*ct + 2048}')
                if ct == 2: A('s_waitcnt lgkmcnt(6)')
            A('s_waitcnt lgkmcnt(0)')
            for ct in range(4):
                q = 48 + 8 * ct
                A(f'v_mfma_f32_16x16x32_bf16 v[{ag+4*ct}:{ag+4*ct+3}], v[{o}:{o+3}], v[{q}:{q+3}], ' + ('0' if ks == 0 else f'v[{ag+4*ct}:{ag+4*ct+3}]'))
                A(f'v_mfma_f32_16x16x32_bf16 v[{au+4*ct}:{au+4*ct+3}], v[{o}:{o+3}], v[{q+4}:{q+7}], ' + ('0' if ks == 0 else f'v[{au+4*ct}:{au+4*ct+3}]'))
        A('s_mov_b32 s76, 0xffff0000\ns_mov_b32 s77, 0\ns_mov_b32 s78, 0\ns_mov_b32 s79, 0xffff\ns_mov_b32 s80, 0\ns_mov_b32 s81, 0xffff0000')
        A('v_lshlrev_b32 v9, 3, v0')
        A(f's_lshl_b32 s62, s70, 13\ns_lshl_b32 s69, s71, 9\ns_add_u32 s62, s62, s69\ns_add_u32 s62, s62, {hex(W_FX)}')
        for ct in range(4):
            o = 48 + 2 * ct
            for base, dst in ((ag, o), (au, o + 1)):
                a = base + 4 * ct
                A(f'v_cndmask_b32 v{dst}, v{a}, v{a+1}, s[76:77]')
                A(f'v_cndmask_b32 v{dst}, v{dst}, v{a+2}, s[78:79]')
                A(f'v_cndmask_b32 v{dst}, v{dst}, v{a+3}, s[80:81]')
            A(f'buffer_store_dwordx2 v[{o}:{o+1}], v9, s[44:47], s62 offen {s.pol_hs}')
            if ct < 3: A('s_add_u32 s62, s62, 2048')
        A('v_lshrrev_b32 v2, 4, v0\nv_mul_u32_u24 v2, 1280, v2\nv_and_b32 v3, 15, v0\nv_lshlrev_b32 v3, 4, v3\nv_add_u32 v2, v2, v3')
        A('s_mul_i32 s60, s68, 20480')
        for u in range(4):
            for cb in range(5):
                r = DATA + 4 * (u * 5 + cb)
                if 'f_wd' not in s.skip: A(f'buffer_load_dwordx4 v[{r}:{r+3}], v2, s[72:75], s60 offen offset:{cb*256} {s.pol_f}')
            if u < 3: A('s_add_u32 s60, s60, 5120')
        A(f's_lshl_b32 s62, s70, 7\ns_lshl_b32 s69, s71, 2\ns_add_u32 s62, s62, s69\ns_add_u32 s62, s62, {hex(W_FLAGF)}\nv_lshlrev_b32 v14, 4, v0')
        A('s_waitcnt vmcnt(20)' if 'f_wd' not in s.skip else 's_waitcnt vmcnt(0)')
        s.flag_store('0xf', 14, 's62')
        if s.fineF: s.stamp(4)
        A(f's_lshl_b32 s60, s70, 7\ns_lshl_b32 s69, s71, 4\ns_add_u32 s60, s60, s69\ns_add_u32 s60, s60, {hex(W_FLAGF)}')
        s.spoll(4, [0, 1, 2, 3], sleep=2)
        A(f's_lshl_b32 s60, s68, 11\ns_add_u32 s60, s60, {hex(W_FX)}')
        for t in range(4):
            A(f'buffer_load_dwordx2 v[{12+2*t}:{13+2*t}], v9, s[44:47], s60 offen offset:{t*512} {s.pol_hl}')
        A('s_waitcnt vmcnt(0)')
        if s.fineF: s.stamp(5)
        A('v_add_f32 v12, v12, v14\nv_add_f32 v16, v16, v18\nv_add_f32 v12, v12, v16')
        A('v_add_f32 v13, v13, v15\nv_add_f32 v17, v17, v19\nv_add_f32 v14, v13, v17')
        g_, u_, t0, t1 = 12, 14, 20, 21
        s.bf16r(g_, g_)
        s.bf16r(u_, u_)
        A(f'v_mul_f32 v{t0}, v{g_}, v{g_}\nv_mul_f32 v{t0}, v{t0}, v{g_}')
        A(f'v_mov_b32 v{t1}, 0x3d372713\nv_fma_f32 v{t0}, v{t0}, v{t1}, v{g_}')
        A(f'v_mul_f32 v{t0}, 0x3f4c422a, v{t0}')
        A(f'v_mul_f32 v{t0}, 0x4038aa3b, v{t0}')
        A(f'v_exp_f32 v{t0}, v{t0}')
        A(f'v_add_f32 v{t0}, 1.0, v{t0}')
        A(f'v_rcp_f32 v{t0}, v{t0}')
        A(f'v_fma_f32 v{t0}, v{t0}, -2.0, 1.0')
        A(f'v_add_f32 v{t0}, 1.0, v{t0}')
        A(f'v_mul_f32 v{t1}, 0.5, v{g_}')
        A(f'v_mul_f32 v{t0}, v{t1}, v{t0}')
        s.bf16r(t0, t0)
        A(f'v_mul_f32 v{t0}, v{t0}, v{u_}')
        A(f'v_cvt_pk_bf16_f32 v{g_}, v{t0}, v{t0}')
        A('v_lshrrev_b32 v9, 4, v0\nv_lshlrev_b32 v9, 6, v9\nv_and_b32 v10, 3, v0\nv_lshlrev_b32 v10, 4, v10\nv_bfe_u32 v11, v0, 2, 2\nv_lshlrev_b32 v11, 2, v11\nv_add3_u32 v9, v9, v10, v11')
        A(f'ds_write_b32 v9, v{g_} offset:{L_HT}')
        if s.dbg:
            A(f's_lshl_b32 s60, s68, 8\ns_add_u32 s60, s60, {hex(W_DBG + 0x500000)}')
            A('v_lshlrev_b32 v10, 2, v0\nv_add_u32 v10, s60, v10')
            A(f'global_store_dword v10, v{g_}, s[30:31]')
        A('v_bfe_u32 v9, v0, 3, 1\nv_lshlrev_b32 v9, 2, v9\nv_lshrrev_b32 v10, 4, v0\nv_add_u32 v9, v9, v10\nv_lshlrev_b32 v9, 4, v9')
        A('s_waitcnt lgkmcnt(0)')
        A(f'ds_read_b128 v[12:15], v9 offset:{L_HT}')
        A(f'ds_read_b128 v[16:19], v9 offset:{L_HT + 128}')
        A('v_bfe_u32 v9, v0, 3, 1\nv_mul_u32_u24 v9, 640, v9\nv_lshrrev_b32 v10, 4, v0\nv_lshlrev_b32 v10, 5, v10\nv_and_b32 v11, 7, v0\nv_add3_u32 v9, v9, v10, v11\nv_lshlrev_b32 v9, 2, v9')
        A('s_waitcnt vmcnt(0) lgkmcnt(0)')
        for u in range(4):
            for bp in range(2):
                y = 60 + 4 * ((2 * u + bp) & 3)
                for d in range(4): A(f'v_and_b32 v{y+d}, v{12+4*bp+u}, v{4+d}')
                for cb in range(5):
                    a = 20 + 8 * cb + 4 * bp
                    r = DATA + 4 * (u * 5 + cb)
                    A(f'v_mfma_f32_16x16x32_bf16 v[{a}:{a+3}], v[{r}:{r+3}], v[{y}:{y+3}], ' + ('0' if u == 0 else f'v[{a}:{a+3}]'))
        for cb in range(5):
            for bp in range(2):
                for r in range(4):
                    A(f'ds_write_b32 v9, v{20+8*cb+4*bp+r} offset:{L_YPART + bp*5120 + cb*512 + r*32}')
        A('s_waitcnt lgkmcnt(0)')
        A('v_lshlrev_b32 v9, 4, v0')
        A(f's_mul_i32 s60, s68, 10240\ns_add_u32 s60, s60, {hex(W_FPART)}')
        for t in range(10):
            A(f'ds_read_b128 v[{12+4*t}:{15+4*t}], v9 offset:{L_YPART + 1024*t}')
        A('s_waitcnt lgkmcnt(0)')
        for t in range(10):
            if 'f_pub' not in s.skip: A(f'buffer_store_dwordx4 v[{12+4*t}:{15+4*t}], v9, s[44:47], s60 offen offset:{(t%4)*1024} {s.pol_fp}')
            if t % 4 == 3: A('s_add_u32 s60, s60, 4096')
        A(f's_lshl_b32 s62, s68, 2\ns_add_u32 s62, s62, {hex(W_FLAGP)}\nv_mov_b32 v9, 0')
        A('s_waitcnt vmcnt(0)')
        s.flag_store('1', 9, 's62')
        if s.fineF: s.stamp(6)

    def wait_ml(s):
        A = s.A
        lp, ld = s.lab('ml'), s.lab('mld')
        A(f'v_and_b32 v9, 3, v0\nv_lshlrev_b32 v9, 3, v9')
        A('s_mov_b32 s61, 0x400000')
        A(f'{lp}:')
        A(f'ds_read_b64 v[10:11], v9 offset:{L_ML}')
        A('s_waitcnt lgkmcnt(0)')
        A('v_cmp_eq_u32 vcc, -1, v10')
        A(f's_cbranch_vccz {ld}')
        A('s_sleep 16')
        A('s_sub_u32 s61, s61, 1\ns_cmp_lg_u32 s61, 0')
        A(f's_cbranch_scc1 {lp}')
        A(f'{ld}:')

    def mlx(s):
        A = s.A
        s.wait_ml()
        A('v_mov_b32 v12, v10')
        A('v_max_f32_dpp v12, v12, v12 quad_perm:[1,0,3,2] row_mask:0xf bank_mask:0xf')
        A('v_max_f32_dpp v12, v12, v12 quad_perm:[2,3,0,1] row_mask:0xf bank_mask:0xf')
        A(f'v_sub_f32 v14, v10, v12\nv_mul_f32 v14, {hex(LOG2E)}, v14\nv_exp_f32 v14, v14')
        A('v_mul_f32 v14, v14, v11')
        A('v_add_f32_dpp v14, v14, v14 quad_perm:[1,0,3,2] row_mask:0xf bank_mask:0xf')
        A('v_add_f32_dpp v14, v14, v14 quad_perm:[2,3,0,1] row_mask:0xf bank_mask:0xf')
        A('v_mov_b32 v13, s58\nv_mov_b32 v15, s58')
        A(f's_xor_b32 s60, s2, 128\ns_lshl_b32 s60, s60, 7\ns_add_u32 s60, s60, {hex(W_ML)}')
        A('v_mov_b32 v9, 0')
        A('s_mov_b64 exec, 1')
        A(f'buffer_store_dwordx4 v[12:15], v9, s[44:47], s60 offen {s.pol_hs}')
        A('s_mov_b64 exec, -1')
        A(f's_lshl_b32 s60, s2, 7\ns_add_u32 s60, s60, {hex(W_ML)}')
        s.spoll(4, [1, 3], sleep=4)
        A('v_mov_b32 v22, s76\nv_mov_b32 v23, s78')
        A('v_max_f32 v16, v12, v22')
        A(f'v_sub_f32 v17, v12, v16\nv_mul_f32 v17, {hex(LOG2E)}, v17\nv_exp_f32 v17, v17')
        A(f'v_sub_f32 v18, v22, v16\nv_mul_f32 v18, {hex(LOG2E)}, v18\nv_exp_f32 v18, v18')
        A('v_mul_f32 v17, v17, v14\nv_fma_f32 v17, v18, v23, v17')
        A(f'v_sub_f32 v18, v10, v16\nv_mul_f32 v18, {hex(LOG2E)}, v18\nv_exp_f32 v18, v18')
        A('v_rcp_f32 v19, v17')
        A('v_mul_f32 v20, v18, v19\nv_fma_f32 v21, -v20, v17, v18\nv_fma_f32 v20, v21, v19, v20')
        A('v_mov_b32 v14, 0x7fc00000\nv_cmp_eq_u32 vcc, -1, v20\nv_cndmask_b32 v20, v20, v14, vcc')
        A('v_and_b32 v9, 3, v0\nv_lshlrev_b32 v9, 2, v9')
        A(f'ds_write_b32 v9, v20 offset:{L_WF}')
        A('s_waitcnt lgkmcnt(0)')

    def consumer_prep(s, l_tail):
        A = s.A
        A('s_cmp_ge_u32 s84, 20')
        A(f's_cbranch_scc1 {l_tail}')
        if 'ffn' not in s.skip:
            s.wait_ml()
            lp, ld = s.lab('fc'), s.lab('fcd')
            A(f'v_lshlrev_b32 v9, 2, v0\ns_mov_b32 s60, {hex(W_FLAGP)}\ns_mov_b32 s61, 0x100000')
            A(f'{lp}:')
            A(f'buffer_load_dword v10, v9, s[44:47], s60 offen {s.pol_hl}')
            A(f'buffer_load_dword v11, v9, s[44:47], s60 offen offset:256 {s.pol_hl}')
            A('s_waitcnt vmcnt(0)')
            A('v_cmp_ne_u32 vcc, s58, v10')
            A('v_cmp_ne_u32 s[76:77], s58, v11')
            A('s_and_b32 s77, s77, 0xfff')
            A('s_or_b64 vcc, vcc, s[76:77]')
            A(f's_cbranch_vccz {ld}')
            A('s_sleep 32')
            A('s_sub_u32 s61, s61, 1\ns_cmp_lg_u32 s61, 0')
            A(f's_cbranch_scc1 {lp}')
            A(f'{ld}:')
        A('v_lshrrev_b32 v9, 3, v0\nv_mul_u32_u24 v9, 10240, v9\nv_and_b32 v10, 7, v0\nv_lshlrev_b32 v10, 4, v10\nv_add_u32 v9, v9, v10')
        A(f's_mul_i32 s60, s65, 2560\ns_lshl_b32 s61, s84, 7\ns_add_u32 s60, s60, s61\ns_add_u32 s60, s60, {hex(W_FPART)}')
        for r in range(4): A(f'v_mov_b32 v{16+4*13+r}, 0')
        for t in range(14):
            if t == 13: A('s_mov_b64 exec, 0xffffffff')
            if t >= 4 and t % 2 == 0: A('s_waitcnt vmcnt(2)')
            if 'f_g' not in s.skip: A(f'buffer_load_dwordx4 v[{16+4*t}:{19+4*t}], v9, s[44:47], s60 offen {s.pol_fg}')
            if t < 13: A(f's_add_u32 s60, s60, {8*10240}')
        A('s_mov_b64 exec, -1')
        A('s_mul_i32 s60, s65, 1280\ns_lshl_b32 s61, s84, 6\ns_add_u32 s60, s60, s61')
        A('v_and_b32 v10, 15, v0\nv_lshlrev_b32 v10, 2, v10')
        A(f'buffer_load_dword v12, v10, s[40:43], s60 offen')
        A('s_waitcnt vmcnt(0)')
        for t in range(1, 14):
            for r in range(4): A(f'v_add_f32 v{16+r}, v{16+r}, v{16+4*t+r}')
        for r in range(4): s.reduce_hi3(16 + r, 20)
        for r in range(4):
            f = 16 + r
            s.bf16r(f, f)
            A(f'v_mul_f32 v20, 0xbfb8aa3b, v{f}\nv_exp_f32 v20, v20\nv_add_f32 v20, 1.0, v20\nv_rcp_f32 v21, v20')
            A(f'v_mul_f32 v22, v{f}, v21\nv_fma_f32 v23, -v22, v20, v{f}\nv_fma_f32 v23, v23, v21, v22')
            A('v_cmp_u_f32 vcc, v23, v23')
            A(f'v_cndmask_b32 v22, v23, v22, vcc')
            s.bf16r(24 + r, 22)
        A('v_and_b32 v9, 7, v0\nv_lshlrev_b32 v9, 4, v9')
        A(f'ds_write_b128 v9, v[24:27] offset:{L_GX}')
        A('v_and_b32 v9, 15, v0\nv_lshlrev_b32 v9, 3, v9')
        A('s_waitcnt lgkmcnt(0)')
        A(f'ds_read_b64 v[88:89], v9 offset:{L_GX}')
        A('v_lshlrev_b32 v92, 16, v12\nv_and_b32 v93, 0xffff0000, v12')
        A('s_waitcnt lgkmcnt(0)')

    def tail(s):
        A = s.A
        DATA = 96
        vM = 4
        A('v_lshrrev_b32 v9, 4, v0\nv_lshlrev_b32 v9, 7, v9\ns_lshl_b32 s60, s63, 5\nv_add_u32 v9, s60, v9')
        A('v_lshrrev_b32 v10, 4, v0\nv_lshlrev_b32 v10, 7, v10\nv_and_b32 v11, 15, v0\nv_lshlrev_b32 v11, 2, v11\nv_add_u32 v10, v10, v11')
        A('s_mul_i32 s60, s63, 2560\nv_add_u32 v10, s60, v10')
        A('s_lshl_b32 s60, s63, 6\nv_add_u32 v76, s60, v0')
        A('v_lshrrev_b32 v77, 3, v76\nv_lshlrev_b32 v77, 14, v77\nv_and_b32 v78, 7, v76\nv_lshlrev_b32 v78, 5, v78\nv_add_u32 v77, v77, v78')
        A('v_lshlrev_b32 v78, 4, v76')
        A('s_mul_i32 s62, s65, 327680\ns_lshl_b32 s69, s67, 8\ns_add_u32 s62, s62, s69')
        A('s_waitcnt vmcnt(0)')
        if not s.fineF: s.stamp(3)
        A('s_barrier')
        if not s.fineF: s.stamp(4)
        for w in range(4):
            A(f'ds_read_b128 v[{16+8*w}:{19+8*w}], v9 offset:{L_OPART + 512*w}')
            A(f'ds_read_b128 v[{20+8*w}:{23+8*w}], v9 offset:{L_OPART + 512*w + 16}')
        A('s_waitcnt lgkmcnt(0)')
        def osum(u):
            A(f'v_add_f32 v{16+u}, v{16+u}, v{24+u}')
            A(f'v_add_f32 v{32+u}, v{32+u}, v{40+u}')
            A(f'v_add_f32 v{16+u}, v{16+u}, v{32+u}')
            A(f'v_cvt_pk_bf16_f32 v{16+u}, v{16+u}, v{16+u}')
        acc = 48
        if s.dbg:
            for u in range(8): osum(u)
            A(f's_lshl_b32 s60, s2, 13\ns_lshl_b32 s61, s63, 11\ns_add_u32 s60, s60, s61\ns_add_u32 s60, s60, {hex(W_DBG + 0x600000)}')
            A('v_lshlrev_b32 v48, 5, v0\nv_add_u32 v48, s60, v48')
            A('global_store_dwordx4 v48, v[16:19], s[30:31]\nglobal_store_dwordx4 v48, v[20:23], s[30:31] offset:16')
            A('s_waitcnt vmcnt(0)')
        else:
            osum(0); osum(1)
        for u in range(8):
            y = 68 + 4 * (u & 1)
            for d in range(4): A(f'v_and_b32 v{y+d}, v{16+u}, v{vM+d}')
            if not s.dbg and u + 2 < 8: osum(u + 2)
            for cb in range(5):
                r = DATA + 4 * (u * 5 + cb)
                a = acc + 4 * cb
                A(f'v_mfma_f32_16x16x32_bf16 v[{a}:{a+3}], v[{r}:{r+3}], v[{y}:{y+3}], ' + ('0' if u == 0 else f'v[{a}:{a+3}]'))
        A('s_mov_b32 exec_lo, 0x00ff00ff\ns_mov_b32 exec_hi, 0x00ff00ff')
        for cb in range(5):
            for r in range(4):
                A(f'ds_write_b32 v10, v{acc+4*cb+r} offset:{L_YPART + 512*cb + 32*r}')
        A('s_mov_b64 exec, -1')
        A('s_waitcnt lgkmcnt(0)')
        A('s_barrier')
        if not s.fineF: s.stamp(5)
        l_fin, l_done = s.lab('fin'), s.lab('done')
        A('s_cmp_eq_u32 s63, 3')
        A(f's_cbranch_scc1 {l_fin}')
        A('v_cmp_gt_u32 vcc, 160, v76')
        A('s_and_saveexec_b64 s[60:61], vcc')
        A(f's_cbranch_execz {l_done}')
        for w in range(4):
            A(f'ds_read_b128 v[{16+4*w}:{19+4*w}], v78 offset:{L_YPART + 2560*w}')
        A('v_mov_b32 v33, s58\nv_mov_b32 v35, s58\nv_mov_b32 v37, s58\nv_mov_b32 v39, s58')
        A('s_waitcnt lgkmcnt(0)')
        for r in range(4):
            A(f'v_add_f32 v{16+r}, v{16+r}, v{20+r}')
            A(f'v_add_f32 v{24+r}, v{24+r}, v{28+r}')
        for r in range(4):
            A(f'v_add_f32 v{32+2*r}, v{16+r}, v{24+r}')
        A(f'buffer_store_dwordx4 v[32:35], v77, s[44:47], s62 offen {s.pol_hs}')
        A(f'buffer_store_dwordx4 v[36:39], v77, s[44:47], s62 offen offset:16 {s.pol_hs}')
        A(f'{l_done}:')
        if not s.fineF: s.stamp(6)
        s.stamp_store(7)
        A('s_endpgm')
        A(f'{l_fin}:')
        l_nf = s.lab('nofin')
        A('s_cmp_ge_u32 s84, 20')
        A(f's_cbranch_scc1 {l_nf}')
        A('s_mul_i32 s60, s65, 20\ns_add_u32 s60, s60, s84\ns_lshl_b32 s60, s60, 14')
        for k in range(1, 4): A(f's_add_u32 s{80+k}, s60, {4096*k}')
        A('s_mov_b32 s80, s60')
        A('v_lshlrev_b32 v9, 4, v0')
        s.srd(48, 26, 5120)
        A('s_mul_i32 s52, s65, 1280\ns_lshl_b32 s53, s84, 6\ns_add_u32 s52, s52, s53')
        A('v_lshlrev_b32 v10, 2, v0')
        lp, ld = s.lab('fp'), s.lab('fpd')
        for t in range(16):
            A(f'buffer_load_dwordx4 v[{16+4*t}:{19+4*t}], v9, s[44:47], s{80+t//4} offen offset:{(t%4)*1024} {s.pol_hl}')
        A('s_mov_b32 s61, 0x100000')
        A(f'{lp}:')
        if s.maskpoll:
            tags = [16 + 4 * t + k for t in range(16) for k in (1, 3)]
            A('s_waitcnt vmcnt(0)')
            A(f'v_min_u32 v80, v{tags[0]}, v{tags[1]}\nv_max_u32 v81, v{tags[0]}, v{tags[1]}')
            for i in range(2, 32, 2):
                A(f'v_min3_u32 v80, v80, v{tags[i]}, v{tags[i+1]}')
                A(f'v_max3_u32 v81, v81, v{tags[i]}, v{tags[i+1]}')
            A('v_cmp_ne_u32 vcc, s58, v80')
            A('v_cmp_ne_u32 s[76:77], s58, v81')
            A('s_or_b64 vcc, vcc, s[76:77]')
            A(f's_cbranch_vccz {ld}')
            for t in range(16):
                A(f'v_cmp_ne_u32 vcc, s58, v{17+4*t}')
                A(f'v_cmp_ne_u32 s[76:77], s58, v{19+4*t}')
                A('s_or_b64 vcc, vcc, s[76:77]')
                ls = s.lab('ok')
                A(f's_cbranch_vccz {ls}')
                A('s_mov_b64 exec, vcc')
                A(f'buffer_load_dwordx4 v[{16+4*t}:{19+4*t}], v9, s[44:47], s{80+t//4} offen offset:{(t%4)*1024} {s.pol_hl}')
                A('s_mov_b64 exec, -1')
                A(f'{ls}:')
            A('s_sub_u32 s61, s61, 1\ns_cmp_lg_u32 s61, 0')
            A(f's_cbranch_scc1 {lp}')
            A('s_waitcnt vmcnt(0)')
        else:
            tags = [16 + 4 * t + k for t in range(16) for k in (1, 3)]
            A('s_waitcnt vmcnt(12)')
            A(f'v_min_u32 v80, v{tags[0]}, v{tags[1]}\nv_max_u32 v81, v{tags[0]}, v{tags[1]}')
            for i in range(2, 32, 2):
                if i in (8, 16, 24): A(f's_waitcnt vmcnt({12 - i//2})')
                A(f'v_min3_u32 v80, v80, v{tags[i]}, v{tags[i+1]}')
                A(f'v_max3_u32 v81, v81, v{tags[i]}, v{tags[i+1]}')
            A('v_cmp_ne_u32 vcc, s58, v80')
            A('v_cmp_ne_u32 s[76:77], s58, v81')
            A('s_or_b64 vcc, vcc, s[76:77]')
            A(f's_cbranch_vccz {ld}')
            for t in range(16):
                A(f'buffer_load_dwordx4 v[{16+4*t}:{19+4*t}], v9, s[44:47], s{80+t//4} offen offset:{(t%4)*1024} {s.pol_hl}')
            A('s_sub_u32 s61, s61, 1\ns_cmp_lg_u32 s61, 0')
            A(f's_cbranch_scc1 {lp}')
            A('s_waitcnt vmcnt(0)')
        A(f'{ld}:')
        step = 1
        while step < 16:
            for t in range(0, 16, 2 * step):
                for k in (0, 2): A(f'v_add_f32 v{16+4*t+k}, v{16+4*t+k}, v{16+4*(t+step)+k}')
            step *= 2
        for k in (0, 2): A(f'v_mov_b32 v{20+k}, v{16+k}')
        for k in (0, 2): A(f'v_permlane16_swap_b32 v{16+k}, v{20+k}')
        for k in (0, 2): A(f'v_add_f32 v{16+k}, v{16+k}, v{20+k}')
        for k in (0, 2): A(f'v_mov_b32 v{20+k}, v{16+k}')
        for k in (0, 2): A(f'v_permlane32_swap_b32 v{16+k}, v{20+k}')
        for k in (0, 2): A(f'v_add_f32 v{16+k}, v{16+k}, v{20+k}')
        A('v_cvt_pk_bf16_f32 v16, v16, v18')
        A('v_lshlrev_b32 v17, 16, v16\nv_and_b32 v18, 0xffff0000, v16')
        A('v_mul_f32 v17, v17, v88\nv_mul_f32 v18, v18, v89')
        A('v_cvt_pk_bf16_f32 v16, v17, v18')
        A('v_lshlrev_b32 v17, 16, v16\nv_and_b32 v18, 0xffff0000, v16')
        A('v_add_f32 v17, v17, v92\nv_add_f32 v18, v18, v93')
        A('v_cvt_pk_bf16_f32 v16, v17, v18')
        A('s_mov_b64 exec, 0xffff')
        A('buffer_store_dword v16, v10, s[48:51], s52 offen')
        A('s_mov_b64 exec, -1')
        A('s_or_b32 s60, s65, s84\ns_cmp_lg_u32 s60, 0')
        A(f's_cbranch_scc1 {l_nf}')
        A(f'v_mov_b32 v9, 0\nv_mov_b32 v11, s58\ns_mov_b32 s60, {hex(W_NONCE)}')
        A('s_mov_b64 exec, 1')
        A('buffer_store_dword v11, v9, s[44:47], s60 offen sc1')
        A('s_mov_b64 exec, -1')
        A(f'{l_nf}:')
        if not s.fineF: s.stamp(6)
        s.stamp_store(7)

    def text(s):
        s.build()
        body = hz.fix(s.L)
        out = [HEADER + f'; @launch grid=(256,1,1) block=(512,1,1) lds={LDS_BYTES}',
               '.amdgcn_target "amdgcn-amd-amdhsa--gfx950"', '.text', f'.globl {NAME}_kernel', '.p2align 8',
               f'.type {NAME}_kernel,@function']
        out += body
        out += ['.section .rodata,"a"', '.p2align 6', f'.amdhsa_kernel {NAME}_kernel',
                '  .amdhsa_next_free_vgpr 256', '  .amdhsa_next_free_sgpr 102', '  .amdhsa_accum_offset 256',
                '  .amdhsa_group_segment_fixed_size 0', '  .amdhsa_kernarg_size 96', '  .amdhsa_user_sgpr_count 2',
                '  .amdhsa_user_sgpr_kernarg_segment_ptr 1', '  .amdhsa_system_sgpr_workgroup_id_x 1',
                '  .amdhsa_float_denorm_mode_32 3',
                '.end_amdhsa_kernel']
        return '\n'.join(out) + '\n'

if __name__ == '__main__':
    import argparse
    ap = argparse.ArgumentParser()
    ap.add_argument('-o', default='cdna_kernels/' + NAME + '.s')
    ap.add_argument('--cfg', default='{}')
    a = ap.parse_args()
    g = Gen(**eval(a.cfg))
    open(a.o, 'w').write(g.text())
    print('wrote', a.o)
```

```python
import sys, os
sys.path.insert(0, os.path.dirname(os.path.abspath(__file__)))
import hz

NAME = 'recurrent_scan__gqa_block_cached__geglu_ffn__decode'

HEADER = '''; Kernarg layout for this problem (96 bytes, ptrs only, base s[0:1]):
;   offset  32: d_in[4] A_wo  shape=(4096, 640) dtype=bfloat16
;   offset  88: d_ws      workspace: q, FFN partials, hand-off mailboxes
; One workgroup per (batch, head, key-half): waves 0-3 stream K then V, waves 4-7 do the projections / FFN / hand-offs.
'''

L_QP    = 0x0000
L_XN    = 0x2000
L_ML    = 0x3400
L_WF    = 0x3440
L_FLAG  = 0x3480
L_QB    = 0x3500
L_HT    = 0x3600
L_OPART = 0x3700
L_YPART = 0x3F00
L_GX    = 0x6700
L_WG    = 0x6800
L_WU    = 0xB800
LDS_BYTES = 0x10800

W_YIN   = 0x000000
W_ML    = 0x140000
W_NONCE = 0x148000
W_FLAGQ = 0x150000
W_FLAGF = 0x158000
W_FLAGP = 0x14B000
W_FDONE = 0x160000
W_Q     = 0x180000
W_FPART = 0x200000
W_FX    = 0x320000
WS_SIZE = 0x360000
W_DBG   = 0x1000000

SCALE = 0x3db504f3
LOG2E = 0x3fb8aa3b

class Gen:
    def __init__(s, W=6, P=30, B=40, WO=3, WF=5, pol_kv='nt', pol_w='', pol_hl='sc1', pol_hs='sc1', dbg=False, stamps=False, prio=True, skip='', W0=None, fineF=False, WO4=None, pol_f=None, pol_q=None, WD=4, boost=0, rot=False, WV=None, maskpoll=False, pol_fg=None, pol_fp=None, mix=0, collector=True, fgwin=0, wofirst=False):
        s.wofirst = wofirst
        s.collector = collector; s.fgwin = fgwin
        s.mix = mix
        s.pol_fg = pol_hl if pol_fg is None else pol_fg; s.pol_fp = pol_hs if pol_fp is None else pol_fp
        s.maskpoll = maskpoll
        s.WV = WV or W
        s.rot = rot
        s.boost = boost
        s.WD = WD
        s.fineF = fineF; s.WO4 = WO4 or WO; s.pol_f = pol_w if pol_f is None else pol_f; s.pol_q = pol_w if pol_q is None else pol_q
        s.L = []
        s.W, s.P, s.B, s.WO, s.WF = W, P, B, WO, WF
        s.W0 = W0 or W
        s.pol_kv, s.pol_w, s.pol_hl, s.pol_hs = pol_kv, pol_w, pol_hl, pol_hs
        s.dbg = dbg; s.stamps = stamps; s.prio = prio; s.skip = skip.split(',')
        s.nlab = 0
    def A(s, t):
        for l in t.split('\n'):
            l = l.strip()
            if l: s.L.append(('  ' + l) if not l.endswith(':') else l)
    def lab(s, base):
        s.nlab += 1
        return f'L_{base}_{s.nlab}'

    def allreduce(s, op, v, t):
        A = s.A
        ins = {'add': 'v_add_f32', 'max': 'v_max_f32'}[op]
        A(f'{ins}_dpp v{v}, v{v}, v{v} quad_perm:[1,0,3,2] row_mask:0xf bank_mask:0xf')
        A(f'{ins}_dpp v{v}, v{v}, v{v} quad_perm:[2,3,0,1] row_mask:0xf bank_mask:0xf')
        A(f'{ins}_dpp v{v}, v{v}, v{v} row_half_mirror row_mask:0xf bank_mask:0xf')
        A(f'{ins}_dpp v{v}, v{v}, v{v} row_mirror row_mask:0xf bank_mask:0xf')
        A(f'v_mov_b32 v{t}, v{v}')
        A(f'v_permlane16_swap_b32 v{v}, v{t}')
        A(f'{ins} v{v}, v{v}, v{t}')
        A(f'v_mov_b32 v{t}, v{v}')
        A(f'v_permlane32_swap_b32 v{v}, v{t}')
        A(f'{ins} v{v}, v{v}, v{t}')

    def reduce_hi3(s, v, t):
        A = s.A
        A(f'v_add_f32_dpp v{v}, v{v}, v{v} row_ror:8 row_mask:0xf bank_mask:0xf')
        A(f'v_mov_b32 v{t}, v{v}')
        A(f'v_permlane16_swap_b32 v{v}, v{t}')
        A(f'v_add_f32 v{v}, v{v}, v{t}')
        A(f'v_mov_b32 v{t}, v{v}')
        A(f'v_permlane32_swap_b32 v{v}, v{t}')
        A(f'v_add_f32 v{v}, v{v}, v{t}')

    def bf16r(s, dst, src):
        s.A(f'v_cvt_pk_bf16_f32 v{dst}, v{src}, v{src}')
        s.A(f'v_lshlrev_b32 v{dst}, 16, v{dst}')

    def srd(s, n, ptr, size):
        s.A(f's_mov_b32 s{n}, s{ptr}\ns_and_b32 s{n+1}, s{ptr+1}, 0xffff\ns_mov_b32 s{n+2}, {hex(size)}\ns_mov_b32 s{n+3}, 0x20000')

    def stamp(s, idx):
        if s.stamps: s.A(f's_memrealtime s[{86+2*idx}:{87+2*idx}]')

    def stamp_store(s, n):
        if not s.stamps: return
        A = s.A
        A('s_waitcnt lgkmcnt(0)')
        A('s_lshl_b32 s100, s2, 3\ns_add_u32 s100, s100, s3\ns_lshl_b32 s100, s100, 6')
        A(f's_add_u32 s100, s100, {hex(W_DBG)}')
        A('v_mov_b32 v1, s100')
        A('s_mov_b64 exec, 1')
        for i in range(n):
            A(f'v_mov_b32 v2, s{86+2*i}')
            A(f'global_store_dword v1, v2, s[30:31] offset:{4*i}')
        A('s_mov_b64 exec, -1')

    def masks_Md(s, base, jreg, t1, t2, mod8=False):
        A = s.A
        if mod8: A(f'v_and_b32 v{t1}, 7, v{jreg}')
        else: A(f'v_mov_b32 v{t1}, v{jreg}')
        A(f'v_and_b32 v{t2}, 1, v{t1}')
        A(f'v_cmp_eq_u32 vcc, 1, v{t2}')
        A(f'v_mov_b32 v{t2}, 0xffff')
        A(f'v_mov_b32 v{base}, 0xffff0000')
        A(f'v_cndmask_b32 v{t2}, v{t2}, v{base}, vcc')
        A(f'v_lshrrev_b32 v{t1}, 1, v{t1}')
        for d in range(4):
            A(f'v_cmp_eq_u32 vcc, {d}, v{t1}')
            A(f'v_cndmask_b32 v{base+d}, 0, v{t2}, vcc')

    def layernorm(s, xr, out_pairs, tb):
        A = s.A
        f = tb
        a, t = tb + 10, tb + 11
        for i in range(5):
            A(f'v_lshlrev_b32 v{f+2*i}, 16, v{xr+i}')
            A(f'v_and_b32 v{f+2*i+1}, 0xffff0000, v{xr+i}')
        A(f'v_add_f32 v{a}, v{f}, v{f+1}\nv_add_f32 v{t}, v{f+2}, v{f+3}')
        for i in range(4, 10, 2): A(f'v_add_f32 v{a}, v{a}, v{f+i}\nv_add_f32 v{t}, v{t}, v{f+i+1}')
        A(f'v_add_f32 v{a}, v{a}, v{t}')
        s.allreduce('add', a, t)
        A(f'v_mul_f32 v{a}, 0x3acccccd, v{a}')
        v, d = tb + 12, tb + 13
        A(f'v_sub_f32 v{d}, v{f}, v{a}\nv_mul_f32 v{v}, v{d}, v{d}')
        for i in range(1, 10):
            A(f'v_sub_f32 v{d}, v{f+i}, v{a}\nv_fmac_f32 v{v}, v{d}, v{d}')
        s.allreduce('add', v, t)
        A(f'v_mul_f32 v{v}, 0x3acccccd, v{v}')
        s.bf16r(v, v)
        A(f'v_add_f32 v{v}, 0x3727c5ac, v{v}')
        s.bf16r(v, v)
        A(f'v_sqrt_f32 v{v}, v{v}')
        s.bf16r(v, v)
        s.bf16r(a, a)
        A(f'v_rcp_f32 v{t}, v{v}')
        for i in range(10):
            A(f'v_sub_f32 v{f+i}, v{f+i}, v{a}')
        for i in range(5):
            A(f'v_cvt_pk_bf16_f32 v{out_pairs+i}, v{f+2*i}, v{f+2*i+1}')
        for i in range(5):
            A(f'v_lshlrev_b32 v{f+2*i}, 16, v{out_pairs+i}')
            A(f'v_and_b32 v{f+2*i+1}, 0xffff0000, v{out_pairs+i}')
        for i in range(10):
            A(f'v_mul_f32 v{d}, v{f+i}, v{t}')
            A(f'v_fma_f32 v{f+i}, -v{d}, v{v}, v{f+i}')
            A(f'v_fma_f32 v{f+i}, v{f+i}, v{t}, v{d}')
        for i in range(5):
            A(f'v_cvt_pk_bf16_f32 v{out_pairs+i}, v{f+2*i}, v{f+2*i+1}')

    def build(s):
        A = s.A
        A(f'{NAME}_kernel:')
        A('s_cmp_ge_u32 s2, 256')
        A('s_cbranch_scc1 L_end')
        s.stamp(0)
        A('s_load_dwordx16 s[8:23], s[0:1], 0')
        A('s_load_dwordx8 s[24:31], s[0:1], 64')
        A('v_lshrrev_b32 v1, 6, v0')
        A('v_and_b32 v0, 63, v0')
        A('v_readfirstlane_b32 s3, v1')
        lni = s.lab('noinit')
        A('s_cmp_lg_u32 s3, 0')
        A(f's_cbranch_scc1 {lni}')
        A('v_mov_b32 v2, -1\nv_cmp_gt_u32 vcc, 32, v0\nv_cndmask_b32 v2, 0, v2, vcc\nv_lshlrev_b32 v3, 2, v0')
        A(f'ds_write_b32 v3, v2 offset:{L_ML}')
        A(f'{lni}:')
        A('s_and_b32 s64, s2, 7\ns_lshr_b32 s68, s2, 3')
        A('s_and_b32 s69, s68, 3\ns_lshl_b32 s69, s69, 3\ns_add_u32 s64, s64, s69')
        A('s_lshr_b32 s65, s68, 2\ns_and_b32 s65, s65, 3')
        A('s_lshr_b32 s66, s68, 4')
        A('s_lshl_b32 s67, s64, 1\ns_add_u32 s67, s67, s66')
        A('s_cmp_eq_u32 s66, 1\ns_cselect_b32 s84, s64, 99')
        A('s_waitcnt lgkmcnt(0)')
        A('s_cmp_ge_u32 s3, 4')
        A('s_cbranch_scc1 L_helper')
        s.streamer()
        A('L_helper:')
        s.helper()
        A('L_end:')
        A('s_endpgm')

    def streamer(s):
        A = s.A
        W, P, B, W0 = s.W, s.P, s.B, s.W0
        RING = 64
        assert RING + 4 * B <= 256 and P + W0 + 3 <= B + 1
        vKo, vVo = 1, 2
        vM = 4; vY = 8; vAcc = 24; vSc = 32; vO = 40; vYp = 44; vT = 52
        if s.prio: A('s_setprio 2')
        s.srd(32, 10, 0x8000000)
        s.srd(36, 12, 0x8000000)
        A(f'v_lshrrev_b32 v{vT}, 4, v0')
        A(f'v_lshlrev_b32 v{vT+3}, 2, v{vT}\nv_and_b32 v{vT+2}, 3, v0\nv_add_u32 v{vT+3}, v{vT+3}, v{vT+2}\nv_lshlrev_b32 v3, 4, v{vT+3}')
        A(f'v_lshlrev_b32 v{vT}, 6, v{vT}')
        A(f'v_bfe_u32 v{vT+1}, v0, 2, 2')
        A(f'v_lshlrev_b32 v{vT+1}, 8, v{vT+1}')
        A(f'v_lshlrev_b32 v{vT+2}, 4, v{vT+2}')
        A(f'v_add3_u32 v{vKo}, v{vT}, v{vT+1}, v{vT+2}')
        A(f'v_lshlrev_b32 v{vVo}, 4, v0')
        A('s_lshl_b32 s40, s65, 5\ns_add_u32 s40, s40, s64\ns_lshl_b32 s40, s40, 20')
        A('s_lshl_b32 s41, s66, 19\ns_add_u32 s40, s40, s41')
        A('s_lshl_b32 s41, s3, 12\ns_add_u32 s40, s40, s41')
        A('s_mov_b32 s41, s40')
        state = {'n': 0, 'win': W}
        def issue():
            n = state['n']; state['n'] += 1
            if n >= 256: return
            if n == 128: A('s_mov_b32 s41, s40')
            elif n % 4 == 0 and n > 0: A('s_add_u32 s41, s41, 0x4000')
            r = RING + 4 * (n % B)
            if n < 128:
                A(f'buffer_load_dwordx4 v[{r}:{r+3}], v{vKo}, s[32:35], s41 offen offset:{(n%4)*1024} {s.pol_kv}')
            else:
                A(f'buffer_load_dwordx4 v[{r}:{r+3}], v{vVo}, s[36:39], s41 offen offset:{(n%4)*1024} {s.pol_kv}')
        done = {'upto': -1}
        def paced_issue(w=None):
            w = w or W
            if state['n'] >= 256: return
            A(f's_waitcnt vmcnt({w-1})')
            done['upto'] = max(done['upto'], state['n'] - w)
            issue()
        def ensure(c):
            if c > done['upto']:
                A(f's_waitcnt vmcnt({state["n"] - 1 - c})')
                done['upto'] = c
        for _ in range(W0): issue()
        A('s_barrier')
        A(f'v_and_b32 v{vT}, 15, v0')
        s.masks_Md(vM, vT, vT+1, vT+2)
        A('s_mov_b32 s44, 0x22222222\ns_mov_b32 s45, 0x22222222')
        A('s_mov_b32 s46, 0x44444444\ns_mov_b32 s47, 0x44444444')
        A('s_mov_b32 s48, 0x88888888\ns_mov_b32 s49, 0x88888888')
        for t in range(4):
            m = 0x000F000F << (4 * t)
            A(f's_mov_b32 s{50+2*t}, {hex(m)}\ns_mov_b32 s{51+2*t}, {hex(m)}')
        for _ in range(P): paced_issue(W0)
        s.stamp(1)
        A('s_barrier')
        s.stamp(2)
        A(f'ds_read_b128 v[56:59], v3 offset:{L_QB}')
        paced_issue()
        A('s_waitcnt lgkmcnt(0)')
        if s.dbg:
            A(f's_lshl_b32 s60, s2, 12\ns_lshl_b32 s61, s3, 10\ns_add_u32 s60, s60, s61\ns_add_u32 s60, s60, {hex(W_DBG + 0x100000)}')
            A(f'v_lshlrev_b32 v8, 4, v0\nv_add_u32 v8, s60, v8')
            A(f'global_store_dwordx4 v8, v[56:59], s[30:31]')
            A('s_waitcnt vmcnt(0)')
        for t in range(4):
            for d in range(4):
                A(f'v_cndmask_b32 v{vY+4*t+d}, 0, v{56+d}, s[{50+2*t}:{51+2*t}]')
        def post(g):
            a = vAcc + 4 * (g & 1)
            t = vT
            A(f'v_cndmask_b32 v{t}, v{a}, v{a+1}, s[44:45]')
            A(f'v_cndmask_b32 v{t}, v{t}, v{a+2}, s[46:47]')
            A(f'v_cndmask_b32 v{t}, v{t}, v{a+3}, s[48:49]')
            A(f'v_add_f32_dpp v{t}, v{t}, v{t} quad_perm:[1,0,3,2] row_mask:0xf bank_mask:0xf')
            q4 = vSc + (g >> 2)
            if (g & 3) == 0:
                A(f'v_add_f32_dpp v{q4}, v{t}, v{t} quad_perm:[2,3,0,1] row_mask:0xf bank_mask:0xf')
            else:
                A(f'v_add_f32_dpp v{t}, v{t}, v{t} quad_perm:[2,3,0,1] row_mask:0xf bank_mask:0xf')
                A(f'v_cndmask_b32 v{q4}, v{q4}, v{t}, s[{42+2*(g&3)}:{43+2*(g&3)}]')
        if s.boost or s.mix:
            A(f's_cmp_lt_u32 s3, {s.mix}\ns_cselect_b32 s59, 1, 0')
            A('s_and_b32 s58, s2, 7\ns_lshl_b32 s60, s65, 3\ns_add_u32 s58, s58, s60\ns_cmp_lt_u32 s58, 27\ns_cselect_b32 s58, 1, 0')
            A('s_cmp_eq_u32 s66, 0\ns_cselect_b32 s58, s58, 0')
            if not s.boost: A('s_mov_b32 s58, 0')
            A('s_or_b32 s58, s58, s59')
        def boosted_issue(w=None):
            w = w or W
            if state['n'] >= 256: return
            lb = s.lab('bo')
            A(f's_waitcnt vmcnt({w})')
            A('s_cmp_eq_u32 s58, 1')
            A(f's_cbranch_scc1 {lb}')
            A(f's_waitcnt vmcnt({w-1})')
            A(f'{lb}:')
            done['upto'] = max(done['upto'], state['n'] - (w + 1))
            issue()
        for c in range(128):
            g, t = c >> 2, c & 3
            backlog = state['n'] - c
            if c == s.boost and s.mix: A('s_mov_b32 s58, s59')
            hi = (s.boost and c < s.boost) or s.mix
            if hi and backlog <= W + 1: boosted_issue()
            elif backlog <= W: paced_issue()
            elif backlog > W + 1 and c % 8 == 7: (boosted_issue() if hi else paced_issue())
            ensure(c)
            r = RING + 4 * (c % B)
            a = vAcc + 4 * (g & 1)
            cin = '0' if t == 0 else f'v[{a}:{a+3}]'
            A(f'v_mfma_f32_16x16x32_bf16 v[{a}:{a+3}], v[{r}:{r+3}], v[{vY+4*t}:{vY+4*t+3}], {cin}')
            if t == 1 and g > 0: post(g - 1)
        paced_issue()
        post(31)
        s.stamp(3)
        if s.dbg:
            A(f's_lshl_b32 s60, s2, 13\ns_lshl_b32 s61, s3, 11\ns_add_u32 s60, s60, s61\ns_add_u32 s60, s60, {hex(W_DBG + 0x200000)}')
            A(f'v_lshlrev_b32 v{vT}, 2, v0\nv_add_u32 v{vT}, s60, v{vT}')
            for i in range(8):
                A(f'global_store_dword v{vT}, v{vSc+i}, s[30:31] offset:{256*i}')
            A('s_waitcnt vmcnt(0)')
        def round_pairs():
            for i in range(4):
                A(f'v_cvt_pk_bf16_f32 v{vT+i}, v{vSc+2*i}, v{vSc+2*i+1}')
            for i in range(4):
                A(f'v_lshlrev_b32 v{vSc+2*i}, 16, v{vT+i}')
                A(f'v_and_b32 v{vSc+2*i+1}, 0xffff0000, v{vT+i}')
        round_pairs()
        for i in range(8): A(f'v_mul_f32 v{vSc+i}, {hex(SCALE)}, v{vSc+i}')
        round_pairs()
        m, t2 = vT + 4, vT + 5
        A(f'v_max3_f32 v{m}, v{vSc}, v{vSc+1}, v{vSc+2}')
        A(f'v_max3_f32 v{m}, v{m}, v{vSc+3}, v{vSc+4}')
        A(f'v_max3_f32 v{m}, v{m}, v{vSc+5}, v{vSc+6}')
        A(f'v_max_f32 v{m}, v{m}, v{vSc+7}')
        s.allreduce('max', m, t2)
        paced_issue()
        for i in range(8): A(f'v_sub_f32 v{vSc+i}, v{vSc+i}, v{m}')
        for i in range(8): A(f'v_mul_f32 v{vSc+i}, {hex(LOG2E)}, v{vSc+i}')
        for i in range(8): A(f'v_exp_f32 v{vSc+i}, v{vSc+i}')
        l = m + 1
        t3 = vT + 6
        A(f'v_add_f32 v{l}, v{vSc}, v{vSc+1}')
        A(f'v_add_f32 v{t3}, v{vSc+2}, v{vSc+3}')
        A(f'v_add_f32 v{l}, v{l}, v{vSc+4}')
        A(f'v_add_f32 v{t3}, v{t3}, v{vSc+5}')
        A(f'v_add_f32 v{l}, v{l}, v{vSc+6}')
        A(f'v_add_f32 v{t3}, v{t3}, v{vSc+7}')
        A(f'v_add_f32 v{l}, v{l}, v{t3}')
        for i in range(8): A(f'v_cvt_pk_bf16_f32 v{vSc+i}, v{vSc+i}, v{vSc+i}')
        s.allreduce('add', l, t3)
        paced_issue()
        A(f'v_cmp_eq_u32 vcc, -1, v{m}')
        A(f'v_mov_b32 v{t3}, 0x7fc00000')
        A(f'v_cndmask_b32 v{m}, v{m}, v{t3}, vcc')
        A(f's_lshl_b32 s60, s3, 3\nv_mov_b32 v{t3}, s60')
        A(f'ds_write_b64 v{t3}, v[{m}:{m+1}] offset:{L_ML}')
        def ybuild(c):
            g, t = (c - 128) >> 2, c & 3
            y = vYp + 4 * (c & 1)
            for d in range(4):
                A(f'v_and_b32_dpp v{y+d}, v{vSc+(g>>2)}, v{vM+d} row_newbcast:{4*t+(g&3)} row_mask:0xf bank_mask:0xf')
        ybuild(128)
        WV = s.WV
        for c in range(128, 256):
            if state['n'] < 256:
                if s.mix:
                    if state['n'] - c <= WV + 1: boosted_issue(WV)
                    elif c % 4 == 3: boosted_issue(WV)
                elif state['n'] - c <= WV: paced_issue(WV)
                elif c % 4 == 3: paced_issue(WV)
            if c == 240:
                A(f's_lshl_b32 s60, s3, 2\nv_mov_b32 v{vT}, s60')
                A(f'ds_read_b32 v{vT+1}, v{vT} offset:{L_WF}')
            if c == 244:
                A(f'v_and_b32 v{vT+2}, 3, v0\nv_lshlrev_b32 v{vT+2}, 5, v{vT+2}')
                A(f'v_lshrrev_b32 v{vT+3}, 4, v0\nv_lshlrev_b32 v{vT+3}, 3, v{vT+3}')
                if s.rot:
                    A(f'v_add_u32 v{vT+2}, v{vT+2}, v{vT+3}')
                    A(f's_lshl_b32 s60, s65, 1\ns_add_u32 s60, s60, s66')
                    A(f'v_bfe_u32 v{vT+4}, v0, 2, 1\nv_subrev_u32 v{vT+4}, s60, v{vT+4}')
                    for r4 in range(4):
                        A(f'v_add_u32 v{vT+8+r4}, {2*r4}, v{vT+4}\nv_and_b32 v{vT+8+r4}, 7, v{vT+8+r4}\nv_add_u32 v{vT+8+r4}, v{vT+8+r4}, v{vT+2}\nv_lshlrev_b32 v{vT+8+r4}, 2, v{vT+8+r4}')
                        A(f's_lshl_b32 s60, s3, 9\nv_add_u32 v{vT+8+r4}, s60, v{vT+8+r4}')
                else:
                    A(f'v_bfe_u32 v{vT+4}, v0, 2, 1')
                    A(f'v_add3_u32 v{vT+2}, v{vT+2}, v{vT+3}, v{vT+4}')
                    A(f'v_lshlrev_b32 v{vT+2}, 2, v{vT+2}')
                    A(f's_lshl_b32 s60, s3, 9\nv_add_u32 v{vT+2}, s60, v{vT+2}')
            if c + 1 < 256: ybuild(c + 1)
            ensure(c)
            r = RING + 4 * (c % B)
            y = vYp + 4 * (c & 1)
            cin = '0' if c == 128 else f'v[{vO}:{vO+3}]'
            A(f'v_mfma_f32_16x16x32_bf16 v[{vO}:{vO+3}], v[{r}:{r+3}], v[{y}:{y+3}], {cin}')
        s.stamp(4)
        lp, ld = s.lab('wf'), s.lab('wfd')
        A('s_waitcnt lgkmcnt(0)')
        A(f'v_cmp_ne_u32 vcc, -1, v{vT+1}')
        A(f's_cbranch_vccnz {ld}')
        A('s_mov_b32 s61, 0x400000')
        A(f'{lp}:')
        A(f'ds_read_b32 v{vT+1}, v{vT} offset:{L_WF}')
        A('s_waitcnt lgkmcnt(0)')
        A(f'v_cmp_ne_u32 vcc, -1, v{vT+1}')
        A(f's_cbranch_vccnz {ld}')
        A('s_sleep 1')
        A('s_sub_u32 s61, s61, 1\ns_cmp_lg_u32 s61, 0')
        A(f's_cbranch_scc1 {lp}')
        A(f'{ld}:')
        for r in range(4): A(f'v_mul_f32 v{vO+r}, v{vO+r}, v{vT+1}')
        A('s_mov_b32 exec_lo, 0x00ff00ff\ns_mov_b32 exec_hi, 0x00ff00ff')
        if s.rot:
            for r in range(4): A(f'ds_write_b32 v{vT+8+r}, v{vO+r} offset:{L_OPART}')
        else:
            for r in range(4): A(f'ds_write_b32 v{vT+2}, v{vO+r} offset:{L_OPART+8*r}')
        A('s_mov_b64 exec, -1')
        A('s_waitcnt lgkmcnt(0)')
        A('s_barrier')
        s.stamp(5)
        s.stamp_store(6)
        A('s_endpgm')

    def lds_flag_wait(s, off, vt):
        A = s.A
        lp, ld = s.lab('fl'), s.lab('fld')
        A(f'v_and_b32 v{vt}, 3, v0\nv_lshlrev_b32 v{vt}, 2, v{vt}')
        A('s_mov_b32 s61, 0x1000000')
        A(f'{lp}:')
        A(f'ds_read_b32 v{vt+1}, v{vt} offset:{off}')
        A('s_waitcnt lgkmcnt(0)')
        A(f'v_cmp_ne_u32 vcc, 1, v{vt+1}')
        A(f's_cbranch_vccz {ld}')
        A('s_sub_u32 s61, s61, 1\ns_cmp_lg_u32 s61, 0')
        A(f's_cbranch_scc1 {lp}')
        A(f'{ld}:')

    def spoll(s, n, check, sleep=1):
        A = s.A
        lp, ld = s.lab('sp'), s.lab('spd')
        A('s_add_u32 s4, s30, s60\ns_addc_u32 s5, s31, 0')
        A('s_mov_b32 s61, 0x200000')
        A(f'{lp}:')
        A(f's_load_dwordx{n} s[76:{76+n-1}], s[4:5], 0 glc' if n > 1 else 's_load_dword s76, s[4:5], 0 glc')
        A('s_waitcnt lgkmcnt(0)')
        A(f's_xor_b32 s6, s{76+check[0]}, s58')
        for c in check[1:]: A(f's_xor_b32 s7, s{76+c}, s58\ns_or_b32 s6, s6, s7')
        A('s_cmp_eq_u32 s6, 0')
        A(f's_cbranch_scc1 {ld}')
        if sleep: A(f's_sleep {sleep}')
        A('s_sub_u32 s61, s61, 1\ns_cmp_lg_u32 s61, 0')
        A(f's_cbranch_scc1 {lp}')
        A(f'{ld}:')

    def flag_store(s, lanes, vaddr, soff):
        A = s.A
        A(f'v_mov_b32 v15, s58')
        A(f's_mov_b64 exec, {lanes}')
        A(f'buffer_store_dword v15, v{vaddr}, s[44:47], {soff} offen sc1')
        A('s_mov_b64 exec, -1')

    def helper(s):
        A = s.A
        DATA = 96
        vM = 4
        A('s_sub_u32 s63, s3, 4')
        A('s_mov_b32 s59, 0')
        A(f's_add_u32 s4, s30, {hex(W_NONCE)}\ns_addc_u32 s5, s31, 0')
        A('s_load_dword s58, s[4:5], 0')
        s.srd(32, 14, 640 * 4096 * 2)
        s.srd(40, 8, 5120)
        s.srd(44, 30, WS_SIZE)
        A('s_mul_i32 s60, s63, 1280')
        A('v_lshlrev_b32 v1, 2, v0')
        for t in range(5):
            A(f'buffer_load_dword v{16+t}, v1, s[40:43], s60 offen offset:{256*t}')
        A('v_lshrrev_b32 v2, 4, v0\nv_lshlrev_b32 v2, 13, v2\nv_and_b32 v3, 15, v0\nv_lshlrev_b32 v3, 4, v3\nv_add_u32 v2, v2, v3')
        A('s_lshl_b32 s57, s65, 1\ns_add_u32 s57, s57, s66')
        A('s_mul_i32 s56, s57, 80\ns_mul_i32 s60, s63, 20\ns_add_u32 s56, s56, s60')
        A('s_lshl_b32 s60, s56, 13\ns_lshl_b32 s61, s64, 8\ns_add_u32 s60, s60, s61')
        for u in range(5):
            A(f'buffer_load_dwordx4 v[{DATA+4*u}:{DATA+4*u+3}], v2, s[32:35], s60 offen {s.pol_q}')
            if u < 4: A('s_add_u32 s60, s60, 0x8000')
        A('s_barrier')
        s.srd(36, 16, 4096 * 640 * 2)
        A('v_and_b32 v9, 15, v0')
        s.masks_Md(vM, 9, 10, 11, mod8=True)
        A('s_waitcnt vmcnt(5) lgkmcnt(0)')
        A('s_add_u32 s58, s58, 1')
        s.layernorm(16, 24, 32)
        A(f's_mul_i32 s60, s63, 1280\nv_add_u32 v9, s60, v1')
        for t in range(5):
            A(f'ds_write_b32 v9, v{24+t} offset:{L_XN + 256*t}')
        A(f's_lshl_b32 s60, s63, 2\nv_mov_b32 v9, s60\nv_mov_b32 v10, 1')
        A(f'ds_write_b32 v9, v10 offset:{L_FLAG}')
        A('v_bfe_u32 v12, v0, 3, 1\nv_mul_u32_u24 v12, 1280, v12\nv_lshrrev_b32 v13, 4, v0\nv_lshlrev_b32 v13, 1, v13\nv_add_u32 v12, v12, v13')
        A('s_lshl_b32 s60, s56, 1\nv_add_u32 v12, s60, v12')
        s.lds_flag_wait(L_FLAG, 14)
        for bp in range(2):
            for u in range(5):
                A(f'ds_read_u16 v{40+5*bp+u}, v12 offset:{L_XN + bp*2560 + u*8}')
        A('v_bfe_u32 v9, v0, 3, 1\nv_lshlrev_b32 v9, 9, v9\nv_lshrrev_b32 v10, 4, v0\nv_lshlrev_b32 v10, 7, v10\nv_and_b32 v11, 7, v0\nv_lshlrev_b32 v11, 2, v11\nv_add3_u32 v9, v9, v10, v11')
        A('s_lshl_b32 s60, s63, 11\nv_add_u32 v9, s60, v9')
        A('s_waitcnt lgkmcnt(0)')
        for k in range(10): A(f'v_lshl_or_b32 v{40+k}, v{40+k}, 16, v{40+k}')
        A('s_waitcnt vmcnt(0)')
        for u in range(5):
            for bp in range(2):
                y = 60 + 4 * ((2 * u + bp) & 3)
                for d in range(4): A(f'v_and_b32 v{y+d}, v{40+5*bp+u}, v{vM+d}')
                a = 52 + 4 * bp
                A(f'v_mfma_f32_16x16x32_bf16 v[{a}:{a+3}], v[{DATA+4*u}:{DATA+4*u+3}], v[{y}:{y+3}], ' + ('0' if u == 0 else f'v[{a}:{a+3}]'))
        for bp in range(2):
            for r in range(4):
                A(f'ds_write_b32 v9, v{52+4*bp+r} offset:{L_QP + bp*1024 + r*32}')
        A(f's_lshl_b32 s60, s63, 2\nv_mov_b32 v10, s60\nv_mov_b32 v11, 1')
        A(f'ds_write_b32 v10, v11 offset:{L_FLAG + 16}')
        A('s_lshl_b32 s69, s64, 2\ns_add_u32 s69, s69, s63\ns_lshl_b32 s69, s69, 3\ns_add_u32 s69, s69, s57')
        A(f's_lshl_b32 s62, s69, 9\ns_add_u32 s62, s62, {hex(W_Q)}')
        A('v_lshlrev_b32 v13, 3, v0')
        A('s_lshl_b32 s60, s63, 9\nv_add_u32 v12, s60, v13')
        s.lds_flag_wait(L_FLAG + 16, 14)
        for w in range(4):
            A(f'ds_read_b64 v[{16+2*w}:{17+2*w}], v12 offset:{L_QP + 2048*w}')
        A('s_waitcnt lgkmcnt(0)')
        A('v_add_f32 v16, v16, v18\nv_add_f32 v17, v17, v19\nv_add_f32 v20, v20, v22\nv_add_f32 v21, v21, v23')
        A('v_add_f32 v24, v16, v20\nv_add_f32 v25, v17, v21')
        A(f'buffer_store_dwordx2 v[24:25], v13, s[44:47], s62 offen {s.pol_hs}')
        A(f's_lshr_b32 s62, s69, 3\ns_lshl_b32 s62, s62, 7\ns_lshl_b32 s61, s57, 2\ns_add_u32 s62, s62, s61\ns_add_u32 s62, s62, {hex(W_FLAGQ)}\nv_mov_b32 v14, 0')
        A('s_waitcnt vmcnt(0)')
        s.flag_store('1', 14, 's62')
        lq = s.lab('noq')
        A('s_cmp_lg_u32 s63, 0')
        A(f's_cbranch_scc1 {lq}')
        A(f's_lshl_b32 s69, s64, 2\ns_add_u32 s69, s69, s65')
        A(f's_lshl_b32 s60, s69, 7\ns_add_u32 s60, s60, {hex(W_FLAGQ)}')
        s.spoll(8, list(range(8)))
        A(f's_lshl_b32 s60, s69, 12\ns_add_u32 s60, s60, {hex(W_Q)}')
        A('v_lshlrev_b32 v13, 4, v0')
        for t in range(4):
            A(f'buffer_load_dwordx4 v[{16+4*t}:{19+4*t}], v13, s[44:47], s60 offen offset:{t*1024} {s.pol_hl}')
        A('v_and_b32 v12, 31, v0\nv_lshlrev_b32 v12, 3, v12')
        A('s_waitcnt vmcnt(0)')
        for k in range(4):
            A(f'v_add_f32 v{16+k}, v{16+k}, v{20+k}\nv_add_f32 v{24+k}, v{24+k}, v{28+k}')
        for k in range(4): A(f'v_add_f32 v{16+k}, v{16+k}, v{24+k}')
        for k in range(4): A(f'v_mov_b32 v{20+k}, v{16+k}')
        for k in range(4): A(f'v_permlane32_swap_b32 v{16+k}, v{20+k}')
        for k in range(4): A(f'v_add_f32 v{16+k}, v{16+k}, v{20+k}')
        A('v_cvt_pk_bf16_f32 v16, v16, v17\nv_cvt_pk_bf16_f32 v17, v18, v19')
        A(f'ds_write_b64 v12, v[16:17] offset:{L_QB}')
        A(f'{lq}:')
        A('s_waitcnt lgkmcnt(0)')
        s.stamp(1)
        A('s_barrier')
        l_wo = s.lab('wo')
        s.ffn(l_wo)
        A(f'{l_wo}:')
        A('v_lshrrev_b32 v2, 4, v0\nv_mul_u32_u24 v2, 1280, v2\nv_and_b32 v3, 15, v0\nv_lshlrev_b32 v3, 4, v3\nv_add_u32 v2, v2, v3')
        A('s_lshl_b32 s60, s64, 7\ns_lshl_b32 s61, s63, 5\ns_add_u32 s60, s60, s61\ns_mul_i32 s60, s60, 1280')
        if 'wo_v' in s.skip:
            A('s_lshl_b32 s6, s2, 19\ns_add_u32 s72, s12, s6\ns_addc_u32 s73, s13, 0\ns_and_b32 s73, s73, 0xffff\ns_mov_b32 s74, 0x80000\ns_mov_b32 s75, 0x20000')
            A('s_and_b32 s60, s60, 0x3ffff')
        def wo_loads(win):
            n = 0
            for u in range(8):
                for cb in range(5):
                    if n >= win: A(f's_waitcnt vmcnt({win-1})')
                    r = DATA + 4 * (u * 5 + cb)
                    if 'wo_v' in s.skip: A(f'buffer_load_dwordx4 v[{r}:{r+3}], v2, s[72:75], s60 offen offset:{cb*256} nt')
                    elif 'wo' not in s.skip: A(f'buffer_load_dwordx4 v[{r}:{r+3}], v2, s[36:39], s60 offen offset:{cb*256} {s.pol_w}')
                    n += 1
                if u < 7:
                    if s.rot: A(f's_add_u32 s6, s57, {u+1}\ns_and_b32 s6, s6, 7\ns_mul_i32 s6, s6, 5120\ns_add_u32 s60, s7, s6')
                    else: A('s_add_u32 s60, s60, 5120')
        if s.rot:
            A('s_mov_b32 s7, s60\ns_mul_i32 s6, s57, 5120\ns_add_u32 s60, s7, s6')
        if s.WO4 != s.WO and not s.wofirst:
            l4, l5 = s.lab('wo4'), s.lab('wod')
            A('s_cmp_eq_u32 s59, 1')
            A(f's_cbranch_scc1 {l4}')
            wo_loads(s.WO)
            A(f's_branch {l5}')
            A(f'{l4}:')
            wo_loads(s.WO4)
            A(f'{l5}:')
        else:
            wo_loads(s.WO)
        s.stamp(2)
        if s.wofirst and 'ffn' not in s.skip:
            lnf = s.lab('noffn')
            A('s_cmp_lg_u32 s59, 1')
            A(f's_cbranch_scc1 {lnf}')
            s.ffn_rest()
            A(f'{lnf}:')
        l_tail, l_w7 = s.lab('tail'), s.lab('w7')
        A('s_cmp_eq_u32 s63, 3')
        A(f's_cbranch_scc1 {l_w7}')
        if s.collector and 'ffn' not in s.skip:
            l_nc = s.lab('nocol')
            A('s_cmp_lg_u32 s63, 2')
            A(f's_cbranch_scc1 {l_nc}')
            A('s_cmp_lg_u32 s2, 255')
            A(f's_cbranch_scc1 {l_tail}')
            s.collect()
            A(f's_branch {l_tail}')
            A(f'{l_nc}:')
        A('s_cmp_lg_u32 s63, 1')
        A(f's_cbranch_scc1 {l_tail}')
        s.mlx()
        A(f's_branch {l_tail}')
        A(f'{l_w7}:')
        s.consumer_prep(l_tail)
        A(f'{l_tail}:')
        s.tail()

    def ffn(s, l_skip):
        A = s.A
        DATA = 96
        if 'ffn' in s.skip: return
        A('s_cmp_lg_u32 s66, 0')
        A(f's_cbranch_scc1 {l_skip}')
        A('s_and_b32 s70, s2, 7\ns_lshl_b32 s61, s65, 3\ns_add_u32 s70, s70, s61')
        A('s_cmp_ge_u32 s70, 27')
        A(f's_cbranch_scc1 {l_skip}')
        A('s_lshr_b32 s71, s2, 3\ns_and_b32 s71, s71, 3')
        A('s_lshl_b32 s68, s70, 2\ns_add_u32 s68, s68, s71')
        s.srd(48, 20, 640 * 1728 * 2)
        s.srd(52, 22, 640 * 1728 * 2)
        s.srd(72, 24, 1728 * 640 * 2)
        A('v_lshrrev_b32 v9, 3, v0\nv_mul_u32_u24 v9, 3456, v9\nv_and_b32 v10, 7, v0\nv_lshlrev_b32 v10, 4, v10\nv_add_u32 v9, v9, v10')
        A(f's_mul_i32 s60, s71, {160*3456}\ns_lshl_b32 s61, s70, 7\ns_add_u32 s60, s60, s61\ns_mul_i32 s61, s63, {40*3456}\ns_add_u32 s60, s60, s61')
        A(f's_mul_i32 s62, s63, 5120\ns_add_u32 s69, s62, {L_WU}\ns_add_u32 s62, s62, {L_WG}')
        n = 0
        for t in range(5):
            for srd, mreg in (('s[48:51]', 's62'), ('s[52:55]', 's69')):
                if n >= s.WF: A(f's_waitcnt vmcnt({s.WF-1})')
                A(f's_mov_b32 m0, {mreg}')
                if 'f_dma' not in s.skip: A(f'buffer_load_dwordx4 v9, {srd}, s60 offen {s.pol_f} lds')
                n += 1
            if t < 4: A(f's_add_u32 s60, s60, {8*3456}\ns_add_u32 s62, s62, 1024\ns_add_u32 s69, s69, 1024')
        lw4 = s.lab('w4')
        A('s_cmp_eq_u32 s63, 0')
        A(f's_cbranch_scc1 {lw4}')
        A('s_waitcnt vmcnt(0)')
        A(f's_lshl_b32 s60, s63, 2\nv_mov_b32 v10, s60\nv_mov_b32 v11, 1')
        A(f'ds_write_b32 v10, v11 offset:{L_FLAG + 32}')
        A(f's_branch {l_skip}')
        A(f'{lw4}:')
        A('s_mov_b32 s59, 1')
        if s.wofirst: return
        s.ffn_rest()

    def ffn_rest(s):
        A = s.A
        DATA = 96
        A('v_and_b32 v9, 3, v0\nv_mul_u32_u24 v9, 1280, v9\nv_lshrrev_b32 v10, 4, v0\nv_lshlrev_b32 v11, 3, v10\nv_add_u32 v9, v9, v11')
        A('s_mul_i32 s60, s71, 320\nv_add_u32 v9, s60, v9')
        A('v_lshlrev_b32 v10, 2, v10\nv_bfe_u32 v11, v0, 2, 2\nv_add_u32 v10, v10, v11\nv_lshlrev_b32 v10, 7, v10\nv_and_b32 v11, 3, v0\nv_lshlrev_b32 v11, 3, v11\nv_add_u32 v10, v10, v11')
        A(f'v_add_u32 v8, {L_WU - L_WG}, v10')
        A('s_waitcnt vmcnt(0)')
        A(f'v_mov_b32 v12, 0\nv_mov_b32 v13, 1\nds_write_b32 v12, v13 offset:{L_FLAG + 32}')
        s.lds_flag_wait(L_FLAG + 32, 14)
        if s.fineF: s.stamp(3)
        ag, au = 12, 28
        for ks in range(5):
            o = 44
            A(f'ds_read_b64 v[{o}:{o+1}], v9 offset:{L_XN + 64*ks}')
            A(f'ds_read_b64 v[{o+2}:{o+3}], v9 offset:{L_XN + 64*ks + 32}')
            for ct in range(4):
                q = 48 + 8 * ct
                A(f'ds_read_b64_tr_b16 v[{q}:{q+1}], v10 offset:{L_WG + 4096*ks + 32*ct}')
                A(f'ds_read_b64_tr_b16 v[{q+2}:{q+3}], v10 offset:{L_WG + 4096*ks + 32*ct + 2048}')
                A(f'ds_read_b64_tr_b16 v[{q+4}:{q+5}], v8 offset:{L_WG + 4096*ks + 32*ct}')
                A(f'ds_read_b64_tr_b16 v[{q+6}:{q+7}], v8 offset:{L_WG + 4096*ks + 32*ct + 2048}')
                if ct == 2: A('s_waitcnt lgkmcnt(6)')
            A('s_waitcnt lgkmcnt(0)')
            for ct in range(4):
                q = 48 + 8 * ct
                A(f'v_mfma_f32_16x16x32_bf16 v[{ag+4*ct}:{ag+4*ct+3}], v[{o}:{o+3}], v[{q}:{q+3}], ' + ('0' if ks == 0 else f'v[{ag+4*ct}:{ag+4*ct+3}]'))
                A(f'v_mfma_f32_16x16x32_bf16 v[{au+4*ct}:{au+4*ct+3}], v[{o}:{o+3}], v[{q+4}:{q+7}], ' + ('0' if ks == 0 else f'v[{au+4*ct}:{au+4*ct+3}]'))
        A('s_mov_b32 s76, 0xffff0000\ns_mov_b32 s77, 0\ns_mov_b32 s78, 0\ns_mov_b32 s79, 0xffff\ns_mov_b32 s80, 0\ns_mov_b32 s81, 0xffff0000')
        A('v_lshlrev_b32 v9, 3, v0')
        A(f's_lshl_b32 s62, s70, 13\ns_lshl_b32 s69, s71, 9\ns_add_u32 s62, s62, s69\ns_add_u32 s62, s62, {hex(W_FX)}')
        for ct in range(4):
            o = 48 + 2 * ct
            for base, dst in ((ag, o), (au, o + 1)):
                a = base + 4 * ct
                A(f'v_cndmask_b32 v{dst}, v{a}, v{a+1}, s[76:77]')
                A(f'v_cndmask_b32 v{dst}, v{dst}, v{a+2}, s[78:79]')
                A(f'v_cndmask_b32 v{dst}, v{dst}, v{a+3}, s[80:81]')
            A(f'buffer_store_dwordx2 v[{o}:{o+1}], v9, s[44:47], s62 offen {s.pol_hs}')
            if ct < 3: A('s_add_u32 s62, s62, 2048')
        A('v_lshrrev_b32 v2, 4, v0\nv_mul_u32_u24 v2, 1280, v2\nv_and_b32 v3, 15, v0\nv_lshlrev_b32 v3, 4, v3\nv_add_u32 v2, v2, v3')
        A('s_mul_i32 s60, s68, 20480')
        def wd_batch(cb, base):
            for u in range(4):
                A(f's_add_u32 s6, s85, {u*5120}')
                if 'f_wd' not in s.skip: A(f'buffer_load_dwordx4 v[{base+4*u}:{base+4*u+3}], v2, s[72:75], s6 offen offset:{cb*256} {s.pol_f}')
        s._wd_batch = wd_batch
        if s.wofirst:
            A('s_mov_b32 s85, s60')
            wd_batch(0, 56); wd_batch(1, 72)
            nwd = 8
        else:
            for u in range(4):
                for cb in range(5):
                    r = DATA + 4 * (u * 5 + cb)
                    if 'f_wd' not in s.skip: A(f'buffer_load_dwordx4 v[{r}:{r+3}], v2, s[72:75], s60 offen offset:{cb*256} {s.pol_f}')
                if u < 3: A('s_add_u32 s60, s60, 5120')
            nwd = 20
        A(f's_lshl_b32 s62, s70, 9\ns_lshl_b32 s69, s71, 2\ns_add_u32 s62, s62, s69\ns_add_u32 s62, s62, {hex(W_FLAGF)}\nv_lshlrev_b32 v14, 7, v0')
        A(f's_waitcnt vmcnt({nwd})' if 'f_wd' not in s.skip else 's_waitcnt vmcnt(0)')
        s.flag_store('0xf', 14, 's62')
        if s.fineF: s.stamp(4)
        A(f's_lshl_b32 s60, s68, 7\ns_add_u32 s60, s60, {hex(W_FLAGF)}')
        s.spoll(4, [0, 1, 2, 3], sleep=2)
        A(f's_lshl_b32 s60, s68, 11\ns_add_u32 s60, s60, {hex(W_FX)}')
        for t in range(4):
            A(f'buffer_load_dwordx2 v[{12+2*t}:{13+2*t}], v9, s[44:47], s60 offen offset:{t*512} {s.pol_hl}')
        A('s_waitcnt vmcnt(0)')
        if s.fineF: s.stamp(5)
        A('v_add_f32 v12, v12, v14\nv_add_f32 v16, v16, v18\nv_add_f32 v12, v12, v16')
        A('v_add_f32 v13, v13, v15\nv_add_f32 v17, v17, v19\nv_add_f32 v14, v13, v17')
        g_, u_, t0, t1 = 12, 14, 20, 21
        s.bf16r(g_, g_)
        s.bf16r(u_, u_)
        A(f'v_mul_f32 v{t0}, v{g_}, v{g_}\nv_mul_f32 v{t0}, v{t0}, v{g_}')
        A(f'v_mov_b32 v{t1}, 0x3d372713\nv_fma_f32 v{t0}, v{t0}, v{t1}, v{g_}')
        A(f'v_mul_f32 v{t0}, 0x3f4c422a, v{t0}')
        A(f'v_mul_f32 v{t0}, 0x4038aa3b, v{t0}')
        A(f'v_exp_f32 v{t0}, v{t0}')
        A(f'v_add_f32 v{t0}, 1.0, v{t0}')
        A(f'v_rcp_f32 v{t0}, v{t0}')
        A(f'v_fma_f32 v{t0}, v{t0}, -2.0, 1.0')
        A(f'v_add_f32 v{t0}, 1.0, v{t0}')
        A(f'v_mul_f32 v{t1}, 0.5, v{g_}')
        A(f'v_mul_f32 v{t0}, v{t1}, v{t0}')
        s.bf16r(t0, t0)
        A(f'v_mul_f32 v{t0}, v{t0}, v{u_}')
        A(f'v_cvt_pk_bf16_f32 v{g_}, v{t0}, v{t0}')
        A('v_lshrrev_b32 v9, 4, v0\nv_lshlrev_b32 v9, 6, v9\nv_and_b32 v10, 3, v0\nv_lshlrev_b32 v10, 4, v10\nv_bfe_u32 v11, v0, 2, 2\nv_lshlrev_b32 v11, 2, v11\nv_add3_u32 v9, v9, v10, v11')
        A(f'ds_write_b32 v9, v{g_} offset:{L_HT}')
        if s.dbg:
            A(f's_lshl_b32 s60, s68, 8\ns_add_u32 s60, s60, {hex(W_DBG + 0x500000)}')
            A('v_lshlrev_b32 v10, 2, v0\nv_add_u32 v10, s60, v10')
            A(f'global_store_dword v10, v{g_}, s[30:31]')
        A('v_bfe_u32 v9, v0, 3, 1\nv_lshlrev_b32 v9, 2, v9\nv_lshrrev_b32 v10, 4, v0\nv_add_u32 v9, v9, v10\nv_lshlrev_b32 v9, 4, v9')
        A('s_waitcnt lgkmcnt(0)')
        A(f'ds_read_b128 v[12:15], v9 offset:{L_HT}')
        A(f'ds_read_b128 v[16:19], v9 offset:{L_HT + 128}')
        A('v_bfe_u32 v9, v0, 3, 1\nv_mul_u32_u24 v9, 640, v9\nv_lshrrev_b32 v10, 4, v0\nv_lshlrev_b32 v10, 5, v10\nv_and_b32 v11, 7, v0\nv_add3_u32 v9, v9, v10, v11\nv_lshlrev_b32 v9, 2, v9')
        A('s_waitcnt vmcnt(0) lgkmcnt(0)')
        if s.wofirst:
            for bp in range(2):
                for u in range(4):
                    for d in range(4): A(f'v_and_b32 v{20+16*bp+4*u+d}, v{12+4*bp+u}, v{4+d}')
            for cb in range(5):
                base = 56 if cb % 2 == 0 else 72
                if cb >= 2: A(f's_waitcnt vmcnt({4 if cb < 4 else 0})')
                for bp in range(2):
                    a = 88 + 4 * bp if False else (12 + 4 * bp)
                    for u in range(4):
                        A(f'v_mfma_f32_16x16x32_bf16 v[{a}:{a+3}], v[{base+4*u}:{base+4*u+3}], v[{20+16*bp+4*u}:{23+16*bp+4*u}], ' + ('0' if u == 0 else f'v[{a}:{a+3}]'))
                if cb + 2 < 5: s._wd_batch(cb + 2, base)
                for bp in range(2):
                    for r in range(4):
                        A(f'ds_write_b32 v9, v{12+4*bp+r} offset:{L_YPART + bp*5120 + cb*512 + r*32}')
        else:
            for u in range(4):
                for bp in range(2):
                    y = 60 + 4 * ((2 * u + bp) & 3)
                    for d in range(4): A(f'v_and_b32 v{y+d}, v{12+4*bp+u}, v{4+d}')
                    for cb in range(5):
                        a = 20 + 8 * cb + 4 * bp
                        r = DATA + 4 * (u * 5 + cb)
                        A(f'v_mfma_f32_16x16x32_bf16 v[{a}:{a+3}], v[{r}:{r+3}], v[{y}:{y+3}], ' + ('0' if u == 0 else f'v[{a}:{a+3}]'))
            for cb in range(5):
                for bp in range(2):
                    for r in range(4):
                        A(f'ds_write_b32 v9, v{20+8*cb+4*bp+r} offset:{L_YPART + bp*5120 + cb*512 + r*32}')
        A('s_waitcnt lgkmcnt(0)')
        A('v_lshlrev_b32 v9, 4, v0')
        A(f's_mul_i32 s60, s68, 10240\ns_add_u32 s60, s60, {hex(W_FPART)}')
        for t in range(10):
            A(f'ds_read_b128 v[{12+4*t}:{15+4*t}], v9 offset:{L_YPART + 1024*t}')
        A('s_waitcnt lgkmcnt(0)')
        for t in range(10):
            if 'f_pub' not in s.skip: A(f'buffer_store_dwordx4 v[{12+4*t}:{15+4*t}], v9, s[44:47], s60 offen offset:{(t%4)*1024} {s.pol_fp}')
            if t % 4 == 3: A('s_add_u32 s60, s60, 4096')
        A(f's_lshl_b32 s62, s68, 2\ns_add_u32 s62, s62, {hex(W_FLAGP)}\nv_mov_b32 v9, 0')
        A('s_waitcnt vmcnt(0)')
        s.flag_store('1', 9, 's62')
        if s.fineF: s.stamp(6)

    def wait_ml(s):
        A = s.A
        lp, ld = s.lab('ml'), s.lab('mld')
        A(f'v_and_b32 v9, 3, v0\nv_lshlrev_b32 v9, 3, v9')
        A('s_mov_b32 s61, 0x400000')
        A(f'{lp}:')
        A(f'ds_read_b64 v[10:11], v9 offset:{L_ML}')
        A('s_waitcnt lgkmcnt(0)')
        A('v_cmp_eq_u32 vcc, -1, v10')
        A(f's_cbranch_vccz {ld}')
        A('s_sleep 16')
        A('s_sub_u32 s61, s61, 1\ns_cmp_lg_u32 s61, 0')
        A(f's_cbranch_scc1 {lp}')
        A(f'{ld}:')

    def mlx(s):
        A = s.A
        s.wait_ml()
        A('v_mov_b32 v12, v10')
        A('v_max_f32_dpp v12, v12, v12 quad_perm:[1,0,3,2] row_mask:0xf bank_mask:0xf')
        A('v_max_f32_dpp v12, v12, v12 quad_perm:[2,3,0,1] row_mask:0xf bank_mask:0xf')
        A(f'v_sub_f32 v14, v10, v12\nv_mul_f32 v14, {hex(LOG2E)}, v14\nv_exp_f32 v14, v14')
        A('v_mul_f32 v14, v14, v11')
        A('v_add_f32_dpp v14, v14, v14 quad_perm:[1,0,3,2] row_mask:0xf bank_mask:0xf')
        A('v_add_f32_dpp v14, v14, v14 quad_perm:[2,3,0,1] row_mask:0xf bank_mask:0xf')
        A('v_mov_b32 v13, s58\nv_mov_b32 v15, s58')
        A(f's_xor_b32 s60, s2, 128\ns_lshl_b32 s60, s60, 7\ns_add_u32 s60, s60, {hex(W_ML)}')
        A('v_mov_b32 v9, 0')
        A('s_mov_b64 exec, 1')
        A(f'buffer_store_dwordx4 v[12:15], v9, s[44:47], s60 offen {s.pol_hs}')
        A('s_mov_b64 exec, -1')
        A(f's_lshl_b32 s60, s2, 7\ns_add_u32 s60, s60, {hex(W_ML)}')
        s.spoll(4, [1, 3], sleep=4)
        A('v_mov_b32 v22, s76\nv_mov_b32 v23, s78')
        A('v_max_f32 v16, v12, v22')
        A(f'v_sub_f32 v17, v12, v16\nv_mul_f32 v17, {hex(LOG2E)}, v17\nv_exp_f32 v17, v17')
        A(f'v_sub_f32 v18, v22, v16\nv_mul_f32 v18, {hex(LOG2E)}, v18\nv_exp_f32 v18, v18')
        A('v_mul_f32 v17, v17, v14\nv_fma_f32 v17, v18, v23, v17')
        A(f'v_sub_f32 v18, v10, v16\nv_mul_f32 v18, {hex(LOG2E)}, v18\nv_exp_f32 v18, v18')
        A('v_rcp_f32 v19, v17')
        A('v_mul_f32 v20, v18, v19\nv_fma_f32 v21, -v20, v17, v18\nv_fma_f32 v20, v21, v19, v20')
        A('v_mov_b32 v14, 0x7fc00000\nv_cmp_eq_u32 vcc, -1, v20\nv_cndmask_b32 v20, v20, v14, vcc')
        A('v_and_b32 v9, 3, v0\nv_lshlrev_b32 v9, 2, v9')
        A(f'ds_write_b32 v9, v20 offset:{L_WF}')
        A('s_waitcnt lgkmcnt(0)')

    def collect(s):
        A = s.A
        lp, ld = s.lab('fc'), s.lab('fcd')
        A(f'v_lshlrev_b32 v9, 2, v0\ns_mov_b32 s60, {hex(W_FLAGP)}\ns_mov_b32 s61, 0x100000')
        A(f'{lp}:')
        A(f'buffer_load_dword v10, v9, s[44:47], s60 offen {s.pol_hl}')
        A(f'buffer_load_dword v11, v9, s[44:47], s60 offen offset:256 {s.pol_hl}')
        A('s_waitcnt vmcnt(0)')
        A('v_cmp_ne_u32 vcc, s58, v10')
        A('v_cmp_ne_u32 s[76:77], s58, v11')
        A('s_and_b32 s77, s77, 0xfff')
        A('s_or_b64 vcc, vcc, s[76:77]')
        A(f's_cbranch_vccz {ld}')
        A('s_sleep 32')
        A('s_sub_u32 s61, s61, 1\ns_cmp_lg_u32 s61, 0')
        A(f's_cbranch_scc1 {lp}')
        A(f'{ld}:')
        A(f'v_lshlrev_b32 v9, 7, v0\nv_mov_b32 v10, s58\ns_mov_b32 s60, {hex(W_FDONE)}')
        A('buffer_store_dword v10, v9, s[44:47], s60 offen sc1')
        A(f's_mov_b32 s60, {hex(W_FDONE + 64*128)}')
        A('s_mov_b64 exec, 0xffff')
        A('buffer_store_dword v10, v9, s[44:47], s60 offen sc1')
        A('s_mov_b64 exec, -1')

    def consumer_prep(s, l_tail):
        A = s.A
        A('s_cmp_ge_u32 s84, 20')
        A(f's_cbranch_scc1 {l_tail}')
        if 'ffn' not in s.skip and s.collector:
            A(f's_mul_i32 s60, s65, 20\ns_add_u32 s60, s60, s84\ns_lshl_b32 s60, s60, 7\ns_add_u32 s60, s60, {hex(W_FDONE)}')
            s.spoll(1, [0], sleep=32)
        elif 'ffn' not in s.skip:
                s.wait_ml()
                lp, ld = s.lab('fc'), s.lab('fcd')
                A(f'v_lshlrev_b32 v9, 2, v0\ns_mov_b32 s60, {hex(W_FLAGP)}\ns_mov_b32 s61, 0x100000')
                A(f'{lp}:')
                A(f'buffer_load_dword v10, v9, s[44:47], s60 offen {s.pol_hl}')
                A(f'buffer_load_dword v11, v9, s[44:47], s60 offen offset:256 {s.pol_hl}')
                A('s_waitcnt vmcnt(0)')
                A('v_cmp_ne_u32 vcc, s58, v10')
                A('v_cmp_ne_u32 s[76:77], s58, v11')
                A('s_and_b32 s77, s77, 0xfff')
                A('s_or_b64 vcc, vcc, s[76:77]')
                A(f's_cbranch_vccz {ld}')
                A('s_sleep 32')
                A('s_sub_u32 s61, s61, 1\ns_cmp_lg_u32 s61, 0')
                A(f's_cbranch_scc1 {lp}')
                A(f'{ld}:')
        A('v_lshrrev_b32 v9, 3, v0\nv_mul_u32_u24 v9, 10240, v9\nv_and_b32 v10, 7, v0\nv_lshlrev_b32 v10, 4, v10\nv_add_u32 v9, v9, v10')
        A(f's_mul_i32 s60, s65, 2560\ns_lshl_b32 s61, s84, 7\ns_add_u32 s60, s60, s61\ns_add_u32 s60, s60, {hex(W_FPART)}')
        for r in range(4): A(f'v_mov_b32 v{16+4*13+r}, 0')
        for t in range(14):
            if t == 13: A('s_mov_b64 exec, 0xffffffff')
            if s.fgwin and t >= s.fgwin: A(f's_waitcnt vmcnt({s.fgwin-1})')
            if 'f_g' not in s.skip: A(f'buffer_load_dwordx4 v[{16+4*t}:{19+4*t}], v9, s[44:47], s60 offen {s.pol_fg}')
            if t < 13: A(f's_add_u32 s60, s60, {8*10240}')
        A('s_mov_b64 exec, -1')
        A('s_mul_i32 s60, s65, 1280\ns_lshl_b32 s61, s84, 6\ns_add_u32 s60, s60, s61')
        A('v_and_b32 v10, 15, v0\nv_lshlrev_b32 v10, 2, v10')
        A(f'buffer_load_dword v12, v10, s[40:43], s60 offen')
        A('s_waitcnt vmcnt(0)')
        for t in range(1, 14):
            for r in range(4): A(f'v_add_f32 v{16+r}, v{16+r}, v{16+4*t+r}')
        for r in range(4): s.reduce_hi3(16 + r, 20)
        for r in range(4):
            f = 16 + r
            s.bf16r(f, f)
            A(f'v_mul_f32 v20, 0xbfb8aa3b, v{f}\nv_exp_f32 v20, v20\nv_add_f32 v20, 1.0, v20\nv_rcp_f32 v21, v20')
            A(f'v_mul_f32 v22, v{f}, v21\nv_fma_f32 v23, -v22, v20, v{f}\nv_fma_f32 v23, v23, v21, v22')
            A('v_cmp_u_f32 vcc, v23, v23')
            A(f'v_cndmask_b32 v22, v23, v22, vcc')
            s.bf16r(24 + r, 22)
        A('v_and_b32 v9, 7, v0\nv_lshlrev_b32 v9, 4, v9')
        A(f'ds_write_b128 v9, v[24:27] offset:{L_GX}')
        A('v_and_b32 v9, 15, v0\nv_lshlrev_b32 v9, 3, v9')
        A('s_waitcnt lgkmcnt(0)')
        A(f'ds_read_b64 v[88:89], v9 offset:{L_GX}')
        A('v_lshlrev_b32 v92, 16, v12\nv_and_b32 v93, 0xffff0000, v12')
        A('s_waitcnt lgkmcnt(0)')

    def tail(s):
        A = s.A
        DATA = 96
        vM = 4
        A('v_lshrrev_b32 v9, 4, v0\nv_lshlrev_b32 v9, 7, v9\ns_lshl_b32 s60, s63, 5\nv_add_u32 v9, s60, v9')
        A('v_lshrrev_b32 v10, 4, v0\nv_lshlrev_b32 v10, 7, v10\nv_and_b32 v11, 15, v0\nv_lshlrev_b32 v11, 2, v11\nv_add_u32 v10, v10, v11')
        A('s_mul_i32 s60, s63, 2560\nv_add_u32 v10, s60, v10')
        A('s_lshl_b32 s60, s63, 6\nv_add_u32 v76, s60, v0')
        A('v_lshrrev_b32 v77, 3, v76\nv_lshlrev_b32 v77, 14, v77\nv_and_b32 v78, 7, v76\nv_lshlrev_b32 v78, 5, v78\nv_add_u32 v77, v77, v78')
        A('v_lshlrev_b32 v78, 4, v76')
        A('s_mul_i32 s62, s65, 327680\ns_lshl_b32 s69, s67, 8\ns_add_u32 s62, s62, s69')
        A('s_waitcnt vmcnt(0)')
        if not s.fineF: s.stamp(3)
        A('s_barrier')
        if not s.fineF: s.stamp(4)
        for w in range(4):
            A(f'ds_read_b128 v[{16+8*w}:{19+8*w}], v9 offset:{L_OPART + 512*w}')
            A(f'ds_read_b128 v[{20+8*w}:{23+8*w}], v9 offset:{L_OPART + 512*w + 16}')
        A('s_waitcnt lgkmcnt(0)')
        def osum(u):
            A(f'v_add_f32 v{16+u}, v{16+u}, v{24+u}')
            A(f'v_add_f32 v{32+u}, v{32+u}, v{40+u}')
            A(f'v_add_f32 v{16+u}, v{16+u}, v{32+u}')
            A(f'v_cvt_pk_bf16_f32 v{16+u}, v{16+u}, v{16+u}')
        acc = 48
        if s.dbg:
            for u in range(8): osum(u)
            A(f's_lshl_b32 s60, s2, 13\ns_lshl_b32 s61, s63, 11\ns_add_u32 s60, s60, s61\ns_add_u32 s60, s60, {hex(W_DBG + 0x600000)}')
            A('v_lshlrev_b32 v48, 5, v0\nv_add_u32 v48, s60, v48')
            A('global_store_dwordx4 v48, v[16:19], s[30:31]\nglobal_store_dwordx4 v48, v[20:23], s[30:31] offset:16')
            A('s_waitcnt vmcnt(0)')
        else:
            osum(0); osum(1)
        for u in range(8):
            y = 68 + 4 * (u & 1)
            for d in range(4): A(f'v_and_b32 v{y+d}, v{16+u}, v{vM+d}')
            if not s.dbg and u + 2 < 8: osum(u + 2)
            for cb in range(5):
                r = DATA + 4 * (u * 5 + cb)
                a = acc + 4 * cb
                A(f'v_mfma_f32_16x16x32_bf16 v[{a}:{a+3}], v[{r}:{r+3}], v[{y}:{y+3}], ' + ('0' if u == 0 else f'v[{a}:{a+3}]'))
        A('s_mov_b32 exec_lo, 0x00ff00ff\ns_mov_b32 exec_hi, 0x00ff00ff')
        for cb in range(5):
            for r in range(4):
                A(f'ds_write_b32 v10, v{acc+4*cb+r} offset:{L_YPART + 512*cb + 32*r}')
        A('s_mov_b64 exec, -1')
        A('s_waitcnt lgkmcnt(0)')
        A('s_barrier')
        if not s.fineF: s.stamp(5)
        l_fin, l_done = s.lab('fin'), s.lab('done')
        A('s_cmp_eq_u32 s63, 3')
        A(f's_cbranch_scc1 {l_fin}')
        A('v_cmp_gt_u32 vcc, 160, v76')
        A('s_and_saveexec_b64 s[60:61], vcc')
        A(f's_cbranch_execz {l_done}')
        for w in range(4):
            A(f'ds_read_b128 v[{16+4*w}:{19+4*w}], v78 offset:{L_YPART + 2560*w}')
        A('v_mov_b32 v33, s58\nv_mov_b32 v35, s58\nv_mov_b32 v37, s58\nv_mov_b32 v39, s58')
        A('s_waitcnt lgkmcnt(0)')
        for r in range(4):
            A(f'v_add_f32 v{16+r}, v{16+r}, v{20+r}')
            A(f'v_add_f32 v{24+r}, v{24+r}, v{28+r}')
        for r in range(4):
            A(f'v_add_f32 v{32+2*r}, v{16+r}, v{24+r}')
        A(f'buffer_store_dwordx4 v[32:35], v77, s[44:47], s62 offen {s.pol_hs}')
        A(f'buffer_store_dwordx4 v[36:39], v77, s[44:47], s62 offen offset:16 {s.pol_hs}')
        A(f'{l_done}:')
        if not s.fineF: s.stamp(6)
        s.stamp_store(7)
        A('s_endpgm')
        A(f'{l_fin}:')
        l_nf = s.lab('nofin')
        A('s_cmp_ge_u32 s84, 20')
        A(f's_cbranch_scc1 {l_nf}')
        A('s_mul_i32 s60, s65, 20\ns_add_u32 s60, s60, s84\ns_lshl_b32 s60, s60, 14')
        for k in range(1, 4): A(f's_add_u32 s{80+k}, s60, {4096*k}')
        A('s_mov_b32 s80, s60')
        A('v_lshlrev_b32 v9, 4, v0')
        s.srd(48, 26, 5120)
        A('s_mul_i32 s52, s65, 1280\ns_lshl_b32 s53, s84, 6\ns_add_u32 s52, s52, s53')
        A('v_lshlrev_b32 v10, 2, v0')
        lp, ld = s.lab('fp'), s.lab('fpd')
        for t in range(16):
            A(f'buffer_load_dwordx4 v[{16+4*t}:{19+4*t}], v9, s[44:47], s{80+t//4} offen offset:{(t%4)*1024} {s.pol_hl}')
        A('s_mov_b32 s61, 0x100000')
        A(f'{lp}:')
        if s.maskpoll:
            tags = [16 + 4 * t + k for t in range(16) for k in (1, 3)]
            A('s_waitcnt vmcnt(0)')
            A(f'v_min_u32 v80, v{tags[0]}, v{tags[1]}\nv_max_u32 v81, v{tags[0]}, v{tags[1]}')
            for i in range(2, 32, 2):
                A(f'v_min3_u32 v80, v80, v{tags[i]}, v{tags[i+1]}')
                A(f'v_max3_u32 v81, v81, v{tags[i]}, v{tags[i+1]}')
            A('v_cmp_ne_u32 vcc, s58, v80')
            A('v_cmp_ne_u32 s[76:77], s58, v81')
            A('s_or_b64 vcc, vcc, s[76:77]')
            A(f's_cbranch_vccz {ld}')
            for t in range(16):
                A(f'v_cmp_ne_u32 vcc, s58, v{17+4*t}')
                A(f'v_cmp_ne_u32 s[76:77], s58, v{19+4*t}')
                A('s_or_b64 vcc, vcc, s[76:77]')
                ls = s.lab('ok')
                A(f's_cbranch_vccz {ls}')
                A('s_mov_b64 exec, vcc')
                A(f'buffer_load_dwordx4 v[{16+4*t}:{19+4*t}], v9, s[44:47], s{80+t//4} offen offset:{(t%4)*1024} {s.pol_hl}')
                A('s_mov_b64 exec, -1')
                A(f'{ls}:')
            A('s_sub_u32 s61, s61, 1\ns_cmp_lg_u32 s61, 0')
            A(f's_cbranch_scc1 {lp}')
            A('s_waitcnt vmcnt(0)')
        else:
            tags = [16 + 4 * t + k for t in range(16) for k in (1, 3)]
            A('s_waitcnt vmcnt(12)')
            A(f'v_min_u32 v80, v{tags[0]}, v{tags[1]}\nv_max_u32 v81, v{tags[0]}, v{tags[1]}')
            for i in range(2, 32, 2):
                if i in (8, 16, 24): A(f's_waitcnt vmcnt({12 - i//2})')
                A(f'v_min3_u32 v80, v80, v{tags[i]}, v{tags[i+1]}')
                A(f'v_max3_u32 v81, v81, v{tags[i]}, v{tags[i+1]}')
            A('v_cmp_ne_u32 vcc, s58, v80')
            A('v_cmp_ne_u32 s[76:77], s58, v81')
            A('s_or_b64 vcc, vcc, s[76:77]')
            A(f's_cbranch_vccz {ld}')
            for t in range(16):
                A(f'buffer_load_dwordx4 v[{16+4*t}:{19+4*t}], v9, s[44:47], s{80+t//4} offen offset:{(t%4)*1024} {s.pol_hl}')
            A('s_sub_u32 s61, s61, 1\ns_cmp_lg_u32 s61, 0')
            A(f's_cbranch_scc1 {lp}')
            A('s_waitcnt vmcnt(0)')
        A(f'{ld}:')
        step = 1
        while step < 16:
            for t in range(0, 16, 2 * step):
                for k in (0, 2): A(f'v_add_f32 v{16+4*t+k}, v{16+4*t+k}, v{16+4*(t+step)+k}')
            step *= 2
        for k in (0, 2): A(f'v_mov_b32 v{20+k}, v{16+k}')
        for k in (0, 2): A(f'v_permlane16_swap_b32 v{16+k}, v{20+k}')
        for k in (0, 2): A(f'v_add_f32 v{16+k}, v{16+k}, v{20+k}')
        for k in (0, 2): A(f'v_mov_b32 v{20+k}, v{16+k}')
        for k in (0, 2): A(f'v_permlane32_swap_b32 v{16+k}, v{20+k}')
        for k in (0, 2): A(f'v_add_f32 v{16+k}, v{16+k}, v{20+k}')
        A('v_cvt_pk_bf16_f32 v16, v16, v18')
        A('v_lshlrev_b32 v17, 16, v16\nv_and_b32 v18, 0xffff0000, v16')
        A('v_mul_f32 v17, v17, v88\nv_mul_f32 v18, v18, v89')
        A('v_cvt_pk_bf16_f32 v16, v17, v18')
        A('v_lshlrev_b32 v17, 16, v16\nv_and_b32 v18, 0xffff0000, v16')
        A('v_add_f32 v17, v17, v92\nv_add_f32 v18, v18, v93')
        A('v_cvt_pk_bf16_f32 v16, v17, v18')
        A('s_mov_b64 exec, 0xffff')
        A('buffer_store_dword v16, v10, s[48:51], s52 offen')
        A('s_mov_b64 exec, -1')
        A('s_or_b32 s60, s65, s84\ns_cmp_lg_u32 s60, 0')
        A(f's_cbranch_scc1 {l_nf}')
        A(f'v_mov_b32 v9, 0\nv_mov_b32 v11, s58\ns_mov_b32 s60, {hex(W_NONCE)}')
        A('s_mov_b64 exec, 1')
        A('buffer_store_dword v11, v9, s[44:47], s60 offen sc1')
        A('s_mov_b64 exec, -1')
        A(f'{l_nf}:')
        if not s.fineF: s.stamp(6)
        s.stamp_store(7)

    def text(s):
        s.build()
        body = hz.fix(s.L)
        out = [HEADER + f'; @launch grid=(256,1,1) block=(512,1,1) lds={LDS_BYTES}',
               '.amdgcn_target "amdgcn-amd-amdhsa--gfx950"', '.text', f'.globl {NAME}_kernel', '.p2align 8',
               f'.type {NAME}_kernel,@function']
        out += body
        out += ['.section .rodata,"a"', '.p2align 6', f'.amdhsa_kernel {NAME}_kernel',
                '  .amdhsa_next_free_vgpr 256', '  .amdhsa_next_free_sgpr 102', '  .amdhsa_accum_offset 256',
                '  .amdhsa_group_segment_fixed_size 0', '  .amdhsa_kernarg_size 96', '  .amdhsa_user_sgpr_count 2',
                '  .amdhsa_user_sgpr_kernarg_segment_ptr 1', '  .amdhsa_system_sgpr_workgroup_id_x 1',
                '  .amdhsa_float_denorm_mode_32 3',
                '.end_amdhsa_kernel']
        return '\n'.join(out) + '\n'

if __name__ == '__main__':
    import argparse
    ap = argparse.ArgumentParser()
    ap.add_argument('-o', default='cdna_kernels/' + NAME + '.s')
    ap.add_argument('--cfg', default='{}')
    a = ap.parse_args()
    g = Gen(**eval(a.cfg))
    open(a.o, 'w').write(g.text())
    print('wrote', a.o)
```

```python
import sys, os
sys.path.insert(0, os.path.dirname(os.path.abspath(__file__)))
import hz

NAME = 'recurrent_scan__gqa_block_cached__geglu_ffn__decode'

HEADER = '''; Kernarg layout for this problem (96 bytes, ptrs only, base s[0:1]):
;   offset  32: d_in[4] A_wo  shape=(4096, 640) dtype=bfloat16
;   offset  88: d_ws      workspace: q, FFN partials, hand-off mailboxes
; One workgroup per (batch, head, key-half): waves 0-3 stream K then V, waves 4-7 do the projections / FFN / hand-offs.
'''

L_QP    = 0x0000
L_XN    = 0x2000
L_ML    = 0x3400
L_WF    = 0x3440
L_FLAG  = 0x3480
L_QB    = 0x3500
L_HT    = 0x3600
L_OPART = 0x3700
L_YPART = 0x3F00
L_GX    = 0x6700
L_WG    = 0x6800
L_WU    = 0xB800
LDS_BYTES = 0x10800

W_YIN   = 0x000000
W_ML    = 0x140000
W_NONCE = 0x148000
W_FLAGQ = 0x150000
W_FLAGF = 0x158000
W_FLAGP = 0x14B000
W_FDONE = 0x160000
W_Q     = 0x180000
W_FPART = 0x200000
W_FX    = 0x320000
WS_SIZE = 0x360000
W_DBG   = 0x1000000

SCALE = 0x3db504f3
LOG2E = 0x3fb8aa3b

class Gen:
    def __init__(s, W=6, P=30, B=40, WO=3, WF=5, pol_kv='nt', pol_w='', pol_hl='sc1', pol_hs='sc1', dbg=False, stamps=False, prio=True, skip='', W0=None, fineF=False, WO4=None, pol_f=None, pol_q=None, WD=4, boost=0, rot=False, WV=None, maskpoll=False, pol_fg=None, pol_fp=None, mix=0, collector=True, fgwin=0, wofirst=False, refill=0, cstep=8, Wend=0, Nend=0, fasttail=False, qflag=False):
        s.qflag = qflag
        s.fasttail = fasttail
        s.Wend, s.Nend = Wend, Nend
        s.refill = refill; s.cstep = cstep
        s.wofirst = wofirst
        s.collector = collector; s.fgwin = fgwin
        s.mix = mix
        s.pol_fg = pol_hl if pol_fg is None else pol_fg; s.pol_fp = pol_hs if pol_fp is None else pol_fp
        s.maskpoll = maskpoll
        s.WV = WV or W
        s.rot = rot
        s.boost = boost
        s.WD = WD
        s.fineF = fineF; s.WO4 = WO4 or WO; s.pol_f = pol_w if pol_f is None else pol_f; s.pol_q = pol_w if pol_q is None else pol_q
        s.L = []
        s.W, s.P, s.B, s.WO, s.WF = W, P, B, WO, WF
        s.W0 = W0 or W
        s.pol_kv, s.pol_w, s.pol_hl, s.pol_hs = pol_kv, pol_w, pol_hl, pol_hs
        s.dbg = dbg; s.stamps = stamps; s.prio = prio; s.skip = skip.split(',')
        s.nlab = 0
    def A(s, t):
        for l in t.split('\n'):
            l = l.strip()
            if l: s.L.append(('  ' + l) if not l.endswith(':') else l)
    def lab(s, base):
        s.nlab += 1
        return f'L_{base}_{s.nlab}'

    def allreduce(s, op, v, t):
        A = s.A
        ins = {'add': 'v_add_f32', 'max': 'v_max_f32'}[op]
        A(f'{ins}_dpp v{v}, v{v}, v{v} quad_perm:[1,0,3,2] row_mask:0xf bank_mask:0xf')
        A(f'{ins}_dpp v{v}, v{v}, v{v} quad_perm:[2,3,0,1] row_mask:0xf bank_mask:0xf')
        A(f'{ins}_dpp v{v}, v{v}, v{v} row_half_mirror row_mask:0xf bank_mask:0xf')
        A(f'{ins}_dpp v{v}, v{v}, v{v} row_mirror row_mask:0xf bank_mask:0xf')
        A(f'v_mov_b32 v{t}, v{v}')
        A(f'v_permlane16_swap_b32 v{v}, v{t}')
        A(f'{ins} v{v}, v{v}, v{t}')
        A(f'v_mov_b32 v{t}, v{v}')
        A(f'v_permlane32_swap_b32 v{v}, v{t}')
        A(f'{ins} v{v}, v{v}, v{t}')

    def reduce_hi3(s, v, t):
        A = s.A
        A(f'v_add_f32_dpp v{v}, v{v}, v{v} row_ror:8 row_mask:0xf bank_mask:0xf')
        A(f'v_mov_b32 v{t}, v{v}')
        A(f'v_permlane16_swap_b32 v{v}, v{t}')
        A(f'v_add_f32 v{v}, v{v}, v{t}')
        A(f'v_mov_b32 v{t}, v{v}')
        A(f'v_permlane32_swap_b32 v{v}, v{t}')
        A(f'v_add_f32 v{v}, v{v}, v{t}')

    def bf16r(s, dst, src):
        s.A(f'v_cvt_pk_bf16_f32 v{dst}, v{src}, v{src}')
        s.A(f'v_lshlrev_b32 v{dst}, 16, v{dst}')

    def srd(s, n, ptr, size):
        s.A(f's_mov_b32 s{n}, s{ptr}\ns_and_b32 s{n+1}, s{ptr+1}, 0xffff\ns_mov_b32 s{n+2}, {hex(size)}\ns_mov_b32 s{n+3}, 0x20000')

    def stamp(s, idx):
        if s.stamps: s.A(f's_memrealtime s[{86+2*idx}:{87+2*idx}]')

    def stamp_store(s, n):
        if not s.stamps: return
        A = s.A
        A('s_waitcnt lgkmcnt(0)')
        A('s_lshl_b32 s100, s2, 3\ns_add_u32 s100, s100, s3\ns_lshl_b32 s100, s100, 6')
        A(f's_add_u32 s100, s100, {hex(W_DBG)}')
        A('v_mov_b32 v1, s100')
        A('s_mov_b64 exec, 1')
        for i in range(n):
            A(f'v_mov_b32 v2, s{86+2*i}')
            A(f'global_store_dword v1, v2, s[30:31] offset:{4*i}')
        A('s_mov_b64 exec, -1')

    def masks_Md(s, base, jreg, t1, t2, mod8=False):
        A = s.A
        if mod8: A(f'v_and_b32 v{t1}, 7, v{jreg}')
        else: A(f'v_mov_b32 v{t1}, v{jreg}')
        A(f'v_and_b32 v{t2}, 1, v{t1}')
        A(f'v_cmp_eq_u32 vcc, 1, v{t2}')
        A(f'v_mov_b32 v{t2}, 0xffff')
        A(f'v_mov_b32 v{base}, 0xffff0000')
        A(f'v_cndmask_b32 v{t2}, v{t2}, v{base}, vcc')
        A(f'v_lshrrev_b32 v{t1}, 1, v{t1}')
        for d in range(4):
            A(f'v_cmp_eq_u32 vcc, {d}, v{t1}')
            A(f'v_cndmask_b32 v{base+d}, 0, v{t2}, vcc')

    def layernorm(s, xr, out_pairs, tb):
        A = s.A
        f = tb
        a, t = tb + 10, tb + 11
        for i in range(5):
            A(f'v_lshlrev_b32 v{f+2*i}, 16, v{xr+i}')
            A(f'v_and_b32 v{f+2*i+1}, 0xffff0000, v{xr+i}')
        A(f'v_add_f32 v{a}, v{f}, v{f+1}\nv_add_f32 v{t}, v{f+2}, v{f+3}')
        for i in range(4, 10, 2): A(f'v_add_f32 v{a}, v{a}, v{f+i}\nv_add_f32 v{t}, v{t}, v{f+i+1}')
        A(f'v_add_f32 v{a}, v{a}, v{t}')
        s.allreduce('add', a, t)
        A(f'v_mul_f32 v{a}, 0x3acccccd, v{a}')
        v, d = tb + 12, tb + 13
        A(f'v_sub_f32 v{d}, v{f}, v{a}\nv_mul_f32 v{v}, v{d}, v{d}')
        for i in range(1, 10):
            A(f'v_sub_f32 v{d}, v{f+i}, v{a}\nv_fmac_f32 v{v}, v{d}, v{d}')
        s.allreduce('add', v, t)
        A(f'v_mul_f32 v{v}, 0x3acccccd, v{v}')
        s.bf16r(v, v)
        A(f'v_add_f32 v{v}, 0x3727c5ac, v{v}')
        s.bf16r(v, v)
        A(f'v_sqrt_f32 v{v}, v{v}')
        s.bf16r(v, v)
        s.bf16r(a, a)
        A(f'v_rcp_f32 v{t}, v{v}')
        for i in range(10):
            A(f'v_sub_f32 v{f+i}, v{f+i}, v{a}')
        for i in range(5):
            A(f'v_cvt_pk_bf16_f32 v{out_pairs+i}, v{f+2*i}, v{f+2*i+1}')
        for i in range(5):
            A(f'v_lshlrev_b32 v{f+2*i}, 16, v{out_pairs+i}')
            A(f'v_and_b32 v{f+2*i+1}, 0xffff0000, v{out_pairs+i}')
        for i in range(10):
            A(f'v_mul_f32 v{d}, v{f+i}, v{t}')
            A(f'v_fma_f32 v{f+i}, -v{d}, v{v}, v{f+i}')
            A(f'v_fma_f32 v{f+i}, v{f+i}, v{t}, v{d}')
        for i in range(5):
            A(f'v_cvt_pk_bf16_f32 v{out_pairs+i}, v{f+2*i}, v{f+2*i+1}')

    def build(s):
        A = s.A
        A(f'{NAME}_kernel:')
        A('s_cmp_ge_u32 s2, 256')
        A('s_cbranch_scc1 L_end')
        s.stamp(0)
        A('s_load_dwordx16 s[8:23], s[0:1], 0')
        A('s_load_dwordx8 s[24:31], s[0:1], 64')
        A('v_lshrrev_b32 v1, 6, v0')
        A('v_and_b32 v0, 63, v0')
        A('v_readfirstlane_b32 s3, v1')
        lni = s.lab('noinit')
        A('s_cmp_lg_u32 s3, 0')
        A(f's_cbranch_scc1 {lni}')
        A('v_mov_b32 v2, -1\nv_cmp_gt_u32 vcc, 32, v0\nv_cndmask_b32 v2, 0, v2, vcc\nv_lshlrev_b32 v3, 2, v0')
        A(f'ds_write_b32 v3, v2 offset:{L_ML}')
        A(f'{lni}:')
        A('s_and_b32 s64, s2, 7\ns_lshr_b32 s68, s2, 3')
        A('s_and_b32 s69, s68, 3\ns_lshl_b32 s69, s69, 3\ns_add_u32 s64, s64, s69')
        A('s_lshr_b32 s65, s68, 2\ns_and_b32 s65, s65, 3')
        A('s_lshr_b32 s66, s68, 4')
        A('s_lshl_b32 s67, s64, 1\ns_add_u32 s67, s67, s66')
        A('s_cmp_eq_u32 s66, 1\ns_cselect_b32 s84, s64, 99')
        A('s_waitcnt lgkmcnt(0)')
        A('s_cmp_ge_u32 s3, 4')
        A('s_cbranch_scc1 L_helper')
        s.streamer()
        A('L_helper:')
        s.helper()
        A('L_end:')
        A('s_endpgm')

    def streamer(s):
        A = s.A
        W, P, B, W0 = s.W, s.P, s.B, s.W0
        RING = 64
        assert RING + 4 * B <= 256 and P + W0 + max(1, s.refill) + 2 <= B + 1
        vKo, vVo = 1, 2
        vM = 4; vY = 8; vAcc = 24; vSc = 32; vO = 40; vYp = 44; vT = 52
        if s.prio: A('s_setprio 2')
        s.srd(32, 10, 0x8000000)
        s.srd(36, 12, 0x8000000)
        A(f'v_lshrrev_b32 v{vT}, 4, v0')
        A(f'v_lshlrev_b32 v{vT+3}, 2, v{vT}\nv_and_b32 v{vT+2}, 3, v0\nv_add_u32 v{vT+3}, v{vT+3}, v{vT+2}\nv_lshlrev_b32 v3, 4, v{vT+3}')
        A(f'v_lshlrev_b32 v{vT}, 6, v{vT}')
        A(f'v_bfe_u32 v{vT+1}, v0, 2, 2')
        A(f'v_lshlrev_b32 v{vT+1}, 8, v{vT+1}')
        A(f'v_lshlrev_b32 v{vT+2}, 4, v{vT+2}')
        A(f'v_add3_u32 v{vKo}, v{vT}, v{vT+1}, v{vT+2}')
        A(f'v_lshlrev_b32 v{vVo}, 4, v0')
        A('s_lshl_b32 s40, s65, 5\ns_add_u32 s40, s40, s64\ns_lshl_b32 s40, s40, 20')
        A('s_lshl_b32 s41, s66, 19\ns_add_u32 s40, s40, s41')
        A('s_lshl_b32 s41, s3, 12\ns_add_u32 s40, s40, s41')
        A('s_mov_b32 s41, s40')
        state = {'n': 0, 'win': W}
        def issue():
            n = state['n']; state['n'] += 1
            if n >= 256: return
            if n == 128: A('s_mov_b32 s41, s40')
            elif n % 4 == 0 and n > 0: A('s_add_u32 s41, s41, 0x4000')
            r = RING + 4 * (n % B)
            if n < 128:
                A(f'buffer_load_dwordx4 v[{r}:{r+3}], v{vKo}, s[32:35], s41 offen offset:{(n%4)*1024} {s.pol_kv}')
            else:
                A(f'buffer_load_dwordx4 v[{r}:{r+3}], v{vVo}, s[36:39], s41 offen offset:{(n%4)*1024} {s.pol_kv}')
        done = {'upto': -1}
        def paced_issue(w=None):
            w = w or W
            if state['n'] >= 256: return
            A(f's_waitcnt vmcnt({w-1})')
            done['upto'] = max(done['upto'], state['n'] - w)
            issue()
        def ensure(c):
            if c > done['upto']:
                A(f's_waitcnt vmcnt({state["n"] - 1 - c})')
                done['upto'] = c
        for _ in range(W0): issue()
        A('s_barrier')
        A(f'v_and_b32 v{vT}, 15, v0')
        s.masks_Md(vM, vT, vT+1, vT+2)
        A('s_mov_b32 s44, 0x22222222\ns_mov_b32 s45, 0x22222222')
        A('s_mov_b32 s46, 0x44444444\ns_mov_b32 s47, 0x44444444')
        A('s_mov_b32 s48, 0x88888888\ns_mov_b32 s49, 0x88888888')
        for t in range(4):
            m = 0x000F000F << (4 * t)
            A(f's_mov_b32 s{50+2*t}, {hex(m)}\ns_mov_b32 s{51+2*t}, {hex(m)}')
        for _ in range(P): paced_issue(W0)
        s.stamp(1)
        if s.qflag:
            lp, ld = s.lab('qf'), s.lab('qfd')
            A(f'v_mov_b32 v{vT}, 0\ns_mov_b32 s61, 0x1000000')
            A(f'{lp}:')
            A(f'ds_read_b32 v{vT+1}, v{vT} offset:{L_FLAG + 48}')
            A('s_waitcnt lgkmcnt(0)')
            A(f'v_cmp_eq_u32 vcc, 1, v{vT+1}')
            A(f's_cbranch_vccnz {ld}')
            A('s_sub_u32 s61, s61, 1\ns_cmp_lg_u32 s61, 0')
            A(f's_cbranch_scc1 {lp}')
            A(f'{ld}:')
        else:
            A('s_barrier')
        s.stamp(2)
        A(f'ds_read_b128 v[56:59], v3 offset:{L_QB}')
        for _ in range(max(1, s.refill)): paced_issue()
        A('s_waitcnt lgkmcnt(0)')
        if s.dbg:
            A(f's_lshl_b32 s60, s2, 12\ns_lshl_b32 s61, s3, 10\ns_add_u32 s60, s60, s61\ns_add_u32 s60, s60, {hex(W_DBG + 0x100000)}')
            A(f'v_lshlrev_b32 v8, 4, v0\nv_add_u32 v8, s60, v8')
            A(f'global_store_dwordx4 v8, v[56:59], s[30:31]')
            A('s_waitcnt vmcnt(0)')
        for t in range(4):
            for d in range(4):
                A(f'v_cndmask_b32 v{vY+4*t+d}, 0, v{56+d}, s[{50+2*t}:{51+2*t}]')
        def post(g):
            a = vAcc + 4 * (g & 1)
            t = vT
            A(f'v_cndmask_b32 v{t}, v{a}, v{a+1}, s[44:45]')
            A(f'v_cndmask_b32 v{t}, v{t}, v{a+2}, s[46:47]')
            A(f'v_cndmask_b32 v{t}, v{t}, v{a+3}, s[48:49]')
            A(f'v_add_f32_dpp v{t}, v{t}, v{t} quad_perm:[1,0,3,2] row_mask:0xf bank_mask:0xf')
            q4 = vSc + (g >> 2)
            if (g & 3) == 0:
                A(f'v_add_f32_dpp v{q4}, v{t}, v{t} quad_perm:[2,3,0,1] row_mask:0xf bank_mask:0xf')
            else:
                A(f'v_add_f32_dpp v{t}, v{t}, v{t} quad_perm:[2,3,0,1] row_mask:0xf bank_mask:0xf')
                A(f'v_cndmask_b32 v{q4}, v{q4}, v{t}, s[{42+2*(g&3)}:{43+2*(g&3)}]')
        if s.boost or s.mix:
            A(f's_cmp_lt_u32 s3, {s.mix}\ns_cselect_b32 s59, 1, 0')
            A('s_and_b32 s58, s2, 7\ns_lshl_b32 s60, s65, 3\ns_add_u32 s58, s58, s60\ns_cmp_lt_u32 s58, 27\ns_cselect_b32 s58, 1, 0')
            A('s_cmp_eq_u32 s66, 0\ns_cselect_b32 s58, s58, 0')
            if not s.boost: A('s_mov_b32 s58, 0')
            A('s_or_b32 s58, s58, s59')
        def boosted_issue(w=None):
            w = w or W
            if state['n'] >= 256: return
            lb = s.lab('bo')
            A(f's_waitcnt vmcnt({w})')
            A('s_cmp_eq_u32 s58, 1')
            A(f's_cbranch_scc1 {lb}')
            A(f's_waitcnt vmcnt({w-1})')
            A(f'{lb}:')
            done['upto'] = max(done['upto'], state['n'] - (w + 1))
            issue()
        for c in range(128):
            g, t = c >> 2, c & 3
            backlog = state['n'] - c
            if c == s.boost and s.mix: A('s_mov_b32 s58, s59')
            hi = (s.boost and c < s.boost) or s.mix
            if hi and backlog <= W + 1: boosted_issue()
            elif backlog <= W: paced_issue()
            elif backlog > W + 1 and c % s.cstep == s.cstep - 1: (boosted_issue() if hi else paced_issue())
            ensure(c)
            r = RING + 4 * (c % B)
            a = vAcc + 4 * (g & 1)
            cin = '0' if t == 0 else f'v[{a}:{a+3}]'
            A(f'v_mfma_f32_16x16x32_bf16 v[{a}:{a+3}], v[{r}:{r+3}], v[{vY+4*t}:{vY+4*t+3}], {cin}')
            if t == 1 and g > 0: post(g - 1)
        paced_issue()
        post(31)
        s.stamp(3)
        if s.dbg:
            A(f's_lshl_b32 s60, s2, 13\ns_lshl_b32 s61, s3, 11\ns_add_u32 s60, s60, s61\ns_add_u32 s60, s60, {hex(W_DBG + 0x200000)}')
            A(f'v_lshlrev_b32 v{vT}, 2, v0\nv_add_u32 v{vT}, s60, v{vT}')
            for i in range(8):
                A(f'global_store_dword v{vT}, v{vSc+i}, s[30:31] offset:{256*i}')
            A('s_waitcnt vmcnt(0)')
        def round_pairs():
            for i in range(4):
                A(f'v_cvt_pk_bf16_f32 v{vT+i}, v{vSc+2*i}, v{vSc+2*i+1}')
            for i in range(4):
                A(f'v_lshlrev_b32 v{vSc+2*i}, 16, v{vT+i}')
                A(f'v_and_b32 v{vSc+2*i+1}, 0xffff0000, v{vT+i}')
        round_pairs()
        for i in range(8): A(f'v_mul_f32 v{vSc+i}, {hex(SCALE)}, v{vSc+i}')
        round_pairs()
        m, t2 = vT + 4, vT + 5
        A(f'v_max3_f32 v{m}, v{vSc}, v{vSc+1}, v{vSc+2}')
        A(f'v_max3_f32 v{m}, v{m}, v{vSc+3}, v{vSc+4}')
        A(f'v_max3_f32 v{m}, v{m}, v{vSc+5}, v{vSc+6}')
        A(f'v_max_f32 v{m}, v{m}, v{vSc+7}')
        s.allreduce('max', m, t2)
        paced_issue()
        for i in range(8): A(f'v_sub_f32 v{vSc+i}, v{vSc+i}, v{m}')
        for i in range(8): A(f'v_mul_f32 v{vSc+i}, {hex(LOG2E)}, v{vSc+i}')
        for i in range(8): A(f'v_exp_f32 v{vSc+i}, v{vSc+i}')
        l = m + 1
        t3 = vT + 6
        A(f'v_add_f32 v{l}, v{vSc}, v{vSc+1}')
        A(f'v_add_f32 v{t3}, v{vSc+2}, v{vSc+3}')
        A(f'v_add_f32 v{l}, v{l}, v{vSc+4}')
        A(f'v_add_f32 v{t3}, v{t3}, v{vSc+5}')
        A(f'v_add_f32 v{l}, v{l}, v{vSc+6}')
        A(f'v_add_f32 v{t3}, v{t3}, v{vSc+7}')
        A(f'v_add_f32 v{l}, v{l}, v{t3}')
        for i in range(8): A(f'v_cvt_pk_bf16_f32 v{vSc+i}, v{vSc+i}, v{vSc+i}')
        s.allreduce('add', l, t3)
        paced_issue()
        A(f'v_cmp_eq_u32 vcc, -1, v{m}')
        A(f'v_mov_b32 v{t3}, 0x7fc00000')
        A(f'v_cndmask_b32 v{m}, v{m}, v{t3}, vcc')
        A(f's_lshl_b32 s60, s3, 3\nv_mov_b32 v{t3}, s60')
        A(f'ds_write_b64 v{t3}, v[{m}:{m+1}] offset:{L_ML}')
        def ybuild(c):
            g, t = (c - 128) >> 2, c & 3
            y = vYp + 4 * (c & 1)
            for d in range(4):
                A(f'v_and_b32_dpp v{y+d}, v{vSc+(g>>2)}, v{vM+d} row_newbcast:{4*t+(g&3)} row_mask:0xf bank_mask:0xf')
        ybuild(128)
        WV = s.WV
        for c in range(128, 256):
            if state['n'] < 256:
                if s.mix:
                    if state['n'] - c <= WV + 1: boosted_issue(WV)
                    elif c % 4 == 3: boosted_issue(WV)
                elif s.Nend and state['n'] >= 256 - s.Nend:
                    while state['n'] < 256 and state['n'] - c <= s.Wend - 1: paced_issue(s.Wend)
                    if state['n'] < 256 and state['n'] - c <= s.Wend: paced_issue(s.Wend)
                elif state['n'] - c <= WV: paced_issue(WV)
                elif c % 4 == 3: paced_issue(WV)
            if c == 240:
                A(f's_lshl_b32 s60, s3, 2\nv_mov_b32 v{vT}, s60')
                A(f'ds_read_b32 v{vT+1}, v{vT} offset:{L_WF}')
            if c == 244:
                A(f'v_and_b32 v{vT+2}, 3, v0\nv_lshlrev_b32 v{vT+2}, 5, v{vT+2}')
                A(f'v_lshrrev_b32 v{vT+3}, 4, v0\nv_lshlrev_b32 v{vT+3}, 3, v{vT+3}')
                if s.rot:
                    A(f'v_add_u32 v{vT+2}, v{vT+2}, v{vT+3}')
                    A(f's_lshl_b32 s60, s65, 1\ns_add_u32 s60, s60, s66')
                    A(f'v_bfe_u32 v{vT+4}, v0, 2, 1\nv_subrev_u32 v{vT+4}, s60, v{vT+4}')
                    for r4 in range(4):
                        A(f'v_add_u32 v{vT+8+r4}, {2*r4}, v{vT+4}\nv_and_b32 v{vT+8+r4}, 7, v{vT+8+r4}\nv_add_u32 v{vT+8+r4}, v{vT+8+r4}, v{vT+2}\nv_lshlrev_b32 v{vT+8+r4}, 2, v{vT+8+r4}')
                        A(f's_lshl_b32 s60, s3, 9\nv_add_u32 v{vT+8+r4}, s60, v{vT+8+r4}')
                else:
                    A(f'v_bfe_u32 v{vT+4}, v0, 2, 1')
                    A(f'v_add3_u32 v{vT+2}, v{vT+2}, v{vT+3}, v{vT+4}')
                    A(f'v_lshlrev_b32 v{vT+2}, 2, v{vT+2}')
                    A(f's_lshl_b32 s60, s3, 9\nv_add_u32 v{vT+2}, s60, v{vT+2}')
            if c + 1 < 256: ybuild(c + 1)
            ensure(c)
            r = RING + 4 * (c % B)
            y = vYp + 4 * (c & 1)
            cin = '0' if c == 128 else f'v[{vO}:{vO+3}]'
            A(f'v_mfma_f32_16x16x32_bf16 v[{vO}:{vO+3}], v[{r}:{r+3}], v[{y}:{y+3}], {cin}')
        s.stamp(4)
        lp, ld = s.lab('wf'), s.lab('wfd')
        A('s_waitcnt lgkmcnt(0)')
        A(f'v_cmp_ne_u32 vcc, -1, v{vT+1}')
        A(f's_cbranch_vccnz {ld}')
        A('s_mov_b32 s61, 0x400000')
        A(f'{lp}:')
        A(f'ds_read_b32 v{vT+1}, v{vT} offset:{L_WF}')
        A('s_waitcnt lgkmcnt(0)')
        A(f'v_cmp_ne_u32 vcc, -1, v{vT+1}')
        A(f's_cbranch_vccnz {ld}')
        A('s_sleep 1')
        A('s_sub_u32 s61, s61, 1\ns_cmp_lg_u32 s61, 0')
        A(f's_cbranch_scc1 {lp}')
        A(f'{ld}:')
        for r in range(4): A(f'v_mul_f32 v{vO+r}, v{vO+r}, v{vT+1}')
        A('s_mov_b32 exec_lo, 0x00ff00ff\ns_mov_b32 exec_hi, 0x00ff00ff')
        if s.rot:
            for r in range(4): A(f'ds_write_b32 v{vT+8+r}, v{vO+r} offset:{L_OPART}')
        else:
            for r in range(4): A(f'ds_write_b32 v{vT+2}, v{vO+r} offset:{L_OPART+8*r}')
        A('s_mov_b64 exec, -1')
        A('s_waitcnt lgkmcnt(0)')
        A('s_barrier')
        s.stamp(5)
        s.stamp_store(6)
        A('s_endpgm')

    def lds_flag_wait(s, off, vt):
        A = s.A
        lp, ld = s.lab('fl'), s.lab('fld')
        A(f'v_and_b32 v{vt}, 3, v0\nv_lshlrev_b32 v{vt}, 2, v{vt}')
        A('s_mov_b32 s61, 0x1000000')
        A(f'{lp}:')
        A(f'ds_read_b32 v{vt+1}, v{vt} offset:{off}')
        A('s_waitcnt lgkmcnt(0)')
        A(f'v_cmp_ne_u32 vcc, 1, v{vt+1}')
        A(f's_cbranch_vccz {ld}')
        A('s_sub_u32 s61, s61, 1\ns_cmp_lg_u32 s61, 0')
        A(f's_cbranch_scc1 {lp}')
        A(f'{ld}:')

    def spoll(s, n, check, sleep=1):
        A = s.A
        lp, ld = s.lab('sp'), s.lab('spd')
        A('s_add_u32 s4, s30, s60\ns_addc_u32 s5, s31, 0')
        A('s_mov_b32 s61, 0x200000')
        A(f'{lp}:')
        A(f's_load_dwordx{n} s[76:{76+n-1}], s[4:5], 0 glc' if n > 1 else 's_load_dword s76, s[4:5], 0 glc')
        A('s_waitcnt lgkmcnt(0)')
        A(f's_xor_b32 s6, s{76+check[0]}, s58')
        for c in check[1:]: A(f's_xor_b32 s7, s{76+c}, s58\ns_or_b32 s6, s6, s7')
        A('s_cmp_eq_u32 s6, 0')
        A(f's_cbranch_scc1 {ld}')
        if sleep: A(f's_sleep {sleep}')
        A('s_sub_u32 s61, s61, 1\ns_cmp_lg_u32 s61, 0')
        A(f's_cbranch_scc1 {lp}')
        A(f'{ld}:')

    def flag_store(s, lanes, vaddr, soff):
        A = s.A
        A(f'v_mov_b32 v15, s58')
        A(f's_mov_b64 exec, {lanes}')
        A(f'buffer_store_dword v15, v{vaddr}, s[44:47], {soff} offen sc1')
        A('s_mov_b64 exec, -1')

    def helper(s):
        A = s.A
        DATA = 96
        vM = 4
        A('s_sub_u32 s63, s3, 4')
        A('s_mov_b32 s59, 0')
        A(f's_add_u32 s4, s30, {hex(W_NONCE)}\ns_addc_u32 s5, s31, 0')
        A('s_load_dword s58, s[4:5], 0')
        s.srd(32, 14, 640 * 4096 * 2)
        s.srd(40, 8, 5120)
        s.srd(44, 30, WS_SIZE)
        A('s_mul_i32 s60, s63, 1280')
        A('v_lshlrev_b32 v1, 2, v0')
        for t in range(5):
            A(f'buffer_load_dword v{16+t}, v1, s[40:43], s60 offen offset:{256*t}')
        A('v_lshrrev_b32 v2, 4, v0\nv_lshlrev_b32 v2, 13, v2\nv_and_b32 v3, 15, v0\nv_lshlrev_b32 v3, 4, v3\nv_add_u32 v2, v2, v3')
        A('s_lshl_b32 s57, s65, 1\ns_add_u32 s57, s57, s66')
        A('s_mul_i32 s56, s57, 80\ns_mul_i32 s60, s63, 20\ns_add_u32 s56, s56, s60')
        A('s_lshl_b32 s60, s56, 13\ns_lshl_b32 s61, s64, 8\ns_add_u32 s60, s60, s61')
        for u in range(5):
            A(f'buffer_load_dwordx4 v[{DATA+4*u}:{DATA+4*u+3}], v2, s[32:35], s60 offen {s.pol_q}')
            if u < 4: A('s_add_u32 s60, s60, 0x8000')
        A('s_barrier')
        s.srd(36, 16, 4096 * 640 * 2)
        A('v_and_b32 v9, 15, v0')
        s.masks_Md(vM, 9, 10, 11, mod8=True)
        A('s_waitcnt vmcnt(5) lgkmcnt(0)')
        A('s_add_u32 s58, s58, 1')
        s.layernorm(16, 24, 32)
        A(f's_mul_i32 s60, s63, 1280\nv_add_u32 v9, s60, v1')
        for t in range(5):
            A(f'ds_write_b32 v9, v{24+t} offset:{L_XN + 256*t}')
        A(f's_lshl_b32 s60, s63, 2\nv_mov_b32 v9, s60\nv_mov_b32 v10, 1')
        A(f'ds_write_b32 v9, v10 offset:{L_FLAG}')
        A('v_bfe_u32 v12, v0, 3, 1\nv_mul_u32_u24 v12, 1280, v12\nv_lshrrev_b32 v13, 4, v0\nv_lshlrev_b32 v13, 1, v13\nv_add_u32 v12, v12, v13')
        A('s_lshl_b32 s60, s56, 1\nv_add_u32 v12, s60, v12')
        s.lds_flag_wait(L_FLAG, 14)
        for bp in range(2):
            for u in range(5):
                A(f'ds_read_u16 v{40+5*bp+u}, v12 offset:{L_XN + bp*2560 + u*8}')
        A('v_bfe_u32 v9, v0, 3, 1\nv_lshlrev_b32 v9, 9, v9\nv_lshrrev_b32 v10, 4, v0\nv_lshlrev_b32 v10, 7, v10\nv_and_b32 v11, 7, v0\nv_lshlrev_b32 v11, 2, v11\nv_add3_u32 v9, v9, v10, v11')
        A('s_lshl_b32 s60, s63, 11\nv_add_u32 v9, s60, v9')
        A('s_waitcnt lgkmcnt(0)')
        for k in range(10): A(f'v_lshl_or_b32 v{40+k}, v{40+k}, 16, v{40+k}')
        A('s_waitcnt vmcnt(0)')
        for u in range(5):
            for bp in range(2):
                y = 60 + 4 * ((2 * u + bp) & 3)
                for d in range(4): A(f'v_and_b32 v{y+d}, v{40+5*bp+u}, v{vM+d}')
                a = 52 + 4 * bp
                A(f'v_mfma_f32_16x16x32_bf16 v[{a}:{a+3}], v[{DATA+4*u}:{DATA+4*u+3}], v[{y}:{y+3}], ' + ('0' if u == 0 else f'v[{a}:{a+3}]'))
        for bp in range(2):
            for r in range(4):
                A(f'ds_write_b32 v9, v{52+4*bp+r} offset:{L_QP + bp*1024 + r*32}')
        A(f's_lshl_b32 s60, s63, 2\nv_mov_b32 v10, s60\nv_mov_b32 v11, 1')
        A(f'ds_write_b32 v10, v11 offset:{L_FLAG + 16}')
        A('s_lshl_b32 s69, s64, 2\ns_add_u32 s69, s69, s63\ns_lshl_b32 s69, s69, 3\ns_add_u32 s69, s69, s57')
        A(f's_lshl_b32 s62, s69, 9\ns_add_u32 s62, s62, {hex(W_Q)}')
        A('v_lshlrev_b32 v13, 3, v0')
        A('s_lshl_b32 s60, s63, 9\nv_add_u32 v12, s60, v13')
        s.lds_flag_wait(L_FLAG + 16, 14)
        for w in range(4):
            A(f'ds_read_b64 v[{16+2*w}:{17+2*w}], v12 offset:{L_QP + 2048*w}')
        A('s_waitcnt lgkmcnt(0)')
        A('v_add_f32 v16, v16, v18\nv_add_f32 v17, v17, v19\nv_add_f32 v20, v20, v22\nv_add_f32 v21, v21, v23')
        A('v_add_f32 v24, v16, v20\nv_add_f32 v25, v17, v21')
        A(f'buffer_store_dwordx2 v[24:25], v13, s[44:47], s62 offen {s.pol_hs}')
        A(f's_lshr_b32 s62, s69, 3\ns_lshl_b32 s62, s62, 7\ns_lshl_b32 s61, s57, 2\ns_add_u32 s62, s62, s61\ns_add_u32 s62, s62, {hex(W_FLAGQ)}\nv_mov_b32 v14, 0')
        A('s_waitcnt vmcnt(0)')
        s.flag_store('1', 14, 's62')
        lq = s.lab('noq')
        A('s_cmp_lg_u32 s63, 0')
        A(f's_cbranch_scc1 {lq}')
        A(f's_lshl_b32 s69, s64, 2\ns_add_u32 s69, s69, s65')
        A(f's_lshl_b32 s60, s69, 7\ns_add_u32 s60, s60, {hex(W_FLAGQ)}')
        s.spoll(8, list(range(8)))
        A(f's_lshl_b32 s60, s69, 12\ns_add_u32 s60, s60, {hex(W_Q)}')
        A('v_lshlrev_b32 v13, 4, v0')
        for t in range(4):
            A(f'buffer_load_dwordx4 v[{16+4*t}:{19+4*t}], v13, s[44:47], s60 offen offset:{t*1024} {s.pol_hl}')
        A('v_and_b32 v12, 31, v0\nv_lshlrev_b32 v12, 3, v12')
        A('s_waitcnt vmcnt(0)')
        for k in range(4):
            A(f'v_add_f32 v{16+k}, v{16+k}, v{20+k}\nv_add_f32 v{24+k}, v{24+k}, v{28+k}')
        for k in range(4): A(f'v_add_f32 v{16+k}, v{16+k}, v{24+k}')
        for k in range(4): A(f'v_mov_b32 v{20+k}, v{16+k}')
        for k in range(4): A(f'v_permlane32_swap_b32 v{16+k}, v{20+k}')
        for k in range(4): A(f'v_add_f32 v{16+k}, v{16+k}, v{20+k}')
        A('v_cvt_pk_bf16_f32 v16, v16, v17\nv_cvt_pk_bf16_f32 v17, v18, v19')
        A(f'ds_write_b64 v12, v[16:17] offset:{L_QB}')
        if s.qflag: A(f'v_mov_b32 v12, 0\nv_mov_b32 v13, 1\nds_write_b32 v12, v13 offset:{L_FLAG + 48}')
        A(f'{lq}:')
        A('s_waitcnt lgkmcnt(0)')
        s.stamp(1)
        if not s.qflag: A('s_barrier')
        l_wo = s.lab('wo')
        s.ffn(l_wo)
        A(f'{l_wo}:')
        A('v_lshrrev_b32 v2, 4, v0\nv_mul_u32_u24 v2, 1280, v2\nv_and_b32 v3, 15, v0\nv_lshlrev_b32 v3, 4, v3\nv_add_u32 v2, v2, v3')
        A('s_lshl_b32 s60, s64, 7\ns_lshl_b32 s61, s63, 5\ns_add_u32 s60, s60, s61\ns_mul_i32 s60, s60, 1280')
        if 'wo_v' in s.skip:
            A('s_lshl_b32 s6, s2, 19\ns_add_u32 s72, s12, s6\ns_addc_u32 s73, s13, 0\ns_and_b32 s73, s73, 0xffff\ns_mov_b32 s74, 0x80000\ns_mov_b32 s75, 0x20000')
            A('s_and_b32 s60, s60, 0x3ffff')
        def wo_loads(win):
            n = 0
            for u in range(8):
                for cb in range(5):
                    if n >= win: A(f's_waitcnt vmcnt({win-1})')
                    r = DATA + 4 * (u * 5 + cb)
                    if 'wo_v' in s.skip: A(f'buffer_load_dwordx4 v[{r}:{r+3}], v2, s[72:75], s60 offen offset:{cb*256} nt')
                    elif 'wo' not in s.skip: A(f'buffer_load_dwordx4 v[{r}:{r+3}], v2, s[36:39], s60 offen offset:{cb*256} {s.pol_w}')
                    n += 1
                if u < 7:
                    if s.rot: A(f's_add_u32 s6, s57, {u+1}\ns_and_b32 s6, s6, 7\ns_mul_i32 s6, s6, 5120\ns_add_u32 s60, s7, s6')
                    else: A('s_add_u32 s60, s60, 5120')
        if s.rot:
            A('s_mov_b32 s7, s60\ns_mul_i32 s6, s57, 5120\ns_add_u32 s60, s7, s6')
        if s.WO4 != s.WO and not s.wofirst:
            l4, l5 = s.lab('wo4'), s.lab('wod')
            A('s_cmp_eq_u32 s59, 1')
            A(f's_cbranch_scc1 {l4}')
            wo_loads(s.WO)
            A(f's_branch {l5}')
            A(f'{l4}:')
            wo_loads(s.WO4)
            A(f'{l5}:')
        else:
            wo_loads(s.WO)
        s.stamp(2)
        if s.wofirst and 'ffn' not in s.skip:
            lnf = s.lab('noffn')
            A('s_cmp_lg_u32 s59, 1')
            A(f's_cbranch_scc1 {lnf}')
            s.ffn_rest()
            A(f'{lnf}:')
        l_tail, l_w7 = s.lab('tail'), s.lab('w7')
        A('s_cmp_eq_u32 s63, 3')
        A(f's_cbranch_scc1 {l_w7}')
        if s.collector and 'ffn' not in s.skip:
            l_nc = s.lab('nocol')
            A('s_cmp_lg_u32 s63, 2')
            A(f's_cbranch_scc1 {l_nc}')
            A('s_cmp_lg_u32 s2, 255')
            A(f's_cbranch_scc1 {l_tail}')
            s.collect()
            A(f's_branch {l_tail}')
            A(f'{l_nc}:')
        A('s_cmp_lg_u32 s63, 1')
        A(f's_cbranch_scc1 {l_tail}')
        s.mlx()
        A(f's_branch {l_tail}')
        A(f'{l_w7}:')
        s.consumer_prep(l_tail)
        A(f'{l_tail}:')
        s.tail()

    def ffn(s, l_skip):
        A = s.A
        DATA = 96
        if 'ffn' in s.skip: return
        A('s_cmp_lg_u32 s66, 0')
        A(f's_cbranch_scc1 {l_skip}')
        A('s_and_b32 s70, s2, 7\ns_lshl_b32 s61, s65, 3\ns_add_u32 s70, s70, s61')
        A('s_cmp_ge_u32 s70, 27')
        A(f's_cbranch_scc1 {l_skip}')
        A('s_lshr_b32 s71, s2, 3\ns_and_b32 s71, s71, 3')
        A('s_lshl_b32 s68, s70, 2\ns_add_u32 s68, s68, s71')
        s.srd(48, 20, 640 * 1728 * 2)
        s.srd(52, 22, 640 * 1728 * 2)
        s.srd(72, 24, 1728 * 640 * 2)
        A('v_lshrrev_b32 v9, 3, v0\nv_mul_u32_u24 v9, 3456, v9\nv_and_b32 v10, 7, v0\nv_lshlrev_b32 v10, 4, v10\nv_add_u32 v9, v9, v10')
        A(f's_mul_i32 s60, s71, {160*3456}\ns_lshl_b32 s61, s70, 7\ns_add_u32 s60, s60, s61\ns_mul_i32 s61, s63, {40*3456}\ns_add_u32 s60, s60, s61')
        A(f's_mul_i32 s62, s63, 5120\ns_add_u32 s69, s62, {L_WU}\ns_add_u32 s62, s62, {L_WG}')
        n = 0
        for t in range(5):
            for srd, mreg in (('s[48:51]', 's62'), ('s[52:55]', 's69')):
                if n >= s.WF: A(f's_waitcnt vmcnt({s.WF-1})')
                A(f's_mov_b32 m0, {mreg}')
                if 'f_dma' not in s.skip: A(f'buffer_load_dwordx4 v9, {srd}, s60 offen {s.pol_f} lds')
                n += 1
            if t < 4: A(f's_add_u32 s60, s60, {8*3456}\ns_add_u32 s62, s62, 1024\ns_add_u32 s69, s69, 1024')
        lw4 = s.lab('w4')
        A('s_cmp_eq_u32 s63, 0')
        A(f's_cbranch_scc1 {lw4}')
        A('s_waitcnt vmcnt(0)')
        A(f's_lshl_b32 s60, s63, 2\nv_mov_b32 v10, s60\nv_mov_b32 v11, 1')
        A(f'ds_write_b32 v10, v11 offset:{L_FLAG + 32}')
        A(f's_branch {l_skip}')
        A(f'{lw4}:')
        A('s_mov_b32 s59, 1')
        if s.wofirst: return
        s.ffn_rest()

    def ffn_rest(s):
        A = s.A
        DATA = 96
        A('v_and_b32 v9, 3, v0\nv_mul_u32_u24 v9, 1280, v9\nv_lshrrev_b32 v10, 4, v0\nv_lshlrev_b32 v11, 3, v10\nv_add_u32 v9, v9, v11')
        A('s_mul_i32 s60, s71, 320\nv_add_u32 v9, s60, v9')
        A('v_lshlrev_b32 v10, 2, v10\nv_bfe_u32 v11, v0, 2, 2\nv_add_u32 v10, v10, v11\nv_lshlrev_b32 v10, 7, v10\nv_and_b32 v11, 3, v0\nv_lshlrev_b32 v11, 3, v11\nv_add_u32 v10, v10, v11')
        A(f'v_add_u32 v8, {L_WU - L_WG}, v10')
        A('s_waitcnt vmcnt(0)')
        A(f'v_mov_b32 v12, 0\nv_mov_b32 v13, 1\nds_write_b32 v12, v13 offset:{L_FLAG + 32}')
        s.lds_flag_wait(L_FLAG + 32, 14)
        if s.fineF: s.stamp(3)
        ag, au = 12, 28
        for ks in range(5):
            o = 44
            A(f'ds_read_b64 v[{o}:{o+1}], v9 offset:{L_XN + 64*ks}')
            A(f'ds_read_b64 v[{o+2}:{o+3}], v9 offset:{L_XN + 64*ks + 32}')
            for ct in range(4):
                q = 48 + 8 * ct
                A(f'ds_read_b64_tr_b16 v[{q}:{q+1}], v10 offset:{L_WG + 4096*ks + 32*ct}')
                A(f'ds_read_b64_tr_b16 v[{q+2}:{q+3}], v10 offset:{L_WG + 4096*ks + 32*ct + 2048}')
                A(f'ds_read_b64_tr_b16 v[{q+4}:{q+5}], v8 offset:{L_WG + 4096*ks + 32*ct}')
                A(f'ds_read_b64_tr_b16 v[{q+6}:{q+7}], v8 offset:{L_WG + 4096*ks + 32*ct + 2048}')
                if ct == 2: A('s_waitcnt lgkmcnt(6)')
            A('s_waitcnt lgkmcnt(0)')
            for ct in range(4):
                q = 48 + 8 * ct
                A(f'v_mfma_f32_16x16x32_bf16 v[{ag+4*ct}:{ag+4*ct+3}], v[{o}:{o+3}], v[{q}:{q+3}], ' + ('0' if ks == 0 else f'v[{ag+4*ct}:{ag+4*ct+3}]'))
                A(f'v_mfma_f32_16x16x32_bf16 v[{au+4*ct}:{au+4*ct+3}], v[{o}:{o+3}], v[{q+4}:{q+7}], ' + ('0' if ks == 0 else f'v[{au+4*ct}:{au+4*ct+3}]'))
        A('s_mov_b32 s76, 0xffff0000\ns_mov_b32 s77, 0\ns_mov_b32 s78, 0\ns_mov_b32 s79, 0xffff\ns_mov_b32 s80, 0\ns_mov_b32 s81, 0xffff0000')
        A('v_lshlrev_b32 v9, 3, v0')
        A(f's_lshl_b32 s62, s70, 13\ns_lshl_b32 s69, s71, 9\ns_add_u32 s62, s62, s69\ns_add_u32 s62, s62, {hex(W_FX)}')
        for ct in range(4):
            o = 48 + 2 * ct
            for base, dst in ((ag, o), (au, o + 1)):
                a = base + 4 * ct
                A(f'v_cndmask_b32 v{dst}, v{a}, v{a+1}, s[76:77]')
                A(f'v_cndmask_b32 v{dst}, v{dst}, v{a+2}, s[78:79]')
                A(f'v_cndmask_b32 v{dst}, v{dst}, v{a+3}, s[80:81]')
            if 'f_x' not in s.skip: A(f'buffer_store_dwordx2 v[{o}:{o+1}], v9, s[44:47], s62 offen {s.pol_hs}')
            if ct < 3: A('s_add_u32 s62, s62, 2048')
        A('v_lshrrev_b32 v2, 4, v0\nv_mul_u32_u24 v2, 1280, v2\nv_and_b32 v3, 15, v0\nv_lshlrev_b32 v3, 4, v3\nv_add_u32 v2, v2, v3')
        A('s_mul_i32 s60, s68, 20480')
        def wd_batch(cb, base):
            for u in range(4):
                A(f's_add_u32 s6, s85, {u*5120}')
                if 'f_wd' not in s.skip: A(f'buffer_load_dwordx4 v[{base+4*u}:{base+4*u+3}], v2, s[72:75], s6 offen offset:{cb*256} {s.pol_f}')
        s._wd_batch = wd_batch
        if s.wofirst:
            A('s_mov_b32 s85, s60')
            wd_batch(0, 56); wd_batch(1, 72)
            nwd = 8
        else:
            for u in range(4):
                for cb in range(5):
                    r = DATA + 4 * (u * 5 + cb)
                    if 'f_wd' not in s.skip: A(f'buffer_load_dwordx4 v[{r}:{r+3}], v2, s[72:75], s60 offen offset:{cb*256} {s.pol_f}')
                if u < 3: A('s_add_u32 s60, s60, 5120')
            nwd = 20
        A(f's_lshl_b32 s62, s70, 9\ns_lshl_b32 s69, s71, 2\ns_add_u32 s62, s62, s69\ns_add_u32 s62, s62, {hex(W_FLAGF)}\nv_lshlrev_b32 v14, 7, v0')
        A(f's_waitcnt vmcnt({nwd})' if 'f_wd' not in s.skip else 's_waitcnt vmcnt(0)')
        if 'f_x' not in s.skip: s.flag_store('0xf', 14, 's62')
        if s.fineF: s.stamp(4)
        A(f's_lshl_b32 s60, s68, 7\ns_add_u32 s60, s60, {hex(W_FLAGF)}')
        if 'f_x' not in s.skip: s.spoll(4, [0, 1, 2, 3], sleep=2)
        A(f's_lshl_b32 s60, s68, 11\ns_add_u32 s60, s60, {hex(W_FX)}')
        for t in range(4):
            if 'f_x' not in s.skip: A(f'buffer_load_dwordx2 v[{12+2*t}:{13+2*t}], v9, s[44:47], s60 offen offset:{t*512} {s.pol_hl}')
        A('s_waitcnt vmcnt(0)')
        if s.fineF: s.stamp(5)
        A('v_add_f32 v12, v12, v14\nv_add_f32 v16, v16, v18\nv_add_f32 v12, v12, v16')
        A('v_add_f32 v13, v13, v15\nv_add_f32 v17, v17, v19\nv_add_f32 v14, v13, v17')
        g_, u_, t0, t1 = 12, 14, 20, 21
        s.bf16r(g_, g_)
        s.bf16r(u_, u_)
        A(f'v_mul_f32 v{t0}, v{g_}, v{g_}\nv_mul_f32 v{t0}, v{t0}, v{g_}')
        A(f'v_mov_b32 v{t1}, 0x3d372713\nv_fma_f32 v{t0}, v{t0}, v{t1}, v{g_}')
        A(f'v_mul_f32 v{t0}, 0x3f4c422a, v{t0}')
        A(f'v_mul_f32 v{t0}, 0x4038aa3b, v{t0}')
        A(f'v_exp_f32 v{t0}, v{t0}')
        A(f'v_add_f32 v{t0}, 1.0, v{t0}')
        A(f'v_rcp_f32 v{t0}, v{t0}')
        A(f'v_fma_f32 v{t0}, v{t0}, -2.0, 1.0')
        A(f'v_add_f32 v{t0}, 1.0, v{t0}')
        A(f'v_mul_f32 v{t1}, 0.5, v{g_}')
        A(f'v_mul_f32 v{t0}, v{t1}, v{t0}')
        s.bf16r(t0, t0)
        A(f'v_mul_f32 v{t0}, v{t0}, v{u_}')
        A(f'v_cvt_pk_bf16_f32 v{g_}, v{t0}, v{t0}')
        A('v_lshrrev_b32 v9, 4, v0\nv_lshlrev_b32 v9, 6, v9\nv_and_b32 v10, 3, v0\nv_lshlrev_b32 v10, 4, v10\nv_bfe_u32 v11, v0, 2, 2\nv_lshlrev_b32 v11, 2, v11\nv_add3_u32 v9, v9, v10, v11')
        A(f'ds_write_b32 v9, v{g_} offset:{L_HT}')
        if s.dbg:
            A(f's_lshl_b32 s60, s68, 8\ns_add_u32 s60, s60, {hex(W_DBG + 0x500000)}')
            A('v_lshlrev_b32 v10, 2, v0\nv_add_u32 v10, s60, v10')
            A(f'global_store_dword v10, v{g_}, s[30:31]')
        A('v_bfe_u32 v9, v0, 3, 1\nv_lshlrev_b32 v9, 2, v9\nv_lshrrev_b32 v10, 4, v0\nv_add_u32 v9, v9, v10\nv_lshlrev_b32 v9, 4, v9')
        A('s_waitcnt lgkmcnt(0)')
        A(f'ds_read_b128 v[12:15], v9 offset:{L_HT}')
        A(f'ds_read_b128 v[16:19], v9 offset:{L_HT + 128}')
        A('v_bfe_u32 v9, v0, 3, 1\nv_mul_u32_u24 v9, 640, v9\nv_lshrrev_b32 v10, 4, v0\nv_lshlrev_b32 v10, 5, v10\nv_and_b32 v11, 7, v0\nv_add3_u32 v9, v9, v10, v11\nv_lshlrev_b32 v9, 2, v9')
        A('s_waitcnt vmcnt(0) lgkmcnt(0)')
        if s.wofirst:
            for bp in range(2):
                for u in range(4):
                    for d in range(4): A(f'v_and_b32 v{20+16*bp+4*u+d}, v{12+4*bp+u}, v{4+d}')
            for cb in range(5):
                base = 56 if cb % 2 == 0 else 72
                if cb >= 2: A(f's_waitcnt vmcnt({4 if cb < 4 else 0})')
                for bp in range(2):
                    a = 88 + 4 * bp if False else (12 + 4 * bp)
                    for u in range(4):
                        A(f'v_mfma_f32_16x16x32_bf16 v[{a}:{a+3}], v[{base+4*u}:{base+4*u+3}], v[{20+16*bp+4*u}:{23+16*bp+4*u}], ' + ('0' if u == 0 else f'v[{a}:{a+3}]'))
                if cb + 2 < 5: s._wd_batch(cb + 2, base)
                for bp in range(2):
                    for r in range(4):
                        A(f'ds_write_b32 v9, v{12+4*bp+r} offset:{L_YPART + bp*5120 + cb*512 + r*32}')
        else:
            for u in range(4):
                for bp in range(2):
                    y = 60 + 4 * ((2 * u + bp) & 3)
                    for d in range(4): A(f'v_and_b32 v{y+d}, v{12+4*bp+u}, v{4+d}')
                    for cb in range(5):
                        a = 20 + 8 * cb + 4 * bp
                        r = DATA + 4 * (u * 5 + cb)
                        A(f'v_mfma_f32_16x16x32_bf16 v[{a}:{a+3}], v[{r}:{r+3}], v[{y}:{y+3}], ' + ('0' if u == 0 else f'v[{a}:{a+3}]'))
            for cb in range(5):
                for bp in range(2):
                    for r in range(4):
                        A(f'ds_write_b32 v9, v{20+8*cb+4*bp+r} offset:{L_YPART + bp*5120 + cb*512 + r*32}')
        A('s_waitcnt lgkmcnt(0)')
        A('v_lshlrev_b32 v9, 4, v0')
        A(f's_mul_i32 s60, s68, 10240\ns_add_u32 s60, s60, {hex(W_FPART)}')
        for t in range(10):
            A(f'ds_read_b128 v[{12+4*t}:{15+4*t}], v9 offset:{L_YPART + 1024*t}')
        A('s_waitcnt lgkmcnt(0)')
        for t in range(10):
            if 'f_pub' not in s.skip: A(f'buffer_store_dwordx4 v[{12+4*t}:{15+4*t}], v9, s[44:47], s60 offen offset:{(t%4)*1024} {s.pol_fp}')
            if t % 4 == 3: A('s_add_u32 s60, s60, 4096')
        A(f's_lshl_b32 s62, s68, 2\ns_add_u32 s62, s62, {hex(W_FLAGP)}\nv_mov_b32 v9, 0')
        A('s_waitcnt vmcnt(0)')
        s.flag_store('1', 9, 's62')
        if s.fineF: s.stamp(6)

    def wait_ml(s):
        A = s.A
        lp, ld = s.lab('ml'), s.lab('mld')
        A(f'v_and_b32 v9, 3, v0\nv_lshlrev_b32 v9, 3, v9')
        A('s_mov_b32 s61, 0x400000')
        A(f'{lp}:')
        A(f'ds_read_b64 v[10:11], v9 offset:{L_ML}')
        A('s_waitcnt lgkmcnt(0)')
        A('v_cmp_eq_u32 vcc, -1, v10')
        A(f's_cbranch_vccz {ld}')
        A('s_sleep 16')
        A('s_sub_u32 s61, s61, 1\ns_cmp_lg_u32 s61, 0')
        A(f's_cbranch_scc1 {lp}')
        A(f'{ld}:')

    def mlx(s):
        A = s.A
        s.wait_ml()
        A('v_mov_b32 v12, v10')
        A('v_max_f32_dpp v12, v12, v12 quad_perm:[1,0,3,2] row_mask:0xf bank_mask:0xf')
        A('v_max_f32_dpp v12, v12, v12 quad_perm:[2,3,0,1] row_mask:0xf bank_mask:0xf')
        A(f'v_sub_f32 v14, v10, v12\nv_mul_f32 v14, {hex(LOG2E)}, v14\nv_exp_f32 v14, v14')
        A('v_mul_f32 v14, v14, v11')
        A('v_add_f32_dpp v14, v14, v14 quad_perm:[1,0,3,2] row_mask:0xf bank_mask:0xf')
        A('v_add_f32_dpp v14, v14, v14 quad_perm:[2,3,0,1] row_mask:0xf bank_mask:0xf')
        A('v_mov_b32 v13, s58\nv_mov_b32 v15, s58')
        A(f's_xor_b32 s60, s2, 128\ns_lshl_b32 s60, s60, 7\ns_add_u32 s60, s60, {hex(W_ML)}')
        A('v_mov_b32 v9, 0')
        A('s_mov_b64 exec, 1')
        A(f'buffer_store_dwordx4 v[12:15], v9, s[44:47], s60 offen {s.pol_hs}')
        A('s_mov_b64 exec, -1')
        A(f's_lshl_b32 s60, s2, 7\ns_add_u32 s60, s60, {hex(W_ML)}')
        s.spoll(4, [1, 3], sleep=4)
        A('v_mov_b32 v22, s76\nv_mov_b32 v23, s78')
        A('v_max_f32 v16, v12, v22')
        A(f'v_sub_f32 v17, v12, v16\nv_mul_f32 v17, {hex(LOG2E)}, v17\nv_exp_f32 v17, v17')
        A(f'v_sub_f32 v18, v22, v16\nv_mul_f32 v18, {hex(LOG2E)}, v18\nv_exp_f32 v18, v18')
        A('v_mul_f32 v17, v17, v14\nv_fma_f32 v17, v18, v23, v17')
        A(f'v_sub_f32 v18, v10, v16\nv_mul_f32 v18, {hex(LOG2E)}, v18\nv_exp_f32 v18, v18')
        A('v_rcp_f32 v19, v17')
        A('v_mul_f32 v20, v18, v19\nv_fma_f32 v21, -v20, v17, v18\nv_fma_f32 v20, v21, v19, v20')
        A('v_mov_b32 v14, 0x7fc00000\nv_cmp_eq_u32 vcc, -1, v20\nv_cndmask_b32 v20, v20, v14, vcc')
        A('v_and_b32 v9, 3, v0\nv_lshlrev_b32 v9, 2, v9')
        A(f'ds_write_b32 v9, v20 offset:{L_WF}')
        A('s_waitcnt lgkmcnt(0)')

    def collect(s):
        A = s.A
        lp, ld = s.lab('fc'), s.lab('fcd')
        A(f'v_lshlrev_b32 v9, 2, v0\ns_mov_b32 s60, {hex(W_FLAGP)}\ns_mov_b32 s61, 0x100000')
        A(f'{lp}:')
        A(f'buffer_load_dword v10, v9, s[44:47], s60 offen {s.pol_hl}')
        A(f'buffer_load_dword v11, v9, s[44:47], s60 offen offset:256 {s.pol_hl}')
        A('s_waitcnt vmcnt(0)')
        A('v_cmp_ne_u32 vcc, s58, v10')
        A('v_cmp_ne_u32 s[76:77], s58, v11')
        A('s_and_b32 s77, s77, 0xfff')
        A('s_or_b64 vcc, vcc, s[76:77]')
        A(f's_cbranch_vccz {ld}')
        A('s_sleep 32')
        A('s_sub_u32 s61, s61, 1\ns_cmp_lg_u32 s61, 0')
        A(f's_cbranch_scc1 {lp}')
        A(f'{ld}:')
        A(f'v_lshlrev_b32 v9, 7, v0\nv_mov_b32 v10, s58\ns_mov_b32 s60, {hex(W_FDONE)}')
        A('buffer_store_dword v10, v9, s[44:47], s60 offen sc1')
        A(f's_mov_b32 s60, {hex(W_FDONE + 64*128)}')
        A('s_mov_b64 exec, 0xffff')
        A('buffer_store_dword v10, v9, s[44:47], s60 offen sc1')
        A('s_mov_b64 exec, -1')

    def consumer_prep(s, l_tail):
        A = s.A
        A('s_cmp_ge_u32 s84, 20')
        A(f's_cbranch_scc1 {l_tail}')
        if 'ffn' not in s.skip and s.collector:
            A(f's_mul_i32 s60, s65, 20\ns_add_u32 s60, s60, s84\ns_lshl_b32 s60, s60, 7\ns_add_u32 s60, s60, {hex(W_FDONE)}')
            if 'f_cons' not in s.skip: s.spoll(1, [0], sleep=32)
        elif 'ffn' not in s.skip:
                s.wait_ml()
                lp, ld = s.lab('fc'), s.lab('fcd')
                A(f'v_lshlrev_b32 v9, 2, v0\ns_mov_b32 s60, {hex(W_FLAGP)}\ns_mov_b32 s61, 0x100000')
                A(f'{lp}:')
                A(f'buffer_load_dword v10, v9, s[44:47], s60 offen {s.pol_hl}')
                A(f'buffer_load_dword v11, v9, s[44:47], s60 offen offset:256 {s.pol_hl}')
                A('s_waitcnt vmcnt(0)')
                A('v_cmp_ne_u32 vcc, s58, v10')
                A('v_cmp_ne_u32 s[76:77], s58, v11')
                A('s_and_b32 s77, s77, 0xfff')
                A('s_or_b64 vcc, vcc, s[76:77]')
                A(f's_cbranch_vccz {ld}')
                A('s_sleep 32')
                A('s_sub_u32 s61, s61, 1\ns_cmp_lg_u32 s61, 0')
                A(f's_cbranch_scc1 {lp}')
                A(f'{ld}:')
        A('v_lshrrev_b32 v9, 3, v0\nv_mul_u32_u24 v9, 10240, v9\nv_and_b32 v10, 7, v0\nv_lshlrev_b32 v10, 4, v10\nv_add_u32 v9, v9, v10')
        A(f's_mul_i32 s60, s65, 2560\ns_lshl_b32 s61, s84, 7\ns_add_u32 s60, s60, s61\ns_add_u32 s60, s60, {hex(W_FPART)}')
        for r in range(4): A(f'v_mov_b32 v{16+4*13+r}, 0')
        for t in range(14):
            if t == 13: A('s_mov_b64 exec, 0xffffffff')
            if s.fgwin and t >= s.fgwin: A(f's_waitcnt vmcnt({s.fgwin-1})')
            if 'f_g' not in s.skip: A(f'buffer_load_dwordx4 v[{16+4*t}:{19+4*t}], v9, s[44:47], s60 offen {s.pol_fg}')
            if t < 13: A(f's_add_u32 s60, s60, {8*10240}')
        A('s_mov_b64 exec, -1')
        A('s_mul_i32 s60, s65, 1280\ns_lshl_b32 s61, s84, 6\ns_add_u32 s60, s60, s61')
        A('v_and_b32 v10, 15, v0\nv_lshlrev_b32 v10, 2, v10')
        A(f'buffer_load_dword v12, v10, s[40:43], s60 offen')
        A('s_waitcnt vmcnt(0)')
        for t in range(1, 14):
            for r in range(4): A(f'v_add_f32 v{16+r}, v{16+r}, v{16+4*t+r}')
        for r in range(4): s.reduce_hi3(16 + r, 20)
        for r in range(4):
            f = 16 + r
            s.bf16r(f, f)
            A(f'v_mul_f32 v20, 0xbfb8aa3b, v{f}\nv_exp_f32 v20, v20\nv_add_f32 v20, 1.0, v20\nv_rcp_f32 v21, v20')
            A(f'v_mul_f32 v22, v{f}, v21\nv_fma_f32 v23, -v22, v20, v{f}\nv_fma_f32 v23, v23, v21, v22')
            A('v_cmp_u_f32 vcc, v23, v23')
            A(f'v_cndmask_b32 v22, v23, v22, vcc')
            s.bf16r(24 + r, 22)
        A('v_and_b32 v9, 7, v0\nv_lshlrev_b32 v9, 4, v9')
        A(f'ds_write_b128 v9, v[24:27] offset:{L_GX}')
        A('v_and_b32 v9, 15, v0\nv_lshlrev_b32 v9, 3, v9')
        A('s_waitcnt lgkmcnt(0)')
        A(f'ds_read_b64 v[88:89], v9 offset:{L_GX}')
        A('v_lshlrev_b32 v92, 16, v12\nv_and_b32 v93, 0xffff0000, v12')
        A('s_waitcnt lgkmcnt(0)')

    def tail(s):
        A = s.A
        DATA = 96
        vM = 4
        A('v_lshrrev_b32 v9, 4, v0\nv_lshlrev_b32 v9, 7, v9\ns_lshl_b32 s60, s63, 5\nv_add_u32 v9, s60, v9')
        A('v_lshrrev_b32 v10, 4, v0\nv_lshlrev_b32 v10, 7, v10\nv_and_b32 v11, 15, v0\nv_lshlrev_b32 v11, 2, v11\nv_add_u32 v10, v10, v11')
        A('s_mul_i32 s60, s63, 2560\nv_add_u32 v10, s60, v10')
        A('s_lshl_b32 s60, s63, 6\nv_add_u32 v76, s60, v0')
        A('v_lshrrev_b32 v77, 3, v76\nv_lshlrev_b32 v77, 14, v77\nv_and_b32 v78, 7, v76\nv_lshlrev_b32 v78, 5, v78\nv_add_u32 v77, v77, v78')
        A('v_lshlrev_b32 v78, 4, v76')
        A('s_mul_i32 s62, s65, 327680\ns_lshl_b32 s69, s67, 8\ns_add_u32 s62, s62, s69')
        A('s_waitcnt vmcnt(0)')
        if not s.fineF: s.stamp(3)
        A('s_barrier')
        if not s.fineF: s.stamp(4)
        if s.fasttail and not s.dbg:
            acc = 48
            for w in range(4): A(f'ds_read_b128 v[{16+8*w}:{19+8*w}], v9 offset:{L_OPART + 512*w}')
            for w in range(4): A(f'ds_read_b128 v[{20+8*w}:{23+8*w}], v9 offset:{L_OPART + 512*w + 16}')
            def osum(u):
                return [f'v_add_f32 v{16+u}, v{16+u}, v{24+u}', f'v_add_f32 v{32+u}, v{32+u}, v{40+u}', f'v_add_f32 v{16+u}, v{16+u}, v{32+u}',
                        f'v_cvt_pk_bf16_f32 v{16+u}, v{16+u}, v{16+u}']
            def yb(u):
                y = 68 + 4 * (u & 1)
                return [f'v_and_b32 v{y+d}, v{16+u}, v{vM+d}' for d in range(4)]
            A('s_waitcnt lgkmcnt(4)')
            for i in osum(0) + osum(1) + yb(0): A(i)
            for u in range(8):
                y = 68 + 4 * (u & 1)
                fill = []
                if u == 2: fill.append('s_waitcnt lgkmcnt(0)')
                if u + 1 < 8: fill += yb(u + 1)
                if u + 2 < 8: fill += osum(u + 2)
                per = [fill[0:2], fill[2:4], fill[4:6], fill[6:9], []] if u != 2 else [fill[0:3], fill[3:5], fill[5:7], fill[7:9], []]
                for cb in range(5):
                    r = DATA + 4 * (u * 5 + cb)
                    a_ = acc + 4 * cb
                    A(f'v_mfma_f32_16x16x32_bf16 v[{a_}:{a_+3}], v[{r}:{r+3}], v[{y}:{y+3}], ' + ('0' if u == 0 else f'v[{a_}:{a_+3}]'))
                    for i in per[cb]: A(i)
        else:
            for w in range(4):
                A(f'ds_read_b128 v[{16+8*w}:{19+8*w}], v9 offset:{L_OPART + 512*w}')
                A(f'ds_read_b128 v[{20+8*w}:{23+8*w}], v9 offset:{L_OPART + 512*w + 16}')
            A('s_waitcnt lgkmcnt(0)')
            def osum(u):
                A(f'v_add_f32 v{16+u}, v{16+u}, v{24+u}')
                A(f'v_add_f32 v{32+u}, v{32+u}, v{40+u}')
                A(f'v_add_f32 v{16+u}, v{16+u}, v{32+u}')
                A(f'v_cvt_pk_bf16_f32 v{16+u}, v{16+u}, v{16+u}')
            acc = 48
            if s.dbg:
                for u in range(8): osum(u)
                A(f's_lshl_b32 s60, s2, 13\ns_lshl_b32 s61, s63, 11\ns_add_u32 s60, s60, s61\ns_add_u32 s60, s60, {hex(W_DBG + 0x600000)}')
                A('v_lshlrev_b32 v48, 5, v0\nv_add_u32 v48, s60, v48')
                A('global_store_dwordx4 v48, v[16:19], s[30:31]\nglobal_store_dwordx4 v48, v[20:23], s[30:31] offset:16')
                A('s_waitcnt vmcnt(0)')
            else:
                osum(0); osum(1)
            for u in range(8):
                y = 68 + 4 * (u & 1)
                for d in range(4): A(f'v_and_b32 v{y+d}, v{16+u}, v{vM+d}')
                if not s.dbg and u + 2 < 8: osum(u + 2)
                for cb in range(5):
                    r = DATA + 4 * (u * 5 + cb)
                    a = acc + 4 * cb
                    A(f'v_mfma_f32_16x16x32_bf16 v[{a}:{a+3}], v[{r}:{r+3}], v[{y}:{y+3}], ' + ('0' if u == 0 else f'v[{a}:{a+3}]'))
        A('s_mov_b32 exec_lo, 0x00ff00ff\ns_mov_b32 exec_hi, 0x00ff00ff')
        for cb in range(5):
            for r in range(4):
                A(f'ds_write_b32 v10, v{acc+4*cb+r} offset:{L_YPART + 512*cb + 32*r}')
        A('s_mov_b64 exec, -1')
        A('s_waitcnt lgkmcnt(0)')
        A('s_barrier')
        if not s.fineF: s.stamp(5)
        l_fin, l_done = s.lab('fin'), s.lab('done')
        A('s_cmp_eq_u32 s63, 3')
        A(f's_cbranch_scc1 {l_fin}')
        A('v_cmp_gt_u32 vcc, 160, v76')
        A('s_and_saveexec_b64 s[60:61], vcc')
        A(f's_cbranch_execz {l_done}')
        for w in range(4):
            A(f'ds_read_b128 v[{16+4*w}:{19+4*w}], v78 offset:{L_YPART + 2560*w}')
        A('v_mov_b32 v33, s58\nv_mov_b32 v35, s58\nv_mov_b32 v37, s58\nv_mov_b32 v39, s58')
        A('s_waitcnt lgkmcnt(0)')
        for r in range(4):
            A(f'v_add_f32 v{16+r}, v{16+r}, v{20+r}')
            A(f'v_add_f32 v{24+r}, v{24+r}, v{28+r}')
        for r in range(4):
            A(f'v_add_f32 v{32+2*r}, v{16+r}, v{24+r}')
        A(f'buffer_store_dwordx4 v[32:35], v77, s[44:47], s62 offen {s.pol_hs}')
        A(f'buffer_store_dwordx4 v[36:39], v77, s[44:47], s62 offen offset:16 {s.pol_hs}')
        A(f'{l_done}:')
        if not s.fineF: s.stamp(6)
        s.stamp_store(7)
        A('s_endpgm')
        A(f'{l_fin}:')
        l_nf = s.lab('nofin')
        A('s_cmp_ge_u32 s84, 20')
        A(f's_cbranch_scc1 {l_nf}')
        A('s_mul_i32 s60, s65, 20\ns_add_u32 s60, s60, s84\ns_lshl_b32 s60, s60, 14')
        for k in range(1, 4): A(f's_add_u32 s{80+k}, s60, {4096*k}')
        A('s_mov_b32 s80, s60')
        A('v_lshlrev_b32 v9, 4, v0')
        s.srd(48, 26, 5120)
        A('s_mul_i32 s52, s65, 1280\ns_lshl_b32 s53, s84, 6\ns_add_u32 s52, s52, s53')
        A('v_lshlrev_b32 v10, 2, v0')
        lp, ld = s.lab('fp'), s.lab('fpd')
        for t in range(16):
            A(f'buffer_load_dwordx4 v[{16+4*t}:{19+4*t}], v9, s[44:47], s{80+t//4} offen offset:{(t%4)*1024} {s.pol_hl}')
        A('s_mov_b32 s61, 0x100000')
        A(f'{lp}:')
        if s.maskpoll:
            tags = [16 + 4 * t + k for t in range(16) for k in (1, 3)]
            A('s_waitcnt vmcnt(0)')
            A(f'v_min_u32 v80, v{tags[0]}, v{tags[1]}\nv_max_u32 v81, v{tags[0]}, v{tags[1]}')
            for i in range(2, 32, 2):
                A(f'v_min3_u32 v80, v80, v{tags[i]}, v{tags[i+1]}')
                A(f'v_max3_u32 v81, v81, v{tags[i]}, v{tags[i+1]}')
            A('v_cmp_ne_u32 vcc, s58, v80')
            A('v_cmp_ne_u32 s[76:77], s58, v81')
            A('s_or_b64 vcc, vcc, s[76:77]')
            A(f's_cbranch_vccz {ld}')
            for t in range(16):
                A(f'v_cmp_ne_u32 vcc, s58, v{17+4*t}')
                A(f'v_cmp_ne_u32 s[76:77], s58, v{19+4*t}')
                A('s_or_b64 vcc, vcc, s[76:77]')
                ls = s.lab('ok')
                A(f's_cbranch_vccz {ls}')
                A('s_mov_b64 exec, vcc')
                A(f'buffer_load_dwordx4 v[{16+4*t}:{19+4*t}], v9, s[44:47], s{80+t//4} offen offset:{(t%4)*1024} {s.pol_hl}')
                A('s_mov_b64 exec, -1')
                A(f'{ls}:')
            A('s_sub_u32 s61, s61, 1\ns_cmp_lg_u32 s61, 0')
            A(f's_cbranch_scc1 {lp}')
            A('s_waitcnt vmcnt(0)')
        else:
            tags = [16 + 4 * t + k for t in range(16) for k in (1, 3)]
            A('s_waitcnt vmcnt(12)')
            A(f'v_min_u32 v80, v{tags[0]}, v{tags[1]}\nv_max_u32 v81, v{tags[0]}, v{tags[1]}')
            for i in range(2, 32, 2):
                if i in (8, 16, 24): A(f's_waitcnt vmcnt({12 - i//2})')
                A(f'v_min3_u32 v80, v80, v{tags[i]}, v{tags[i+1]}')
                A(f'v_max3_u32 v81, v81, v{tags[i]}, v{tags[i+1]}')
            A('v_cmp_ne_u32 vcc, s58, v80')
            A('v_cmp_ne_u32 s[76:77], s58, v81')
            A('s_or_b64 vcc, vcc, s[76:77]')
            A(f's_cbranch_vccz {ld}')
            for t in range(16):
                A(f'buffer_load_dwordx4 v[{16+4*t}:{19+4*t}], v9, s[44:47], s{80+t//4} offen offset:{(t%4)*1024} {s.pol_hl}')
            A('s_sub_u32 s61, s61, 1\ns_cmp_lg_u32 s61, 0')
            A(f's_cbranch_scc1 {lp}')
            A('s_waitcnt vmcnt(0)')
        A(f'{ld}:')
        step = 1
        while step < 16:
            for t in range(0, 16, 2 * step):
                for k in (0, 2): A(f'v_add_f32 v{16+4*t+k}, v{16+4*t+k}, v{16+4*(t+step)+k}')
            step *= 2
        for k in (0, 2): A(f'v_mov_b32 v{20+k}, v{16+k}')
        for k in (0, 2): A(f'v_permlane16_swap_b32 v{16+k}, v{20+k}')
        for k in (0, 2): A(f'v_add_f32 v{16+k}, v{16+k}, v{20+k}')
        for k in (0, 2): A(f'v_mov_b32 v{20+k}, v{16+k}')
        for k in (0, 2): A(f'v_permlane32_swap_b32 v{16+k}, v{20+k}')
        for k in (0, 2): A(f'v_add_f32 v{16+k}, v{16+k}, v{20+k}')
        A('v_cvt_pk_bf16_f32 v16, v16, v18')
        A('v_lshlrev_b32 v17, 16, v16\nv_and_b32 v18, 0xffff0000, v16')
        A('v_mul_f32 v17, v17, v88\nv_mul_f32 v18, v18, v89')
        A('v_cvt_pk_bf16_f32 v16, v17, v18')
        A('v_lshlrev_b32 v17, 16, v16\nv_and_b32 v18, 0xffff0000, v16')
        A('v_add_f32 v17, v17, v92\nv_add_f32 v18, v18, v93')
        A('v_cvt_pk_bf16_f32 v16, v17, v18')
        A('s_mov_b64 exec, 0xffff')
        A('buffer_store_dword v16, v10, s[48:51], s52 offen')
        A('s_mov_b64 exec, -1')
        A('s_or_b32 s60, s65, s84\ns_cmp_lg_u32 s60, 0')
        A(f's_cbranch_scc1 {l_nf}')
        A(f'v_mov_b32 v9, 0\nv_mov_b32 v11, s58\ns_mov_b32 s60, {hex(W_NONCE)}')
        A('s_mov_b64 exec, 1')
        A('buffer_store_dword v11, v9, s[44:47], s60 offen sc1')
        A('s_mov_b64 exec, -1')
        A(f'{l_nf}:')
        if not s.fineF: s.stamp(6)
        s.stamp_store(7)

    def text(s):
        s.build()
        body = hz.fix(s.L)
        out = [HEADER + f'; @launch grid=(256,1,1) block=(512,1,1) lds={LDS_BYTES}',
               '.amdgcn_target "amdgcn-amd-amdhsa--gfx950"', '.text', f'.globl {NAME}_kernel', '.p2align 8',
               f'.type {NAME}_kernel,@function']
        out += body
        out += ['.section .rodata,"a"', '.p2align 6', f'.amdhsa_kernel {NAME}_kernel',
                '  .amdhsa_next_free_vgpr 256', '  .amdhsa_next_free_sgpr 102', '  .amdhsa_accum_offset 256',
                '  .amdhsa_group_segment_fixed_size 0', '  .amdhsa_kernarg_size 96', '  .amdhsa_user_sgpr_count 2',
                '  .amdhsa_user_sgpr_kernarg_segment_ptr 1', '  .amdhsa_system_sgpr_workgroup_id_x 1',
                '  .amdhsa_float_denorm_mode_32 3',
                '.end_amdhsa_kernel']
        return '\n'.join(out) + '\n'

if __name__ == '__main__':
    import argparse
    ap = argparse.ArgumentParser()
    ap.add_argument('-o', default='cdna_kernels/' + NAME + '.s')
    ap.add_argument('--cfg', default='{}')
    a = ap.parse_args()
    g = Gen(**eval(a.cfg))
    open(a.o, 'w').write(g.text())
    print('wrote', a.o)
```

```python
import sys, os
sys.path.insert(0, os.path.dirname(os.path.abspath(__file__)))
import hz

NAME = 'recurrent_scan__gqa_block_cached__geglu_ffn__decode'

HEADER = '''; Kernarg layout for this problem (96 bytes, ptrs only, base s[0:1]):
;   offset  32: d_in[4] A_wo  shape=(4096, 640) dtype=bfloat16
;   offset  88: d_ws      workspace: q, FFN partials, hand-off mailboxes
; One workgroup per (batch, head, key-half): waves 0-3 stream K then V, waves 4-7 do the projections / FFN / hand-offs.
'''

L_QP    = 0x0000
L_XN    = 0x2000
L_ML    = 0x3400
L_WF    = 0x3440
L_FLAG  = 0x3480
L_QB    = 0x3500
L_HT    = 0x3600
L_OPART = 0x3700
L_YPART = 0x3F00
L_GX    = 0x6700
L_WG    = 0x6800
L_WU    = 0xB800
LDS_BYTES = 0x10800

W_YIN   = 0x000000
W_ML    = 0x140000
W_NONCE = 0x148000
W_FLAGQ = 0x150000
W_FLAGF = 0x158000
W_FLAGP = 0x14B000
W_FDONE = 0x160000
W_Q     = 0x180000
W_FPART = 0x200000
W_FX    = 0x320000
W_Q2    = 0x360000
WS_SIZE = 0x460000
W_DBG   = 0x1000000

SCALE = 0x3db504f3
LOG2E = 0x3fb8aa3b

class Gen:
    def __init__(s, W=6, P=30, B=40, WO=3, WF=5, pol_kv='nt', pol_w='', pol_hl='sc1', pol_hs='sc1', dbg=False, stamps=False, prio=True, skip='', W0=None, fineF=False, WO4=None, pol_f=None, pol_q=None, WD=4, boost=0, rot=False, WV=None, maskpoll=False, pol_fg=None, pol_fp=None, mix=0, collector=True, fgwin=0, wofirst=False, refill=0, cstep=8, Wend=0, Nend=0, fasttail=False, qflag=False, qtag=False, vtouch=0):
        s.vtouch = vtouch
        s.qtag = qtag
        s.qflag = qflag
        s.fasttail = fasttail
        s.Wend, s.Nend = Wend, Nend
        s.refill = refill; s.cstep = cstep
        s.wofirst = wofirst
        s.collector = collector; s.fgwin = fgwin
        s.mix = mix
        s.pol_fg = pol_hl if pol_fg is None else pol_fg; s.pol_fp = pol_hs if pol_fp is None else pol_fp
        s.maskpoll = maskpoll
        s.WV = WV or W
        s.rot = rot
        s.boost = boost
        s.WD = WD
        s.fineF = fineF; s.WO4 = WO4 or WO; s.pol_f = pol_w if pol_f is None else pol_f; s.pol_q = pol_w if pol_q is None else pol_q
        s.L = []
        s.W, s.P, s.B, s.WO, s.WF = W, P, B, WO, WF
        s.W0 = W0 or W
        s.pol_kv, s.pol_w, s.pol_hl, s.pol_hs = pol_kv, pol_w, pol_hl, pol_hs
        s.dbg = dbg; s.stamps = stamps; s.prio = prio; s.skip = skip.split(',')
        s.nlab = 0
    def A(s, t):
        for l in t.split('\n'):
            l = l.strip()
            if l: s.L.append(('  ' + l) if not l.endswith(':') else l)
    def lab(s, base):
        s.nlab += 1
        return f'L_{base}_{s.nlab}'

    def allreduce(s, op, v, t):
        A = s.A
        ins = {'add': 'v_add_f32', 'max': 'v_max_f32'}[op]
        A(f'{ins}_dpp v{v}, v{v}, v{v} quad_perm:[1,0,3,2] row_mask:0xf bank_mask:0xf')
        A(f'{ins}_dpp v{v}, v{v}, v{v} quad_perm:[2,3,0,1] row_mask:0xf bank_mask:0xf')
        A(f'{ins}_dpp v{v}, v{v}, v{v} row_half_mirror row_mask:0xf bank_mask:0xf')
        A(f'{ins}_dpp v{v}, v{v}, v{v} row_mirror row_mask:0xf bank_mask:0xf')
        A(f'v_mov_b32 v{t}, v{v}')
        A(f'v_permlane16_swap_b32 v{v}, v{t}')
        A(f'{ins} v{v}, v{v}, v{t}')
        A(f'v_mov_b32 v{t}, v{v}')
        A(f'v_permlane32_swap_b32 v{v}, v{t}')
        A(f'{ins} v{v}, v{v}, v{t}')

    def reduce_hi3(s, v, t):
        A = s.A
        A(f'v_add_f32_dpp v{v}, v{v}, v{v} row_ror:8 row_mask:0xf bank_mask:0xf')
        A(f'v_mov_b32 v{t}, v{v}')
        A(f'v_permlane16_swap_b32 v{v}, v{t}')
        A(f'v_add_f32 v{v}, v{v}, v{t}')
        A(f'v_mov_b32 v{t}, v{v}')
        A(f'v_permlane32_swap_b32 v{v}, v{t}')
        A(f'v_add_f32 v{v}, v{v}, v{t}')

    def bf16r(s, dst, src):
        s.A(f'v_cvt_pk_bf16_f32 v{dst}, v{src}, v{src}')
        s.A(f'v_lshlrev_b32 v{dst}, 16, v{dst}')

    def srd(s, n, ptr, size):
        s.A(f's_mov_b32 s{n}, s{ptr}\ns_and_b32 s{n+1}, s{ptr+1}, 0xffff\ns_mov_b32 s{n+2}, {hex(size)}\ns_mov_b32 s{n+3}, 0x20000')

    def stamp(s, idx):
        if s.stamps: s.A(f's_memrealtime s[{86+2*idx}:{87+2*idx}]')

    def stamp_store(s, n):
        if not s.stamps: return
        A = s.A
        A('s_waitcnt lgkmcnt(0)')
        A('s_lshl_b32 s100, s2, 3\ns_add_u32 s100, s100, s3\ns_lshl_b32 s100, s100, 6')
        A(f's_add_u32 s100, s100, {hex(W_DBG)}')
        A('v_mov_b32 v1, s100')
        A('s_mov_b64 exec, 1')
        for i in range(n):
            A(f'v_mov_b32 v2, s{86+2*i}')
            A(f'global_store_dword v1, v2, s[30:31] offset:{4*i}')
        A('s_mov_b64 exec, -1')

    def masks_Md(s, base, jreg, t1, t2, mod8=False):
        A = s.A
        if mod8: A(f'v_and_b32 v{t1}, 7, v{jreg}')
        else: A(f'v_mov_b32 v{t1}, v{jreg}')
        A(f'v_and_b32 v{t2}, 1, v{t1}')
        A(f'v_cmp_eq_u32 vcc, 1, v{t2}')
        A(f'v_mov_b32 v{t2}, 0xffff')
        A(f'v_mov_b32 v{base}, 0xffff0000')
        A(f'v_cndmask_b32 v{t2}, v{t2}, v{base}, vcc')
        A(f'v_lshrrev_b32 v{t1}, 1, v{t1}')
        for d in range(4):
            A(f'v_cmp_eq_u32 vcc, {d}, v{t1}')
            A(f'v_cndmask_b32 v{base+d}, 0, v{t2}, vcc')

    def layernorm(s, xr, out_pairs, tb):
        A = s.A
        f = tb
        a, t = tb + 10, tb + 11
        for i in range(5):
            A(f'v_lshlrev_b32 v{f+2*i}, 16, v{xr+i}')
            A(f'v_and_b32 v{f+2*i+1}, 0xffff0000, v{xr+i}')
        A(f'v_add_f32 v{a}, v{f}, v{f+1}\nv_add_f32 v{t}, v{f+2}, v{f+3}')
        for i in range(4, 10, 2): A(f'v_add_f32 v{a}, v{a}, v{f+i}\nv_add_f32 v{t}, v{t}, v{f+i+1}')
        A(f'v_add_f32 v{a}, v{a}, v{t}')
        s.allreduce('add', a, t)
        A(f'v_mul_f32 v{a}, 0x3acccccd, v{a}')
        v, d = tb + 12, tb + 13
        A(f'v_sub_f32 v{d}, v{f}, v{a}\nv_mul_f32 v{v}, v{d}, v{d}')
        for i in range(1, 10):
            A(f'v_sub_f32 v{d}, v{f+i}, v{a}\nv_fmac_f32 v{v}, v{d}, v{d}')
        s.allreduce('add', v, t)
        A(f'v_mul_f32 v{v}, 0x3acccccd, v{v}')
        s.bf16r(v, v)
        A(f'v_add_f32 v{v}, 0x3727c5ac, v{v}')
        s.bf16r(v, v)
        A(f'v_sqrt_f32 v{v}, v{v}')
        s.bf16r(v, v)
        s.bf16r(a, a)
        A(f'v_rcp_f32 v{t}, v{v}')
        for i in range(10):
            A(f'v_sub_f32 v{f+i}, v{f+i}, v{a}')
        for i in range(5):
            A(f'v_cvt_pk_bf16_f32 v{out_pairs+i}, v{f+2*i}, v{f+2*i+1}')
        for i in range(5):
            A(f'v_lshlrev_b32 v{f+2*i}, 16, v{out_pairs+i}')
            A(f'v_and_b32 v{f+2*i+1}, 0xffff0000, v{out_pairs+i}')
        for i in range(10):
            A(f'v_mul_f32 v{d}, v{f+i}, v{t}')
            A(f'v_fma_f32 v{f+i}, -v{d}, v{v}, v{f+i}')
            A(f'v_fma_f32 v{f+i}, v{f+i}, v{t}, v{d}')
        for i in range(5):
            A(f'v_cvt_pk_bf16_f32 v{out_pairs+i}, v{f+2*i}, v{f+2*i+1}')

    def build(s):
        A = s.A
        A(f'{NAME}_kernel:')
        A('s_cmp_ge_u32 s2, 256')
        A('s_cbranch_scc1 L_end')
        s.stamp(0)
        A('s_load_dwordx16 s[8:23], s[0:1], 0')
        A('s_load_dwordx8 s[24:31], s[0:1], 64')
        A('v_lshrrev_b32 v1, 6, v0')
        A('v_and_b32 v0, 63, v0')
        A('v_readfirstlane_b32 s3, v1')
        lni = s.lab('noinit')
        A('s_cmp_lg_u32 s3, 0')
        A(f's_cbranch_scc1 {lni}')
        A('v_mov_b32 v2, -1\nv_cmp_gt_u32 vcc, 32, v0\nv_cndmask_b32 v2, 0, v2, vcc\nv_lshlrev_b32 v3, 2, v0')
        A(f'ds_write_b32 v3, v2 offset:{L_ML}')
        A(f'{lni}:')
        A('s_and_b32 s64, s2, 7\ns_lshr_b32 s68, s2, 3')
        A('s_and_b32 s69, s68, 3\ns_lshl_b32 s69, s69, 3\ns_add_u32 s64, s64, s69')
        A('s_lshr_b32 s65, s68, 2\ns_and_b32 s65, s65, 3')
        A('s_lshr_b32 s66, s68, 4')
        A('s_lshl_b32 s67, s64, 1\ns_add_u32 s67, s67, s66')
        A('s_cmp_eq_u32 s66, 1\ns_cselect_b32 s84, s64, 99')
        A('s_waitcnt lgkmcnt(0)')
        A('s_cmp_ge_u32 s3, 4')
        A('s_cbranch_scc1 L_helper')
        s.streamer()
        A('L_helper:')
        s.helper()
        A('L_end:')
        A('s_endpgm')

    def streamer(s):
        A = s.A
        W, P, B, W0 = s.W, s.P, s.B, s.W0
        RING = 64
        assert RING + 4 * B <= 256 and P + W0 + max(1, s.refill) + 2 <= B + 1
        vKo, vVo = 1, 2
        vM = 4; vY = 8; vAcc = 24; vSc = 32; vO = 40; vYp = 44; vT = 52
        if s.prio: A('s_setprio 2')
        s.srd(32, 10, 0x8000000)
        s.srd(36, 12, 0x8000000)
        A(f'v_lshrrev_b32 v{vT}, 4, v0')
        A(f'v_lshlrev_b32 v{vT+3}, 2, v{vT}\nv_and_b32 v{vT+2}, 3, v0\nv_add_u32 v{vT+3}, v{vT+3}, v{vT+2}\nv_lshlrev_b32 v3, 4, v{vT+3}')
        A(f'v_lshlrev_b32 v{vT}, 6, v{vT}')
        A(f'v_bfe_u32 v{vT+1}, v0, 2, 2')
        A(f'v_lshlrev_b32 v{vT+1}, 8, v{vT+1}')
        A(f'v_lshlrev_b32 v{vT+2}, 4, v{vT+2}')
        A(f'v_add3_u32 v{vKo}, v{vT}, v{vT+1}, v{vT+2}')
        A(f'v_lshlrev_b32 v{vVo}, 4, v0')
        A('s_lshl_b32 s40, s65, 5\ns_add_u32 s40, s40, s64\ns_lshl_b32 s40, s40, 20')
        A('s_lshl_b32 s41, s66, 19\ns_add_u32 s40, s40, s41')
        A('s_lshl_b32 s41, s3, 12\ns_add_u32 s40, s40, s41')
        A('s_mov_b32 s41, s40')
        state = {'n': 0, 'win': W}
        def issue():
            n = state['n']; state['n'] += 1
            if n >= 256: return
            if n == 128: A('s_mov_b32 s41, s40')
            elif n % 4 == 0 and n > 0: A('s_add_u32 s41, s41, 0x4000')
            r = RING + 4 * (n % B)
            if n < 128:
                A(f'buffer_load_dwordx4 v[{r}:{r+3}], v{vKo}, s[32:35], s41 offen offset:{(n%4)*1024} {s.pol_kv}')
            else:
                A(f'buffer_load_dwordx4 v[{r}:{r+3}], v{vVo}, s[36:39], s41 offen offset:{(n%4)*1024} {s.pol_kv}')
        done = {'upto': -1}
        def paced_issue(w=None):
            w = w or W
            if state['n'] >= 256: return
            A(f's_waitcnt vmcnt({w-1})')
            done['upto'] = max(done['upto'], state['n'] - w)
            issue()
        def ensure(c):
            if c > done['upto']:
                A(f's_waitcnt vmcnt({state["n"] - 1 - c})')
                done['upto'] = c
        for _ in range(W0): issue()
        A('s_barrier')
        A(f'v_and_b32 v{vT}, 15, v0')
        s.masks_Md(vM, vT, vT+1, vT+2)
        A('s_mov_b32 s44, 0x22222222\ns_mov_b32 s45, 0x22222222')
        A('s_mov_b32 s46, 0x44444444\ns_mov_b32 s47, 0x44444444')
        A('s_mov_b32 s48, 0x88888888\ns_mov_b32 s49, 0x88888888')
        for t in range(4):
            m = 0x000F000F << (4 * t)
            A(f's_mov_b32 s{50+2*t}, {hex(m)}\ns_mov_b32 s{51+2*t}, {hex(m)}')
        for _ in range(P): paced_issue(W0)
        s.stamp(1)
        if s.qflag:
            lp, ld = s.lab('qf'), s.lab('qfd')
            A(f'v_mov_b32 v{vT}, 0\ns_mov_b32 s61, 0x400000')
            if s.prio: A('s_setprio 0')
            A(f'{lp}:')
            A(f'ds_read_b32 v{vT+1}, v{vT} offset:{L_FLAG + 48}')
            A('s_waitcnt lgkmcnt(0)')
            A(f'v_cmp_eq_u32 vcc, 1, v{vT+1}')
            A(f's_cbranch_vccnz {ld}')
            A('s_sleep 2')
            A('s_sub_u32 s61, s61, 1\ns_cmp_lg_u32 s61, 0')
            A(f's_cbranch_scc1 {lp}')
            A(f'{ld}:')
            if s.prio: A('s_setprio 2')
        else:
            A('s_barrier')
        s.stamp(2)
        A(f'ds_read_b128 v[56:59], v3 offset:{L_QB}')
        for _ in range(max(1, s.refill)): paced_issue()
        A('s_waitcnt lgkmcnt(0)')
        if s.dbg:
            A(f's_lshl_b32 s60, s2, 12\ns_lshl_b32 s61, s3, 10\ns_add_u32 s60, s60, s61\ns_add_u32 s60, s60, {hex(W_DBG + 0x100000)}')
            A(f'v_lshlrev_b32 v8, 4, v0\nv_add_u32 v8, s60, v8')
            A(f'global_store_dwordx4 v8, v[56:59], s[30:31]')
            A('s_waitcnt vmcnt(0)')
        for t in range(4):
            for d in range(4):
                A(f'v_cndmask_b32 v{vY+4*t+d}, 0, v{56+d}, s[{50+2*t}:{51+2*t}]')
        def post(g):
            a = vAcc + 4 * (g & 1)
            t = vT
            A(f'v_cndmask_b32 v{t}, v{a}, v{a+1}, s[44:45]')
            A(f'v_cndmask_b32 v{t}, v{t}, v{a+2}, s[46:47]')
            A(f'v_cndmask_b32 v{t}, v{t}, v{a+3}, s[48:49]')
            A(f'v_add_f32_dpp v{t}, v{t}, v{t} quad_perm:[1,0,3,2] row_mask:0xf bank_mask:0xf')
            q4 = vSc + (g >> 2)
            if (g & 3) == 0:
                A(f'v_add_f32_dpp v{q4}, v{t}, v{t} quad_perm:[2,3,0,1] row_mask:0xf bank_mask:0xf')
            else:
                A(f'v_add_f32_dpp v{t}, v{t}, v{t} quad_perm:[2,3,0,1] row_mask:0xf bank_mask:0xf')
                A(f'v_cndmask_b32 v{q4}, v{q4}, v{t}, s[{42+2*(g&3)}:{43+2*(g&3)}]')
        if s.boost or s.mix:
            A(f's_cmp_lt_u32 s3, {s.mix}\ns_cselect_b32 s59, 1, 0')
            A('s_and_b32 s58, s2, 7\ns_lshl_b32 s60, s65, 3\ns_add_u32 s58, s58, s60\ns_cmp_lt_u32 s58, 27\ns_cselect_b32 s58, 1, 0')
            A('s_cmp_eq_u32 s66, 0\ns_cselect_b32 s58, s58, 0')
            if not s.boost: A('s_mov_b32 s58, 0')
            A('s_or_b32 s58, s58, s59')
        def boosted_issue(w=None):
            w = w or W
            if state['n'] >= 256: return
            lb = s.lab('bo')
            A(f's_waitcnt vmcnt({w})')
            A('s_cmp_eq_u32 s58, 1')
            A(f's_cbranch_scc1 {lb}')
            A(f's_waitcnt vmcnt({w-1})')
            A(f'{lb}:')
            done['upto'] = max(done['upto'], state['n'] - (w + 1))
            issue()
        for c in range(128):
            g, t = c >> 2, c & 3
            backlog = state['n'] - c
            if c == s.boost and s.mix: A('s_mov_b32 s58, s59')
            hi = (s.boost and c < s.boost) or s.mix
            if hi and backlog <= W + 1: boosted_issue()
            elif backlog <= W: paced_issue()
            elif backlog > W + 1 and c % s.cstep == s.cstep - 1: (boosted_issue() if hi else paced_issue())
            ensure(c)
            r = RING + 4 * (c % B)
            a = vAcc + 4 * (g & 1)
            cin = '0' if t == 0 else f'v[{a}:{a+3}]'
            A(f'v_mfma_f32_16x16x32_bf16 v[{a}:{a+3}], v[{r}:{r+3}], v[{vY+4*t}:{vY+4*t+3}], {cin}')
            if t == 1 and g > 0: post(g - 1)
        paced_issue()
        post(31)
        s.stamp(3)
        if s.dbg:
            A(f's_lshl_b32 s60, s2, 13\ns_lshl_b32 s61, s3, 11\ns_add_u32 s60, s60, s61\ns_add_u32 s60, s60, {hex(W_DBG + 0x200000)}')
            A(f'v_lshlrev_b32 v{vT}, 2, v0\nv_add_u32 v{vT}, s60, v{vT}')
            for i in range(8):
                A(f'global_store_dword v{vT}, v{vSc+i}, s[30:31] offset:{256*i}')
            A('s_waitcnt vmcnt(0)')
        def round_pairs():
            for i in range(4):
                A(f'v_cvt_pk_bf16_f32 v{vT+i}, v{vSc+2*i}, v{vSc+2*i+1}')
            for i in range(4):
                A(f'v_lshlrev_b32 v{vSc+2*i}, 16, v{vT+i}')
                A(f'v_and_b32 v{vSc+2*i+1}, 0xffff0000, v{vT+i}')
        round_pairs()
        for i in range(8): A(f'v_mul_f32 v{vSc+i}, {hex(SCALE)}, v{vSc+i}')
        round_pairs()
        m, t2 = vT + 4, vT + 5
        A(f'v_max3_f32 v{m}, v{vSc}, v{vSc+1}, v{vSc+2}')
        A(f'v_max3_f32 v{m}, v{m}, v{vSc+3}, v{vSc+4}')
        A(f'v_max3_f32 v{m}, v{m}, v{vSc+5}, v{vSc+6}')
        A(f'v_max_f32 v{m}, v{m}, v{vSc+7}')
        s.allreduce('max', m, t2)
        paced_issue()
        for i in range(8): A(f'v_sub_f32 v{vSc+i}, v{vSc+i}, v{m}')
        for i in range(8): A(f'v_mul_f32 v{vSc+i}, {hex(LOG2E)}, v{vSc+i}')
        for i in range(8): A(f'v_exp_f32 v{vSc+i}, v{vSc+i}')
        l = m + 1
        t3 = vT + 6
        A(f'v_add_f32 v{l}, v{vSc}, v{vSc+1}')
        A(f'v_add_f32 v{t3}, v{vSc+2}, v{vSc+3}')
        A(f'v_add_f32 v{l}, v{l}, v{vSc+4}')
        A(f'v_add_f32 v{t3}, v{t3}, v{vSc+5}')
        A(f'v_add_f32 v{l}, v{l}, v{vSc+6}')
        A(f'v_add_f32 v{t3}, v{t3}, v{vSc+7}')
        A(f'v_add_f32 v{l}, v{l}, v{t3}')
        for i in range(8): A(f'v_cvt_pk_bf16_f32 v{vSc+i}, v{vSc+i}, v{vSc+i}')
        s.allreduce('add', l, t3)
        paced_issue()
        A(f'v_cmp_eq_u32 vcc, -1, v{m}')
        A(f'v_mov_b32 v{t3}, 0x7fc00000')
        A(f'v_cndmask_b32 v{m}, v{m}, v{t3}, vcc')
        A(f's_lshl_b32 s60, s3, 3\nv_mov_b32 v{t3}, s60')
        A(f'ds_write_b64 v{t3}, v[{m}:{m+1}] offset:{L_ML}')
        def ybuild(c):
            g, t = (c - 128) >> 2, c & 3
            y = vYp + 4 * (c & 1)
            for d in range(4):
                A(f'v_and_b32_dpp v{y+d}, v{vSc+(g>>2)}, v{vM+d} row_newbcast:{4*t+(g&3)} row_mask:0xf bank_mask:0xf')
        ybuild(128)
        WV = s.WV
        for c in range(128, 256):
            if state['n'] < 256:
                if s.mix:
                    if state['n'] - c <= WV + 1: boosted_issue(WV)
                    elif c % 4 == 3: boosted_issue(WV)
                elif s.Nend and state['n'] >= 256 - s.Nend:
                    while state['n'] < 256 and state['n'] - c <= s.Wend - 1: paced_issue(s.Wend)
                    if state['n'] < 256 and state['n'] - c <= s.Wend: paced_issue(s.Wend)
                elif state['n'] - c <= WV: paced_issue(WV)
                elif c % 4 == 3: paced_issue(WV)
            if c == 240:
                A(f's_lshl_b32 s60, s3, 2\nv_mov_b32 v{vT}, s60')
                A(f'ds_read_b32 v{vT+1}, v{vT} offset:{L_WF}')
            if c == 244:
                A(f'v_and_b32 v{vT+2}, 3, v0\nv_lshlrev_b32 v{vT+2}, 5, v{vT+2}')
                A(f'v_lshrrev_b32 v{vT+3}, 4, v0\nv_lshlrev_b32 v{vT+3}, 3, v{vT+3}')
                if s.rot:
                    A(f'v_add_u32 v{vT+2}, v{vT+2}, v{vT+3}')
                    A(f's_lshl_b32 s60, s65, 1\ns_add_u32 s60, s60, s66')
                    A(f'v_bfe_u32 v{vT+4}, v0, 2, 1\nv_subrev_u32 v{vT+4}, s60, v{vT+4}')
                    for r4 in range(4):
                        A(f'v_add_u32 v{vT+8+r4}, {2*r4}, v{vT+4}\nv_and_b32 v{vT+8+r4}, 7, v{vT+8+r4}\nv_add_u32 v{vT+8+r4}, v{vT+8+r4}, v{vT+2}\nv_lshlrev_b32 v{vT+8+r4}, 2, v{vT+8+r4}')
                        A(f's_lshl_b32 s60, s3, 9\nv_add_u32 v{vT+8+r4}, s60, v{vT+8+r4}')
                else:
                    A(f'v_bfe_u32 v{vT+4}, v0, 2, 1')
                    A(f'v_add3_u32 v{vT+2}, v{vT+2}, v{vT+3}, v{vT+4}')
                    A(f'v_lshlrev_b32 v{vT+2}, 2, v{vT+2}')
                    A(f's_lshl_b32 s60, s3, 9\nv_add_u32 v{vT+2}, s60, v{vT+2}')
            if c + 1 < 256: ybuild(c + 1)
            ensure(c)
            r = RING + 4 * (c % B)
            y = vYp + 4 * (c & 1)
            cin = '0' if c == 128 else f'v[{vO}:{vO+3}]'
            A(f'v_mfma_f32_16x16x32_bf16 v[{vO}:{vO+3}], v[{r}:{r+3}], v[{y}:{y+3}], {cin}')
        s.stamp(4)
        lp, ld = s.lab('wf'), s.lab('wfd')
        A('s_waitcnt lgkmcnt(0)')
        A(f'v_cmp_ne_u32 vcc, -1, v{vT+1}')
        A(f's_cbranch_vccnz {ld}')
        A('s_mov_b32 s61, 0x400000')
        A(f'{lp}:')
        A(f'ds_read_b32 v{vT+1}, v{vT} offset:{L_WF}')
        A('s_waitcnt lgkmcnt(0)')
        A(f'v_cmp_ne_u32 vcc, -1, v{vT+1}')
        A(f's_cbranch_vccnz {ld}')
        A('s_sleep 1')
        A('s_sub_u32 s61, s61, 1\ns_cmp_lg_u32 s61, 0')
        A(f's_cbranch_scc1 {lp}')
        A(f'{ld}:')
        for r in range(4): A(f'v_mul_f32 v{vO+r}, v{vO+r}, v{vT+1}')
        A('s_mov_b32 exec_lo, 0x00ff00ff\ns_mov_b32 exec_hi, 0x00ff00ff')
        if s.rot:
            for r in range(4): A(f'ds_write_b32 v{vT+8+r}, v{vO+r} offset:{L_OPART}')
        else:
            for r in range(4): A(f'ds_write_b32 v{vT+2}, v{vO+r} offset:{L_OPART+8*r}')
        A('s_mov_b64 exec, -1')
        A('s_waitcnt lgkmcnt(0)')
        A('s_barrier')
        s.stamp(5)
        s.stamp_store(6)
        A('s_endpgm')

    def lds_flag_wait(s, off, vt):
        A = s.A
        lp, ld = s.lab('fl'), s.lab('fld')
        A(f'v_and_b32 v{vt}, 3, v0\nv_lshlrev_b32 v{vt}, 2, v{vt}')
        A('s_mov_b32 s61, 0x1000000')
        A(f'{lp}:')
        A(f'ds_read_b32 v{vt+1}, v{vt} offset:{off}')
        A('s_waitcnt lgkmcnt(0)')
        A(f'v_cmp_ne_u32 vcc, 1, v{vt+1}')
        A(f's_cbranch_vccz {ld}')
        A('s_sub_u32 s61, s61, 1\ns_cmp_lg_u32 s61, 0')
        A(f's_cbranch_scc1 {lp}')
        A(f'{ld}:')

    def spoll(s, n, check, sleep=1):
        A = s.A
        lp, ld = s.lab('sp'), s.lab('spd')
        A('s_add_u32 s4, s30, s60\ns_addc_u32 s5, s31, 0')
        A('s_mov_b32 s61, 0x200000')
        A(f'{lp}:')
        A(f's_load_dwordx{n} s[76:{76+n-1}], s[4:5], 0 glc' if n > 1 else 's_load_dword s76, s[4:5], 0 glc')
        A('s_waitcnt lgkmcnt(0)')
        A(f's_xor_b32 s6, s{76+check[0]}, s58')
        for c in check[1:]: A(f's_xor_b32 s7, s{76+c}, s58\ns_or_b32 s6, s6, s7')
        A('s_cmp_eq_u32 s6, 0')
        A(f's_cbranch_scc1 {ld}')
        if sleep: A(f's_sleep {sleep}')
        A('s_sub_u32 s61, s61, 1\ns_cmp_lg_u32 s61, 0')
        A(f's_cbranch_scc1 {lp}')
        A(f'{ld}:')

    def flag_store(s, lanes, vaddr, soff):
        A = s.A
        A(f'v_mov_b32 v15, s58')
        A(f's_mov_b64 exec, {lanes}')
        A(f'buffer_store_dword v15, v{vaddr}, s[44:47], {soff} offen sc1')
        A('s_mov_b64 exec, -1')

    def helper(s):
        A = s.A
        DATA = 96
        vM = 4
        A('s_sub_u32 s63, s3, 4')
        A('s_mov_b32 s59, 0')
        A(f's_add_u32 s4, s30, {hex(W_NONCE)}\ns_addc_u32 s5, s31, 0')
        A('s_load_dword s58, s[4:5], 0')
        s.srd(32, 14, 640 * 4096 * 2)
        s.srd(40, 8, 5120)
        s.srd(44, 30, WS_SIZE)
        A('s_mul_i32 s60, s63, 1280')
        A('v_lshlrev_b32 v1, 2, v0')
        for t in range(5):
            A(f'buffer_load_dword v{16+t}, v1, s[40:43], s60 offen offset:{256*t}')
        A('v_lshrrev_b32 v2, 4, v0\nv_lshlrev_b32 v2, 13, v2\nv_and_b32 v3, 15, v0\nv_lshlrev_b32 v3, 4, v3\nv_add_u32 v2, v2, v3')
        A('s_lshl_b32 s57, s65, 1\ns_add_u32 s57, s57, s66')
        A('s_mul_i32 s56, s57, 80\ns_mul_i32 s60, s63, 20\ns_add_u32 s56, s56, s60')
        A('s_lshl_b32 s60, s56, 13\ns_lshl_b32 s61, s64, 8\ns_add_u32 s60, s60, s61')
        for u in range(5):
            A(f'buffer_load_dwordx4 v[{DATA+4*u}:{DATA+4*u+3}], v2, s[32:35], s60 offen {s.pol_q}')
            if u < 4: A('s_add_u32 s60, s60, 0x8000')
        if s.vtouch:
            s.srd(48, 12, 0x8000000)
            A('s_lshl_b32 s60, s65, 5\ns_add_u32 s60, s60, s64\ns_lshl_b32 s60, s60, 20\ns_lshl_b32 s61, s66, 19\ns_add_u32 s60, s60, s61')
            A(f'v_lshlrev_b32 v9, {19 - 6 if s.vtouch > 1 else 0}, v0')
            A('s_mov_b64 exec, ' + ('-1' if s.vtouch > 1 else '1'))
            A('buffer_load_dword v95, v9, s[48:51], s60 offen nt')
            A('s_mov_b64 exec, -1')
        A('s_barrier')
        s.srd(36, 16, 4096 * 640 * 2)
        A('v_and_b32 v9, 15, v0')
        s.masks_Md(vM, 9, 10, 11, mod8=True)
        A(f's_waitcnt vmcnt({6 if s.vtouch else 5}) lgkmcnt(0)')
        A('s_add_u32 s58, s58, 1')
        s.layernorm(16, 24, 32)
        A(f's_mul_i32 s60, s63, 1280\nv_add_u32 v9, s60, v1')
        for t in range(5):
            A(f'ds_write_b32 v9, v{24+t} offset:{L_XN + 256*t}')
        A(f's_lshl_b32 s60, s63, 2\nv_mov_b32 v9, s60\nv_mov_b32 v10, 1')
        A(f'ds_write_b32 v9, v10 offset:{L_FLAG}')
        A('v_bfe_u32 v12, v0, 3, 1\nv_mul_u32_u24 v12, 1280, v12\nv_lshrrev_b32 v13, 4, v0\nv_lshlrev_b32 v13, 1, v13\nv_add_u32 v12, v12, v13')
        A('s_lshl_b32 s60, s56, 1\nv_add_u32 v12, s60, v12')
        s.lds_flag_wait(L_FLAG, 14)
        for bp in range(2):
            for u in range(5):
                A(f'ds_read_u16 v{40+5*bp+u}, v12 offset:{L_XN + bp*2560 + u*8}')
        A('v_bfe_u32 v9, v0, 3, 1\nv_lshlrev_b32 v9, 9, v9\nv_lshrrev_b32 v10, 4, v0\nv_lshlrev_b32 v10, 7, v10\nv_and_b32 v11, 7, v0\nv_lshlrev_b32 v11, 2, v11\nv_add3_u32 v9, v9, v10, v11')
        A('s_lshl_b32 s60, s63, 11\nv_add_u32 v9, s60, v9')
        A('s_waitcnt lgkmcnt(0)')
        for k in range(10): A(f'v_lshl_or_b32 v{40+k}, v{40+k}, 16, v{40+k}')
        A('s_waitcnt vmcnt(0)')
        for u in range(5):
            for bp in range(2):
                y = 60 + 4 * ((2 * u + bp) & 3)
                for d in range(4): A(f'v_and_b32 v{y+d}, v{40+5*bp+u}, v{vM+d}')
                a = 52 + 4 * bp
                A(f'v_mfma_f32_16x16x32_bf16 v[{a}:{a+3}], v[{DATA+4*u}:{DATA+4*u+3}], v[{y}:{y+3}], ' + ('0' if u == 0 else f'v[{a}:{a+3}]'))
        for bp in range(2):
            for r in range(4):
                A(f'ds_write_b32 v9, v{52+4*bp+r} offset:{L_QP + bp*1024 + r*32}')
        A(f's_lshl_b32 s60, s63, 2\nv_mov_b32 v10, s60\nv_mov_b32 v11, 1')
        A(f'ds_write_b32 v10, v11 offset:{L_FLAG + 16}')
        if s.qtag:
            A('s_lshl_b32 s69, s64, 2\ns_add_u32 s69, s69, s63\ns_lshl_b32 s69, s69, 3\ns_add_u32 s69, s69, s57')
            A(f's_lshl_b32 s62, s69, 10\ns_add_u32 s62, s62, {hex(W_Q2)}')
            A('v_lshlrev_b32 v13, 4, v0')
            A('s_lshl_b32 s60, s63, 9\nv_lshlrev_b32 v12, 3, v0\nv_add_u32 v12, s60, v12')
            s.lds_flag_wait(L_FLAG + 16, 14)
            for w in range(4):
                A(f'ds_read_b64 v[{16+2*w}:{17+2*w}], v12 offset:{L_QP + 2048*w}')
            A('v_mov_b32 v25, s58\nv_mov_b32 v27, s58')
            A('s_waitcnt lgkmcnt(0)')
            A('v_add_f32 v16, v16, v18\nv_add_f32 v17, v17, v19\nv_add_f32 v20, v20, v22\nv_add_f32 v21, v21, v23')
            A('v_add_f32 v24, v16, v20\nv_add_f32 v26, v17, v21')
            A(f'buffer_store_dwordx4 v[24:27], v13, s[44:47], s62 offen {s.pol_hs}')
            lq = s.lab('noq')
            A('s_cmp_lg_u32 s63, 0')
            A(f's_cbranch_scc1 {lq}')
            A(f's_lshl_b32 s69, s64, 2\ns_add_u32 s69, s69, s65\ns_lshl_b32 s60, s69, 13\ns_add_u32 s60, s60, {hex(W_Q2)}')
            A('s_add_u32 s4, s30, s60\ns_addc_u32 s5, s31, 0')
            lp, ld = s.lab('qh'), s.lab('qhd')
            A('s_mov_b32 s61, 0x200000')
            A(f'{lp}:')
            for r in range(8): A(f's_load_dword s{76+r}, s[4:5], {r*1024+4} glc')
            A('s_waitcnt lgkmcnt(0)')
            A('s_xor_b32 s6, s76, s58')
            for r in range(1, 8): A(f's_xor_b32 s7, s{76+r}, s58\ns_or_b32 s6, s6, s7')
            A('s_cmp_eq_u32 s6, 0')
            A(f's_cbranch_scc1 {ld}')
            A('s_sub_u32 s61, s61, 1\ns_cmp_lg_u32 s61, 0')
            A(f's_cbranch_scc1 {lp}')
            A(f'{ld}:')
            A('s_add_u32 s62, s60, 4096')
            lp, ld = s.lab('qg'), s.lab('qgd')
            A('s_mov_b32 s61, 0x100000')
            A(f'{lp}:')
            for t in range(8):
                A(f'buffer_load_dwordx4 v[{16+4*t}:{19+4*t}], v13, s[44:47], {"s60" if t < 4 else "s62"} offen offset:{(t%4)*1024} {s.pol_hl}')
            A('s_waitcnt vmcnt(0)')
            tags = [16 + 4 * t + k for t in range(8) for k in (1, 3)]
            A(f'v_min_u32 v48, v{tags[0]}, v{tags[1]}\nv_max_u32 v49, v{tags[0]}, v{tags[1]}')
            for i in range(2, 16, 2):
                A(f'v_min3_u32 v48, v48, v{tags[i]}, v{tags[i+1]}')
                A(f'v_max3_u32 v49, v49, v{tags[i]}, v{tags[i+1]}')
            A('v_cmp_ne_u32 vcc, s58, v48')
            A('v_cmp_ne_u32 s[76:77], s58, v49')
            A('s_or_b64 vcc, vcc, s[76:77]')
            A(f's_cbranch_vccz {ld}')
            A('s_sub_u32 s61, s61, 1\ns_cmp_lg_u32 s61, 0')
            A(f's_cbranch_scc1 {lp}')
            A(f'{ld}:')
            for k in (0, 2):
                A(f'v_add_f32 v{16+k}, v{16+k}, v{20+k}\nv_add_f32 v{24+k}, v{24+k}, v{28+k}\nv_add_f32 v{32+k}, v{32+k}, v{36+k}\nv_add_f32 v{40+k}, v{40+k}, v{44+k}')
                A(f'v_add_f32 v{16+k}, v{16+k}, v{24+k}\nv_add_f32 v{32+k}, v{32+k}, v{40+k}\nv_add_f32 v{16+k}, v{16+k}, v{32+k}')
            A('v_cvt_pk_bf16_f32 v16, v16, v18')
            A(f'ds_write_b32 v1, v16 offset:{L_QB}')
        else:
            A('s_lshl_b32 s69, s64, 2\ns_add_u32 s69, s69, s63\ns_lshl_b32 s69, s69, 3\ns_add_u32 s69, s69, s57')
            A(f's_lshl_b32 s62, s69, 9\ns_add_u32 s62, s62, {hex(W_Q)}')
            A('v_lshlrev_b32 v13, 3, v0')
            A('s_lshl_b32 s60, s63, 9\nv_add_u32 v12, s60, v13')
            s.lds_flag_wait(L_FLAG + 16, 14)
            for w in range(4):
                A(f'ds_read_b64 v[{16+2*w}:{17+2*w}], v12 offset:{L_QP + 2048*w}')
            A('s_waitcnt lgkmcnt(0)')
            A('v_add_f32 v16, v16, v18\nv_add_f32 v17, v17, v19\nv_add_f32 v20, v20, v22\nv_add_f32 v21, v21, v23')
            A('v_add_f32 v24, v16, v20\nv_add_f32 v25, v17, v21')
            A(f'buffer_store_dwordx2 v[24:25], v13, s[44:47], s62 offen {s.pol_hs}')
            A(f's_lshr_b32 s62, s69, 3\ns_lshl_b32 s62, s62, 7\ns_lshl_b32 s61, s57, 2\ns_add_u32 s62, s62, s61\ns_add_u32 s62, s62, {hex(W_FLAGQ)}\nv_mov_b32 v14, 0')
            A('s_waitcnt vmcnt(0)')
            s.flag_store('1', 14, 's62')
            lq = s.lab('noq')
            A('s_cmp_lg_u32 s63, 0')
            A(f's_cbranch_scc1 {lq}')
            A(f's_lshl_b32 s69, s64, 2\ns_add_u32 s69, s69, s65')
            A(f's_lshl_b32 s60, s69, 7\ns_add_u32 s60, s60, {hex(W_FLAGQ)}')
            s.spoll(8, list(range(8)))
            A(f's_lshl_b32 s60, s69, 12\ns_add_u32 s60, s60, {hex(W_Q)}')
            A('v_lshlrev_b32 v13, 4, v0')
            for t in range(4):
                A(f'buffer_load_dwordx4 v[{16+4*t}:{19+4*t}], v13, s[44:47], s60 offen offset:{t*1024} {s.pol_hl}')
            A('v_and_b32 v12, 31, v0\nv_lshlrev_b32 v12, 3, v12')
            A('s_waitcnt vmcnt(0)')
            for k in range(4):
                A(f'v_add_f32 v{16+k}, v{16+k}, v{20+k}\nv_add_f32 v{24+k}, v{24+k}, v{28+k}')
            for k in range(4): A(f'v_add_f32 v{16+k}, v{16+k}, v{24+k}')
            for k in range(4): A(f'v_mov_b32 v{20+k}, v{16+k}')
            for k in range(4): A(f'v_permlane32_swap_b32 v{16+k}, v{20+k}')
            for k in range(4): A(f'v_add_f32 v{16+k}, v{16+k}, v{20+k}')
            A('v_cvt_pk_bf16_f32 v16, v16, v17\nv_cvt_pk_bf16_f32 v17, v18, v19')
            A(f'ds_write_b64 v12, v[16:17] offset:{L_QB}')
        if s.qflag: A(f'v_mov_b32 v12, 0\nv_mov_b32 v13, 1\nds_write_b32 v12, v13 offset:{L_FLAG + 48}')
        A(f'{lq}:')
        A('s_waitcnt lgkmcnt(0)')
        s.stamp(1)
        if not s.qflag: A('s_barrier')
        l_wo = s.lab('wo')
        s.ffn(l_wo)
        A(f'{l_wo}:')
        A('v_lshrrev_b32 v2, 4, v0\nv_mul_u32_u24 v2, 1280, v2\nv_and_b32 v3, 15, v0\nv_lshlrev_b32 v3, 4, v3\nv_add_u32 v2, v2, v3')
        A('s_lshl_b32 s60, s64, 7\ns_lshl_b32 s61, s63, 5\ns_add_u32 s60, s60, s61\ns_mul_i32 s60, s60, 1280')
        if 'wo_v' in s.skip:
            A('s_lshl_b32 s6, s2, 19\ns_add_u32 s72, s12, s6\ns_addc_u32 s73, s13, 0\ns_and_b32 s73, s73, 0xffff\ns_mov_b32 s74, 0x80000\ns_mov_b32 s75, 0x20000')
            A('s_and_b32 s60, s60, 0x3ffff')
        def wo_loads(win):
            n = 0
            for u in range(8):
                for cb in range(5):
                    if n >= win: A(f's_waitcnt vmcnt({win-1})')
                    r = DATA + 4 * (u * 5 + cb)
                    if 'wo_v' in s.skip: A(f'buffer_load_dwordx4 v[{r}:{r+3}], v2, s[72:75], s60 offen offset:{cb*256} nt')
                    elif 'wo' not in s.skip: A(f'buffer_load_dwordx4 v[{r}:{r+3}], v2, s[36:39], s60 offen offset:{cb*256} {s.pol_w}')
                    n += 1
                if u < 7:
                    if s.rot: A(f's_add_u32 s6, s57, {u+1}\ns_and_b32 s6, s6, 7\ns_mul_i32 s6, s6, 5120\ns_add_u32 s60, s7, s6')
                    else: A('s_add_u32 s60, s60, 5120')
        if s.rot:
            A('s_mov_b32 s7, s60\ns_mul_i32 s6, s57, 5120\ns_add_u32 s60, s7, s6')
        if s.WO4 != s.WO and not s.wofirst:
            l4, l5 = s.lab('wo4'), s.lab('wod')
            A('s_cmp_eq_u32 s59, 1')
            A(f's_cbranch_scc1 {l4}')
            wo_loads(s.WO)
            A(f's_branch {l5}')
            A(f'{l4}:')
            wo_loads(s.WO4)
            A(f'{l5}:')
        else:
            wo_loads(s.WO)
        s.stamp(2)
        if s.wofirst and 'ffn' not in s.skip:
            lnf = s.lab('noffn')
            A('s_cmp_lg_u32 s59, 1')
            A(f's_cbranch_scc1 {lnf}')
            s.ffn_rest()
            A(f'{lnf}:')
        l_tail, l_w7 = s.lab('tail'), s.lab('w7')
        A('s_cmp_eq_u32 s63, 3')
        A(f's_cbranch_scc1 {l_w7}')
        if s.collector and 'ffn' not in s.skip:
            l_nc = s.lab('nocol')
            A('s_cmp_lg_u32 s63, 2')
            A(f's_cbranch_scc1 {l_nc}')
            A('s_cmp_lg_u32 s2, 255')
            A(f's_cbranch_scc1 {l_tail}')
            s.collect()
            A(f's_branch {l_tail}')
            A(f'{l_nc}:')
        A('s_cmp_lg_u32 s63, 1')
        A(f's_cbranch_scc1 {l_tail}')
        s.mlx()
        A(f's_branch {l_tail}')
        A(f'{l_w7}:')
        s.consumer_prep(l_tail)
        A(f'{l_tail}:')
        s.tail()

    def ffn(s, l_skip):
        A = s.A
        DATA = 96
        if 'ffn' in s.skip: return
        A('s_cmp_lg_u32 s66, 0')
        A(f's_cbranch_scc1 {l_skip}')
        A('s_and_b32 s70, s2, 7\ns_lshl_b32 s61, s65, 3\ns_add_u32 s70, s70, s61')
        A('s_cmp_ge_u32 s70, 27')
        A(f's_cbranch_scc1 {l_skip}')
        A('s_lshr_b32 s71, s2, 3\ns_and_b32 s71, s71, 3')
        A('s_lshl_b32 s68, s70, 2\ns_add_u32 s68, s68, s71')
        s.srd(48, 20, 640 * 1728 * 2)
        s.srd(52, 22, 640 * 1728 * 2)
        s.srd(72, 24, 1728 * 640 * 2)
        A('v_lshrrev_b32 v9, 3, v0\nv_mul_u32_u24 v9, 3456, v9\nv_and_b32 v10, 7, v0\nv_lshlrev_b32 v10, 4, v10\nv_add_u32 v9, v9, v10')
        A(f's_mul_i32 s60, s71, {160*3456}\ns_lshl_b32 s61, s70, 7\ns_add_u32 s60, s60, s61\ns_mul_i32 s61, s63, {40*3456}\ns_add_u32 s60, s60, s61')
        A(f's_mul_i32 s62, s63, 5120\ns_add_u32 s69, s62, {L_WU}\ns_add_u32 s62, s62, {L_WG}')
        n = 0
        for t in range(5):
            for srd, mreg in (('s[48:51]', 's62'), ('s[52:55]', 's69')):
                if n >= s.WF: A(f's_waitcnt vmcnt({s.WF-1})')
                A(f's_mov_b32 m0, {mreg}')
                if 'f_dma' not in s.skip: A(f'buffer_load_dwordx4 v9, {srd}, s60 offen {s.pol_f} lds')
                n += 1
            if t < 4: A(f's_add_u32 s60, s60, {8*3456}\ns_add_u32 s62, s62, 1024\ns_add_u32 s69, s69, 1024')
        lw4 = s.lab('w4')
        A('s_cmp_eq_u32 s63, 0')
        A(f's_cbranch_scc1 {lw4}')
        A('s_waitcnt vmcnt(0)')
        A(f's_lshl_b32 s60, s63, 2\nv_mov_b32 v10, s60\nv_mov_b32 v11, 1')
        A(f'ds_write_b32 v10, v11 offset:{L_FLAG + 32}')
        A(f's_branch {l_skip}')
        A(f'{lw4}:')
        A('s_mov_b32 s59, 1')
        if s.wofirst: return
        s.ffn_rest()

    def ffn_rest(s):
        A = s.A
        DATA = 96
        A('v_and_b32 v9, 3, v0\nv_mul_u32_u24 v9, 1280, v9\nv_lshrrev_b32 v10, 4, v0\nv_lshlrev_b32 v11, 3, v10\nv_add_u32 v9, v9, v11')
        A('s_mul_i32 s60, s71, 320\nv_add_u32 v9, s60, v9')
        A('v_lshlrev_b32 v10, 2, v10\nv_bfe_u32 v11, v0, 2, 2\nv_add_u32 v10, v10, v11\nv_lshlrev_b32 v10, 7, v10\nv_and_b32 v11, 3, v0\nv_lshlrev_b32 v11, 3, v11\nv_add_u32 v10, v10, v11')
        A(f'v_add_u32 v8, {L_WU - L_WG}, v10')
        A('s_waitcnt vmcnt(0)')
        A(f'v_mov_b32 v12, 0\nv_mov_b32 v13, 1\nds_write_b32 v12, v13 offset:{L_FLAG + 32}')
        s.lds_flag_wait(L_FLAG + 32, 14)
        if s.fineF: s.stamp(3)
        ag, au = 12, 28
        for ks in range(5):
            o = 44
            A(f'ds_read_b64 v[{o}:{o+1}], v9 offset:{L_XN + 64*ks}')
            A(f'ds_read_b64 v[{o+2}:{o+3}], v9 offset:{L_XN + 64*ks + 32}')
            for ct in range(4):
                q = 48 + 8 * ct
                A(f'ds_read_b64_tr_b16 v[{q}:{q+1}], v10 offset:{L_WG + 4096*ks + 32*ct}')
                A(f'ds_read_b64_tr_b16 v[{q+2}:{q+3}], v10 offset:{L_WG + 4096*ks + 32*ct + 2048}')
                A(f'ds_read_b64_tr_b16 v[{q+4}:{q+5}], v8 offset:{L_WG + 4096*ks + 32*ct}')
                A(f'ds_read_b64_tr_b16 v[{q+6}:{q+7}], v8 offset:{L_WG + 4096*ks + 32*ct + 2048}')
                if ct == 2: A('s_waitcnt lgkmcnt(6)')
            A('s_waitcnt lgkmcnt(0)')
            for ct in range(4):
                q = 48 + 8 * ct
                A(f'v_mfma_f32_16x16x32_bf16 v[{ag+4*ct}:{ag+4*ct+3}], v[{o}:{o+3}], v[{q}:{q+3}], ' + ('0' if ks == 0 else f'v[{ag+4*ct}:{ag+4*ct+3}]'))
                A(f'v_mfma_f32_16x16x32_bf16 v[{au+4*ct}:{au+4*ct+3}], v[{o}:{o+3}], v[{q+4}:{q+7}], ' + ('0' if ks == 0 else f'v[{au+4*ct}:{au+4*ct+3}]'))
        A('s_mov_b32 s76, 0xffff0000\ns_mov_b32 s77, 0\ns_mov_b32 s78, 0\ns_mov_b32 s79, 0xffff\ns_mov_b32 s80, 0\ns_mov_b32 s81, 0xffff0000')
        A('v_lshlrev_b32 v9, 3, v0')
        A(f's_lshl_b32 s62, s70, 13\ns_lshl_b32 s69, s71, 9\ns_add_u32 s62, s62, s69\ns_add_u32 s62, s62, {hex(W_FX)}')
        for ct in range(4):
            o = 48 + 2 * ct
            for base, dst in ((ag, o), (au, o + 1)):
                a = base + 4 * ct
                A(f'v_cndmask_b32 v{dst}, v{a}, v{a+1}, s[76:77]')
                A(f'v_cndmask_b32 v{dst}, v{dst}, v{a+2}, s[78:79]')
                A(f'v_cndmask_b32 v{dst}, v{dst}, v{a+3}, s[80:81]')
            if 'f_x' not in s.skip: A(f'buffer_store_dwordx2 v[{o}:{o+1}], v9, s[44:47], s62 offen {s.pol_hs}')
            if ct < 3: A('s_add_u32 s62, s62, 2048')
        A('v_lshrrev_b32 v2, 4, v0\nv_mul_u32_u24 v2, 1280, v2\nv_and_b32 v3, 15, v0\nv_lshlrev_b32 v3, 4, v3\nv_add_u32 v2, v2, v3')
        A('s_mul_i32 s60, s68, 20480')
        def wd_batch(cb, base):
            for u in range(4):
                A(f's_add_u32 s6, s85, {u*5120}')
                if 'f_wd' not in s.skip: A(f'buffer_load_dwordx4 v[{base+4*u}:{base+4*u+3}], v2, s[72:75], s6 offen offset:{cb*256} {s.pol_f}')
        s._wd_batch = wd_batch
        if s.wofirst:
            A('s_mov_b32 s85, s60')
            wd_batch(0, 56); wd_batch(1, 72)
            nwd = 8
        else:
            for u in range(4):
                for cb in range(5):
                    r = DATA + 4 * (u * 5 + cb)
                    if 'f_wd' not in s.skip: A(f'buffer_load_dwordx4 v[{r}:{r+3}], v2, s[72:75], s60 offen offset:{cb*256} {s.pol_f}')
                if u < 3: A('s_add_u32 s60, s60, 5120')
            nwd = 20
        A(f's_lshl_b32 s62, s70, 9\ns_lshl_b32 s69, s71, 2\ns_add_u32 s62, s62, s69\ns_add_u32 s62, s62, {hex(W_FLAGF)}\nv_lshlrev_b32 v14, 7, v0')
        A(f's_waitcnt vmcnt({nwd})' if 'f_wd' not in s.skip else 's_waitcnt vmcnt(0)')
        if 'f_x' not in s.skip: s.flag_store('0xf', 14, 's62')
        if s.fineF: s.stamp(4)
        A(f's_lshl_b32 s60, s68, 7\ns_add_u32 s60, s60, {hex(W_FLAGF)}')
        if 'f_x' not in s.skip: s.spoll(4, [0, 1, 2, 3], sleep=2)
        A(f's_lshl_b32 s60, s68, 11\ns_add_u32 s60, s60, {hex(W_FX)}')
        for t in range(4):
            if 'f_x' not in s.skip: A(f'buffer_load_dwordx2 v[{12+2*t}:{13+2*t}], v9, s[44:47], s60 offen offset:{t*512} {s.pol_hl}')
        A('s_waitcnt vmcnt(0)')
        if s.fineF: s.stamp(5)
        A('v_add_f32 v12, v12, v14\nv_add_f32 v16, v16, v18\nv_add_f32 v12, v12, v16')
        A('v_add_f32 v13, v13, v15\nv_add_f32 v17, v17, v19\nv_add_f32 v14, v13, v17')
        g_, u_, t0, t1 = 12, 14, 20, 21
        s.bf16r(g_, g_)
        s.bf16r(u_, u_)
        A(f'v_mul_f32 v{t0}, v{g_}, v{g_}\nv_mul_f32 v{t0}, v{t0}, v{g_}')
        A(f'v_mov_b32 v{t1}, 0x3d372713\nv_fma_f32 v{t0}, v{t0}, v{t1}, v{g_}')
        A(f'v_mul_f32 v{t0}, 0x3f4c422a, v{t0}')
        A(f'v_mul_f32 v{t0}, 0x4038aa3b, v{t0}')
        A(f'v_exp_f32 v{t0}, v{t0}')
        A(f'v_add_f32 v{t0}, 1.0, v{t0}')
        A(f'v_rcp_f32 v{t0}, v{t0}')
        A(f'v_fma_f32 v{t0}, v{t0}, -2.0, 1.0')
        A(f'v_add_f32 v{t0}, 1.0, v{t0}')
        A(f'v_mul_f32 v{t1}, 0.5, v{g_}')
        A(f'v_mul_f32 v{t0}, v{t1}, v{t0}')
        s.bf16r(t0, t0)
        A(f'v_mul_f32 v{t0}, v{t0}, v{u_}')
        A(f'v_cvt_pk_bf16_f32 v{g_}, v{t0}, v{t0}')
        A('v_lshrrev_b32 v9, 4, v0\nv_lshlrev_b32 v9, 6, v9\nv_and_b32 v10, 3, v0\nv_lshlrev_b32 v10, 4, v10\nv_bfe_u32 v11, v0, 2, 2\nv_lshlrev_b32 v11, 2, v11\nv_add3_u32 v9, v9, v10, v11')
        A(f'ds_write_b32 v9, v{g_} offset:{L_HT}')
        if s.dbg:
            A(f's_lshl_b32 s60, s68, 8\ns_add_u32 s60, s60, {hex(W_DBG + 0x500000)}')
            A('v_lshlrev_b32 v10, 2, v0\nv_add_u32 v10, s60, v10')
            A(f'global_store_dword v10, v{g_}, s[30:31]')
        A('v_bfe_u32 v9, v0, 3, 1\nv_lshlrev_b32 v9, 2, v9\nv_lshrrev_b32 v10, 4, v0\nv_add_u32 v9, v9, v10\nv_lshlrev_b32 v9, 4, v9')
        A('s_waitcnt lgkmcnt(0)')
        A(f'ds_read_b128 v[12:15], v9 offset:{L_HT}')
        A(f'ds_read_b128 v[16:19], v9 offset:{L_HT + 128}')
        A('v_bfe_u32 v9, v0, 3, 1\nv_mul_u32_u24 v9, 640, v9\nv_lshrrev_b32 v10, 4, v0\nv_lshlrev_b32 v10, 5, v10\nv_and_b32 v11, 7, v0\nv_add3_u32 v9, v9, v10, v11\nv_lshlrev_b32 v9, 2, v9')
        A('s_waitcnt vmcnt(0) lgkmcnt(0)')
        if s.wofirst:
            for bp in range(2):
                for u in range(4):
                    for d in range(4): A(f'v_and_b32 v{20+16*bp+4*u+d}, v{12+4*bp+u}, v{4+d}')
            for cb in range(5):
                base = 56 if cb % 2 == 0 else 72
                if cb >= 2: A(f's_waitcnt vmcnt({4 if cb < 4 else 0})')
                for bp in range(2):
                    a = 88 + 4 * bp if False else (12 + 4 * bp)
                    for u in range(4):
                        A(f'v_mfma_f32_16x16x32_bf16 v[{a}:{a+3}], v[{base+4*u}:{base+4*u+3}], v[{20+16*bp+4*u}:{23+16*bp+4*u}], ' + ('0' if u == 0 else f'v[{a}:{a+3}]'))
                if cb + 2 < 5: s._wd_batch(cb + 2, base)
                for bp in range(2):
                    for r in range(4):
                        A(f'ds_write_b32 v9, v{12+4*bp+r} offset:{L_YPART + bp*5120 + cb*512 + r*32}')
        else:
            for u in range(4):
                for bp in range(2):
                    y = 60 + 4 * ((2 * u + bp) & 3)
                    for d in range(4): A(f'v_and_b32 v{y+d}, v{12+4*bp+u}, v{4+d}')
                    for cb in range(5):
                        a = 20 + 8 * cb + 4 * bp
                        r = DATA + 4 * (u * 5 + cb)
                        A(f'v_mfma_f32_16x16x32_bf16 v[{a}:{a+3}], v[{r}:{r+3}], v[{y}:{y+3}], ' + ('0' if u == 0 else f'v[{a}:{a+3}]'))
            for cb in range(5):
                for bp in range(2):
                    for r in range(4):
                        A(f'ds_write_b32 v9, v{20+8*cb+4*bp+r} offset:{L_YPART + bp*5120 + cb*512 + r*32}')
        A('s_waitcnt lgkmcnt(0)')
        A('v_lshlrev_b32 v9, 4, v0')
        A(f's_mul_i32 s60, s68, 10240\ns_add_u32 s60, s60, {hex(W_FPART)}')
        for t in range(10):
            A(f'ds_read_b128 v[{12+4*t}:{15+4*t}], v9 offset:{L_YPART + 1024*t}')
        A('s_waitcnt lgkmcnt(0)')
        for t in range(10):
            if 'f_pub' not in s.skip: A(f'buffer_store_dwordx4 v[{12+4*t}:{15+4*t}], v9, s[44:47], s60 offen offset:{(t%4)*1024} {s.pol_fp}')
            if t % 4 == 3: A('s_add_u32 s60, s60, 4096')
        A(f's_lshl_b32 s62, s68, 2\ns_add_u32 s62, s62, {hex(W_FLAGP)}\nv_mov_b32 v9, 0')
        A('s_waitcnt vmcnt(0)')
        s.flag_store('1', 9, 's62')
        if s.fineF: s.stamp(6)

    def wait_ml(s):
        A = s.A
        lp, ld = s.lab('ml'), s.lab('mld')
        A(f'v_and_b32 v9, 3, v0\nv_lshlrev_b32 v9, 3, v9')
        A('s_mov_b32 s61, 0x400000')
        A(f'{lp}:')
        A(f'ds_read_b64 v[10:11], v9 offset:{L_ML}')
        A('s_waitcnt lgkmcnt(0)')
        A('v_cmp_eq_u32 vcc, -1, v10')
        A(f's_cbranch_vccz {ld}')
        A('s_sleep 16')
        A('s_sub_u32 s61, s61, 1\ns_cmp_lg_u32 s61, 0')
        A(f's_cbranch_scc1 {lp}')
        A(f'{ld}:')

    def mlx(s):
        A = s.A
        s.wait_ml()
        A('v_mov_b32 v12, v10')
        A('v_max_f32_dpp v12, v12, v12 quad_perm:[1,0,3,2] row_mask:0xf bank_mask:0xf')
        A('v_max_f32_dpp v12, v12, v12 quad_perm:[2,3,0,1] row_mask:0xf bank_mask:0xf')
        A(f'v_sub_f32 v14, v10, v12\nv_mul_f32 v14, {hex(LOG2E)}, v14\nv_exp_f32 v14, v14')
        A('v_mul_f32 v14, v14, v11')
        A('v_add_f32_dpp v14, v14, v14 quad_perm:[1,0,3,2] row_mask:0xf bank_mask:0xf')
        A('v_add_f32_dpp v14, v14, v14 quad_perm:[2,3,0,1] row_mask:0xf bank_mask:0xf')
        A('v_mov_b32 v13, s58\nv_mov_b32 v15, s58')
        A(f's_xor_b32 s60, s2, 128\ns_lshl_b32 s60, s60, 7\ns_add_u32 s60, s60, {hex(W_ML)}')
        A('v_mov_b32 v9, 0')
        A('s_mov_b64 exec, 1')
        A(f'buffer_store_dwordx4 v[12:15], v9, s[44:47], s60 offen {s.pol_hs}')
        A('s_mov_b64 exec, -1')
        A(f's_lshl_b32 s60, s2, 7\ns_add_u32 s60, s60, {hex(W_ML)}')
        s.spoll(4, [1, 3], sleep=4)
        A('v_mov_b32 v22, s76\nv_mov_b32 v23, s78')
        A('v_max_f32 v16, v12, v22')
        A(f'v_sub_f32 v17, v12, v16\nv_mul_f32 v17, {hex(LOG2E)}, v17\nv_exp_f32 v17, v17')
        A(f'v_sub_f32 v18, v22, v16\nv_mul_f32 v18, {hex(LOG2E)}, v18\nv_exp_f32 v18, v18')
        A('v_mul_f32 v17, v17, v14\nv_fma_f32 v17, v18, v23, v17')
        A(f'v_sub_f32 v18, v10, v16\nv_mul_f32 v18, {hex(LOG2E)}, v18\nv_exp_f32 v18, v18')
        A('v_rcp_f32 v19, v17')
        A('v_mul_f32 v20, v18, v19\nv_fma_f32 v21, -v20, v17, v18\nv_fma_f32 v20, v21, v19, v20')
        A('v_mov_b32 v14, 0x7fc00000\nv_cmp_eq_u32 vcc, -1, v20\nv_cndmask_b32 v20, v20, v14, vcc')
        A('v_and_b32 v9, 3, v0\nv_lshlrev_b32 v9, 2, v9')
        A(f'ds_write_b32 v9, v20 offset:{L_WF}')
        A('s_waitcnt lgkmcnt(0)')

    def collect(s):
        A = s.A
        lp, ld = s.lab('fc'), s.lab('fcd')
        A(f'v_lshlrev_b32 v9, 2, v0\ns_mov_b32 s60, {hex(W_FLAGP)}\ns_mov_b32 s61, 0x100000')
        A(f'{lp}:')
        A(f'buffer_load_dword v10, v9, s[44:47], s60 offen {s.pol_hl}')
        A(f'buffer_load_dword v11, v9, s[44:47], s60 offen offset:256 {s.pol_hl}')
        A('s_waitcnt vmcnt(0)')
        A('v_cmp_ne_u32 vcc, s58, v10')
        A('v_cmp_ne_u32 s[76:77], s58, v11')
        A('s_and_b32 s77, s77, 0xfff')
        A('s_or_b64 vcc, vcc, s[76:77]')
        A(f's_cbranch_vccz {ld}')
        A('s_sleep 32')
        A('s_sub_u32 s61, s61, 1\ns_cmp_lg_u32 s61, 0')
        A(f's_cbranch_scc1 {lp}')
        A(f'{ld}:')
        A(f'v_lshlrev_b32 v9, 7, v0\nv_mov_b32 v10, s58\ns_mov_b32 s60, {hex(W_FDONE)}')
        A('buffer_store_dword v10, v9, s[44:47], s60 offen sc1')
        A(f's_mov_b32 s60, {hex(W_FDONE + 64*128)}')
        A('s_mov_b64 exec, 0xffff')
        A('buffer_store_dword v10, v9, s[44:47], s60 offen sc1')
        A('s_mov_b64 exec, -1')

    def consumer_prep(s, l_tail):
        A = s.A
        A('s_cmp_ge_u32 s84, 20')
        A(f's_cbranch_scc1 {l_tail}')
        if 'ffn' not in s.skip and s.collector:
            A(f's_mul_i32 s60, s65, 20\ns_add_u32 s60, s60, s84\ns_lshl_b32 s60, s60, 7\ns_add_u32 s60, s60, {hex(W_FDONE)}')
            if 'f_cons' not in s.skip: s.spoll(1, [0], sleep=32)
        elif 'ffn' not in s.skip:
                s.wait_ml()
                lp, ld = s.lab('fc'), s.lab('fcd')
                A(f'v_lshlrev_b32 v9, 2, v0\ns_mov_b32 s60, {hex(W_FLAGP)}\ns_mov_b32 s61, 0x100000')
                A(f'{lp}:')
                A(f'buffer_load_dword v10, v9, s[44:47], s60 offen {s.pol_hl}')
                A(f'buffer_load_dword v11, v9, s[44:47], s60 offen offset:256 {s.pol_hl}')
                A('s_waitcnt vmcnt(0)')
                A('v_cmp_ne_u32 vcc, s58, v10')
                A('v_cmp_ne_u32 s[76:77], s58, v11')
                A('s_and_b32 s77, s77, 0xfff')
                A('s_or_b64 vcc, vcc, s[76:77]')
                A(f's_cbranch_vccz {ld}')
                A('s_sleep 32')
                A('s_sub_u32 s61, s61, 1\ns_cmp_lg_u32 s61, 0')
                A(f's_cbranch_scc1 {lp}')
                A(f'{ld}:')
        A('v_lshrrev_b32 v9, 3, v0\nv_mul_u32_u24 v9, 10240, v9\nv_and_b32 v10, 7, v0\nv_lshlrev_b32 v10, 4, v10\nv_add_u32 v9, v9, v10')
        A(f's_mul_i32 s60, s65, 2560\ns_lshl_b32 s61, s84, 7\ns_add_u32 s60, s60, s61\ns_add_u32 s60, s60, {hex(W_FPART)}')
        for r in range(4): A(f'v_mov_b32 v{16+4*13+r}, 0')
        for t in range(14):
            if t == 13: A('s_mov_b64 exec, 0xffffffff')
            if s.fgwin and t >= s.fgwin: A(f's_waitcnt vmcnt({s.fgwin-1})')
            if 'f_g' not in s.skip: A(f'buffer_load_dwordx4 v[{16+4*t}:{19+4*t}], v9, s[44:47], s60 offen {s.pol_fg}')
            if t < 13: A(f's_add_u32 s60, s60, {8*10240}')
        A('s_mov_b64 exec, -1')
        A('s_mul_i32 s60, s65, 1280\ns_lshl_b32 s61, s84, 6\ns_add_u32 s60, s60, s61')
        A('v_and_b32 v10, 15, v0\nv_lshlrev_b32 v10, 2, v10')
        A(f'buffer_load_dword v12, v10, s[40:43], s60 offen')
        A('s_waitcnt vmcnt(0)')
        for t in range(1, 14):
            for r in range(4): A(f'v_add_f32 v{16+r}, v{16+r}, v{16+4*t+r}')
        for r in range(4): s.reduce_hi3(16 + r, 20)
        for r in range(4):
            f = 16 + r
            s.bf16r(f, f)
            A(f'v_mul_f32 v20, 0xbfb8aa3b, v{f}\nv_exp_f32 v20, v20\nv_add_f32 v20, 1.0, v20\nv_rcp_f32 v21, v20')
            A(f'v_mul_f32 v22, v{f}, v21\nv_fma_f32 v23, -v22, v20, v{f}\nv_fma_f32 v23, v23, v21, v22')
            A('v_cmp_u_f32 vcc, v23, v23')
            A(f'v_cndmask_b32 v22, v23, v22, vcc')
            s.bf16r(24 + r, 22)
        A('v_and_b32 v9, 7, v0\nv_lshlrev_b32 v9, 4, v9')
        A(f'ds_write_b128 v9, v[24:27] offset:{L_GX}')
        A('v_and_b32 v9, 15, v0\nv_lshlrev_b32 v9, 3, v9')
        A('s_waitcnt lgkmcnt(0)')
        A(f'ds_read_b64 v[88:89], v9 offset:{L_GX}')
        A('v_lshlrev_b32 v92, 16, v12\nv_and_b32 v93, 0xffff0000, v12')
        A('s_waitcnt lgkmcnt(0)')

    def tail(s):
        A = s.A
        DATA = 96
        vM = 4
        A('v_lshrrev_b32 v9, 4, v0\nv_lshlrev_b32 v9, 7, v9\ns_lshl_b32 s60, s63, 5\nv_add_u32 v9, s60, v9')
        A('v_lshrrev_b32 v10, 4, v0\nv_lshlrev_b32 v10, 7, v10\nv_and_b32 v11, 15, v0\nv_lshlrev_b32 v11, 2, v11\nv_add_u32 v10, v10, v11')
        A('s_mul_i32 s60, s63, 2560\nv_add_u32 v10, s60, v10')
        A('s_lshl_b32 s60, s63, 6\nv_add_u32 v76, s60, v0')
        A('v_lshrrev_b32 v77, 3, v76\nv_lshlrev_b32 v77, 14, v77\nv_and_b32 v78, 7, v76\nv_lshlrev_b32 v78, 5, v78\nv_add_u32 v77, v77, v78')
        A('v_lshlrev_b32 v78, 4, v76')
        A('s_mul_i32 s62, s65, 327680\ns_lshl_b32 s69, s67, 8\ns_add_u32 s62, s62, s69')
        A('s_waitcnt vmcnt(0)')
        if not s.fineF: s.stamp(3)
        A('s_barrier')
        if not s.fineF: s.stamp(4)
        if s.fasttail and not s.dbg:
            acc = 48
            for w in range(4): A(f'ds_read_b128 v[{16+8*w}:{19+8*w}], v9 offset:{L_OPART + 512*w}')
            for w in range(4): A(f'ds_read_b128 v[{20+8*w}:{23+8*w}], v9 offset:{L_OPART + 512*w + 16}')
            def osum(u):
                return [f'v_add_f32 v{16+u}, v{16+u}, v{24+u}', f'v_add_f32 v{32+u}, v{32+u}, v{40+u}', f'v_add_f32 v{16+u}, v{16+u}, v{32+u}',
                        f'v_cvt_pk_bf16_f32 v{16+u}, v{16+u}, v{16+u}']
            def yb(u):
                y = 68 + 4 * (u & 1)
                return [f'v_and_b32 v{y+d}, v{16+u}, v{vM+d}' for d in range(4)]
            A('s_waitcnt lgkmcnt(4)')
            for i in osum(0) + osum(1) + yb(0): A(i)
            for u in range(8):
                y = 68 + 4 * (u & 1)
                fill = []
                if u == 2: fill.append('s_waitcnt lgkmcnt(0)')
                if u + 1 < 8: fill += yb(u + 1)
                if u + 2 < 8: fill += osum(u + 2)
                per = [fill[0:2], fill[2:4], fill[4:6], fill[6:9], []] if u != 2 else [fill[0:3], fill[3:5], fill[5:7], fill[7:9], []]
                for cb in range(5):
                    r = DATA + 4 * (u * 5 + cb)
                    a_ = acc + 4 * cb
                    A(f'v_mfma_f32_16x16x32_bf16 v[{a_}:{a_+3}], v[{r}:{r+3}], v[{y}:{y+3}], ' + ('0' if u == 0 else f'v[{a_}:{a_+3}]'))
                    for i in per[cb]: A(i)
        else:
            for w in range(4):
                A(f'ds_read_b128 v[{16+8*w}:{19+8*w}], v9 offset:{L_OPART + 512*w}')
                A(f'ds_read_b128 v[{20+8*w}:{23+8*w}], v9 offset:{L_OPART + 512*w + 16}')
            A('s_waitcnt lgkmcnt(0)')
            def osum(u):
                A(f'v_add_f32 v{16+u}, v{16+u}, v{24+u}')
                A(f'v_add_f32 v{32+u}, v{32+u}, v{40+u}')
                A(f'v_add_f32 v{16+u}, v{16+u}, v{32+u}')
                A(f'v_cvt_pk_bf16_f32 v{16+u}, v{16+u}, v{16+u}')
            acc = 48
            if s.dbg:
                for u in range(8): osum(u)
                A(f's_lshl_b32 s60, s2, 13\ns_lshl_b32 s61, s63, 11\ns_add_u32 s60, s60, s61\ns_add_u32 s60, s60, {hex(W_DBG + 0x600000)}')
                A('v_lshlrev_b32 v48, 5, v0\nv_add_u32 v48, s60, v48')
                A('global_store_dwordx4 v48, v[16:19], s[30:31]\nglobal_store_dwordx4 v48, v[20:23], s[30:31] offset:16')
                A('s_waitcnt vmcnt(0)')
            else:
                osum(0); osum(1)
            for u in range(8):
                y = 68 + 4 * (u & 1)
                for d in range(4): A(f'v_and_b32 v{y+d}, v{16+u}, v{vM+d}')
                if not s.dbg and u + 2 < 8: osum(u + 2)
                for cb in range(5):
                    r = DATA + 4 * (u * 5 + cb)
                    a = acc + 4 * cb
                    A(f'v_mfma_f32_16x16x32_bf16 v[{a}:{a+3}], v[{r}:{r+3}], v[{y}:{y+3}], ' + ('0' if u == 0 else f'v[{a}:{a+3}]'))
        A('s_mov_b32 exec_lo, 0x00ff00ff\ns_mov_b32 exec_hi, 0x00ff00ff')
        for cb in range(5):
            for r in range(4):
                A(f'ds_write_b32 v10, v{acc+4*cb+r} offset:{L_YPART + 512*cb + 32*r}')
        A('s_mov_b64 exec, -1')
        A('s_waitcnt lgkmcnt(0)')
        A('s_barrier')
        if not s.fineF: s.stamp(5)
        l_fin, l_done = s.lab('fin'), s.lab('done')
        A('s_cmp_eq_u32 s63, 3')
        A(f's_cbranch_scc1 {l_fin}')
        A('v_cmp_gt_u32 vcc, 160, v76')
        A('s_and_saveexec_b64 s[60:61], vcc')
        A(f's_cbranch_execz {l_done}')
        for w in range(4):
            A(f'ds_read_b128 v[{16+4*w}:{19+4*w}], v78 offset:{L_YPART + 2560*w}')
        A('v_mov_b32 v33, s58\nv_mov_b32 v35, s58\nv_mov_b32 v37, s58\nv_mov_b32 v39, s58')
        A('s_waitcnt lgkmcnt(0)')
        for r in range(4):
            A(f'v_add_f32 v{16+r}, v{16+r}, v{20+r}')
            A(f'v_add_f32 v{24+r}, v{24+r}, v{28+r}')
        for r in range(4):
            A(f'v_add_f32 v{32+2*r}, v{16+r}, v{24+r}')
        A(f'buffer_store_dwordx4 v[32:35], v77, s[44:47], s62 offen {s.pol_hs}')
        A(f'buffer_store_dwordx4 v[36:39], v77, s[44:47], s62 offen offset:16 {s.pol_hs}')
        A(f'{l_done}:')
        if not s.fineF: s.stamp(6)
        s.stamp_store(7)
        A('s_endpgm')
        A(f'{l_fin}:')
        l_nf = s.lab('nofin')
        A('s_cmp_ge_u32 s84, 20')
        A(f's_cbranch_scc1 {l_nf}')
        A('s_mul_i32 s60, s65, 20\ns_add_u32 s60, s60, s84\ns_lshl_b32 s60, s60, 14')
        for k in range(1, 4): A(f's_add_u32 s{80+k}, s60, {4096*k}')
        A('s_mov_b32 s80, s60')
        A('v_lshlrev_b32 v9, 4, v0')
        s.srd(48, 26, 5120)
        A('s_mul_i32 s52, s65, 1280\ns_lshl_b32 s53, s84, 6\ns_add_u32 s52, s52, s53')
        A('v_lshlrev_b32 v10, 2, v0')
        lp, ld = s.lab('fp'), s.lab('fpd')
        for t in range(16):
            A(f'buffer_load_dwordx4 v[{16+4*t}:{19+4*t}], v9, s[44:47], s{80+t//4} offen offset:{(t%4)*1024} {s.pol_hl}')
        A('s_mov_b32 s61, 0x100000')
        A(f'{lp}:')
        if s.maskpoll:
            tags = [16 + 4 * t + k for t in range(16) for k in (1, 3)]
            A('s_waitcnt vmcnt(0)')
            A(f'v_min_u32 v80, v{tags[0]}, v{tags[1]}\nv_max_u32 v81, v{tags[0]}, v{tags[1]}')
            for i in range(2, 32, 2):
                A(f'v_min3_u32 v80, v80, v{tags[i]}, v{tags[i+1]}')
                A(f'v_max3_u32 v81, v81, v{tags[i]}, v{tags[i+1]}')
            A('v_cmp_ne_u32 vcc, s58, v80')
            A('v_cmp_ne_u32 s[76:77], s58, v81')
            A('s_or_b64 vcc, vcc, s[76:77]')
            A(f's_cbranch_vccz {ld}')
            for t in range(16):
                A(f'v_cmp_ne_u32 vcc, s58, v{17+4*t}')
                A(f'v_cmp_ne_u32 s[76:77], s58, v{19+4*t}')
                A('s_or_b64 vcc, vcc, s[76:77]')
                ls = s.lab('ok')
                A(f's_cbranch_vccz {ls}')
                A('s_mov_b64 exec, vcc')
                A(f'buffer_load_dwordx4 v[{16+4*t}:{19+4*t}], v9, s[44:47], s{80+t//4} offen offset:{(t%4)*1024} {s.pol_hl}')
                A('s_mov_b64 exec, -1')
                A(f'{ls}:')
            A('s_sub_u32 s61, s61, 1\ns_cmp_lg_u32 s61, 0')
            A(f's_cbranch_scc1 {lp}')
            A('s_waitcnt vmcnt(0)')
        else:
            tags = [16 + 4 * t + k for t in range(16) for k in (1, 3)]
            A('s_waitcnt vmcnt(12)')
            A(f'v_min_u32 v80, v{tags[0]}, v{tags[1]}\nv_max_u32 v81, v{tags[0]}, v{tags[1]}')
            for i in range(2, 32, 2):
                if i in (8, 16, 24): A(f's_waitcnt vmcnt({12 - i//2})')
                A(f'v_min3_u32 v80, v80, v{tags[i]}, v{tags[i+1]}')
                A(f'v_max3_u32 v81, v81, v{tags[i]}, v{tags[i+1]}')
            A('v_cmp_ne_u32 vcc, s58, v80')
            A('v_cmp_ne_u32 s[76:77], s58, v81')
            A('s_or_b64 vcc, vcc, s[76:77]')
            A(f's_cbranch_vccz {ld}')
            for t in range(16):
                A(f'buffer_load_dwordx4 v[{16+4*t}:{19+4*t}], v9, s[44:47], s{80+t//4} offen offset:{(t%4)*1024} {s.pol_hl}')
            A('s_sub_u32 s61, s61, 1\ns_cmp_lg_u32 s61, 0')
            A(f's_cbranch_scc1 {lp}')
            A('s_waitcnt vmcnt(0)')
        A(f'{ld}:')
        step = 1
        while step < 16:
            for t in range(0, 16, 2 * step):
                for k in (0, 2): A(f'v_add_f32 v{16+4*t+k}, v{16+4*t+k}, v{16+4*(t+step)+k}')
            step *= 2
        for k in (0, 2): A(f'v_mov_b32 v{20+k}, v{16+k}')
        for k in (0, 2): A(f'v_permlane16_swap_b32 v{16+k}, v{20+k}')
        for k in (0, 2): A(f'v_add_f32 v{16+k}, v{16+k}, v{20+k}')
        for k in (0, 2): A(f'v_mov_b32 v{20+k}, v{16+k}')
        for k in (0, 2): A(f'v_permlane32_swap_b32 v{16+k}, v{20+k}')
        for k in (0, 2): A(f'v_add_f32 v{16+k}, v{16+k}, v{20+k}')
        A('v_cvt_pk_bf16_f32 v16, v16, v18')
        A('v_lshlrev_b32 v17, 16, v16\nv_and_b32 v18, 0xffff0000, v16')
        A('v_mul_f32 v17, v17, v88\nv_mul_f32 v18, v18, v89')
        A('v_cvt_pk_bf16_f32 v16, v17, v18')
        A('v_lshlrev_b32 v17, 16, v16\nv_and_b32 v18, 0xffff0000, v16')
        A('v_add_f32 v17, v17, v92\nv_add_f32 v18, v18, v93')
        A('v_cvt_pk_bf16_f32 v16, v17, v18')
        A('s_mov_b64 exec, 0xffff')
        A('buffer_store_dword v16, v10, s[48:51], s52 offen')
        A('s_mov_b64 exec, -1')
        A('s_or_b32 s60, s65, s84\ns_cmp_lg_u32 s60, 0')
        A(f's_cbranch_scc1 {l_nf}')
        A(f'v_mov_b32 v9, 0\nv_mov_b32 v11, s58\ns_mov_b32 s60, {hex(W_NONCE)}')
        A('s_mov_b64 exec, 1')
        A('buffer_store_dword v11, v9, s[44:47], s60 offen sc1')
        A('s_mov_b64 exec, -1')
        A(f'{l_nf}:')
        if not s.fineF: s.stamp(6)
        s.stamp_store(7)

    def text(s):
        s.build()
        body = hz.fix(s.L)
        out = [HEADER + f'; @launch grid=(256,1,1) block=(512,1,1) lds={LDS_BYTES}',
               '.amdgcn_target "amdgcn-amd-amdhsa--gfx950"', '.text', f'.globl {NAME}_kernel', '.p2align 8',
               f'.type {NAME}_kernel,@function']
        out += body
        out += ['.section .rodata,"a"', '.p2align 6', f'.amdhsa_kernel {NAME}_kernel',
                '  .amdhsa_next_free_vgpr 256', '  .amdhsa_next_free_sgpr 102', '  .amdhsa_accum_offset 256',
                '  .amdhsa_group_segment_fixed_size 0', '  .amdhsa_kernarg_size 96', '  .amdhsa_user_sgpr_count 2',
                '  .amdhsa_user_sgpr_kernarg_segment_ptr 1', '  .amdhsa_system_sgpr_workgroup_id_x 1',
                '  .amdhsa_float_denorm_mode_32 3',
                '.end_amdhsa_kernel']
        return '\n'.join(out) + '\n'

if __name__ == '__main__':
    import argparse
    ap = argparse.ArgumentParser()
    ap.add_argument('-o', default='cdna_kernels/' + NAME + '.s')
    ap.add_argument('--cfg', default='{}')
    a = ap.parse_args()
    g = Gen(**eval(a.cfg))
    open(a.o, 'w').write(g.text())
    print('wrote', a.o)
```

```python
import sys, os
sys.path.insert(0, os.path.dirname(os.path.abspath(__file__)))
import hz

NAME = 'recurrent_scan__gqa_block_cached__geglu_ffn__decode'

HEADER = '''; Kernarg layout for this problem (96 bytes, ptrs only, base s[0:1]):
;   offset  32: d_in[4] A_wo  shape=(4096, 640) dtype=bfloat16
;   offset  88: d_ws      workspace: q, FFN partials, hand-off mailboxes
; Layout: 256 workgroups, one per (batch, head, key half); 8 waves each.
;   waves 4-7 (helpers): layernorm, 1/8 of the head's q projection (exchanged between the 8 workgroups of a head), the wo slice
;     kept in registers, a slice of the GeGLU FFN (108 workgroups), the (max,sum) exchange with the partner half,
;     the output projection and the final combine (80 consumer workgroups: x + s * silu(ffn)).
;   Hand-offs between workgroups go through d_ws with write-through stores; every flag / granule carries a tag that differs
;   from the previous launch's (word at d_ws+0x148000, plus one), so nothing has to be cleared and stale words are ignored.
'''

L_QP    = 0x0000
L_XN    = 0x2000
L_ML    = 0x3400
L_WF    = 0x3440
L_FLAG  = 0x3480
L_QB    = 0x3500
L_HT    = 0x3600
L_OPART = 0x3700
L_YPART = 0x3F00
L_GX    = 0x6700
L_WG    = 0x6800
L_WU    = 0xB800
LDS_BYTES = 0x10800

W_YIN   = 0x000000
W_ML    = 0x140000
W_NONCE = 0x148000
W_FLAGQ = 0x150000
W_FLAGF = 0x158000
W_FLAGP = 0x14B000
W_FDONE = 0x160000
W_Q     = 0x180000
W_FPART = 0x200000
W_FX    = 0x320000
W_Q2    = 0x360000
WS_SIZE = 0x460000
W_DBG   = 0x1000000

SCALE = 0x3db504f3
LOG2E = 0x3fb8aa3b

class Gen:
    def __init__(s, W=5, P=24, B=40, WO=3, WF=5, pol_kv='nt', pol_w='', pol_hl='sc1', pol_hs='sc1', dbg=False, stamps=False, prio=True, skip='', W0=None, fineF=False, WO4=None, pol_f=None, pol_q=None, WD=4, boost=0, rot=False, WV=None, maskpoll=False, pol_fg=None, pol_fp=None, mix=0, collector=True, fgwin=0, wofirst=False, refill=0, cstep=8, Wend=0, Nend=0, fasttail=False, qflag=False, qtag=False, vtouch=0):
        s.vtouch = vtouch
        s.qtag = qtag
        s.qflag = qflag
        s.fasttail = fasttail
        s.Wend, s.Nend = Wend, Nend
        s.refill = refill; s.cstep = cstep
        s.wofirst = wofirst
        s.collector = collector; s.fgwin = fgwin
        s.mix = mix
        s.pol_fg = pol_hl if pol_fg is None else pol_fg; s.pol_fp = pol_hs if pol_fp is None else pol_fp
        s.maskpoll = maskpoll
        s.WV = WV or W
        s.rot = rot
        s.boost = boost
        s.WD = WD
        s.fineF = fineF; s.WO4 = WO4 or WO; s.pol_f = pol_w if pol_f is None else pol_f; s.pol_q = pol_w if pol_q is None else pol_q
        s.L = []
        s.W, s.P, s.B, s.WO, s.WF = W, P, B, WO, WF
        s.W0 = W0 or W
        s.pol_kv, s.pol_w, s.pol_hl, s.pol_hs = pol_kv, pol_w, pol_hl, pol_hs
        s.dbg = dbg; s.stamps = stamps; s.prio = prio; s.skip = skip.split(',')
        s.nlab = 0
    def A(s, t):
        for l in t.split('\n'):
            l = l.strip()
            if l: s.L.append(('  ' + l) if not l.endswith(':') else l)
    def lab(s, base):
        s.nlab += 1
        return f'L_{base}_{s.nlab}'

    def allreduce(s, op, v, t):
        A = s.A
        ins = {'add': 'v_add_f32', 'max': 'v_max_f32'}[op]
        A(f'{ins}_dpp v{v}, v{v}, v{v} quad_perm:[1,0,3,2] row_mask:0xf bank_mask:0xf')
        A(f'{ins}_dpp v{v}, v{v}, v{v} quad_perm:[2,3,0,1] row_mask:0xf bank_mask:0xf')
        A(f'{ins}_dpp v{v}, v{v}, v{v} row_half_mirror row_mask:0xf bank_mask:0xf')
        A(f'{ins}_dpp v{v}, v{v}, v{v} row_mirror row_mask:0xf bank_mask:0xf')
        A(f'v_mov_b32 v{t}, v{v}')
        A(f'v_permlane16_swap_b32 v{v}, v{t}')
        A(f'{ins} v{v}, v{v}, v{t}')
        A(f'v_mov_b32 v{t}, v{v}')
        A(f'v_permlane32_swap_b32 v{v}, v{t}')
        A(f'{ins} v{v}, v{v}, v{t}')

    def reduce_hi3(s, v, t):
        A = s.A
        A(f'v_add_f32_dpp v{v}, v{v}, v{v} row_ror:8 row_mask:0xf bank_mask:0xf')
        A(f'v_mov_b32 v{t}, v{v}')
        A(f'v_permlane16_swap_b32 v{v}, v{t}')
        A(f'v_add_f32 v{v}, v{v}, v{t}')
        A(f'v_mov_b32 v{t}, v{v}')
        A(f'v_permlane32_swap_b32 v{v}, v{t}')
        A(f'v_add_f32 v{v}, v{v}, v{t}')

    def bf16r(s, dst, src):
        s.A(f'v_cvt_pk_bf16_f32 v{dst}, v{src}, v{src}')
        s.A(f'v_lshlrev_b32 v{dst}, 16, v{dst}')

    def srd(s, n, ptr, size):
        s.A(f's_mov_b32 s{n}, s{ptr}\ns_and_b32 s{n+1}, s{ptr+1}, 0xffff\ns_mov_b32 s{n+2}, {hex(size)}\ns_mov_b32 s{n+3}, 0x20000')

    def stamp(s, idx):
        if s.stamps: s.A(f's_memrealtime s[{86+2*idx}:{87+2*idx}]')

    def stamp_store(s, n):
        if not s.stamps: return
        A = s.A
        A('s_waitcnt lgkmcnt(0)')
        A('s_lshl_b32 s100, s2, 3\ns_add_u32 s100, s100, s3\ns_lshl_b32 s100, s100, 6')
        A(f's_add_u32 s100, s100, {hex(W_DBG)}')
        A('v_mov_b32 v1, s100')
        A('s_mov_b64 exec, 1')
        for i in range(n):
            A(f'v_mov_b32 v2, s{86+2*i}')
            A(f'global_store_dword v1, v2, s[30:31] offset:{4*i}')
        A('s_mov_b64 exec, -1')

    def masks_Md(s, base, jreg, t1, t2, mod8=False):
        A = s.A
        if mod8: A(f'v_and_b32 v{t1}, 7, v{jreg}')
        else: A(f'v_mov_b32 v{t1}, v{jreg}')
        A(f'v_and_b32 v{t2}, 1, v{t1}')
        A(f'v_cmp_eq_u32 vcc, 1, v{t2}')
        A(f'v_mov_b32 v{t2}, 0xffff')
        A(f'v_mov_b32 v{base}, 0xffff0000')
        A(f'v_cndmask_b32 v{t2}, v{t2}, v{base}, vcc')
        A(f'v_lshrrev_b32 v{t1}, 1, v{t1}')
        for d in range(4):
            A(f'v_cmp_eq_u32 vcc, {d}, v{t1}')
            A(f'v_cndmask_b32 v{base+d}, 0, v{t2}, vcc')

    def layernorm(s, xr, out_pairs, tb):
        A = s.A
        f = tb
        a, t = tb + 10, tb + 11
        for i in range(5):
            A(f'v_lshlrev_b32 v{f+2*i}, 16, v{xr+i}')
            A(f'v_and_b32 v{f+2*i+1}, 0xffff0000, v{xr+i}')
        A(f'v_add_f32 v{a}, v{f}, v{f+1}\nv_add_f32 v{t}, v{f+2}, v{f+3}')
        for i in range(4, 10, 2): A(f'v_add_f32 v{a}, v{a}, v{f+i}\nv_add_f32 v{t}, v{t}, v{f+i+1}')
        A(f'v_add_f32 v{a}, v{a}, v{t}')
        s.allreduce('add', a, t)
        A(f'v_mul_f32 v{a}, 0x3acccccd, v{a}')
        v, d = tb + 12, tb + 13
        A(f'v_sub_f32 v{d}, v{f}, v{a}\nv_mul_f32 v{v}, v{d}, v{d}')
        for i in range(1, 10):
            A(f'v_sub_f32 v{d}, v{f+i}, v{a}\nv_fmac_f32 v{v}, v{d}, v{d}')
        s.allreduce('add', v, t)
        A(f'v_mul_f32 v{v}, 0x3acccccd, v{v}')
        s.bf16r(v, v)
        A(f'v_add_f32 v{v}, 0x3727c5ac, v{v}')
        s.bf16r(v, v)
        A(f'v_sqrt_f32 v{v}, v{v}')
        s.bf16r(v, v)
        s.bf16r(a, a)
        A(f'v_rcp_f32 v{t}, v{v}')
        for i in range(10):
            A(f'v_sub_f32 v{f+i}, v{f+i}, v{a}')
        for i in range(5):
            A(f'v_cvt_pk_bf16_f32 v{out_pairs+i}, v{f+2*i}, v{f+2*i+1}')
        for i in range(5):
            A(f'v_lshlrev_b32 v{f+2*i}, 16, v{out_pairs+i}')
            A(f'v_and_b32 v{f+2*i+1}, 0xffff0000, v{out_pairs+i}')
        for i in range(10):
            A(f'v_mul_f32 v{d}, v{f+i}, v{t}')
            A(f'v_fma_f32 v{f+i}, -v{d}, v{v}, v{f+i}')
            A(f'v_fma_f32 v{f+i}, v{f+i}, v{t}, v{d}')
        for i in range(5):
            A(f'v_cvt_pk_bf16_f32 v{out_pairs+i}, v{f+2*i}, v{f+2*i+1}')

    def build(s):
        A = s.A
        A(f'{NAME}_kernel:')
        A('s_cmp_ge_u32 s2, 256')
        A('s_cbranch_scc1 L_end')
        s.stamp(0)
        A('s_load_dwordx16 s[8:23], s[0:1], 0')
        A('s_load_dwordx8 s[24:31], s[0:1], 64')
        A('v_lshrrev_b32 v1, 6, v0')
        A('v_and_b32 v0, 63, v0')
        A('v_readfirstlane_b32 s3, v1')
        lni = s.lab('noinit')
        A('s_cmp_lg_u32 s3, 0')
        A(f's_cbranch_scc1 {lni}')
        A('v_mov_b32 v2, -1\nv_cmp_gt_u32 vcc, 32, v0\nv_cndmask_b32 v2, 0, v2, vcc\nv_lshlrev_b32 v3, 2, v0')
        A(f'ds_write_b32 v3, v2 offset:{L_ML}')
        A(f'{lni}:')
        A('s_and_b32 s64, s2, 7\ns_lshr_b32 s68, s2, 3')
        A('s_and_b32 s69, s68, 3\ns_lshl_b32 s69, s69, 3\ns_add_u32 s64, s64, s69')
        A('s_lshr_b32 s65, s68, 2\ns_and_b32 s65, s65, 3')
        A('s_lshr_b32 s66, s68, 4')
        A('s_lshl_b32 s67, s64, 1\ns_add_u32 s67, s67, s66')
        A('s_cmp_eq_u32 s66, 1\ns_cselect_b32 s84, s64, 99')
        A('s_waitcnt lgkmcnt(0)')
        A('s_cmp_ge_u32 s3, 4')
        A('s_cbranch_scc1 L_helper')
        s.streamer()
        A('L_helper:')
        s.helper()
        A('L_end:')
        A('s_endpgm')

    def streamer(s):
        A = s.A
        W, P, B, W0 = s.W, s.P, s.B, s.W0
        RING = 64
        assert RING + 4 * B <= 256 and P + W0 + max(1, s.refill) + 2 <= B + 1
        vKo, vVo = 1, 2
        vM = 4; vY = 8; vAcc = 24; vSc = 32; vO = 40; vYp = 44; vT = 52
        if s.prio: A('s_setprio 2')
        s.srd(32, 10, 0x8000000)
        s.srd(36, 12, 0x8000000)
        A(f'v_lshrrev_b32 v{vT}, 4, v0')
        A(f'v_lshlrev_b32 v{vT+3}, 2, v{vT}\nv_and_b32 v{vT+2}, 3, v0\nv_add_u32 v{vT+3}, v{vT+3}, v{vT+2}\nv_lshlrev_b32 v3, 4, v{vT+3}')
        A(f'v_lshlrev_b32 v{vT}, 6, v{vT}')
        A(f'v_bfe_u32 v{vT+1}, v0, 2, 2')
        A(f'v_lshlrev_b32 v{vT+1}, 8, v{vT+1}')
        A(f'v_lshlrev_b32 v{vT+2}, 4, v{vT+2}')
        A(f'v_add3_u32 v{vKo}, v{vT}, v{vT+1}, v{vT+2}')
        A(f'v_lshlrev_b32 v{vVo}, 4, v0')
        A('s_lshl_b32 s40, s65, 5\ns_add_u32 s40, s40, s64\ns_lshl_b32 s40, s40, 20')
        A('s_lshl_b32 s41, s66, 19\ns_add_u32 s40, s40, s41')
        A('s_lshl_b32 s41, s3, 12\ns_add_u32 s40, s40, s41')
        A('s_mov_b32 s41, s40')
        state = {'n': 0, 'win': W}
        def issue():
            n = state['n']; state['n'] += 1
            if n >= 256: return
            if n == 128: A('s_mov_b32 s41, s40')
            elif n % 4 == 0 and n > 0: A('s_add_u32 s41, s41, 0x4000')
            r = RING + 4 * (n % B)
            if n < 128:
                A(f'buffer_load_dwordx4 v[{r}:{r+3}], v{vKo}, s[32:35], s41 offen offset:{(n%4)*1024} {s.pol_kv}')
            else:
                A(f'buffer_load_dwordx4 v[{r}:{r+3}], v{vVo}, s[36:39], s41 offen offset:{(n%4)*1024} {s.pol_kv}')
        done = {'upto': -1}
        def paced_issue(w=None):
            w = w or W
            if state['n'] >= 256: return
            A(f's_waitcnt vmcnt({w-1})')
            done['upto'] = max(done['upto'], state['n'] - w)
            issue()
        def ensure(c):
            if c > done['upto']:
                A(f's_waitcnt vmcnt({state["n"] - 1 - c})')
                done['upto'] = c
        for _ in range(W0): issue()
        A('s_barrier')
        A(f'v_and_b32 v{vT}, 15, v0')
        s.masks_Md(vM, vT, vT+1, vT+2)
        A('s_mov_b32 s44, 0x22222222\ns_mov_b32 s45, 0x22222222')
        A('s_mov_b32 s46, 0x44444444\ns_mov_b32 s47, 0x44444444')
        A('s_mov_b32 s48, 0x88888888\ns_mov_b32 s49, 0x88888888')
        for t in range(4):
            m = 0x000F000F << (4 * t)
            A(f's_mov_b32 s{50+2*t}, {hex(m)}\ns_mov_b32 s{51+2*t}, {hex(m)}')
        for _ in range(P): paced_issue(W0)
        s.stamp(1)
        if s.qflag:
            lp, ld = s.lab('qf'), s.lab('qfd')
            A(f'v_mov_b32 v{vT}, 0\ns_mov_b32 s61, 0x400000')
            if s.prio: A('s_setprio 0')
            A(f'{lp}:')
            A(f'ds_read_b32 v{vT+1}, v{vT} offset:{L_FLAG + 48}')
            A('s_waitcnt lgkmcnt(0)')
            A(f'v_cmp_eq_u32 vcc, 1, v{vT+1}')
            A(f's_cbranch_vccnz {ld}')
            A('s_sleep 2')
            A('s_sub_u32 s61, s61, 1\ns_cmp_lg_u32 s61, 0')
            A(f's_cbranch_scc1 {lp}')
            A(f'{ld}:')
            if s.prio: A('s_setprio 2')
        else:
            A('s_barrier')
        s.stamp(2)
        A(f'ds_read_b128 v[56:59], v3 offset:{L_QB}')
        for _ in range(max(1, s.refill)): paced_issue()
        A('s_waitcnt lgkmcnt(0)')
        if s.dbg:
            A(f's_lshl_b32 s60, s2, 12\ns_lshl_b32 s61, s3, 10\ns_add_u32 s60, s60, s61\ns_add_u32 s60, s60, {hex(W_DBG + 0x100000)}')
            A(f'v_lshlrev_b32 v8, 4, v0\nv_add_u32 v8, s60, v8')
            A(f'global_store_dwordx4 v8, v[56:59], s[30:31]')
            A('s_waitcnt vmcnt(0)')
        for t in range(4):
            for d in range(4):
                A(f'v_cndmask_b32 v{vY+4*t+d}, 0, v{56+d}, s[{50+2*t}:{51+2*t}]')
        def post(g):
            a = vAcc + 4 * (g & 1)
            t = vT
            A(f'v_cndmask_b32 v{t}, v{a}, v{a+1}, s[44:45]')
            A(f'v_cndmask_b32 v{t}, v{t}, v{a+2}, s[46:47]')
            A(f'v_cndmask_b32 v{t}, v{t}, v{a+3}, s[48:49]')
            A(f'v_add_f32_dpp v{t}, v{t}, v{t} quad_perm:[1,0,3,2] row_mask:0xf bank_mask:0xf')
            q4 = vSc + (g >> 2)
            if (g & 3) == 0:
                A(f'v_add_f32_dpp v{q4}, v{t}, v{t} quad_perm:[2,3,0,1] row_mask:0xf bank_mask:0xf')
            else:
                A(f'v_add_f32_dpp v{t}, v{t}, v{t} quad_perm:[2,3,0,1] row_mask:0xf bank_mask:0xf')
                A(f'v_cndmask_b32 v{q4}, v{q4}, v{t}, s[{42+2*(g&3)}:{43+2*(g&3)}]')
        if s.boost or s.mix:
            A(f's_cmp_lt_u32 s3, {s.mix}\ns_cselect_b32 s59, 1, 0')
            A('s_and_b32 s58, s2, 7\ns_lshl_b32 s60, s65, 3\ns_add_u32 s58, s58, s60\ns_cmp_lt_u32 s58, 27\ns_cselect_b32 s58, 1, 0')
            A('s_cmp_eq_u32 s66, 0\ns_cselect_b32 s58, s58, 0')
            if not s.boost: A('s_mov_b32 s58, 0')
            A('s_or_b32 s58, s58, s59')
        def boosted_issue(w=None):
            w = w or W
            if state['n'] >= 256: return
            lb = s.lab('bo')
            A(f's_waitcnt vmcnt({w})')
            A('s_cmp_eq_u32 s58, 1')
            A(f's_cbranch_scc1 {lb}')
            A(f's_waitcnt vmcnt({w-1})')
            A(f'{lb}:')
            done['upto'] = max(done['upto'], state['n'] - (w + 1))
            issue()
        for c in range(128):
            g, t = c >> 2, c & 3
            backlog = state['n'] - c
            if c == s.boost and s.mix: A('s_mov_b32 s58, s59')
            hi = (s.boost and c < s.boost) or s.mix
            if hi and backlog <= W + 1: boosted_issue()
            elif backlog <= W: paced_issue()
            elif backlog > W + 1 and c % s.cstep == s.cstep - 1: (boosted_issue() if hi else paced_issue())
            ensure(c)
            r = RING + 4 * (c % B)
            a = vAcc + 4 * (g & 1)
            cin = '0' if t == 0 else f'v[{a}:{a+3}]'
            A(f'v_mfma_f32_16x16x32_bf16 v[{a}:{a+3}], v[{r}:{r+3}], v[{vY+4*t}:{vY+4*t+3}], {cin}')
            if t == 1 and g > 0: post(g - 1)
        paced_issue()
        post(31)
        s.stamp(3)
        if s.dbg:
            A(f's_lshl_b32 s60, s2, 13\ns_lshl_b32 s61, s3, 11\ns_add_u32 s60, s60, s61\ns_add_u32 s60, s60, {hex(W_DBG + 0x200000)}')
            A(f'v_lshlrev_b32 v{vT}, 2, v0\nv_add_u32 v{vT}, s60, v{vT}')
            for i in range(8):
                A(f'global_store_dword v{vT}, v{vSc+i}, s[30:31] offset:{256*i}')
            A('s_waitcnt vmcnt(0)')
        def round_pairs():
            for i in range(4):
                A(f'v_cvt_pk_bf16_f32 v{vT+i}, v{vSc+2*i}, v{vSc+2*i+1}')
            for i in range(4):
                A(f'v_lshlrev_b32 v{vSc+2*i}, 16, v{vT+i}')
                A(f'v_and_b32 v{vSc+2*i+1}, 0xffff0000, v{vT+i}')
        round_pairs()
        for i in range(8): A(f'v_mul_f32 v{vSc+i}, {hex(SCALE)}, v{vSc+i}')
        round_pairs()
        m, t2 = vT + 4, vT + 5
        A(f'v_max3_f32 v{m}, v{vSc}, v{vSc+1}, v{vSc+2}')
        A(f'v_max3_f32 v{m}, v{m}, v{vSc+3}, v{vSc+4}')
        A(f'v_max3_f32 v{m}, v{m}, v{vSc+5}, v{vSc+6}')
        A(f'v_max_f32 v{m}, v{m}, v{vSc+7}')
        s.allreduce('max', m, t2)
        paced_issue()
        for i in range(8): A(f'v_sub_f32 v{vSc+i}, v{vSc+i}, v{m}')
        for i in range(8): A(f'v_mul_f32 v{vSc+i}, {hex(LOG2E)}, v{vSc+i}')
        for i in range(8): A(f'v_exp_f32 v{vSc+i}, v{vSc+i}')
        l = m + 1
        t3 = vT + 6
        A(f'v_add_f32 v{l}, v{vSc}, v{vSc+1}')
        A(f'v_add_f32 v{t3}, v{vSc+2}, v{vSc+3}')
        A(f'v_add_f32 v{l}, v{l}, v{vSc+4}')
        A(f'v_add_f32 v{t3}, v{t3}, v{vSc+5}')
        A(f'v_add_f32 v{l}, v{l}, v{vSc+6}')
        A(f'v_add_f32 v{t3}, v{t3}, v{vSc+7}')
        A(f'v_add_f32 v{l}, v{l}, v{t3}')
        for i in range(8): A(f'v_cvt_pk_bf16_f32 v{vSc+i}, v{vSc+i}, v{vSc+i}')
        s.allreduce('add', l, t3)
        paced_issue()
        A(f'v_cmp_eq_u32 vcc, -1, v{m}')
        A(f'v_mov_b32 v{t3}, 0x7fc00000')
        A(f'v_cndmask_b32 v{m}, v{m}, v{t3}, vcc')
        A(f's_lshl_b32 s60, s3, 3\nv_mov_b32 v{t3}, s60')
        A(f'ds_write_b64 v{t3}, v[{m}:{m+1}] offset:{L_ML}')
        def ybuild(c):
            g, t = (c - 128) >> 2, c & 3
            y = vYp + 4 * (c & 1)
            for d in range(4):
                A(f'v_and_b32_dpp v{y+d}, v{vSc+(g>>2)}, v{vM+d} row_newbcast:{4*t+(g&3)} row_mask:0xf bank_mask:0xf')
        ybuild(128)
        WV = s.WV
        for c in range(128, 256):
            if state['n'] < 256:
                if s.mix:
                    if state['n'] - c <= WV + 1: boosted_issue(WV)
                    elif c % 4 == 3: boosted_issue(WV)
                elif s.Nend and state['n'] >= 256 - s.Nend:
                    while state['n'] < 256 and state['n'] - c <= s.Wend - 1: paced_issue(s.Wend)
                    if state['n'] < 256 and state['n'] - c <= s.Wend: paced_issue(s.Wend)
                elif state['n'] - c <= WV: paced_issue(WV)
                elif c % 4 == 3: paced_issue(WV)
            if c == 240:
                A(f's_lshl_b32 s60, s3, 2\nv_mov_b32 v{vT}, s60')
                A(f'ds_read_b32 v{vT+1}, v{vT} offset:{L_WF}')
            if c == 244:
                A(f'v_and_b32 v{vT+2}, 3, v0\nv_lshlrev_b32 v{vT+2}, 5, v{vT+2}')
                A(f'v_lshrrev_b32 v{vT+3}, 4, v0\nv_lshlrev_b32 v{vT+3}, 3, v{vT+3}')
                if s.rot:
                    A(f'v_add_u32 v{vT+2}, v{vT+2}, v{vT+3}')
                    A(f's_lshl_b32 s60, s65, 1\ns_add_u32 s60, s60, s66')
                    A(f'v_bfe_u32 v{vT+4}, v0, 2, 1\nv_subrev_u32 v{vT+4}, s60, v{vT+4}')
                    for r4 in range(4):
                        A(f'v_add_u32 v{vT+8+r4}, {2*r4}, v{vT+4}\nv_and_b32 v{vT+8+r4}, 7, v{vT+8+r4}\nv_add_u32 v{vT+8+r4}, v{vT+8+r4}, v{vT+2}\nv_lshlrev_b32 v{vT+8+r4}, 2, v{vT+8+r4}')
                        A(f's_lshl_b32 s60, s3, 9\nv_add_u32 v{vT+8+r4}, s60, v{vT+8+r4}')
                else:
                    A(f'v_bfe_u32 v{vT+4}, v0, 2, 1')
                    A(f'v_add3_u32 v{vT+2}, v{vT+2}, v{vT+3}, v{vT+4}')
                    A(f'v_lshlrev_b32 v{vT+2}, 2, v{vT+2}')
                    A(f's_lshl_b32 s60, s3, 9\nv_add_u32 v{vT+2}, s60, v{vT+2}')
            if c + 1 < 256: ybuild(c + 1)
            ensure(c)
            r = RING + 4 * (c % B)
            y = vYp + 4 * (c & 1)
            cin = '0' if c == 128 else f'v[{vO}:{vO+3}]'
            A(f'v_mfma_f32_16x16x32_bf16 v[{vO}:{vO+3}], v[{r}:{r+3}], v[{y}:{y+3}], {cin}')
        s.stamp(4)
        lp, ld = s.lab('wf'), s.lab('wfd')
        A('s_waitcnt lgkmcnt(0)')
        A(f'v_cmp_ne_u32 vcc, -1, v{vT+1}')
        A(f's_cbranch_vccnz {ld}')
        A('s_mov_b32 s61, 0x400000')
        A(f'{lp}:')
        A(f'ds_read_b32 v{vT+1}, v{vT} offset:{L_WF}')
        A('s_waitcnt lgkmcnt(0)')
        A(f'v_cmp_ne_u32 vcc, -1, v{vT+1}')
        A(f's_cbranch_vccnz {ld}')
        A('s_sleep 1')
        A('s_sub_u32 s61, s61, 1\ns_cmp_lg_u32 s61, 0')
        A(f's_cbranch_scc1 {lp}')
        A(f'{ld}:')
        for r in range(4): A(f'v_mul_f32 v{vO+r}, v{vO+r}, v{vT+1}')
        A('s_mov_b32 exec_lo, 0x00ff00ff\ns_mov_b32 exec_hi, 0x00ff00ff')
        if s.rot:
            for r in range(4): A(f'ds_write_b32 v{vT+8+r}, v{vO+r} offset:{L_OPART}')
        else:
            for r in range(4): A(f'ds_write_b32 v{vT+2}, v{vO+r} offset:{L_OPART+8*r}')
        A('s_mov_b64 exec, -1')
        A('s_waitcnt lgkmcnt(0)')
        A('s_barrier')
        s.stamp(5)
        s.stamp_store(6)
        A('s_endpgm')

    def lds_flag_wait(s, off, vt):
        A = s.A
        lp, ld = s.lab('fl'), s.lab('fld')
        A(f'v_and_b32 v{vt}, 3, v0\nv_lshlrev_b32 v{vt}, 2, v{vt}')
        A('s_mov_b32 s61, 0x1000000')
        A(f'{lp}:')
        A(f'ds_read_b32 v{vt+1}, v{vt} offset:{off}')
        A('s_waitcnt lgkmcnt(0)')
        A(f'v_cmp_ne_u32 vcc, 1, v{vt+1}')
        A(f's_cbranch_vccz {ld}')
        A('s_sub_u32 s61, s61, 1\ns_cmp_lg_u32 s61, 0')
        A(f's_cbranch_scc1 {lp}')
        A(f'{ld}:')

    def spoll(s, n, check, sleep=1):
        A = s.A
        lp, ld = s.lab('sp'), s.lab('spd')
        A('s_add_u32 s4, s30, s60\ns_addc_u32 s5, s31, 0')
        A('s_mov_b32 s61, 0x200000')
        A(f'{lp}:')
        A(f's_load_dwordx{n} s[76:{76+n-1}], s[4:5], 0 glc' if n > 1 else 's_load_dword s76, s[4:5], 0 glc')
        A('s_waitcnt lgkmcnt(0)')
        A(f's_xor_b32 s6, s{76+check[0]}, s58')
        for c in check[1:]: A(f's_xor_b32 s7, s{76+c}, s58\ns_or_b32 s6, s6, s7')
        A('s_cmp_eq_u32 s6, 0')
        A(f's_cbranch_scc1 {ld}')
        if sleep: A(f's_sleep {sleep}')
        A('s_sub_u32 s61, s61, 1\ns_cmp_lg_u32 s61, 0')
        A(f's_cbranch_scc1 {lp}')
        A(f'{ld}:')

    def flag_store(s, lanes, vaddr, soff):
        A = s.A
        A(f'v_mov_b32 v15, s58')
        A(f's_mov_b64 exec, {lanes}')
        A(f'buffer_store_dword v15, v{vaddr}, s[44:47], {soff} offen sc1')
        A('s_mov_b64 exec, -1')

    def helper(s):
        A = s.A
        DATA = 96
        vM = 4
        A('s_sub_u32 s63, s3, 4')
        A('s_mov_b32 s59, 0')
        A(f's_add_u32 s4, s30, {hex(W_NONCE)}\ns_addc_u32 s5, s31, 0')
        A('s_load_dword s58, s[4:5], 0')
        s.srd(32, 14, 640 * 4096 * 2)
        s.srd(40, 8, 5120)
        s.srd(44, 30, WS_SIZE)
        A('s_mul_i32 s60, s63, 1280')
        A('v_lshlrev_b32 v1, 2, v0')
        for t in range(5):
            A(f'buffer_load_dword v{16+t}, v1, s[40:43], s60 offen offset:{256*t}')
        A('v_lshrrev_b32 v2, 4, v0\nv_lshlrev_b32 v2, 13, v2\nv_and_b32 v3, 15, v0\nv_lshlrev_b32 v3, 4, v3\nv_add_u32 v2, v2, v3')
        A('s_lshl_b32 s57, s65, 1\ns_add_u32 s57, s57, s66')
        A('s_mul_i32 s56, s57, 80\ns_mul_i32 s60, s63, 20\ns_add_u32 s56, s56, s60')
        A('s_lshl_b32 s60, s56, 13\ns_lshl_b32 s61, s64, 8\ns_add_u32 s60, s60, s61')
        for u in range(5):
            A(f'buffer_load_dwordx4 v[{DATA+4*u}:{DATA+4*u+3}], v2, s[32:35], s60 offen {s.pol_q}')
            if u < 4: A('s_add_u32 s60, s60, 0x8000')
        if s.vtouch:
            s.srd(48, 12, 0x8000000)
            A('s_lshl_b32 s60, s65, 5\ns_add_u32 s60, s60, s64\ns_lshl_b32 s60, s60, 20\ns_lshl_b32 s61, s66, 19\ns_add_u32 s60, s60, s61')
            A(f'v_lshlrev_b32 v9, {19 - 6 if s.vtouch > 1 else 0}, v0')
            A('s_mov_b64 exec, ' + ('-1' if s.vtouch > 1 else '1'))
            A('buffer_load_dword v95, v9, s[48:51], s60 offen nt')
            A('s_mov_b64 exec, -1')
        A('s_barrier')
        s.srd(36, 16, 4096 * 640 * 2)
        A('v_and_b32 v9, 15, v0')
        s.masks_Md(vM, 9, 10, 11, mod8=True)
        A(f's_waitcnt vmcnt({6 if s.vtouch else 5}) lgkmcnt(0)')
        A('s_add_u32 s58, s58, 1')
        s.layernorm(16, 24, 32)
        A(f's_mul_i32 s60, s63, 1280\nv_add_u32 v9, s60, v1')
        for t in range(5):
            A(f'ds_write_b32 v9, v{24+t} offset:{L_XN + 256*t}')
        A(f's_lshl_b32 s60, s63, 2\nv_mov_b32 v9, s60\nv_mov_b32 v10, 1')
        A(f'ds_write_b32 v9, v10 offset:{L_FLAG}')
        A('v_bfe_u32 v12, v0, 3, 1\nv_mul_u32_u24 v12, 1280, v12\nv_lshrrev_b32 v13, 4, v0\nv_lshlrev_b32 v13, 1, v13\nv_add_u32 v12, v12, v13')
        A('s_lshl_b32 s60, s56, 1\nv_add_u32 v12, s60, v12')
        s.lds_flag_wait(L_FLAG, 14)
        for bp in range(2):
            for u in range(5):
                A(f'ds_read_u16 v{40+5*bp+u}, v12 offset:{L_XN + bp*2560 + u*8}')
        A('v_bfe_u32 v9, v0, 3, 1\nv_lshlrev_b32 v9, 9, v9\nv_lshrrev_b32 v10, 4, v0\nv_lshlrev_b32 v10, 7, v10\nv_and_b32 v11, 7, v0\nv_lshlrev_b32 v11, 2, v11\nv_add3_u32 v9, v9, v10, v11')
        A('s_lshl_b32 s60, s63, 11\nv_add_u32 v9, s60, v9')
        A('s_waitcnt lgkmcnt(0)')
        for k in range(10): A(f'v_lshl_or_b32 v{40+k}, v{40+k}, 16, v{40+k}')
        A('s_waitcnt vmcnt(0)')
        for u in range(5):
            for bp in range(2):
                y = 60 + 4 * ((2 * u + bp) & 3)
                for d in range(4): A(f'v_and_b32 v{y+d}, v{40+5*bp+u}, v{vM+d}')
                a = 52 + 4 * bp
                A(f'v_mfma_f32_16x16x32_bf16 v[{a}:{a+3}], v[{DATA+4*u}:{DATA+4*u+3}], v[{y}:{y+3}], ' + ('0' if u == 0 else f'v[{a}:{a+3}]'))
        for bp in range(2):
            for r in range(4):
                A(f'ds_write_b32 v9, v{52+4*bp+r} offset:{L_QP + bp*1024 + r*32}')
        A(f's_lshl_b32 s60, s63, 2\nv_mov_b32 v10, s60\nv_mov_b32 v11, 1')
        A(f'ds_write_b32 v10, v11 offset:{L_FLAG + 16}')
        if s.qtag:
            A('s_lshl_b32 s69, s64, 2\ns_add_u32 s69, s69, s63\ns_lshl_b32 s69, s69, 3\ns_add_u32 s69, s69, s57')
            A(f's_lshl_b32 s62, s69, 10\ns_add_u32 s62, s62, {hex(W_Q2)}')
            A('v_lshlrev_b32 v13, 4, v0')
            A('s_lshl_b32 s60, s63, 9\nv_lshlrev_b32 v12, 3, v0\nv_add_u32 v12, s60, v12')
            s.lds_flag_wait(L_FLAG + 16, 14)
            for w in range(4):
                A(f'ds_read_b64 v[{16+2*w}:{17+2*w}], v12 offset:{L_QP + 2048*w}')
            A('v_mov_b32 v25, s58\nv_mov_b32 v27, s58')
            A('s_waitcnt lgkmcnt(0)')
            A('v_add_f32 v16, v16, v18\nv_add_f32 v17, v17, v19\nv_add_f32 v20, v20, v22\nv_add_f32 v21, v21, v23')
            A('v_add_f32 v24, v16, v20\nv_add_f32 v26, v17, v21')
            A(f'buffer_store_dwordx4 v[24:27], v13, s[44:47], s62 offen {s.pol_hs}')
            lq = s.lab('noq')
            A('s_cmp_lg_u32 s63, 0')
            A(f's_cbranch_scc1 {lq}')
            A(f's_lshl_b32 s69, s64, 2\ns_add_u32 s69, s69, s65\ns_lshl_b32 s60, s69, 13\ns_add_u32 s60, s60, {hex(W_Q2)}')
            A('s_add_u32 s4, s30, s60\ns_addc_u32 s5, s31, 0')
            lp, ld = s.lab('qh'), s.lab('qhd')
            A('s_mov_b32 s61, 0x200000')
            A(f'{lp}:')
            for r in range(8): A(f's_load_dword s{76+r}, s[4:5], {r*1024+4} glc')
            A('s_waitcnt lgkmcnt(0)')
            A('s_xor_b32 s6, s76, s58')
            for r in range(1, 8): A(f's_xor_b32 s7, s{76+r}, s58\ns_or_b32 s6, s6, s7')
            A('s_cmp_eq_u32 s6, 0')
            A(f's_cbranch_scc1 {ld}')
            A('s_sub_u32 s61, s61, 1\ns_cmp_lg_u32 s61, 0')
            A(f's_cbranch_scc1 {lp}')
            A(f'{ld}:')
            A('s_add_u32 s62, s60, 4096')
            lp, ld = s.lab('qg'), s.lab('qgd')
            A('s_mov_b32 s61, 0x100000')
            A(f'{lp}:')
            for t in range(8):
                A(f'buffer_load_dwordx4 v[{16+4*t}:{19+4*t}], v13, s[44:47], {"s60" if t < 4 else "s62"} offen offset:{(t%4)*1024} {s.pol_hl}')
            A('s_waitcnt vmcnt(0)')
            tags = [16 + 4 * t + k for t in range(8) for k in (1, 3)]
            A(f'v_min_u32 v48, v{tags[0]}, v{tags[1]}\nv_max_u32 v49, v{tags[0]}, v{tags[1]}')
            for i in range(2, 16, 2):
                A(f'v_min3_u32 v48, v48, v{tags[i]}, v{tags[i+1]}')
                A(f'v_max3_u32 v49, v49, v{tags[i]}, v{tags[i+1]}')
            A('v_cmp_ne_u32 vcc, s58, v48')
            A('v_cmp_ne_u32 s[76:77], s58, v49')
            A('s_or_b64 vcc, vcc, s[76:77]')
            A(f's_cbranch_vccz {ld}')
            A('s_sub_u32 s61, s61, 1\ns_cmp_lg_u32 s61, 0')
            A(f's_cbranch_scc1 {lp}')
            A(f'{ld}:')
            for k in (0, 2):
                A(f'v_add_f32 v{16+k}, v{16+k}, v{20+k}\nv_add_f32 v{24+k}, v{24+k}, v{28+k}\nv_add_f32 v{32+k}, v{32+k}, v{36+k}\nv_add_f32 v{40+k}, v{40+k}, v{44+k}')
                A(f'v_add_f32 v{16+k}, v{16+k}, v{24+k}\nv_add_f32 v{32+k}, v{32+k}, v{40+k}\nv_add_f32 v{16+k}, v{16+k}, v{32+k}')
            A('v_cvt_pk_bf16_f32 v16, v16, v18')
            A(f'ds_write_b32 v1, v16 offset:{L_QB}')
        else:
            A('s_lshl_b32 s69, s64, 2\ns_add_u32 s69, s69, s63\ns_lshl_b32 s69, s69, 3\ns_add_u32 s69, s69, s57')
            A(f's_lshl_b32 s62, s69, 9\ns_add_u32 s62, s62, {hex(W_Q)}')
            A('v_lshlrev_b32 v13, 3, v0')
            A('s_lshl_b32 s60, s63, 9\nv_add_u32 v12, s60, v13')
            s.lds_flag_wait(L_FLAG + 16, 14)
            for w in range(4):
                A(f'ds_read_b64 v[{16+2*w}:{17+2*w}], v12 offset:{L_QP + 2048*w}')
            A('s_waitcnt lgkmcnt(0)')
            A('v_add_f32 v16, v16, v18\nv_add_f32 v17, v17, v19\nv_add_f32 v20, v20, v22\nv_add_f32 v21, v21, v23')
            A('v_add_f32 v24, v16, v20\nv_add_f32 v25, v17, v21')
            A(f'buffer_store_dwordx2 v[24:25], v13, s[44:47], s62 offen {s.pol_hs}')
            A(f's_lshr_b32 s62, s69, 3\ns_lshl_b32 s62, s62, 7\ns_lshl_b32 s61, s57, 2\ns_add_u32 s62, s62, s61\ns_add_u32 s62, s62, {hex(W_FLAGQ)}\nv_mov_b32 v14, 0')
            A('s_waitcnt vmcnt(0)')
            s.flag_store('1', 14, 's62')
            lq = s.lab('noq')
            A('s_cmp_lg_u32 s63, 0')
            A(f's_cbranch_scc1 {lq}')
            A(f's_lshl_b32 s69, s64, 2\ns_add_u32 s69, s69, s65')
            A(f's_lshl_b32 s60, s69, 7\ns_add_u32 s60, s60, {hex(W_FLAGQ)}')
            s.spoll(8, list(range(8)))
            A(f's_lshl_b32 s60, s69, 12\ns_add_u32 s60, s60, {hex(W_Q)}')
            A('v_lshlrev_b32 v13, 4, v0')
            for t in range(4):
                A(f'buffer_load_dwordx4 v[{16+4*t}:{19+4*t}], v13, s[44:47], s60 offen offset:{t*1024} {s.pol_hl}')
            A('v_and_b32 v12, 31, v0\nv_lshlrev_b32 v12, 3, v12')
            A('s_waitcnt vmcnt(0)')
            for k in range(4):
                A(f'v_add_f32 v{16+k}, v{16+k}, v{20+k}\nv_add_f32 v{24+k}, v{24+k}, v{28+k}')
            for k in range(4): A(f'v_add_f32 v{16+k}, v{16+k}, v{24+k}')
            for k in range(4): A(f'v_mov_b32 v{20+k}, v{16+k}')
            for k in range(4): A(f'v_permlane32_swap_b32 v{16+k}, v{20+k}')
            for k in range(4): A(f'v_add_f32 v{16+k}, v{16+k}, v{20+k}')
            A('v_cvt_pk_bf16_f32 v16, v16, v17\nv_cvt_pk_bf16_f32 v17, v18, v19')
            A(f'ds_write_b64 v12, v[16:17] offset:{L_QB}')
        if s.qflag: A(f'v_mov_b32 v12, 0\nv_mov_b32 v13, 1\nds_write_b32 v12, v13 offset:{L_FLAG + 48}')
        A(f'{lq}:')
        A('s_waitcnt lgkmcnt(0)')
        s.stamp(1)
        if not s.qflag: A('s_barrier')
        l_wo = s.lab('wo')
        s.ffn(l_wo)
        A(f'{l_wo}:')
        A('v_lshrrev_b32 v2, 4, v0\nv_mul_u32_u24 v2, 1280, v2\nv_and_b32 v3, 15, v0\nv_lshlrev_b32 v3, 4, v3\nv_add_u32 v2, v2, v3')
        A('s_lshl_b32 s60, s64, 7\ns_lshl_b32 s61, s63, 5\ns_add_u32 s60, s60, s61\ns_mul_i32 s60, s60, 1280')
        if 'wo_v' in s.skip:
            A('s_lshl_b32 s6, s2, 19\ns_add_u32 s72, s12, s6\ns_addc_u32 s73, s13, 0\ns_and_b32 s73, s73, 0xffff\ns_mov_b32 s74, 0x80000\ns_mov_b32 s75, 0x20000')
            A('s_and_b32 s60, s60, 0x3ffff')
        def wo_loads(win):
            n = 0
            for u in range(8):
                for cb in range(5):
                    if n >= win: A(f's_waitcnt vmcnt({win-1})')
                    r = DATA + 4 * (u * 5 + cb)
                    if 'wo_v' in s.skip: A(f'buffer_load_dwordx4 v[{r}:{r+3}], v2, s[72:75], s60 offen offset:{cb*256} nt')
                    elif 'wo' not in s.skip: A(f'buffer_load_dwordx4 v[{r}:{r+3}], v2, s[36:39], s60 offen offset:{cb*256} {s.pol_w}')
                    n += 1
                if u < 7:
                    if s.rot: A(f's_add_u32 s6, s57, {u+1}\ns_and_b32 s6, s6, 7\ns_mul_i32 s6, s6, 5120\ns_add_u32 s60, s7, s6')
                    else: A('s_add_u32 s60, s60, 5120')
        if s.rot:
            A('s_mov_b32 s7, s60\ns_mul_i32 s6, s57, 5120\ns_add_u32 s60, s7, s6')
        if s.WO4 != s.WO and not s.wofirst:
            l4, l5 = s.lab('wo4'), s.lab('wod')
            A('s_cmp_eq_u32 s59, 1')
            A(f's_cbranch_scc1 {l4}')
            wo_loads(s.WO)
            A(f's_branch {l5}')
            A(f'{l4}:')
            wo_loads(s.WO4)
            A(f'{l5}:')
        else:
            wo_loads(s.WO)
        s.stamp(2)
        if s.wofirst and 'ffn' not in s.skip:
            lnf = s.lab('noffn')
            A('s_cmp_lg_u32 s59, 1')
            A(f's_cbranch_scc1 {lnf}')
            s.ffn_rest()
            A(f'{lnf}:')
        l_tail, l_w7 = s.lab('tail'), s.lab('w7')
        A('s_cmp_eq_u32 s63, 3')
        A(f's_cbranch_scc1 {l_w7}')
        if s.collector and 'ffn' not in s.skip:
            l_nc = s.lab('nocol')
            A('s_cmp_lg_u32 s63, 2')
            A(f's_cbranch_scc1 {l_nc}')
            A('s_cmp_lg_u32 s2, 255')
            A(f's_cbranch_scc1 {l_tail}')
            s.collect()
            A(f's_branch {l_tail}')
            A(f'{l_nc}:')
        A('s_cmp_lg_u32 s63, 1')
        A(f's_cbranch_scc1 {l_tail}')
        s.mlx()
        A(f's_branch {l_tail}')
        A(f'{l_w7}:')
        s.consumer_prep(l_tail)
        A(f'{l_tail}:')
        s.tail()

    def ffn(s, l_skip):
        A = s.A
        DATA = 96
        if 'ffn' in s.skip: return
        A('s_cmp_lg_u32 s66, 0')
        A(f's_cbranch_scc1 {l_skip}')
        A('s_and_b32 s70, s2, 7\ns_lshl_b32 s61, s65, 3\ns_add_u32 s70, s70, s61')
        A('s_cmp_ge_u32 s70, 27')
        A(f's_cbranch_scc1 {l_skip}')
        A('s_lshr_b32 s71, s2, 3\ns_and_b32 s71, s71, 3')
        A('s_lshl_b32 s68, s70, 2\ns_add_u32 s68, s68, s71')
        s.srd(48, 20, 640 * 1728 * 2)
        s.srd(52, 22, 640 * 1728 * 2)
        s.srd(72, 24, 1728 * 640 * 2)
        A('v_lshrrev_b32 v9, 3, v0\nv_mul_u32_u24 v9, 3456, v9\nv_and_b32 v10, 7, v0\nv_lshlrev_b32 v10, 4, v10\nv_add_u32 v9, v9, v10')
        A(f's_mul_i32 s60, s71, {160*3456}\ns_lshl_b32 s61, s70, 7\ns_add_u32 s60, s60, s61\ns_mul_i32 s61, s63, {40*3456}\ns_add_u32 s60, s60, s61')
        A(f's_mul_i32 s62, s63, 5120\ns_add_u32 s69, s62, {L_WU}\ns_add_u32 s62, s62, {L_WG}')
        n = 0
        for t in range(5):
            for srd, mreg in (('s[48:51]', 's62'), ('s[52:55]', 's69')):
                if n >= s.WF: A(f's_waitcnt vmcnt({s.WF-1})')
                A(f's_mov_b32 m0, {mreg}')
                if 'f_dma' not in s.skip: A(f'buffer_load_dwordx4 v9, {srd}, s60 offen {s.pol_f} lds')
                n += 1
            if t < 4: A(f's_add_u32 s60, s60, {8*3456}\ns_add_u32 s62, s62, 1024\ns_add_u32 s69, s69, 1024')
        lw4 = s.lab('w4')
        A('s_cmp_eq_u32 s63, 0')
        A(f's_cbranch_scc1 {lw4}')
        A('s_waitcnt vmcnt(0)')
        A(f's_lshl_b32 s60, s63, 2\nv_mov_b32 v10, s60\nv_mov_b32 v11, 1')
        A(f'ds_write_b32 v10, v11 offset:{L_FLAG + 32}')
        A(f's_branch {l_skip}')
        A(f'{lw4}:')
        A('s_mov_b32 s59, 1')
        if s.wofirst: return
        s.ffn_rest()

    def ffn_rest(s):
        A = s.A
        DATA = 96
        A('v_and_b32 v9, 3, v0\nv_mul_u32_u24 v9, 1280, v9\nv_lshrrev_b32 v10, 4, v0\nv_lshlrev_b32 v11, 3, v10\nv_add_u32 v9, v9, v11')
        A('s_mul_i32 s60, s71, 320\nv_add_u32 v9, s60, v9')
        A('v_lshlrev_b32 v10, 2, v10\nv_bfe_u32 v11, v0, 2, 2\nv_add_u32 v10, v10, v11\nv_lshlrev_b32 v10, 7, v10\nv_and_b32 v11, 3, v0\nv_lshlrev_b32 v11, 3, v11\nv_add_u32 v10, v10, v11')
        A(f'v_add_u32 v8, {L_WU - L_WG}, v10')
        A('s_waitcnt vmcnt(0)')
        A(f'v_mov_b32 v12, 0\nv_mov_b32 v13, 1\nds_write_b32 v12, v13 offset:{L_FLAG + 32}')
        s.lds_flag_wait(L_FLAG + 32, 14)
        if s.fineF: s.stamp(3)
        ag, au = 12, 28
        for ks in range(5):
            o = 44
            A(f'ds_read_b64 v[{o}:{o+1}], v9 offset:{L_XN + 64*ks}')
            A(f'ds_read_b64 v[{o+2}:{o+3}], v9 offset:{L_XN + 64*ks + 32}')
            for ct in range(4):
                q = 48 + 8 * ct
                A(f'ds_read_b64_tr_b16 v[{q}:{q+1}], v10 offset:{L_WG + 4096*ks + 32*ct}')
                A(f'ds_read_b64_tr_b16 v[{q+2}:{q+3}], v10 offset:{L_WG + 4096*ks + 32*ct + 2048}')
                A(f'ds_read_b64_tr_b16 v[{q+4}:{q+5}], v8 offset:{L_WG + 4096*ks + 32*ct}')
                A(f'ds_read_b64_tr_b16 v[{q+6}:{q+7}], v8 offset:{L_WG + 4096*ks + 32*ct + 2048}')
                if ct == 2: A('s_waitcnt lgkmcnt(6)')
            A('s_waitcnt lgkmcnt(0)')
            for ct in range(4):
                q = 48 + 8 * ct
                A(f'v_mfma_f32_16x16x32_bf16 v[{ag+4*ct}:{ag+4*ct+3}], v[{o}:{o+3}], v[{q}:{q+3}], ' + ('0' if ks == 0 else f'v[{ag+4*ct}:{ag+4*ct+3}]'))
                A(f'v_mfma_f32_16x16x32_bf16 v[{au+4*ct}:{au+4*ct+3}], v[{o}:{o+3}], v[{q+4}:{q+7}], ' + ('0' if ks == 0 else f'v[{au+4*ct}:{au+4*ct+3}]'))
        A('s_mov_b32 s76, 0xffff0000\ns_mov_b32 s77, 0\ns_mov_b32 s78, 0\ns_mov_b32 s79, 0xffff\ns_mov_b32 s80, 0\ns_mov_b32 s81, 0xffff0000')
        A('v_lshlrev_b32 v9, 3, v0')
        A(f's_lshl_b32 s62, s70, 13\ns_lshl_b32 s69, s71, 9\ns_add_u32 s62, s62, s69\ns_add_u32 s62, s62, {hex(W_FX)}')
        for ct in range(4):
            o = 48 + 2 * ct
            for base, dst in ((ag, o), (au, o + 1)):
                a = base + 4 * ct
                A(f'v_cndmask_b32 v{dst}, v{a}, v{a+1}, s[76:77]')
                A(f'v_cndmask_b32 v{dst}, v{dst}, v{a+2}, s[78:79]')
                A(f'v_cndmask_b32 v{dst}, v{dst}, v{a+3}, s[80:81]')
            if 'f_x' not in s.skip: A(f'buffer_store_dwordx2 v[{o}:{o+1}], v9, s[44:47], s62 offen {s.pol_hs}')
            if ct < 3: A('s_add_u32 s62, s62, 2048')
        A('v_lshrrev_b32 v2, 4, v0\nv_mul_u32_u24 v2, 1280, v2\nv_and_b32 v3, 15, v0\nv_lshlrev_b32 v3, 4, v3\nv_add_u32 v2, v2, v3')
        A('s_mul_i32 s60, s68, 20480')
        def wd_batch(cb, base):
            for u in range(4):
                A(f's_add_u32 s6, s85, {u*5120}')
                if 'f_wd' not in s.skip: A(f'buffer_load_dwordx4 v[{base+4*u}:{base+4*u+3}], v2, s[72:75], s6 offen offset:{cb*256} {s.pol_f}')
        s._wd_batch = wd_batch
        if s.wofirst:
            A('s_mov_b32 s85, s60')
            wd_batch(0, 56); wd_batch(1, 72)
            nwd = 8
        else:
            for u in range(4):
                for cb in range(5):
                    r = DATA + 4 * (u * 5 + cb)
                    if 'f_wd' not in s.skip: A(f'buffer_load_dwordx4 v[{r}:{r+3}], v2, s[72:75], s60 offen offset:{cb*256} {s.pol_f}')
                if u < 3: A('s_add_u32 s60, s60, 5120')
            nwd = 20
        A(f's_lshl_b32 s62, s70, 9\ns_lshl_b32 s69, s71, 2\ns_add_u32 s62, s62, s69\ns_add_u32 s62, s62, {hex(W_FLAGF)}\nv_lshlrev_b32 v14, 7, v0')
        A(f's_waitcnt vmcnt({nwd})' if 'f_wd' not in s.skip else 's_waitcnt vmcnt(0)')
        if 'f_x' not in s.skip: s.flag_store('0xf', 14, 's62')
        if s.fineF: s.stamp(4)
        A(f's_lshl_b32 s60, s68, 7\ns_add_u32 s60, s60, {hex(W_FLAGF)}')
        if 'f_x' not in s.skip: s.spoll(4, [0, 1, 2, 3], sleep=2)
        A(f's_lshl_b32 s60, s68, 11\ns_add_u32 s60, s60, {hex(W_FX)}')
        for t in range(4):
            if 'f_x' not in s.skip: A(f'buffer_load_dwordx2 v[{12+2*t}:{13+2*t}], v9, s[44:47], s60 offen offset:{t*512} {s.pol_hl}')
        A('s_waitcnt vmcnt(0)')
        if s.fineF: s.stamp(5)
        A('v_add_f32 v12, v12, v14\nv_add_f32 v16, v16, v18\nv_add_f32 v12, v12, v16')
        A('v_add_f32 v13, v13, v15\nv_add_f32 v17, v17, v19\nv_add_f32 v14, v13, v17')
        g_, u_, t0, t1 = 12, 14, 20, 21
        s.bf16r(g_, g_)
        s.bf16r(u_, u_)
        A(f'v_mul_f32 v{t0}, v{g_}, v{g_}\nv_mul_f32 v{t0}, v{t0}, v{g_}')
        A(f'v_mov_b32 v{t1}, 0x3d372713\nv_fma_f32 v{t0}, v{t0}, v{t1}, v{g_}')
        A(f'v_mul_f32 v{t0}, 0x3f4c422a, v{t0}')
        A(f'v_mul_f32 v{t0}, 0x4038aa3b, v{t0}')
        A(f'v_exp_f32 v{t0}, v{t0}')
        A(f'v_add_f32 v{t0}, 1.0, v{t0}')
        A(f'v_rcp_f32 v{t0}, v{t0}')
        A(f'v_fma_f32 v{t0}, v{t0}, -2.0, 1.0')
        A(f'v_add_f32 v{t0}, 1.0, v{t0}')
        A(f'v_mul_f32 v{t1}, 0.5, v{g_}')
        A(f'v_mul_f32 v{t0}, v{t1}, v{t0}')
        s.bf16r(t0, t0)
        A(f'v_mul_f32 v{t0}, v{t0}, v{u_}')
        A(f'v_cvt_pk_bf16_f32 v{g_}, v{t0}, v{t0}')
        A('v_lshrrev_b32 v9, 4, v0\nv_lshlrev_b32 v9, 6, v9\nv_and_b32 v10, 3, v0\nv_lshlrev_b32 v10, 4, v10\nv_bfe_u32 v11, v0, 2, 2\nv_lshlrev_b32 v11, 2, v11\nv_add3_u32 v9, v9, v10, v11')
        A(f'ds_write_b32 v9, v{g_} offset:{L_HT}')
        if s.dbg:
            A(f's_lshl_b32 s60, s68, 8\ns_add_u32 s60, s60, {hex(W_DBG + 0x500000)}')
            A('v_lshlrev_b32 v10, 2, v0\nv_add_u32 v10, s60, v10')
            A(f'global_store_dword v10, v{g_}, s[30:31]')
        A('v_bfe_u32 v9, v0, 3, 1\nv_lshlrev_b32 v9, 2, v9\nv_lshrrev_b32 v10, 4, v0\nv_add_u32 v9, v9, v10\nv_lshlrev_b32 v9, 4, v9')
        A('s_waitcnt lgkmcnt(0)')
        A(f'ds_read_b128 v[12:15], v9 offset:{L_HT}')
        A(f'ds_read_b128 v[16:19], v9 offset:{L_HT + 128}')
        A('v_bfe_u32 v9, v0, 3, 1\nv_mul_u32_u24 v9, 640, v9\nv_lshrrev_b32 v10, 4, v0\nv_lshlrev_b32 v10, 5, v10\nv_and_b32 v11, 7, v0\nv_add3_u32 v9, v9, v10, v11\nv_lshlrev_b32 v9, 2, v9')
        A('s_waitcnt vmcnt(0) lgkmcnt(0)')
        if s.wofirst:
            for bp in range(2):
                for u in range(4):
                    for d in range(4): A(f'v_and_b32 v{20+16*bp+4*u+d}, v{12+4*bp+u}, v{4+d}')
            for cb in range(5):
                base = 56 if cb % 2 == 0 else 72
                if cb >= 2: A(f's_waitcnt vmcnt({4 if cb < 4 else 0})')
                for bp in range(2):
                    a = 88 + 4 * bp if False else (12 + 4 * bp)
                    for u in range(4):
                        A(f'v_mfma_f32_16x16x32_bf16 v[{a}:{a+3}], v[{base+4*u}:{base+4*u+3}], v[{20+16*bp+4*u}:{23+16*bp+4*u}], ' + ('0' if u == 0 else f'v[{a}:{a+3}]'))
                if cb + 2 < 5: s._wd_batch(cb + 2, base)
                for bp in range(2):
                    for r in range(4):
                        A(f'ds_write_b32 v9, v{12+4*bp+r} offset:{L_YPART + bp*5120 + cb*512 + r*32}')
        else:
            for u in range(4):
                for bp in range(2):
                    y = 60 + 4 * ((2 * u + bp) & 3)
                    for d in range(4): A(f'v_and_b32 v{y+d}, v{12+4*bp+u}, v{4+d}')
                    for cb in range(5):
                        a = 20 + 8 * cb + 4 * bp
                        r = DATA + 4 * (u * 5 + cb)
                        A(f'v_mfma_f32_16x16x32_bf16 v[{a}:{a+3}], v[{r}:{r+3}], v[{y}:{y+3}], ' + ('0' if u == 0 else f'v[{a}:{a+3}]'))
            for cb in range(5):
                for bp in range(2):
                    for r in range(4):
                        A(f'ds_write_b32 v9, v{20+8*cb+4*bp+r} offset:{L_YPART + bp*5120 + cb*512 + r*32}')
        A('s_waitcnt lgkmcnt(0)')
        A('v_lshlrev_b32 v9, 4, v0')
        A(f's_mul_i32 s60, s68, 10240\ns_add_u32 s60, s60, {hex(W_FPART)}')
        for t in range(10):
            A(f'ds_read_b128 v[{12+4*t}:{15+4*t}], v9 offset:{L_YPART + 1024*t}')
        A('s_waitcnt lgkmcnt(0)')
        for t in range(10):
            if 'f_pub' not in s.skip: A(f'buffer_store_dwordx4 v[{12+4*t}:{15+4*t}], v9, s[44:47], s60 offen offset:{(t%4)*1024} {s.pol_fp}')
            if t % 4 == 3: A('s_add_u32 s60, s60, 4096')
        A(f's_lshl_b32 s62, s68, 2\ns_add_u32 s62, s62, {hex(W_FLAGP)}\nv_mov_b32 v9, 0')
        A('s_waitcnt vmcnt(0)')
        s.flag_store('1', 9, 's62')
        if s.fineF: s.stamp(6)

    def wait_ml(s):
        A = s.A
        lp, ld = s.lab('ml'), s.lab('mld')
        A(f'v_and_b32 v9, 3, v0\nv_lshlrev_b32 v9, 3, v9')
        A('s_mov_b32 s61, 0x400000')
        A(f'{lp}:')
        A(f'ds_read_b64 v[10:11], v9 offset:{L_ML}')
        A('s_waitcnt lgkmcnt(0)')
        A('v_cmp_eq_u32 vcc, -1, v10')
        A(f's_cbranch_vccz {ld}')
        A('s_sleep 16')
        A('s_sub_u32 s61, s61, 1\ns_cmp_lg_u32 s61, 0')
        A(f's_cbranch_scc1 {lp}')
        A(f'{ld}:')

    def mlx(s):
        A = s.A
        s.wait_ml()
        A('v_mov_b32 v12, v10')
        A('v_max_f32_dpp v12, v12, v12 quad_perm:[1,0,3,2] row_mask:0xf bank_mask:0xf')
        A('v_max_f32_dpp v12, v12, v12 quad_perm:[2,3,0,1] row_mask:0xf bank_mask:0xf')
        A(f'v_sub_f32 v14, v10, v12\nv_mul_f32 v14, {hex(LOG2E)}, v14\nv_exp_f32 v14, v14')
        A('v_mul_f32 v14, v14, v11')
        A('v_add_f32_dpp v14, v14, v14 quad_perm:[1,0,3,2] row_mask:0xf bank_mask:0xf')
        A('v_add_f32_dpp v14, v14, v14 quad_perm:[2,3,0,1] row_mask:0xf bank_mask:0xf')
        A('v_mov_b32 v13, s58\nv_mov_b32 v15, s58')
        A(f's_xor_b32 s60, s2, 128\ns_lshl_b32 s60, s60, 7\ns_add_u32 s60, s60, {hex(W_ML)}')
        A('v_mov_b32 v9, 0')
        A('s_mov_b64 exec, 1')
        A(f'buffer_store_dwordx4 v[12:15], v9, s[44:47], s60 offen {s.pol_hs}')
        A('s_mov_b64 exec, -1')
        A(f's_lshl_b32 s60, s2, 7\ns_add_u32 s60, s60, {hex(W_ML)}')
        s.spoll(4, [1, 3], sleep=4)
        A('v_mov_b32 v22, s76\nv_mov_b32 v23, s78')
        A('v_max_f32 v16, v12, v22')
        A(f'v_sub_f32 v17, v12, v16\nv_mul_f32 v17, {hex(LOG2E)}, v17\nv_exp_f32 v17, v17')
        A(f'v_sub_f32 v18, v22, v16\nv_mul_f32 v18, {hex(LOG2E)}, v18\nv_exp_f32 v18, v18')
        A('v_mul_f32 v17, v17, v14\nv_fma_f32 v17, v18, v23, v17')
        A(f'v_sub_f32 v18, v10, v16\nv_mul_f32 v18, {hex(LOG2E)}, v18\nv_exp_f32 v18, v18')
        A('v_rcp_f32 v19, v17')
        A('v_mul_f32 v20, v18, v19\nv_fma_f32 v21, -v20, v17, v18\nv_fma_f32 v20, v21, v19, v20')
        A('v_mov_b32 v14, 0x7fc00000\nv_cmp_eq_u32 vcc, -1, v20\nv_cndmask_b32 v20, v20, v14, vcc')
        A('v_and_b32 v9, 3, v0\nv_lshlrev_b32 v9, 2, v9')
        A(f'ds_write_b32 v9, v20 offset:{L_WF}')
        A('s_waitcnt lgkmcnt(0)')

    def collect(s):
        A = s.A
        lp, ld = s.lab('fc'), s.lab('fcd')
        A(f'v_lshlrev_b32 v9, 2, v0\ns_mov_b32 s60, {hex(W_FLAGP)}\ns_mov_b32 s61, 0x100000')
        A(f'{lp}:')
        A(f'buffer_load_dword v10, v9, s[44:47], s60 offen {s.pol_hl}')
        A(f'buffer_load_dword v11, v9, s[44:47], s60 offen offset:256 {s.pol_hl}')
        A('s_waitcnt vmcnt(0)')
        A('v_cmp_ne_u32 vcc, s58, v10')
        A('v_cmp_ne_u32 s[76:77], s58, v11')
        A('s_and_b32 s77, s77, 0xfff')
        A('s_or_b64 vcc, vcc, s[76:77]')
        A(f's_cbranch_vccz {ld}')
        A('s_sleep 32')
        A('s_sub_u32 s61, s61, 1\ns_cmp_lg_u32 s61, 0')
        A(f's_cbranch_scc1 {lp}')
        A(f'{ld}:')
        A(f'v_lshlrev_b32 v9, 7, v0\nv_mov_b32 v10, s58\ns_mov_b32 s60, {hex(W_FDONE)}')
        A('buffer_store_dword v10, v9, s[44:47], s60 offen sc1')
        A(f's_mov_b32 s60, {hex(W_FDONE + 64*128)}')
        A('s_mov_b64 exec, 0xffff')
        A('buffer_store_dword v10, v9, s[44:47], s60 offen sc1')
        A('s_mov_b64 exec, -1')

    def consumer_prep(s, l_tail):
        A = s.A
        A('s_cmp_ge_u32 s84, 20')
        A(f's_cbranch_scc1 {l_tail}')
        if 'ffn' not in s.skip and s.collector:
            A(f's_mul_i32 s60, s65, 20\ns_add_u32 s60, s60, s84\ns_lshl_b32 s60, s60, 7\ns_add_u32 s60, s60, {hex(W_FDONE)}')
            if 'f_cons' not in s.skip: s.spoll(1, [0], sleep=32)
        elif 'ffn' not in s.skip:
                s.wait_ml()
                lp, ld = s.lab('fc'), s.lab('fcd')
                A(f'v_lshlrev_b32 v9, 2, v0\ns_mov_b32 s60, {hex(W_FLAGP)}\ns_mov_b32 s61, 0x100000')
                A(f'{lp}:')
                A(f'buffer_load_dword v10, v9, s[44:47], s60 offen {s.pol_hl}')
                A(f'buffer_load_dword v11, v9, s[44:47], s60 offen offset:256 {s.pol_hl}')
                A('s_waitcnt vmcnt(0)')
                A('v_cmp_ne_u32 vcc, s58, v10')
                A('v_cmp_ne_u32 s[76:77], s58, v11')
                A('s_and_b32 s77, s77, 0xfff')
                A('s_or_b64 vcc, vcc, s[76:77]')
                A(f's_cbranch_vccz {ld}')
                A('s_sleep 32')
                A('s_sub_u32 s61, s61, 1\ns_cmp_lg_u32 s61, 0')
                A(f's_cbranch_scc1 {lp}')
                A(f'{ld}:')
        A('v_lshrrev_b32 v9, 3, v0\nv_mul_u32_u24 v9, 10240, v9\nv_and_b32 v10, 7, v0\nv_lshlrev_b32 v10, 4, v10\nv_add_u32 v9, v9, v10')
        A(f's_mul_i32 s60, s65, 2560\ns_lshl_b32 s61, s84, 7\ns_add_u32 s60, s60, s61\ns_add_u32 s60, s60, {hex(W_FPART)}')
        for r in range(4): A(f'v_mov_b32 v{16+4*13+r}, 0')
        for t in range(14):
            if t == 13: A('s_mov_b64 exec, 0xffffffff')
            if s.fgwin and t >= s.fgwin: A(f's_waitcnt vmcnt({s.fgwin-1})')
            if 'f_g' not in s.skip: A(f'buffer_load_dwordx4 v[{16+4*t}:{19+4*t}], v9, s[44:47], s60 offen {s.pol_fg}')
            if t < 13: A(f's_add_u32 s60, s60, {8*10240}')
        A('s_mov_b64 exec, -1')
        A('s_mul_i32 s60, s65, 1280\ns_lshl_b32 s61, s84, 6\ns_add_u32 s60, s60, s61')
        A('v_and_b32 v10, 15, v0\nv_lshlrev_b32 v10, 2, v10')
        A(f'buffer_load_dword v12, v10, s[40:43], s60 offen')
        A('s_waitcnt vmcnt(0)')
        for t in range(1, 14):
            for r in range(4): A(f'v_add_f32 v{16+r}, v{16+r}, v{16+4*t+r}')
        for r in range(4): s.reduce_hi3(16 + r, 20)
        for r in range(4):
            f = 16 + r
            s.bf16r(f, f)
            A(f'v_mul_f32 v20, 0xbfb8aa3b, v{f}\nv_exp_f32 v20, v20\nv_add_f32 v20, 1.0, v20\nv_rcp_f32 v21, v20')
            A(f'v_mul_f32 v22, v{f}, v21\nv_fma_f32 v23, -v22, v20, v{f}\nv_fma_f32 v23, v23, v21, v22')
            A('v_cmp_u_f32 vcc, v23, v23')
            A(f'v_cndmask_b32 v22, v23, v22, vcc')
            s.bf16r(24 + r, 22)
        A('v_and_b32 v9, 7, v0\nv_lshlrev_b32 v9, 4, v9')
        A(f'ds_write_b128 v9, v[24:27] offset:{L_GX}')
        A('v_and_b32 v9, 15, v0\nv_lshlrev_b32 v9, 3, v9')
        A('s_waitcnt lgkmcnt(0)')
        A(f'ds_read_b64 v[88:89], v9 offset:{L_GX}')
        A('v_lshlrev_b32 v92, 16, v12\nv_and_b32 v93, 0xffff0000, v12')
        A('s_waitcnt lgkmcnt(0)')

    def tail(s):
        A = s.A
        DATA = 96
        vM = 4
        A('v_lshrrev_b32 v9, 4, v0\nv_lshlrev_b32 v9, 7, v9\ns_lshl_b32 s60, s63, 5\nv_add_u32 v9, s60, v9')
        A('v_lshrrev_b32 v10, 4, v0\nv_lshlrev_b32 v10, 7, v10\nv_and_b32 v11, 15, v0\nv_lshlrev_b32 v11, 2, v11\nv_add_u32 v10, v10, v11')
        A('s_mul_i32 s60, s63, 2560\nv_add_u32 v10, s60, v10')
        A('s_lshl_b32 s60, s63, 6\nv_add_u32 v76, s60, v0')
        A('v_lshrrev_b32 v77, 3, v76\nv_lshlrev_b32 v77, 14, v77\nv_and_b32 v78, 7, v76\nv_lshlrev_b32 v78, 5, v78\nv_add_u32 v77, v77, v78')
        A('v_lshlrev_b32 v78, 4, v76')
        A('s_mul_i32 s62, s65, 327680\ns_lshl_b32 s69, s67, 8\ns_add_u32 s62, s62, s69')
        A('s_waitcnt vmcnt(0)')
        if not s.fineF: s.stamp(3)
        A('s_barrier')
        if not s.fineF: s.stamp(4)
        if s.fasttail and not s.dbg:
            acc = 48
            for w in range(4): A(f'ds_read_b128 v[{16+8*w}:{19+8*w}], v9 offset:{L_OPART + 512*w}')
            for w in range(4): A(f'ds_read_b128 v[{20+8*w}:{23+8*w}], v9 offset:{L_OPART + 512*w + 16}')
            def osum(u):
                return [f'v_add_f32 v{16+u}, v{16+u}, v{24+u}', f'v_add_f32 v{32+u}, v{32+u}, v{40+u}', f'v_add_f32 v{16+u}, v{16+u}, v{32+u}',
                        f'v_cvt_pk_bf16_f32 v{16+u}, v{16+u}, v{16+u}']
            def yb(u):
                y = 68 + 4 * (u & 1)
                return [f'v_and_b32 v{y+d}, v{16+u}, v{vM+d}' for d in range(4)]
            A('s_waitcnt lgkmcnt(4)')
            for i in osum(0) + osum(1) + yb(0): A(i)
            for u in range(8):
                y = 68 + 4 * (u & 1)
                fill = []
                if u == 2: fill.append('s_waitcnt lgkmcnt(0)')
                if u + 1 < 8: fill += yb(u + 1)
                if u + 2 < 8: fill += osum(u + 2)
                per = [fill[0:2], fill[2:4], fill[4:6], fill[6:9], []] if u != 2 else [fill[0:3], fill[3:5], fill[5:7], fill[7:9], []]
                for cb in range(5):
                    r = DATA + 4 * (u * 5 + cb)
                    a_ = acc + 4 * cb
                    A(f'v_mfma_f32_16x16x32_bf16 v[{a_}:{a_+3}], v[{r}:{r+3}], v[{y}:{y+3}], ' + ('0' if u == 0 else f'v[{a_}:{a_+3}]'))
                    for i in per[cb]: A(i)
        else:
            for w in range(4):
                A(f'ds_read_b128 v[{16+8*w}:{19+8*w}], v9 offset:{L_OPART + 512*w}')
                A(f'ds_read_b128 v[{20+8*w}:{23+8*w}], v9 offset:{L_OPART + 512*w + 16}')
            A('s_waitcnt lgkmcnt(0)')
            def osum(u):
                A(f'v_add_f32 v{16+u}, v{16+u}, v{24+u}')
                A(f'v_add_f32 v{32+u}, v{32+u}, v{40+u}')
                A(f'v_add_f32 v{16+u}, v{16+u}, v{32+u}')
                A(f'v_cvt_pk_bf16_f32 v{16+u}, v{16+u}, v{16+u}')
            acc = 48
            if s.dbg:
                for u in range(8): osum(u)
                A(f's_lshl_b32 s60, s2, 13\ns_lshl_b32 s61, s63, 11\ns_add_u32 s60, s60, s61\ns_add_u32 s60, s60, {hex(W_DBG + 0x600000)}')
                A('v_lshlrev_b32 v48, 5, v0\nv_add_u32 v48, s60, v48')
                A('global_store_dwordx4 v48, v[16:19], s[30:31]\nglobal_store_dwordx4 v48, v[20:23], s[30:31] offset:16')
                A('s_waitcnt vmcnt(0)')
            else:
                osum(0); osum(1)
            for u in range(8):
                y = 68 + 4 * (u & 1)
                for d in range(4): A(f'v_and_b32 v{y+d}, v{16+u}, v{vM+d}')
                if not s.dbg and u + 2 < 8: osum(u + 2)
                for cb in range(5):
                    r = DATA + 4 * (u * 5 + cb)
                    a = acc + 4 * cb
                    A(f'v_mfma_f32_16x16x32_bf16 v[{a}:{a+3}], v[{r}:{r+3}], v[{y}:{y+3}], ' + ('0' if u == 0 else f'v[{a}:{a+3}]'))
        A('s_mov_b32 exec_lo, 0x00ff00ff\ns_mov_b32 exec_hi, 0x00ff00ff')
        for cb in range(5):
            for r in range(4):
                A(f'ds_write_b32 v10, v{acc+4*cb+r} offset:{L_YPART + 512*cb + 32*r}')
        A('s_mov_b64 exec, -1')
        A('s_waitcnt lgkmcnt(0)')
        A('s_barrier')
        if not s.fineF: s.stamp(5)
        l_fin, l_done = s.lab('fin'), s.lab('done')
        A('s_cmp_eq_u32 s63, 3')
        A(f's_cbranch_scc1 {l_fin}')
        A('v_cmp_gt_u32 vcc, 160, v76')
        A('s_and_saveexec_b64 s[60:61], vcc')
        A(f's_cbranch_execz {l_done}')
        for w in range(4):
            A(f'ds_read_b128 v[{16+4*w}:{19+4*w}], v78 offset:{L_YPART + 2560*w}')
        A('v_mov_b32 v33, s58\nv_mov_b32 v35, s58\nv_mov_b32 v37, s58\nv_mov_b32 v39, s58')
        A('s_waitcnt lgkmcnt(0)')
        for r in range(4):
            A(f'v_add_f32 v{16+r}, v{16+r}, v{20+r}')
            A(f'v_add_f32 v{24+r}, v{24+r}, v{28+r}')
        for r in range(4):
            A(f'v_add_f32 v{32+2*r}, v{16+r}, v{24+r}')
        A(f'buffer_store_dwordx4 v[32:35], v77, s[44:47], s62 offen {s.pol_hs}')
        A(f'buffer_store_dwordx4 v[36:39], v77, s[44:47], s62 offen offset:16 {s.pol_hs}')
        A(f'{l_done}:')
        if not s.fineF: s.stamp(6)
        s.stamp_store(7)
        A('s_endpgm')
        A(f'{l_fin}:')
        l_nf = s.lab('nofin')
        A('s_cmp_ge_u32 s84, 20')
        A(f's_cbranch_scc1 {l_nf}')
        A('s_mul_i32 s60, s65, 20\ns_add_u32 s60, s60, s84\ns_lshl_b32 s60, s60, 14')
        for k in range(1, 4): A(f's_add_u32 s{80+k}, s60, {4096*k}')
        A('s_mov_b32 s80, s60')
        A('v_lshlrev_b32 v9, 4, v0')
        s.srd(48, 26, 5120)
        A('s_mul_i32 s52, s65, 1280\ns_lshl_b32 s53, s84, 6\ns_add_u32 s52, s52, s53')
        A('v_lshlrev_b32 v10, 2, v0')
        lp, ld = s.lab('fp'), s.lab('fpd')
        for t in range(16):
            A(f'buffer_load_dwordx4 v[{16+4*t}:{19+4*t}], v9, s[44:47], s{80+t//4} offen offset:{(t%4)*1024} {s.pol_hl}')
        A('s_mov_b32 s61, 0x100000')
        A(f'{lp}:')
        if s.maskpoll:
            tags = [16 + 4 * t + k for t in range(16) for k in (1, 3)]
            A('s_waitcnt vmcnt(0)')
            A(f'v_min_u32 v80, v{tags[0]}, v{tags[1]}\nv_max_u32 v81, v{tags[0]}, v{tags[1]}')
            for i in range(2, 32, 2):
                A(f'v_min3_u32 v80, v80, v{tags[i]}, v{tags[i+1]}')
                A(f'v_max3_u32 v81, v81, v{tags[i]}, v{tags[i+1]}')
            A('v_cmp_ne_u32 vcc, s58, v80')
            A('v_cmp_ne_u32 s[76:77], s58, v81')
            A('s_or_b64 vcc, vcc, s[76:77]')
            A(f's_cbranch_vccz {ld}')
            for t in range(16):
                A(f'v_cmp_ne_u32 vcc, s58, v{17+4*t}')
                A(f'v_cmp_ne_u32 s[76:77], s58, v{19+4*t}')
                A('s_or_b64 vcc, vcc, s[76:77]')
                ls = s.lab('ok')
                A(f's_cbranch_vccz {ls}')
                A('s_mov_b64 exec, vcc')
                A(f'buffer_load_dwordx4 v[{16+4*t}:{19+4*t}], v9, s[44:47], s{80+t//4} offen offset:{(t%4)*1024} {s.pol_hl}')
                A('s_mov_b64 exec, -1')
                A(f'{ls}:')
            A('s_sub_u32 s61, s61, 1\ns_cmp_lg_u32 s61, 0')
            A(f's_cbranch_scc1 {lp}')
            A('s_waitcnt vmcnt(0)')
        else:
            tags = [16 + 4 * t + k for t in range(16) for k in (1, 3)]
            A('s_waitcnt vmcnt(12)')
            A(f'v_min_u32 v80, v{tags[0]}, v{tags[1]}\nv_max_u32 v81, v{tags[0]}, v{tags[1]}')
            for i in range(2, 32, 2):
                if i in (8, 16, 24): A(f's_waitcnt vmcnt({12 - i//2})')
                A(f'v_min3_u32 v80, v80, v{tags[i]}, v{tags[i+1]}')
                A(f'v_max3_u32 v81, v81, v{tags[i]}, v{tags[i+1]}')
            A('v_cmp_ne_u32 vcc, s58, v80')
            A('v_cmp_ne_u32 s[76:77], s58, v81')
            A('s_or_b64 vcc, vcc, s[76:77]')
            A(f's_cbranch_vccz {ld}')
            for t in range(16):
                A(f'buffer_load_dwordx4 v[{16+4*t}:{19+4*t}], v9, s[44:47], s{80+t//4} offen offset:{(t%4)*1024} {s.pol_hl}')
            A('s_sub_u32 s61, s61, 1\ns_cmp_lg_u32 s61, 0')
            A(f's_cbranch_scc1 {lp}')
            A('s_waitcnt vmcnt(0)')
        A(f'{ld}:')
        step = 1
        while step < 16:
            for t in range(0, 16, 2 * step):
                for k in (0, 2): A(f'v_add_f32 v{16+4*t+k}, v{16+4*t+k}, v{16+4*(t+step)+k}')
            step *= 2
        for k in (0, 2): A(f'v_mov_b32 v{20+k}, v{16+k}')
        for k in (0, 2): A(f'v_permlane16_swap_b32 v{16+k}, v{20+k}')
        for k in (0, 2): A(f'v_add_f32 v{16+k}, v{16+k}, v{20+k}')
        for k in (0, 2): A(f'v_mov_b32 v{20+k}, v{16+k}')
        for k in (0, 2): A(f'v_permlane32_swap_b32 v{16+k}, v{20+k}')
        for k in (0, 2): A(f'v_add_f32 v{16+k}, v{16+k}, v{20+k}')
        A('v_cvt_pk_bf16_f32 v16, v16, v18')
        A('v_lshlrev_b32 v17, 16, v16\nv_and_b32 v18, 0xffff0000, v16')
        A('v_mul_f32 v17, v17, v88\nv_mul_f32 v18, v18, v89')
        A('v_cvt_pk_bf16_f32 v16, v17, v18')
        A('v_lshlrev_b32 v17, 16, v16\nv_and_b32 v18, 0xffff0000, v16')
        A('v_add_f32 v17, v17, v92\nv_add_f32 v18, v18, v93')
        A('v_cvt_pk_bf16_f32 v16, v17, v18')
        A('s_mov_b64 exec, 0xffff')
        A('buffer_store_dword v16, v10, s[48:51], s52 offen')
        A('s_mov_b64 exec, -1')
        A('s_or_b32 s60, s65, s84\ns_cmp_lg_u32 s60, 0')
        A(f's_cbranch_scc1 {l_nf}')
        A(f'v_mov_b32 v9, 0\nv_mov_b32 v11, s58\ns_mov_b32 s60, {hex(W_NONCE)}')
        A('s_mov_b64 exec, 1')
        A('buffer_store_dword v11, v9, s[44:47], s60 offen sc1')
        A('s_mov_b64 exec, -1')
        A(f'{l_nf}:')
        if not s.fineF: s.stamp(6)
        s.stamp_store(7)

    def text(s):
        s.build()
        body = hz.fix(s.L)
        out = [HEADER + f'; @launch grid=(256,1,1) block=(512,1,1) lds={LDS_BYTES}',
               '.amdgcn_target "amdgcn-amd-amdhsa--gfx950"', '.text', f'.globl {NAME}_kernel', '.p2align 8',
               f'.type {NAME}_kernel,@function']
        out += body
        out += ['.section .rodata,"a"', '.p2align 6', f'.amdhsa_kernel {NAME}_kernel',
                '  .amdhsa_next_free_vgpr 256', '  .amdhsa_next_free_sgpr 102', '  .amdhsa_accum_offset 256',
                '  .amdhsa_group_segment_fixed_size 0', '  .amdhsa_kernarg_size 96', '  .amdhsa_user_sgpr_count 2',
                '  .amdhsa_user_sgpr_kernarg_segment_ptr 1', '  .amdhsa_system_sgpr_workgroup_id_x 1',
                '  .amdhsa_float_denorm_mode_32 3',
                '.end_amdhsa_kernel']
        return '\n'.join(out) + '\n'

if __name__ == '__main__':
    import argparse
    ap = argparse.ArgumentParser()
    ap.add_argument('-o', default='cdna_kernels/' + NAME + '.s')
    ap.add_argument('--cfg', default='{}')
    a = ap.parse_args()
    g = Gen(**eval(a.cfg))
    open(a.o, 'w').write(g.text())
    print('wrote', a.o)
```

```python
import sys, os
sys.path.insert(0, os.path.dirname(os.path.abspath(__file__)))
import hz

NAME = 'recurrent_scan__gqa_block_cached__geglu_ffn__decode'

HEADER = '''; Kernarg layout for this problem (96 bytes, ptrs only, base s[0:1]):
;   offset  32: d_in[4] A_wo  shape=(4096, 640) dtype=bfloat16
;   offset  88: d_ws      workspace: q, FFN partials, hand-off mailboxes
; Layout: 256 workgroups, one per (batch, head, key half); 8 waves each.
;   waves 4-7 (helpers): layernorm, 1/8 of the head's q projection (exchanged between the 8 workgroups of a head), the wo slice
;     kept in registers, a slice of the GeGLU FFN (108 workgroups), the (max,sum) exchange with the partner half,
;     the output projection and the final combine (80 consumer workgroups: x + s * silu(ffn)).
;   Hand-offs between workgroups go through d_ws with write-through stores; every flag / granule carries a tag that differs
;   from the previous launch's (word at d_ws+0x148000, plus one), so nothing has to be cleared and stale words are ignored.
'''

L_QP    = 0x0000
L_XN    = 0x2000
L_ML    = 0x3400
L_WF    = 0x3440
L_FLAG  = 0x3480
L_QB    = 0x3500
L_HT    = 0x3600
L_OPART = 0x3700
L_YPART = 0x3F00
L_GX    = 0x6700
L_WG    = 0x6800
L_WU    = 0xB800
LDS_BYTES = 0x10800

W_YIN   = 0x000000
W_ML    = 0x140000
W_NONCE = 0x148000
W_FLAGQ = 0x150000
W_FLAGF = 0x158000
W_FLAGP = 0x14B000
W_FDONE = 0x160000
W_Q     = 0x180000
W_FPART = 0x200000
W_FX    = 0x320000
W_Q2    = 0x360000
WS_SIZE = 0x460000
W_DBG   = 0x1000000

SCALE = 0x3db504f3
LOG2E = 0x3fb8aa3b

class Gen:
    def __init__(s, W=5, P=24, B=40, WO=3, WF=5, pol_kv='nt', pol_w='', pol_hl='sc1', pol_hs='sc1', dbg=False, stamps=False, prio=True, skip='', W0=None, fineF=False, WO4=None, pol_f=None, pol_q=None, WD=4, boost=0, rot=False, WV=None, maskpoll=False, pol_fg=None, pol_fp=None, mix=0, collector=True, fgwin=0, wofirst=False, refill=0, cstep=8, Wend=0, Nend=0, fasttail=False, qflag=False, qtag=False, vtouch=0, lateboost=0, wodelay=0, ffndelay=0):
        s.wodelay = wodelay; s.ffndelay = ffndelay
        s.lateboost = lateboost
        s.vtouch = vtouch
        s.qtag = qtag
        s.qflag = qflag
        s.fasttail = fasttail
        s.Wend, s.Nend = Wend, Nend
        s.refill = refill; s.cstep = cstep
        s.wofirst = wofirst
        s.collector = collector; s.fgwin = fgwin
        s.mix = mix
        s.pol_fg = pol_hl if pol_fg is None else pol_fg; s.pol_fp = pol_hs if pol_fp is None else pol_fp
        s.maskpoll = maskpoll
        s.WV = WV or W
        s.rot = rot
        s.boost = boost
        s.WD = WD
        s.fineF = fineF; s.WO4 = WO4 or WO; s.pol_f = pol_w if pol_f is None else pol_f; s.pol_q = pol_w if pol_q is None else pol_q
        s.L = []
        s.W, s.P, s.B, s.WO, s.WF = W, P, B, WO, WF
        s.W0 = W0 or W
        s.pol_kv, s.pol_w, s.pol_hl, s.pol_hs = pol_kv, pol_w, pol_hl, pol_hs
        s.dbg = dbg; s.stamps = stamps; s.prio = prio; s.skip = skip.split(',')
        s.nlab = 0
    def A(s, t):
        for l in t.split('\n'):
            l = l.strip()
            if l: s.L.append(('  ' + l) if not l.endswith(':') else l)
    def lab(s, base):
        s.nlab += 1
        return f'L_{base}_{s.nlab}'

    def allreduce(s, op, v, t):
        A = s.A
        ins = {'add': 'v_add_f32', 'max': 'v_max_f32'}[op]
        A(f'{ins}_dpp v{v}, v{v}, v{v} quad_perm:[1,0,3,2] row_mask:0xf bank_mask:0xf')
        A(f'{ins}_dpp v{v}, v{v}, v{v} quad_perm:[2,3,0,1] row_mask:0xf bank_mask:0xf')
        A(f'{ins}_dpp v{v}, v{v}, v{v} row_half_mirror row_mask:0xf bank_mask:0xf')
        A(f'{ins}_dpp v{v}, v{v}, v{v} row_mirror row_mask:0xf bank_mask:0xf')
        A(f'v_mov_b32 v{t}, v{v}')
        A(f'v_permlane16_swap_b32 v{v}, v{t}')
        A(f'{ins} v{v}, v{v}, v{t}')
        A(f'v_mov_b32 v{t}, v{v}')
        A(f'v_permlane32_swap_b32 v{v}, v{t}')
        A(f'{ins} v{v}, v{v}, v{t}')

    def reduce_hi3(s, v, t):
        A = s.A
        A(f'v_add_f32_dpp v{v}, v{v}, v{v} row_ror:8 row_mask:0xf bank_mask:0xf')
        A(f'v_mov_b32 v{t}, v{v}')
        A(f'v_permlane16_swap_b32 v{v}, v{t}')
        A(f'v_add_f32 v{v}, v{v}, v{t}')
        A(f'v_mov_b32 v{t}, v{v}')
        A(f'v_permlane32_swap_b32 v{v}, v{t}')
        A(f'v_add_f32 v{v}, v{v}, v{t}')

    def bf16r(s, dst, src):
        s.A(f'v_cvt_pk_bf16_f32 v{dst}, v{src}, v{src}')
        s.A(f'v_lshlrev_b32 v{dst}, 16, v{dst}')

    def srd(s, n, ptr, size):
        s.A(f's_mov_b32 s{n}, s{ptr}\ns_and_b32 s{n+1}, s{ptr+1}, 0xffff\ns_mov_b32 s{n+2}, {hex(size)}\ns_mov_b32 s{n+3}, 0x20000')

    def stamp(s, idx):
        if s.stamps: s.A(f's_memrealtime s[{86+2*idx}:{87+2*idx}]')

    def stamp_store(s, n):
        if not s.stamps: return
        A = s.A
        A('s_waitcnt lgkmcnt(0)')
        A('s_lshl_b32 s100, s2, 3\ns_add_u32 s100, s100, s3\ns_lshl_b32 s100, s100, 6')
        A(f's_add_u32 s100, s100, {hex(W_DBG)}')
        A('v_mov_b32 v1, s100')
        A('s_mov_b64 exec, 1')
        for i in range(n):
            A(f'v_mov_b32 v2, s{86+2*i}')
            A(f'global_store_dword v1, v2, s[30:31] offset:{4*i}')
        A('s_mov_b64 exec, -1')

    def masks_Md(s, base, jreg, t1, t2, mod8=False):
        A = s.A
        if mod8: A(f'v_and_b32 v{t1}, 7, v{jreg}')
        else: A(f'v_mov_b32 v{t1}, v{jreg}')
        A(f'v_and_b32 v{t2}, 1, v{t1}')
        A(f'v_cmp_eq_u32 vcc, 1, v{t2}')
        A(f'v_mov_b32 v{t2}, 0xffff')
        A(f'v_mov_b32 v{base}, 0xffff0000')
        A(f'v_cndmask_b32 v{t2}, v{t2}, v{base}, vcc')
        A(f'v_lshrrev_b32 v{t1}, 1, v{t1}')
        for d in range(4):
            A(f'v_cmp_eq_u32 vcc, {d}, v{t1}')
            A(f'v_cndmask_b32 v{base+d}, 0, v{t2}, vcc')

    def layernorm(s, xr, out_pairs, tb):
        A = s.A
        f = tb
        a, t = tb + 10, tb + 11
        for i in range(5):
            A(f'v_lshlrev_b32 v{f+2*i}, 16, v{xr+i}')
            A(f'v_and_b32 v{f+2*i+1}, 0xffff0000, v{xr+i}')
        A(f'v_add_f32 v{a}, v{f}, v{f+1}\nv_add_f32 v{t}, v{f+2}, v{f+3}')
        for i in range(4, 10, 2): A(f'v_add_f32 v{a}, v{a}, v{f+i}\nv_add_f32 v{t}, v{t}, v{f+i+1}')
        A(f'v_add_f32 v{a}, v{a}, v{t}')
        s.allreduce('add', a, t)
        A(f'v_mul_f32 v{a}, 0x3acccccd, v{a}')
        v, d = tb + 12, tb + 13
        A(f'v_sub_f32 v{d}, v{f}, v{a}\nv_mul_f32 v{v}, v{d}, v{d}')
        for i in range(1, 10):
            A(f'v_sub_f32 v{d}, v{f+i}, v{a}\nv_fmac_f32 v{v}, v{d}, v{d}')
        s.allreduce('add', v, t)
        A(f'v_mul_f32 v{v}, 0x3acccccd, v{v}')
        s.bf16r(v, v)
        A(f'v_add_f32 v{v}, 0x3727c5ac, v{v}')
        s.bf16r(v, v)
        A(f'v_sqrt_f32 v{v}, v{v}')
        s.bf16r(v, v)
        s.bf16r(a, a)
        A(f'v_rcp_f32 v{t}, v{v}')
        for i in range(10):
            A(f'v_sub_f32 v{f+i}, v{f+i}, v{a}')
        for i in range(5):
            A(f'v_cvt_pk_bf16_f32 v{out_pairs+i}, v{f+2*i}, v{f+2*i+1}')
        for i in range(5):
            A(f'v_lshlrev_b32 v{f+2*i}, 16, v{out_pairs+i}')
            A(f'v_and_b32 v{f+2*i+1}, 0xffff0000, v{out_pairs+i}')
        for i in range(10):
            A(f'v_mul_f32 v{d}, v{f+i}, v{t}')
            A(f'v_fma_f32 v{f+i}, -v{d}, v{v}, v{f+i}')
            A(f'v_fma_f32 v{f+i}, v{f+i}, v{t}, v{d}')
        for i in range(5):
            A(f'v_cvt_pk_bf16_f32 v{out_pairs+i}, v{f+2*i}, v{f+2*i+1}')

    def build(s):
        A = s.A
        A(f'{NAME}_kernel:')
        A('s_cmp_ge_u32 s2, 256')
        A('s_cbranch_scc1 L_end')
        s.stamp(0)
        A('s_load_dwordx16 s[8:23], s[0:1], 0')
        A('s_load_dwordx8 s[24:31], s[0:1], 64')
        A('v_lshrrev_b32 v1, 6, v0')
        A('v_and_b32 v0, 63, v0')
        A('v_readfirstlane_b32 s3, v1')
        lni = s.lab('noinit')
        A('s_cmp_lg_u32 s3, 0')
        A(f's_cbranch_scc1 {lni}')
        A('v_mov_b32 v2, -1\nv_cmp_gt_u32 vcc, 32, v0\nv_cndmask_b32 v2, 0, v2, vcc\nv_lshlrev_b32 v3, 2, v0')
        A(f'ds_write_b32 v3, v2 offset:{L_ML}')
        A(f'{lni}:')
        A('s_and_b32 s64, s2, 7\ns_lshr_b32 s68, s2, 3')
        A('s_and_b32 s69, s68, 3\ns_lshl_b32 s69, s69, 3\ns_add_u32 s64, s64, s69')
        A('s_lshr_b32 s65, s68, 2\ns_and_b32 s65, s65, 3')
        A('s_lshr_b32 s66, s68, 4')
        A('s_lshl_b32 s67, s64, 1\ns_add_u32 s67, s67, s66')
        A('s_cmp_eq_u32 s66, 1\ns_cselect_b32 s84, s64, 99')
        A('s_waitcnt lgkmcnt(0)')
        A('s_cmp_ge_u32 s3, 4')
        A('s_cbranch_scc1 L_helper')
        s.streamer()
        A('L_helper:')
        s.helper()
        A('L_end:')
        A('s_endpgm')

    def streamer(s):
        A = s.A
        W, P, B, W0 = s.W, s.P, s.B, s.W0
        RING = 64
        assert RING + 4 * B <= 256 and P + W0 + max(1, s.refill) + 2 <= B + 1
        vKo, vVo = 1, 2
        vM = 4; vY = 8; vAcc = 24; vSc = 32; vO = 40; vYp = 44; vT = 52
        if s.prio: A('s_setprio 2')
        s.srd(32, 10, 0x8000000)
        s.srd(36, 12, 0x8000000)
        A(f'v_lshrrev_b32 v{vT}, 4, v0')
        A(f'v_lshlrev_b32 v{vT+3}, 2, v{vT}\nv_and_b32 v{vT+2}, 3, v0\nv_add_u32 v{vT+3}, v{vT+3}, v{vT+2}\nv_lshlrev_b32 v3, 4, v{vT+3}')
        A(f'v_lshlrev_b32 v{vT}, 6, v{vT}')
        A(f'v_bfe_u32 v{vT+1}, v0, 2, 2')
        A(f'v_lshlrev_b32 v{vT+1}, 8, v{vT+1}')
        A(f'v_lshlrev_b32 v{vT+2}, 4, v{vT+2}')
        A(f'v_add3_u32 v{vKo}, v{vT}, v{vT+1}, v{vT+2}')
        A(f'v_lshlrev_b32 v{vVo}, 4, v0')
        A('s_lshl_b32 s40, s65, 5\ns_add_u32 s40, s40, s64\ns_lshl_b32 s40, s40, 20')
        A('s_lshl_b32 s41, s66, 19\ns_add_u32 s40, s40, s41')
        A('s_lshl_b32 s41, s3, 12\ns_add_u32 s40, s40, s41')
        A('s_mov_b32 s41, s40')
        state = {'n': 0, 'win': W}
        def issue():
            n = state['n']; state['n'] += 1
            if n >= 256: return
            if n == 128: A('s_mov_b32 s41, s40')
            elif n % 4 == 0 and n > 0: A('s_add_u32 s41, s41, 0x4000')
            r = RING + 4 * (n % B)
            if n < 128:
                A(f'buffer_load_dwordx4 v[{r}:{r+3}], v{vKo}, s[32:35], s41 offen offset:{(n%4)*1024} {s.pol_kv}')
            else:
                A(f'buffer_load_dwordx4 v[{r}:{r+3}], v{vVo}, s[36:39], s41 offen offset:{(n%4)*1024} {s.pol_kv}')
        done = {'upto': -1}
        def paced_issue(w=None):
            w = w or W
            if state['n'] >= 256: return
            A(f's_waitcnt vmcnt({w-1})')
            done['upto'] = max(done['upto'], state['n'] - w)
            issue()
        def ensure(c):
            if c > done['upto']:
                A(f's_waitcnt vmcnt({state["n"] - 1 - c})')
                done['upto'] = c
        for _ in range(W0): issue()
        A('s_barrier')
        A(f'v_and_b32 v{vT}, 15, v0')
        s.masks_Md(vM, vT, vT+1, vT+2)
        A('s_mov_b32 s44, 0x22222222\ns_mov_b32 s45, 0x22222222')
        A('s_mov_b32 s46, 0x44444444\ns_mov_b32 s47, 0x44444444')
        A('s_mov_b32 s48, 0x88888888\ns_mov_b32 s49, 0x88888888')
        for t in range(4):
            m = 0x000F000F << (4 * t)
            A(f's_mov_b32 s{50+2*t}, {hex(m)}\ns_mov_b32 s{51+2*t}, {hex(m)}')
        for _ in range(P): paced_issue(W0)
        s.stamp(1)
        if s.qflag:
            lp, ld = s.lab('qf'), s.lab('qfd')
            A(f'v_mov_b32 v{vT}, 0\ns_mov_b32 s61, 0x400000')
            if s.prio: A('s_setprio 0')
            A(f'{lp}:')
            A(f'ds_read_b32 v{vT+1}, v{vT} offset:{L_FLAG + 48}')
            A('s_waitcnt lgkmcnt(0)')
            A(f'v_cmp_eq_u32 vcc, 1, v{vT+1}')
            A(f's_cbranch_vccnz {ld}')
            A('s_sleep 2')
            A('s_sub_u32 s61, s61, 1\ns_cmp_lg_u32 s61, 0')
            A(f's_cbranch_scc1 {lp}')
            A(f'{ld}:')
            if s.prio: A('s_setprio 2')
            if s.lateboost:
                A(f's_sub_u32 s62, 0x400000, s61\ns_cmp_ge_u32 s62, {s.lateboost}\ns_cselect_b32 s62, 1, 0')
        else:
            A('s_barrier')
        s.stamp(2)
        A(f'ds_read_b128 v[56:59], v3 offset:{L_QB}')
        for _ in range(max(1, s.refill)): paced_issue()
        A('s_waitcnt lgkmcnt(0)')
        if s.dbg:
            A(f's_lshl_b32 s60, s2, 12\ns_lshl_b32 s61, s3, 10\ns_add_u32 s60, s60, s61\ns_add_u32 s60, s60, {hex(W_DBG + 0x100000)}')
            A(f'v_lshlrev_b32 v8, 4, v0\nv_add_u32 v8, s60, v8')
            A(f'global_store_dwordx4 v8, v[56:59], s[30:31]')
            A('s_waitcnt vmcnt(0)')
        for t in range(4):
            for d in range(4):
                A(f'v_cndmask_b32 v{vY+4*t+d}, 0, v{56+d}, s[{50+2*t}:{51+2*t}]')
        def post(g):
            a = vAcc + 4 * (g & 1)
            t = vT
            A(f'v_cndmask_b32 v{t}, v{a}, v{a+1}, s[44:45]')
            A(f'v_cndmask_b32 v{t}, v{t}, v{a+2}, s[46:47]')
            A(f'v_cndmask_b32 v{t}, v{t}, v{a+3}, s[48:49]')
            A(f'v_add_f32_dpp v{t}, v{t}, v{t} quad_perm:[1,0,3,2] row_mask:0xf bank_mask:0xf')
            q4 = vSc + (g >> 2)
            if (g & 3) == 0:
                A(f'v_add_f32_dpp v{q4}, v{t}, v{t} quad_perm:[2,3,0,1] row_mask:0xf bank_mask:0xf')
            else:
                A(f'v_add_f32_dpp v{t}, v{t}, v{t} quad_perm:[2,3,0,1] row_mask:0xf bank_mask:0xf')
                A(f'v_cndmask_b32 v{q4}, v{q4}, v{t}, s[{42+2*(g&3)}:{43+2*(g&3)}]')
        if s.boost or s.mix:
            A(f's_cmp_lt_u32 s3, {s.mix}\ns_cselect_b32 s59, 1, 0')
            A('s_and_b32 s58, s2, 7\ns_lshl_b32 s60, s65, 3\ns_add_u32 s58, s58, s60\ns_cmp_lt_u32 s58, 27\ns_cselect_b32 s58, 1, 0')
            A('s_cmp_eq_u32 s66, 0\ns_cselect_b32 s58, s58, 0')
            if not s.boost: A('s_mov_b32 s58, 0')
            A('s_or_b32 s58, s58, s59')
            if s.lateboost: A('s_or_b32 s58, s58, s62')
        def boosted_issue(w=None):
            w = w or W
            if state['n'] >= 256: return
            lb = s.lab('bo')
            A(f's_waitcnt vmcnt({w})')
            A('s_cmp_eq_u32 s58, 1')
            A(f's_cbranch_scc1 {lb}')
            A(f's_waitcnt vmcnt({w-1})')
            A(f'{lb}:')
            done['upto'] = max(done['upto'], state['n'] - (w + 1))
            issue()
        for c in range(128):
            g, t = c >> 2, c & 3
            backlog = state['n'] - c
            if (s.wodelay and c == s.wodelay) or (s.ffndelay and c == s.ffndelay):
                lz = s.lab('pf')
                A('s_cmp_lg_u32 s3, 0')
                A(f's_cbranch_scc1 {lz}')
                off = L_FLAG + (52 if c == s.wodelay else 56)
                A(f'v_mov_b32 v{vT+10}, 0\nv_mov_b32 v{vT+11}, 1\nds_write_b32 v{vT+10}, v{vT+11} offset:{off}')
                if s.wodelay == s.ffndelay: A(f'ds_write_b32 v{vT+10}, v{vT+11} offset:{L_FLAG + 56}')
                A(f'{lz}:')
            if c == s.boost and s.mix: A('s_mov_b32 s58, s59')
            hi = (s.boost and c < s.boost) or s.mix
            if hi and backlog <= W + 1: boosted_issue()
            elif backlog <= W: paced_issue()
            elif backlog > W + 1 and c % s.cstep == s.cstep - 1: (boosted_issue() if hi else paced_issue())
            ensure(c)
            r = RING + 4 * (c % B)
            a = vAcc + 4 * (g & 1)
            cin = '0' if t == 0 else f'v[{a}:{a+3}]'
            A(f'v_mfma_f32_16x16x32_bf16 v[{a}:{a+3}], v[{r}:{r+3}], v[{vY+4*t}:{vY+4*t+3}], {cin}')
            if t == 1 and g > 0: post(g - 1)
        paced_issue()
        post(31)
        s.stamp(3)
        if s.dbg:
            A(f's_lshl_b32 s60, s2, 13\ns_lshl_b32 s61, s3, 11\ns_add_u32 s60, s60, s61\ns_add_u32 s60, s60, {hex(W_DBG + 0x200000)}')
            A(f'v_lshlrev_b32 v{vT}, 2, v0\nv_add_u32 v{vT}, s60, v{vT}')
            for i in range(8):
                A(f'global_store_dword v{vT}, v{vSc+i}, s[30:31] offset:{256*i}')
            A('s_waitcnt vmcnt(0)')
        def round_pairs():
            for i in range(4):
                A(f'v_cvt_pk_bf16_f32 v{vT+i}, v{vSc+2*i}, v{vSc+2*i+1}')
            for i in range(4):
                A(f'v_lshlrev_b32 v{vSc+2*i}, 16, v{vT+i}')
                A(f'v_and_b32 v{vSc+2*i+1}, 0xffff0000, v{vT+i}')
        round_pairs()
        for i in range(8): A(f'v_mul_f32 v{vSc+i}, {hex(SCALE)}, v{vSc+i}')
        round_pairs()
        m, t2 = vT + 4, vT + 5
        A(f'v_max3_f32 v{m}, v{vSc}, v{vSc+1}, v{vSc+2}')
        A(f'v_max3_f32 v{m}, v{m}, v{vSc+3}, v{vSc+4}')
        A(f'v_max3_f32 v{m}, v{m}, v{vSc+5}, v{vSc+6}')
        A(f'v_max_f32 v{m}, v{m}, v{vSc+7}')
        s.allreduce('max', m, t2)
        paced_issue()
        for i in range(8): A(f'v_sub_f32 v{vSc+i}, v{vSc+i}, v{m}')
        for i in range(8): A(f'v_mul_f32 v{vSc+i}, {hex(LOG2E)}, v{vSc+i}')
        for i in range(8): A(f'v_exp_f32 v{vSc+i}, v{vSc+i}')
        l = m + 1
        t3 = vT + 6
        A(f'v_add_f32 v{l}, v{vSc}, v{vSc+1}')
        A(f'v_add_f32 v{t3}, v{vSc+2}, v{vSc+3}')
        A(f'v_add_f32 v{l}, v{l}, v{vSc+4}')
        A(f'v_add_f32 v{t3}, v{t3}, v{vSc+5}')
        A(f'v_add_f32 v{l}, v{l}, v{vSc+6}')
        A(f'v_add_f32 v{t3}, v{t3}, v{vSc+7}')
        A(f'v_add_f32 v{l}, v{l}, v{t3}')
        for i in range(8): A(f'v_cvt_pk_bf16_f32 v{vSc+i}, v{vSc+i}, v{vSc+i}')
        s.allreduce('add', l, t3)
        paced_issue()
        A(f'v_cmp_eq_u32 vcc, -1, v{m}')
        A(f'v_mov_b32 v{t3}, 0x7fc00000')
        A(f'v_cndmask_b32 v{m}, v{m}, v{t3}, vcc')
        A(f's_lshl_b32 s60, s3, 3\nv_mov_b32 v{t3}, s60')
        A(f'ds_write_b64 v{t3}, v[{m}:{m+1}] offset:{L_ML}')
        def ybuild(c):
            g, t = (c - 128) >> 2, c & 3
            y = vYp + 4 * (c & 1)
            for d in range(4):
                A(f'v_and_b32_dpp v{y+d}, v{vSc+(g>>2)}, v{vM+d} row_newbcast:{4*t+(g&3)} row_mask:0xf bank_mask:0xf')
        ybuild(128)
        WV = s.WV
        for c in range(128, 256):
            if state['n'] < 256:
                if s.mix:
                    if state['n'] - c <= WV + 1: boosted_issue(WV)
                    elif c % 4 == 3: boosted_issue(WV)
                elif s.Nend and state['n'] >= 256 - s.Nend:
                    while state['n'] < 256 and state['n'] - c <= s.Wend - 1: paced_issue(s.Wend)
                    if state['n'] < 256 and state['n'] - c <= s.Wend: paced_issue(s.Wend)
                elif state['n'] - c <= WV: paced_issue(WV)
                elif c % 4 == 3: paced_issue(WV)
            if c == 240:
                A(f's_lshl_b32 s60, s3, 2\nv_mov_b32 v{vT}, s60')
                A(f'ds_read_b32 v{vT+1}, v{vT} offset:{L_WF}')
            if c == 244:
                A(f'v_and_b32 v{vT+2}, 3, v0\nv_lshlrev_b32 v{vT+2}, 5, v{vT+2}')
                A(f'v_lshrrev_b32 v{vT+3}, 4, v0\nv_lshlrev_b32 v{vT+3}, 3, v{vT+3}')
                if s.rot:
                    A(f'v_add_u32 v{vT+2}, v{vT+2}, v{vT+3}')
                    A(f's_lshl_b32 s60, s65, 1\ns_add_u32 s60, s60, s66')
                    A(f'v_bfe_u32 v{vT+4}, v0, 2, 1\nv_subrev_u32 v{vT+4}, s60, v{vT+4}')
                    for r4 in range(4):
                        A(f'v_add_u32 v{vT+8+r4}, {2*r4}, v{vT+4}\nv_and_b32 v{vT+8+r4}, 7, v{vT+8+r4}\nv_add_u32 v{vT+8+r4}, v{vT+8+r4}, v{vT+2}\nv_lshlrev_b32 v{vT+8+r4}, 2, v{vT+8+r4}')
                        A(f's_lshl_b32 s60, s3, 9\nv_add_u32 v{vT+8+r4}, s60, v{vT+8+r4}')
                else:
                    A(f'v_bfe_u32 v{vT+4}, v0, 2, 1')
                    A(f'v_add3_u32 v{vT+2}, v{vT+2}, v{vT+3}, v{vT+4}')
                    A(f'v_lshlrev_b32 v{vT+2}, 2, v{vT+2}')
                    A(f's_lshl_b32 s60, s3, 9\nv_add_u32 v{vT+2}, s60, v{vT+2}')
            if c + 1 < 256: ybuild(c + 1)
            ensure(c)
            r = RING + 4 * (c % B)
            y = vYp + 4 * (c & 1)
            cin = '0' if c == 128 else f'v[{vO}:{vO+3}]'
            A(f'v_mfma_f32_16x16x32_bf16 v[{vO}:{vO+3}], v[{r}:{r+3}], v[{y}:{y+3}], {cin}')
        s.stamp(4)
        lp, ld = s.lab('wf'), s.lab('wfd')
        A('s_waitcnt lgkmcnt(0)')
        A(f'v_cmp_ne_u32 vcc, -1, v{vT+1}')
        A(f's_cbranch_vccnz {ld}')
        A('s_mov_b32 s61, 0x400000')
        A(f'{lp}:')
        A(f'ds_read_b32 v{vT+1}, v{vT} offset:{L_WF}')
        A('s_waitcnt lgkmcnt(0)')
        A(f'v_cmp_ne_u32 vcc, -1, v{vT+1}')
        A(f's_cbranch_vccnz {ld}')
        A('s_sleep 1')
        A('s_sub_u32 s61, s61, 1\ns_cmp_lg_u32 s61, 0')
        A(f's_cbranch_scc1 {lp}')
        A(f'{ld}:')
        for r in range(4): A(f'v_mul_f32 v{vO+r}, v{vO+r}, v{vT+1}')
        A('s_mov_b32 exec_lo, 0x00ff00ff\ns_mov_b32 exec_hi, 0x00ff00ff')
        if s.rot:
            for r in range(4): A(f'ds_write_b32 v{vT+8+r}, v{vO+r} offset:{L_OPART}')
        else:
            for r in range(4): A(f'ds_write_b32 v{vT+2}, v{vO+r} offset:{L_OPART+8*r}')
        A('s_mov_b64 exec, -1')
        A('s_waitcnt lgkmcnt(0)')
        A('s_barrier')
        s.stamp(5)
        s.stamp_store(6)
        A('s_endpgm')

    def lds_flag_wait(s, off, vt):
        A = s.A
        lp, ld = s.lab('fl'), s.lab('fld')
        A(f'v_and_b32 v{vt}, 3, v0\nv_lshlrev_b32 v{vt}, 2, v{vt}')
        A('s_mov_b32 s61, 0x1000000')
        A(f'{lp}:')
        A(f'ds_read_b32 v{vt+1}, v{vt} offset:{off}')
        A('s_waitcnt lgkmcnt(0)')
        A(f'v_cmp_ne_u32 vcc, 1, v{vt+1}')
        A(f's_cbranch_vccz {ld}')
        A('s_sub_u32 s61, s61, 1\ns_cmp_lg_u32 s61, 0')
        A(f's_cbranch_scc1 {lp}')
        A(f'{ld}:')

    def lds_wait1(s, off):
        A = s.A
        lp, ld = s.lab('w1'), s.lab('w1d')
        A('v_mov_b32 v14, 0\ns_mov_b32 s61, 0x400000')
        A(f'{lp}:')
        A(f'ds_read_b32 v15, v14 offset:{off}')
        A('s_waitcnt lgkmcnt(0)')
        A('v_cmp_eq_u32 vcc, 1, v15')
        A(f's_cbranch_vccnz {ld}')
        A('s_sleep 8')
        A('s_sub_u32 s61, s61, 1\ns_cmp_lg_u32 s61, 0')
        A(f's_cbranch_scc1 {lp}')
        A(f'{ld}:')

    def spoll(s, n, check, sleep=1):
        A = s.A
        lp, ld = s.lab('sp'), s.lab('spd')
        A('s_add_u32 s4, s30, s60\ns_addc_u32 s5, s31, 0')
        A('s_mov_b32 s61, 0x200000')
        A(f'{lp}:')
        A(f's_load_dwordx{n} s[76:{76+n-1}], s[4:5], 0 glc' if n > 1 else 's_load_dword s76, s[4:5], 0 glc')
        A('s_waitcnt lgkmcnt(0)')
        A(f's_xor_b32 s6, s{76+check[0]}, s58')
        for c in check[1:]: A(f's_xor_b32 s7, s{76+c}, s58\ns_or_b32 s6, s6, s7')
        A('s_cmp_eq_u32 s6, 0')
        A(f's_cbranch_scc1 {ld}')
        if sleep: A(f's_sleep {sleep}')
        A('s_sub_u32 s61, s61, 1\ns_cmp_lg_u32 s61, 0')
        A(f's_cbranch_scc1 {lp}')
        A(f'{ld}:')

    def flag_store(s, lanes, vaddr, soff):
        A = s.A
        A(f'v_mov_b32 v15, s58')
        A(f's_mov_b64 exec, {lanes}')
        A(f'buffer_store_dword v15, v{vaddr}, s[44:47], {soff} offen sc1')
        A('s_mov_b64 exec, -1')

    def helper(s):
        A = s.A
        DATA = 96
        vM = 4
        A('s_sub_u32 s63, s3, 4')
        A('s_mov_b32 s59, 0')
        A(f's_add_u32 s4, s30, {hex(W_NONCE)}\ns_addc_u32 s5, s31, 0')
        A('s_load_dword s58, s[4:5], 0')
        s.srd(32, 14, 640 * 4096 * 2)
        s.srd(40, 8, 5120)
        s.srd(44, 30, WS_SIZE)
        A('s_mul_i32 s60, s63, 1280')
        A('v_lshlrev_b32 v1, 2, v0')
        for t in range(5):
            A(f'buffer_load_dword v{16+t}, v1, s[40:43], s60 offen offset:{256*t}')
        A('v_lshrrev_b32 v2, 4, v0\nv_lshlrev_b32 v2, 13, v2\nv_and_b32 v3, 15, v0\nv_lshlrev_b32 v3, 4, v3\nv_add_u32 v2, v2, v3')
        A('s_lshl_b32 s57, s65, 1\ns_add_u32 s57, s57, s66')
        A('s_mul_i32 s56, s57, 80\ns_mul_i32 s60, s63, 20\ns_add_u32 s56, s56, s60')
        A('s_lshl_b32 s60, s56, 13\ns_lshl_b32 s61, s64, 8\ns_add_u32 s60, s60, s61')
        for u in range(5):
            A(f'buffer_load_dwordx4 v[{DATA+4*u}:{DATA+4*u+3}], v2, s[32:35], s60 offen {s.pol_q}')
            if u < 4: A('s_add_u32 s60, s60, 0x8000')
        if s.vtouch:
            s.srd(48, 12, 0x8000000)
            A('s_lshl_b32 s60, s65, 5\ns_add_u32 s60, s60, s64\ns_lshl_b32 s60, s60, 20\ns_lshl_b32 s61, s66, 19\ns_add_u32 s60, s60, s61')
            A(f'v_lshlrev_b32 v9, {19 - 6 if s.vtouch > 1 else 0}, v0')
            A('s_mov_b64 exec, ' + ('-1' if s.vtouch > 1 else '1'))
            A('buffer_load_dword v95, v9, s[48:51], s60 offen nt')
            A('s_mov_b64 exec, -1')
        A('s_barrier')
        s.srd(36, 16, 4096 * 640 * 2)
        A('v_and_b32 v9, 15, v0')
        s.masks_Md(vM, 9, 10, 11, mod8=True)
        A(f's_waitcnt vmcnt({6 if s.vtouch else 5}) lgkmcnt(0)')
        A('s_add_u32 s58, s58, 1')
        s.layernorm(16, 24, 32)
        A(f's_mul_i32 s60, s63, 1280\nv_add_u32 v9, s60, v1')
        for t in range(5):
            A(f'ds_write_b32 v9, v{24+t} offset:{L_XN + 256*t}')
        A(f's_lshl_b32 s60, s63, 2\nv_mov_b32 v9, s60\nv_mov_b32 v10, 1')
        A(f'ds_write_b32 v9, v10 offset:{L_FLAG}')
        A('v_bfe_u32 v12, v0, 3, 1\nv_mul_u32_u24 v12, 1280, v12\nv_lshrrev_b32 v13, 4, v0\nv_lshlrev_b32 v13, 1, v13\nv_add_u32 v12, v12, v13')
        A('s_lshl_b32 s60, s56, 1\nv_add_u32 v12, s60, v12')
        s.lds_flag_wait(L_FLAG, 14)
        for bp in range(2):
            for u in range(5):
                A(f'ds_read_u16 v{40+5*bp+u}, v12 offset:{L_XN + bp*2560 + u*8}')
        A('v_bfe_u32 v9, v0, 3, 1\nv_lshlrev_b32 v9, 9, v9\nv_lshrrev_b32 v10, 4, v0\nv_lshlrev_b32 v10, 7, v10\nv_and_b32 v11, 7, v0\nv_lshlrev_b32 v11, 2, v11\nv_add3_u32 v9, v9, v10, v11')
        A('s_lshl_b32 s60, s63, 11\nv_add_u32 v9, s60, v9')
        A('s_waitcnt lgkmcnt(0)')
        for k in range(10): A(f'v_lshl_or_b32 v{40+k}, v{40+k}, 16, v{40+k}')
        A('s_waitcnt vmcnt(0)')
        for u in range(5):
            for bp in range(2):
                y = 60 + 4 * ((2 * u + bp) & 3)
                for d in range(4): A(f'v_and_b32 v{y+d}, v{40+5*bp+u}, v{vM+d}')
                a = 52 + 4 * bp
                A(f'v_mfma_f32_16x16x32_bf16 v[{a}:{a+3}], v[{DATA+4*u}:{DATA+4*u+3}], v[{y}:{y+3}], ' + ('0' if u == 0 else f'v[{a}:{a+3}]'))
        for bp in range(2):
            for r in range(4):
                A(f'ds_write_b32 v9, v{52+4*bp+r} offset:{L_QP + bp*1024 + r*32}')
        A(f's_lshl_b32 s60, s63, 2\nv_mov_b32 v10, s60\nv_mov_b32 v11, 1')
        A(f'ds_write_b32 v10, v11 offset:{L_FLAG + 16}')
        if s.qtag:
            A('s_lshl_b32 s69, s64, 2\ns_add_u32 s69, s69, s63\ns_lshl_b32 s69, s69, 3\ns_add_u32 s69, s69, s57')
            A(f's_lshl_b32 s62, s69, 10\ns_add_u32 s62, s62, {hex(W_Q2)}')
            A('v_lshlrev_b32 v13, 4, v0')
            A('s_lshl_b32 s60, s63, 9\nv_lshlrev_b32 v12, 3, v0\nv_add_u32 v12, s60, v12')
            s.lds_flag_wait(L_FLAG + 16, 14)
            for w in range(4):
                A(f'ds_read_b64 v[{16+2*w}:{17+2*w}], v12 offset:{L_QP + 2048*w}')
            A('v_mov_b32 v25, s58\nv_mov_b32 v27, s58')
            A('s_waitcnt lgkmcnt(0)')
            A('v_add_f32 v16, v16, v18\nv_add_f32 v17, v17, v19\nv_add_f32 v20, v20, v22\nv_add_f32 v21, v21, v23')
            A('v_add_f32 v24, v16, v20\nv_add_f32 v26, v17, v21')
            A(f'buffer_store_dwordx4 v[24:27], v13, s[44:47], s62 offen {s.pol_hs}')
            lq = s.lab('noq')
            A('s_cmp_lg_u32 s63, 0')
            A(f's_cbranch_scc1 {lq}')
            A(f's_lshl_b32 s69, s64, 2\ns_add_u32 s69, s69, s65\ns_lshl_b32 s60, s69, 13\ns_add_u32 s60, s60, {hex(W_Q2)}')
            A('s_add_u32 s4, s30, s60\ns_addc_u32 s5, s31, 0')
            lp, ld = s.lab('qh'), s.lab('qhd')
            A('s_mov_b32 s61, 0x200000')
            A(f'{lp}:')
            for r in range(8): A(f's_load_dword s{76+r}, s[4:5], {r*1024+4} glc')
            A('s_waitcnt lgkmcnt(0)')
            A('s_xor_b32 s6, s76, s58')
            for r in range(1, 8): A(f's_xor_b32 s7, s{76+r}, s58\ns_or_b32 s6, s6, s7')
            A('s_cmp_eq_u32 s6, 0')
            A(f's_cbranch_scc1 {ld}')
            A('s_sub_u32 s61, s61, 1\ns_cmp_lg_u32 s61, 0')
            A(f's_cbranch_scc1 {lp}')
            A(f'{ld}:')
            A('s_add_u32 s62, s60, 4096')
            lp, ld = s.lab('qg'), s.lab('qgd')
            A('s_mov_b32 s61, 0x100000')
            A(f'{lp}:')
            for t in range(8):
                A(f'buffer_load_dwordx4 v[{16+4*t}:{19+4*t}], v13, s[44:47], {"s60" if t < 4 else "s62"} offen offset:{(t%4)*1024} {s.pol_hl}')
            A('s_waitcnt vmcnt(0)')
            tags = [16 + 4 * t + k for t in range(8) for k in (1, 3)]
            A(f'v_min_u32 v48, v{tags[0]}, v{tags[1]}\nv_max_u32 v49, v{tags[0]}, v{tags[1]}')
            for i in range(2, 16, 2):
                A(f'v_min3_u32 v48, v48, v{tags[i]}, v{tags[i+1]}')
                A(f'v_max3_u32 v49, v49, v{tags[i]}, v{tags[i+1]}')
            A('v_cmp_ne_u32 vcc, s58, v48')
            A('v_cmp_ne_u32 s[76:77], s58, v49')
            A('s_or_b64 vcc, vcc, s[76:77]')
            A(f's_cbranch_vccz {ld}')
            A('s_sub_u32 s61, s61, 1\ns_cmp_lg_u32 s61, 0')
            A(f's_cbranch_scc1 {lp}')
            A(f'{ld}:')
            for k in (0, 2):
                A(f'v_add_f32 v{16+k}, v{16+k}, v{20+k}\nv_add_f32 v{24+k}, v{24+k}, v{28+k}\nv_add_f32 v{32+k}, v{32+k}, v{36+k}\nv_add_f32 v{40+k}, v{40+k}, v{44+k}')
                A(f'v_add_f32 v{16+k}, v{16+k}, v{24+k}\nv_add_f32 v{32+k}, v{32+k}, v{40+k}\nv_add_f32 v{16+k}, v{16+k}, v{32+k}')
            A('v_cvt_pk_bf16_f32 v16, v16, v18')
            A(f'ds_write_b32 v1, v16 offset:{L_QB}')
        else:
            A('s_lshl_b32 s69, s64, 2\ns_add_u32 s69, s69, s63\ns_lshl_b32 s69, s69, 3\ns_add_u32 s69, s69, s57')
            A(f's_lshl_b32 s62, s69, 9\ns_add_u32 s62, s62, {hex(W_Q)}')
            A('v_lshlrev_b32 v13, 3, v0')
            A('s_lshl_b32 s60, s63, 9\nv_add_u32 v12, s60, v13')
            s.lds_flag_wait(L_FLAG + 16, 14)
            for w in range(4):
                A(f'ds_read_b64 v[{16+2*w}:{17+2*w}], v12 offset:{L_QP + 2048*w}')
            A('s_waitcnt lgkmcnt(0)')
            A('v_add_f32 v16, v16, v18\nv_add_f32 v17, v17, v19\nv_add_f32 v20, v20, v22\nv_add_f32 v21, v21, v23')
            A('v_add_f32 v24, v16, v20\nv_add_f32 v25, v17, v21')
            A(f'buffer_store_dwordx2 v[24:25], v13, s[44:47], s62 offen {s.pol_hs}')
            A(f's_lshr_b32 s62, s69, 3\ns_lshl_b32 s62, s62, 7\ns_lshl_b32 s61, s57, 2\ns_add_u32 s62, s62, s61\ns_add_u32 s62, s62, {hex(W_FLAGQ)}\nv_mov_b32 v14, 0')
            A('s_waitcnt vmcnt(0)')
            s.flag_store('1', 14, 's62')
            lq = s.lab('noq')
            A('s_cmp_lg_u32 s63, 0')
            A(f's_cbranch_scc1 {lq}')
            A(f's_lshl_b32 s69, s64, 2\ns_add_u32 s69, s69, s65')
            A(f's_lshl_b32 s60, s69, 7\ns_add_u32 s60, s60, {hex(W_FLAGQ)}')
            s.spoll(8, list(range(8)))
            A(f's_lshl_b32 s60, s69, 12\ns_add_u32 s60, s60, {hex(W_Q)}')
            A('v_lshlrev_b32 v13, 4, v0')
            for t in range(4):
                A(f'buffer_load_dwordx4 v[{16+4*t}:{19+4*t}], v13, s[44:47], s60 offen offset:{t*1024} {s.pol_hl}')
            A('v_and_b32 v12, 31, v0\nv_lshlrev_b32 v12, 3, v12')
            A('s_waitcnt vmcnt(0)')
            for k in range(4):
                A(f'v_add_f32 v{16+k}, v{16+k}, v{20+k}\nv_add_f32 v{24+k}, v{24+k}, v{28+k}')
            for k in range(4): A(f'v_add_f32 v{16+k}, v{16+k}, v{24+k}')
            for k in range(4): A(f'v_mov_b32 v{20+k}, v{16+k}')
            for k in range(4): A(f'v_permlane32_swap_b32 v{16+k}, v{20+k}')
            for k in range(4): A(f'v_add_f32 v{16+k}, v{16+k}, v{20+k}')
            A('v_cvt_pk_bf16_f32 v16, v16, v17\nv_cvt_pk_bf16_f32 v17, v18, v19')
            A(f'ds_write_b64 v12, v[16:17] offset:{L_QB}')
        if s.qflag: A(f'v_mov_b32 v12, 0\nv_mov_b32 v13, 1\nds_write_b32 v12, v13 offset:{L_FLAG + 48}')
        A(f'{lq}:')
        A('s_waitcnt lgkmcnt(0)')
        s.stamp(1)
        if not s.qflag: A('s_barrier')
        l_wo = s.lab('wo')
        if s.ffndelay: s.lds_wait1(L_FLAG + 56)
        s.ffn(l_wo)
        A(f'{l_wo}:')
        if s.wodelay: s.lds_wait1(L_FLAG + 52)
        A('v_lshrrev_b32 v2, 4, v0\nv_mul_u32_u24 v2, 1280, v2\nv_and_b32 v3, 15, v0\nv_lshlrev_b32 v3, 4, v3\nv_add_u32 v2, v2, v3')
        A('s_lshl_b32 s60, s64, 7\ns_lshl_b32 s61, s63, 5\ns_add_u32 s60, s60, s61\ns_mul_i32 s60, s60, 1280')
        if 'wo_v' in s.skip:
            A('s_lshl_b32 s6, s2, 19\ns_add_u32 s72, s12, s6\ns_addc_u32 s73, s13, 0\ns_and_b32 s73, s73, 0xffff\ns_mov_b32 s74, 0x80000\ns_mov_b32 s75, 0x20000')
            A('s_and_b32 s60, s60, 0x3ffff')
        def wo_loads(win):
            n = 0
            for u in range(8):
                for cb in range(5):
                    if n >= win: A(f's_waitcnt vmcnt({win-1})')
                    r = DATA + 4 * (u * 5 + cb)
                    if 'wo_v' in s.skip: A(f'buffer_load_dwordx4 v[{r}:{r+3}], v2, s[72:75], s60 offen offset:{cb*256} nt')
                    elif 'wo' not in s.skip: A(f'buffer_load_dwordx4 v[{r}:{r+3}], v2, s[36:39], s60 offen offset:{cb*256} {s.pol_w}')
                    n += 1
                if u < 7:
                    if s.rot: A(f's_add_u32 s6, s57, {u+1}\ns_and_b32 s6, s6, 7\ns_mul_i32 s6, s6, 5120\ns_add_u32 s60, s7, s6')
                    else: A('s_add_u32 s60, s60, 5120')
        if s.rot:
            A('s_mov_b32 s7, s60\ns_mul_i32 s6, s57, 5120\ns_add_u32 s60, s7, s6')
        if s.WO4 != s.WO and not s.wofirst:
            l4, l5 = s.lab('wo4'), s.lab('wod')
            A('s_cmp_eq_u32 s59, 1')
            A(f's_cbranch_scc1 {l4}')
            wo_loads(s.WO)
            A(f's_branch {l5}')
            A(f'{l4}:')
            wo_loads(s.WO4)
            A(f'{l5}:')
        else:
            wo_loads(s.WO)
        s.stamp(2)
        if s.wofirst and 'ffn' not in s.skip:
            lnf = s.lab('noffn')
            A('s_cmp_lg_u32 s59, 1')
            A(f's_cbranch_scc1 {lnf}')
            s.ffn_rest()
            A(f'{lnf}:')
        l_tail, l_w7 = s.lab('tail'), s.lab('w7')
        A('s_cmp_eq_u32 s63, 3')
        A(f's_cbranch_scc1 {l_w7}')
        if s.collector and 'ffn' not in s.skip:
            l_nc = s.lab('nocol')
            A('s_cmp_lg_u32 s63, 2')
            A(f's_cbranch_scc1 {l_nc}')
            A('s_cmp_lg_u32 s2, 255')
            A(f's_cbranch_scc1 {l_tail}')
            s.collect()
            A(f's_branch {l_tail}')
            A(f'{l_nc}:')
        A('s_cmp_lg_u32 s63, 1')
        A(f's_cbranch_scc1 {l_tail}')
        s.mlx()
        A(f's_branch {l_tail}')
        A(f'{l_w7}:')
        s.consumer_prep(l_tail)
        A(f'{l_tail}:')
        s.tail()

    def ffn(s, l_skip):
        A = s.A
        DATA = 96
        if 'ffn' in s.skip: return
        A('s_cmp_lg_u32 s66, 0')
        A(f's_cbranch_scc1 {l_skip}')
        A('s_and_b32 s70, s2, 7\ns_lshl_b32 s61, s65, 3\ns_add_u32 s70, s70, s61')
        A('s_cmp_ge_u32 s70, 27')
        A(f's_cbranch_scc1 {l_skip}')
        A('s_lshr_b32 s71, s2, 3\ns_and_b32 s71, s71, 3')
        A('s_lshl_b32 s68, s70, 2\ns_add_u32 s68, s68, s71')
        s.srd(48, 20, 640 * 1728 * 2)
        s.srd(52, 22, 640 * 1728 * 2)
        s.srd(72, 24, 1728 * 640 * 2)
        A('v_lshrrev_b32 v9, 3, v0\nv_mul_u32_u24 v9, 3456, v9\nv_and_b32 v10, 7, v0\nv_lshlrev_b32 v10, 4, v10\nv_add_u32 v9, v9, v10')
        A(f's_mul_i32 s60, s71, {160*3456}\ns_lshl_b32 s61, s70, 7\ns_add_u32 s60, s60, s61\ns_mul_i32 s61, s63, {40*3456}\ns_add_u32 s60, s60, s61')
        A(f's_mul_i32 s62, s63, 5120\ns_add_u32 s69, s62, {L_WU}\ns_add_u32 s62, s62, {L_WG}')
        n = 0
        for t in range(5):
            for srd, mreg in (('s[48:51]', 's62'), ('s[52:55]', 's69')):
                if n >= s.WF: A(f's_waitcnt vmcnt({s.WF-1})')
                A(f's_mov_b32 m0, {mreg}')
                if 'f_dma' not in s.skip: A(f'buffer_load_dwordx4 v9, {srd}, s60 offen {s.pol_f} lds')
                n += 1
            if t < 4: A(f's_add_u32 s60, s60, {8*3456}\ns_add_u32 s62, s62, 1024\ns_add_u32 s69, s69, 1024')
        lw4 = s.lab('w4')
        A('s_cmp_eq_u32 s63, 0')
        A(f's_cbranch_scc1 {lw4}')
        A('s_waitcnt vmcnt(0)')
        A(f's_lshl_b32 s60, s63, 2\nv_mov_b32 v10, s60\nv_mov_b32 v11, 1')
        A(f'ds_write_b32 v10, v11 offset:{L_FLAG + 32}')
        A(f's_branch {l_skip}')
        A(f'{lw4}:')
        A('s_mov_b32 s59, 1')
        if s.wofirst: return
        s.ffn_rest()

    def ffn_rest(s):
        A = s.A
        DATA = 96
        A('v_and_b32 v9, 3, v0\nv_mul_u32_u24 v9, 1280, v9\nv_lshrrev_b32 v10, 4, v0\nv_lshlrev_b32 v11, 3, v10\nv_add_u32 v9, v9, v11')
        A('s_mul_i32 s60, s71, 320\nv_add_u32 v9, s60, v9')
        A('v_lshlrev_b32 v10, 2, v10\nv_bfe_u32 v11, v0, 2, 2\nv_add_u32 v10, v10, v11\nv_lshlrev_b32 v10, 7, v10\nv_and_b32 v11, 3, v0\nv_lshlrev_b32 v11, 3, v11\nv_add_u32 v10, v10, v11')
        A(f'v_add_u32 v8, {L_WU - L_WG}, v10')
        A('s_waitcnt vmcnt(0)')
        A(f'v_mov_b32 v12, 0\nv_mov_b32 v13, 1\nds_write_b32 v12, v13 offset:{L_FLAG + 32}')
        s.lds_flag_wait(L_FLAG + 32, 14)
        if s.fineF: s.stamp(3)
        ag, au = 12, 28
        for ks in range(5):
            o = 44
            A(f'ds_read_b64 v[{o}:{o+1}], v9 offset:{L_XN + 64*ks}')
            A(f'ds_read_b64 v[{o+2}:{o+3}], v9 offset:{L_XN + 64*ks + 32}')
            for ct in range(4):
                q = 48 + 8 * ct
                A(f'ds_read_b64_tr_b16 v[{q}:{q+1}], v10 offset:{L_WG + 4096*ks + 32*ct}')
                A(f'ds_read_b64_tr_b16 v[{q+2}:{q+3}], v10 offset:{L_WG + 4096*ks + 32*ct + 2048}')
                A(f'ds_read_b64_tr_b16 v[{q+4}:{q+5}], v8 offset:{L_WG + 4096*ks + 32*ct}')
                A(f'ds_read_b64_tr_b16 v[{q+6}:{q+7}], v8 offset:{L_WG + 4096*ks + 32*ct + 2048}')
                if ct == 2: A('s_waitcnt lgkmcnt(6)')
            A('s_waitcnt lgkmcnt(0)')
            for ct in range(4):
                q = 48 + 8 * ct
                A(f'v_mfma_f32_16x16x32_bf16 v[{ag+4*ct}:{ag+4*ct+3}], v[{o}:{o+3}], v[{q}:{q+3}], ' + ('0' if ks == 0 else f'v[{ag+4*ct}:{ag+4*ct+3}]'))
                A(f'v_mfma_f32_16x16x32_bf16 v[{au+4*ct}:{au+4*ct+3}], v[{o}:{o+3}], v[{q+4}:{q+7}], ' + ('0' if ks == 0 else f'v[{au+4*ct}:{au+4*ct+3}]'))
        A('s_mov_b32 s76, 0xffff0000\ns_mov_b32 s77, 0\ns_mov_b32 s78, 0\ns_mov_b32 s79, 0xffff\ns_mov_b32 s80, 0\ns_mov_b32 s81, 0xffff0000')
        A('v_lshlrev_b32 v9, 3, v0')
        A(f's_lshl_b32 s62, s70, 13\ns_lshl_b32 s69, s71, 9\ns_add_u32 s62, s62, s69\ns_add_u32 s62, s62, {hex(W_FX)}')
        for ct in range(4):
            o = 48 + 2 * ct
            for base, dst in ((ag, o), (au, o + 1)):
                a = base + 4 * ct
                A(f'v_cndmask_b32 v{dst}, v{a}, v{a+1}, s[76:77]')
                A(f'v_cndmask_b32 v{dst}, v{dst}, v{a+2}, s[78:79]')
                A(f'v_cndmask_b32 v{dst}, v{dst}, v{a+3}, s[80:81]')
            if 'f_x' not in s.skip: A(f'buffer_store_dwordx2 v[{o}:{o+1}], v9, s[44:47], s62 offen {s.pol_hs}')
            if ct < 3: A('s_add_u32 s62, s62, 2048')
        A('v_lshrrev_b32 v2, 4, v0\nv_mul_u32_u24 v2, 1280, v2\nv_and_b32 v3, 15, v0\nv_lshlrev_b32 v3, 4, v3\nv_add_u32 v2, v2, v3')
        A('s_mul_i32 s60, s68, 20480')
        def wd_batch(cb, base):
            for u in range(4):
                A(f's_add_u32 s6, s85, {u*5120}')
                if 'f_wd' not in s.skip: A(f'buffer_load_dwordx4 v[{base+4*u}:{base+4*u+3}], v2, s[72:75], s6 offen offset:{cb*256} {s.pol_f}')
        s._wd_batch = wd_batch
        if s.wofirst:
            A('s_mov_b32 s85, s60')
            wd_batch(0, 56); wd_batch(1, 72)
            nwd = 8
        else:
            for u in range(4):
                for cb in range(5):
                    r = DATA + 4 * (u * 5 + cb)
                    if 'f_wd' not in s.skip: A(f'buffer_load_dwordx4 v[{r}:{r+3}], v2, s[72:75], s60 offen offset:{cb*256} {s.pol_f}')
                if u < 3: A('s_add_u32 s60, s60, 5120')
            nwd = 20
        A(f's_lshl_b32 s62, s70, 9\ns_lshl_b32 s69, s71, 2\ns_add_u32 s62, s62, s69\ns_add_u32 s62, s62, {hex(W_FLAGF)}\nv_lshlrev_b32 v14, 7, v0')
        A(f's_waitcnt vmcnt({nwd})' if 'f_wd' not in s.skip else 's_waitcnt vmcnt(0)')
        if 'f_x' not in s.skip: s.flag_store('0xf', 14, 's62')
        if s.fineF: s.stamp(4)
        A(f's_lshl_b32 s60, s68, 7\ns_add_u32 s60, s60, {hex(W_FLAGF)}')
        if 'f_x' not in s.skip: s.spoll(4, [0, 1, 2, 3], sleep=2)
        A(f's_lshl_b32 s60, s68, 11\ns_add_u32 s60, s60, {hex(W_FX)}')
        for t in range(4):
            if 'f_x' not in s.skip: A(f'buffer_load_dwordx2 v[{12+2*t}:{13+2*t}], v9, s[44:47], s60 offen offset:{t*512} {s.pol_hl}')
        A('s_waitcnt vmcnt(0)')
        if s.fineF: s.stamp(5)
        A('v_add_f32 v12, v12, v14\nv_add_f32 v16, v16, v18\nv_add_f32 v12, v12, v16')
        A('v_add_f32 v13, v13, v15\nv_add_f32 v17, v17, v19\nv_add_f32 v14, v13, v17')
        g_, u_, t0, t1 = 12, 14, 20, 21
        s.bf16r(g_, g_)
        s.bf16r(u_, u_)
        A(f'v_mul_f32 v{t0}, v{g_}, v{g_}\nv_mul_f32 v{t0}, v{t0}, v{g_}')
        A(f'v_mov_b32 v{t1}, 0x3d372713\nv_fma_f32 v{t0}, v{t0}, v{t1}, v{g_}')
        A(f'v_mul_f32 v{t0}, 0x3f4c422a, v{t0}')
        A(f'v_mul_f32 v{t0}, 0x4038aa3b, v{t0}')
        A(f'v_exp_f32 v{t0}, v{t0}')
        A(f'v_add_f32 v{t0}, 1.0, v{t0}')
        A(f'v_rcp_f32 v{t0}, v{t0}')
        A(f'v_fma_f32 v{t0}, v{t0}, -2.0, 1.0')
        A(f'v_add_f32 v{t0}, 1.0, v{t0}')
        A(f'v_mul_f32 v{t1}, 0.5, v{g_}')
        A(f'v_mul_f32 v{t0}, v{t1}, v{t0}')
        s.bf16r(t0, t0)
        A(f'v_mul_f32 v{t0}, v{t0}, v{u_}')
        A(f'v_cvt_pk_bf16_f32 v{g_}, v{t0}, v{t0}')
        A('v_lshrrev_b32 v9, 4, v0\nv_lshlrev_b32 v9, 6, v9\nv_and_b32 v10, 3, v0\nv_lshlrev_b32 v10, 4, v10\nv_bfe_u32 v11, v0, 2, 2\nv_lshlrev_b32 v11, 2, v11\nv_add3_u32 v9, v9, v10, v11')
        A(f'ds_write_b32 v9, v{g_} offset:{L_HT}')
        if s.dbg:
            A(f's_lshl_b32 s60, s68, 8\ns_add_u32 s60, s60, {hex(W_DBG + 0x500000)}')
            A('v_lshlrev_b32 v10, 2, v0\nv_add_u32 v10, s60, v10')
            A(f'global_store_dword v10, v{g_}, s[30:31]')
        A('v_bfe_u32 v9, v0, 3, 1\nv_lshlrev_b32 v9, 2, v9\nv_lshrrev_b32 v10, 4, v0\nv_add_u32 v9, v9, v10\nv_lshlrev_b32 v9, 4, v9')
        A('s_waitcnt lgkmcnt(0)')
        A(f'ds_read_b128 v[12:15], v9 offset:{L_HT}')
        A(f'ds_read_b128 v[16:19], v9 offset:{L_HT + 128}')
        A('v_bfe_u32 v9, v0, 3, 1\nv_mul_u32_u24 v9, 640, v9\nv_lshrrev_b32 v10, 4, v0\nv_lshlrev_b32 v10, 5, v10\nv_and_b32 v11, 7, v0\nv_add3_u32 v9, v9, v10, v11\nv_lshlrev_b32 v9, 2, v9')
        A('s_waitcnt vmcnt(0) lgkmcnt(0)')
        if s.wofirst:
            for bp in range(2):
                for u in range(4):
                    for d in range(4): A(f'v_and_b32 v{20+16*bp+4*u+d}, v{12+4*bp+u}, v{4+d}')
            for cb in range(5):
                base = 56 if cb % 2 == 0 else 72
                if cb >= 2: A(f's_waitcnt vmcnt({4 if cb < 4 else 0})')
                for bp in range(2):
                    a = 88 + 4 * bp if False else (12 + 4 * bp)
                    for u in range(4):
                        A(f'v_mfma_f32_16x16x32_bf16 v[{a}:{a+3}], v[{base+4*u}:{base+4*u+3}], v[{20+16*bp+4*u}:{23+16*bp+4*u}], ' + ('0' if u == 0 else f'v[{a}:{a+3}]'))
                if cb + 2 < 5: s._wd_batch(cb + 2, base)
                for bp in range(2):
                    for r in range(4):
                        A(f'ds_write_b32 v9, v{12+4*bp+r} offset:{L_YPART + bp*5120 + cb*512 + r*32}')
        else:
            for u in range(4):
                for bp in range(2):
                    y = 60 + 4 * ((2 * u + bp) & 3)
                    for d in range(4): A(f'v_and_b32 v{y+d}, v{12+4*bp+u}, v{4+d}')
                    for cb in range(5):
                        a = 20 + 8 * cb + 4 * bp
                        r = DATA + 4 * (u * 5 + cb)
                        A(f'v_mfma_f32_16x16x32_bf16 v[{a}:{a+3}], v[{r}:{r+3}], v[{y}:{y+3}], ' + ('0' if u == 0 else f'v[{a}:{a+3}]'))
            for cb in range(5):
                for bp in range(2):
                    for r in range(4):
                        A(f'ds_write_b32 v9, v{20+8*cb+4*bp+r} offset:{L_YPART + bp*5120 + cb*512 + r*32}')
        A('s_waitcnt lgkmcnt(0)')
        A('v_lshlrev_b32 v9, 4, v0')
        A(f's_mul_i32 s60, s68, 10240\ns_add_u32 s60, s60, {hex(W_FPART)}')
        for t in range(10):
            A(f'ds_read_b128 v[{12+4*t}:{15+4*t}], v9 offset:{L_YPART + 1024*t}')
        A('s_waitcnt lgkmcnt(0)')
        for t in range(10):
            if 'f_pub' not in s.skip: A(f'buffer_store_dwordx4 v[{12+4*t}:{15+4*t}], v9, s[44:47], s60 offen offset:{(t%4)*1024} {s.pol_fp}')
            if t % 4 == 3: A('s_add_u32 s60, s60, 4096')
        A(f's_lshl_b32 s62, s68, 2\ns_add_u32 s62, s62, {hex(W_FLAGP)}\nv_mov_b32 v9, 0')
        A('s_waitcnt vmcnt(0)')
        s.flag_store('1', 9, 's62')
        if s.fineF: s.stamp(6)

    def wait_ml(s):
        A = s.A
        lp, ld = s.lab('ml'), s.lab('mld')
        A(f'v_and_b32 v9, 3, v0\nv_lshlrev_b32 v9, 3, v9')
        A('s_mov_b32 s61, 0x400000')
        A(f'{lp}:')
        A(f'ds_read_b64 v[10:11], v9 offset:{L_ML}')
        A('s_waitcnt lgkmcnt(0)')
        A('v_cmp_eq_u32 vcc, -1, v10')
        A(f's_cbranch_vccz {ld}')
        A('s_sleep 16')
        A('s_sub_u32 s61, s61, 1\ns_cmp_lg_u32 s61, 0')
        A(f's_cbranch_scc1 {lp}')
        A(f'{ld}:')

    def mlx(s):
        A = s.A
        s.wait_ml()
        A('v_mov_b32 v12, v10')
        A('v_max_f32_dpp v12, v12, v12 quad_perm:[1,0,3,2] row_mask:0xf bank_mask:0xf')
        A('v_max_f32_dpp v12, v12, v12 quad_perm:[2,3,0,1] row_mask:0xf bank_mask:0xf')
        A(f'v_sub_f32 v14, v10, v12\nv_mul_f32 v14, {hex(LOG2E)}, v14\nv_exp_f32 v14, v14')
        A('v_mul_f32 v14, v14, v11')
        A('v_add_f32_dpp v14, v14, v14 quad_perm:[1,0,3,2] row_mask:0xf bank_mask:0xf')
        A('v_add_f32_dpp v14, v14, v14 quad_perm:[2,3,0,1] row_mask:0xf bank_mask:0xf')
        A('v_mov_b32 v13, s58\nv_mov_b32 v15, s58')
        A(f's_xor_b32 s60, s2, 128\ns_lshl_b32 s60, s60, 7\ns_add_u32 s60, s60, {hex(W_ML)}')
        A('v_mov_b32 v9, 0')
        A('s_mov_b64 exec, 1')
        A(f'buffer_store_dwordx4 v[12:15], v9, s[44:47], s60 offen {s.pol_hs}')
        A('s_mov_b64 exec, -1')
        A(f's_lshl_b32 s60, s2, 7\ns_add_u32 s60, s60, {hex(W_ML)}')
        s.spoll(4, [1, 3], sleep=4)
        A('v_mov_b32 v22, s76\nv_mov_b32 v23, s78')
        A('v_max_f32 v16, v12, v22')
        A(f'v_sub_f32 v17, v12, v16\nv_mul_f32 v17, {hex(LOG2E)}, v17\nv_exp_f32 v17, v17')
        A(f'v_sub_f32 v18, v22, v16\nv_mul_f32 v18, {hex(LOG2E)}, v18\nv_exp_f32 v18, v18')
        A('v_mul_f32 v17, v17, v14\nv_fma_f32 v17, v18, v23, v17')
        A(f'v_sub_f32 v18, v10, v16\nv_mul_f32 v18, {hex(LOG2E)}, v18\nv_exp_f32 v18, v18')
        A('v_rcp_f32 v19, v17')
        A('v_mul_f32 v20, v18, v19\nv_fma_f32 v21, -v20, v17, v18\nv_fma_f32 v20, v21, v19, v20')
        A('v_mov_b32 v14, 0x7fc00000\nv_cmp_eq_u32 vcc, -1, v20\nv_cndmask_b32 v20, v20, v14, vcc')
        A('v_and_b32 v9, 3, v0\nv_lshlrev_b32 v9, 2, v9')
        A(f'ds_write_b32 v9, v20 offset:{L_WF}')
        A('s_waitcnt lgkmcnt(0)')

    def collect(s):
        A = s.A
        lp, ld = s.lab('fc'), s.lab('fcd')
        A(f'v_lshlrev_b32 v9, 2, v0\ns_mov_b32 s60, {hex(W_FLAGP)}\ns_mov_b32 s61, 0x100000')
        A(f'{lp}:')
        A(f'buffer_load_dword v10, v9, s[44:47], s60 offen {s.pol_hl}')
        A(f'buffer_load_dword v11, v9, s[44:47], s60 offen offset:256 {s.pol_hl}')
        A('s_waitcnt vmcnt(0)')
        A('v_cmp_ne_u32 vcc, s58, v10')
        A('v_cmp_ne_u32 s[76:77], s58, v11')
        A('s_and_b32 s77, s77, 0xfff')
        A('s_or_b64 vcc, vcc, s[76:77]')
        A(f's_cbranch_vccz {ld}')
        A('s_sleep 32')
        A('s_sub_u32 s61, s61, 1\ns_cmp_lg_u32 s61, 0')
        A(f's_cbranch_scc1 {lp}')
        A(f'{ld}:')
        A(f'v_lshlrev_b32 v9, 7, v0\nv_mov_b32 v10, s58\ns_mov_b32 s60, {hex(W_FDONE)}')
        A('buffer_store_dword v10, v9, s[44:47], s60 offen sc1')
        A(f's_mov_b32 s60, {hex(W_FDONE + 64*128)}')
        A('s_mov_b64 exec, 0xffff')
        A('buffer_store_dword v10, v9, s[44:47], s60 offen sc1')
        A('s_mov_b64 exec, -1')

    def consumer_prep(s, l_tail):
        A = s.A
        A('s_cmp_ge_u32 s84, 20')
        A(f's_cbranch_scc1 {l_tail}')
        if 'ffn' not in s.skip and s.collector:
            A(f's_mul_i32 s60, s65, 20\ns_add_u32 s60, s60, s84\ns_lshl_b32 s60, s60, 7\ns_add_u32 s60, s60, {hex(W_FDONE)}')
            if 'f_cons' not in s.skip: s.spoll(1, [0], sleep=32)
        elif 'ffn' not in s.skip:
                s.wait_ml()
                lp, ld = s.lab('fc'), s.lab('fcd')
                A(f'v_lshlrev_b32 v9, 2, v0\ns_mov_b32 s60, {hex(W_FLAGP)}\ns_mov_b32 s61, 0x100000')
                A(f'{lp}:')
                A(f'buffer_load_dword v10, v9, s[44:47], s60 offen {s.pol_hl}')
                A(f'buffer_load_dword v11, v9, s[44:47], s60 offen offset:256 {s.pol_hl}')
                A('s_waitcnt vmcnt(0)')
                A('v_cmp_ne_u32 vcc, s58, v10')
                A('v_cmp_ne_u32 s[76:77], s58, v11')
                A('s_and_b32 s77, s77, 0xfff')
                A('s_or_b64 vcc, vcc, s[76:77]')
                A(f's_cbranch_vccz {ld}')
                A('s_sleep 32')
                A('s_sub_u32 s61, s61, 1\ns_cmp_lg_u32 s61, 0')
                A(f's_cbranch_scc1 {lp}')
                A(f'{ld}:')
        A('v_lshrrev_b32 v9, 3, v0\nv_mul_u32_u24 v9, 10240, v9\nv_and_b32 v10, 7, v0\nv_lshlrev_b32 v10, 4, v10\nv_add_u32 v9, v9, v10')
        A(f's_mul_i32 s60, s65, 2560\ns_lshl_b32 s61, s84, 7\ns_add_u32 s60, s60, s61\ns_add_u32 s60, s60, {hex(W_FPART)}')
        for r in range(4): A(f'v_mov_b32 v{16+4*13+r}, 0')
        for t in range(14):
            if t == 13: A('s_mov_b64 exec, 0xffffffff')
            if s.fgwin and t >= s.fgwin: A(f's_waitcnt vmcnt({s.fgwin-1})')
            if 'f_g' not in s.skip: A(f'buffer_load_dwordx4 v[{16+4*t}:{19+4*t}], v9, s[44:47], s60 offen {s.pol_fg}')
            if t < 13: A(f's_add_u32 s60, s60, {8*10240}')
        A('s_mov_b64 exec, -1')
        A('s_mul_i32 s60, s65, 1280\ns_lshl_b32 s61, s84, 6\ns_add_u32 s60, s60, s61')
        A('v_and_b32 v10, 15, v0\nv_lshlrev_b32 v10, 2, v10')
        A(f'buffer_load_dword v12, v10, s[40:43], s60 offen')
        A('s_waitcnt vmcnt(0)')
        for t in range(1, 14):
            for r in range(4): A(f'v_add_f32 v{16+r}, v{16+r}, v{16+4*t+r}')
        for r in range(4): s.reduce_hi3(16 + r, 20)
        for r in range(4):
            f = 16 + r
            s.bf16r(f, f)
            A(f'v_mul_f32 v20, 0xbfb8aa3b, v{f}\nv_exp_f32 v20, v20\nv_add_f32 v20, 1.0, v20\nv_rcp_f32 v21, v20')
            A(f'v_mul_f32 v22, v{f}, v21\nv_fma_f32 v23, -v22, v20, v{f}\nv_fma_f32 v23, v23, v21, v22')
            A('v_cmp_u_f32 vcc, v23, v23')
            A(f'v_cndmask_b32 v22, v23, v22, vcc')
            s.bf16r(24 + r, 22)
        A('v_and_b32 v9, 7, v0\nv_lshlrev_b32 v9, 4, v9')
        A(f'ds_write_b128 v9, v[24:27] offset:{L_GX}')
        A('v_and_b32 v9, 15, v0\nv_lshlrev_b32 v9, 3, v9')
        A('s_waitcnt lgkmcnt(0)')
        A(f'ds_read_b64 v[88:89], v9 offset:{L_GX}')
        A('v_lshlrev_b32 v92, 16, v12\nv_and_b32 v93, 0xffff0000, v12')
        A('s_waitcnt lgkmcnt(0)')

    def tail(s):
        A = s.A
        DATA = 96
        vM = 4
        A('v_lshrrev_b32 v9, 4, v0\nv_lshlrev_b32 v9, 7, v9\ns_lshl_b32 s60, s63, 5\nv_add_u32 v9, s60, v9')
        A('v_lshrrev_b32 v10, 4, v0\nv_lshlrev_b32 v10, 7, v10\nv_and_b32 v11, 15, v0\nv_lshlrev_b32 v11, 2, v11\nv_add_u32 v10, v10, v11')
        A('s_mul_i32 s60, s63, 2560\nv_add_u32 v10, s60, v10')
        A('s_lshl_b32 s60, s63, 6\nv_add_u32 v76, s60, v0')
        A('v_lshrrev_b32 v77, 3, v76\nv_lshlrev_b32 v77, 14, v77\nv_and_b32 v78, 7, v76\nv_lshlrev_b32 v78, 5, v78\nv_add_u32 v77, v77, v78')
        A('v_lshlrev_b32 v78, 4, v76')
        A('s_mul_i32 s62, s65, 327680\ns_lshl_b32 s69, s67, 8\ns_add_u32 s62, s62, s69')
        A('s_waitcnt vmcnt(0)')
        if not s.fineF: s.stamp(3)
        A('s_barrier')
        if not s.fineF: s.stamp(4)
        if s.fasttail and not s.dbg:
            acc = 48
            for w in range(4): A(f'ds_read_b128 v[{16+8*w}:{19+8*w}], v9 offset:{L_OPART + 512*w}')
            for w in range(4): A(f'ds_read_b128 v[{20+8*w}:{23+8*w}], v9 offset:{L_OPART + 512*w + 16}')
            def osum(u):
                return [f'v_add_f32 v{16+u}, v{16+u}, v{24+u}', f'v_add_f32 v{32+u}, v{32+u}, v{40+u}', f'v_add_f32 v{16+u}, v{16+u}, v{32+u}',
                        f'v_cvt_pk_bf16_f32 v{16+u}, v{16+u}, v{16+u}']
            def yb(u):
                y = 68 + 4 * (u & 1)
                return [f'v_and_b32 v{y+d}, v{16+u}, v{vM+d}' for d in range(4)]
            A('s_waitcnt lgkmcnt(4)')
            for i in osum(0) + osum(1) + yb(0): A(i)
            for u in range(8):
                y = 68 + 4 * (u & 1)
                fill = []
                if u == 2: fill.append('s_waitcnt lgkmcnt(0)')
                if u + 1 < 8: fill += yb(u + 1)
                if u + 2 < 8: fill += osum(u + 2)
                per = [fill[0:2], fill[2:4], fill[4:6], fill[6:9], []] if u != 2 else [fill[0:3], fill[3:5], fill[5:7], fill[7:9], []]
                for cb in range(5):
                    r = DATA + 4 * (u * 5 + cb)
                    a_ = acc + 4 * cb
                    A(f'v_mfma_f32_16x16x32_bf16 v[{a_}:{a_+3}], v[{r}:{r+3}], v[{y}:{y+3}], ' + ('0' if u == 0 else f'v[{a_}:{a_+3}]'))
                    for i in per[cb]: A(i)
        else:
            for w in range(4):
                A(f'ds_read_b128 v[{16+8*w}:{19+8*w}], v9 offset:{L_OPART + 512*w}')
                A(f'ds_read_b128 v[{20+8*w}:{23+8*w}], v9 offset:{L_OPART + 512*w + 16}')
            A('s_waitcnt lgkmcnt(0)')
            def osum(u):
                A(f'v_add_f32 v{16+u}, v{16+u}, v{24+u}')
                A(f'v_add_f32 v{32+u}, v{32+u}, v{40+u}')
                A(f'v_add_f32 v{16+u}, v{16+u}, v{32+u}')
                A(f'v_cvt_pk_bf16_f32 v{16+u}, v{16+u}, v{16+u}')
            acc = 48
            if s.dbg:
                for u in range(8): osum(u)
                A(f's_lshl_b32 s60, s2, 13\ns_lshl_b32 s61, s63, 11\ns_add_u32 s60, s60, s61\ns_add_u32 s60, s60, {hex(W_DBG + 0x600000)}')
                A('v_lshlrev_b32 v48, 5, v0\nv_add_u32 v48, s60, v48')
                A('global_store_dwordx4 v48, v[16:19], s[30:31]\nglobal_store_dwordx4 v48, v[20:23], s[30:31] offset:16')
                A('s_waitcnt vmcnt(0)')
            else:
                osum(0); osum(1)
            for u in range(8):
                y = 68 + 4 * (u & 1)
                for d in range(4): A(f'v_and_b32 v{y+d}, v{16+u}, v{vM+d}')
                if not s.dbg and u + 2 < 8: osum(u + 2)
                for cb in range(5):
                    r = DATA + 4 * (u * 5 + cb)
                    a = acc + 4 * cb
                    A(f'v_mfma_f32_16x16x32_bf16 v[{a}:{a+3}], v[{r}:{r+3}], v[{y}:{y+3}], ' + ('0' if u == 0 else f'v[{a}:{a+3}]'))
        A('s_mov_b32 exec_lo, 0x00ff00ff\ns_mov_b32 exec_hi, 0x00ff00ff')
        for cb in range(5):
            for r in range(4):
                A(f'ds_write_b32 v10, v{acc+4*cb+r} offset:{L_YPART + 512*cb + 32*r}')
        A('s_mov_b64 exec, -1')
        A('s_waitcnt lgkmcnt(0)')
        A('s_barrier')
        if not s.fineF: s.stamp(5)
        l_fin, l_done = s.lab('fin'), s.lab('done')
        A('s_cmp_eq_u32 s63, 3')
        A(f's_cbranch_scc1 {l_fin}')
        A('v_cmp_gt_u32 vcc, 160, v76')
        A('s_and_saveexec_b64 s[60:61], vcc')
        A(f's_cbranch_execz {l_done}')
        for w in range(4):
            A(f'ds_read_b128 v[{16+4*w}:{19+4*w}], v78 offset:{L_YPART + 2560*w}')
        A('v_mov_b32 v33, s58\nv_mov_b32 v35, s58\nv_mov_b32 v37, s58\nv_mov_b32 v39, s58')
        A('s_waitcnt lgkmcnt(0)')
        for r in range(4):
            A(f'v_add_f32 v{16+r}, v{16+r}, v{20+r}')
            A(f'v_add_f32 v{24+r}, v{24+r}, v{28+r}')
        for r in range(4):
            A(f'v_add_f32 v{32+2*r}, v{16+r}, v{24+r}')
        A(f'buffer_store_dwordx4 v[32:35], v77, s[44:47], s62 offen {s.pol_hs}')
        A(f'buffer_store_dwordx4 v[36:39], v77, s[44:47], s62 offen offset:16 {s.pol_hs}')
        A(f'{l_done}:')
        if not s.fineF: s.stamp(6)
        s.stamp_store(7)
        A('s_endpgm')
        A(f'{l_fin}:')
        l_nf = s.lab('nofin')
        A('s_cmp_ge_u32 s84, 20')
        A(f's_cbranch_scc1 {l_nf}')
        A('s_mul_i32 s60, s65, 20\ns_add_u32 s60, s60, s84\ns_lshl_b32 s60, s60, 14')
        for k in range(1, 4): A(f's_add_u32 s{80+k}, s60, {4096*k}')
        A('s_mov_b32 s80, s60')
        A('v_lshlrev_b32 v9, 4, v0')
        s.srd(48, 26, 5120)
        A('s_mul_i32 s52, s65, 1280\ns_lshl_b32 s53, s84, 6\ns_add_u32 s52, s52, s53')
        A('v_lshlrev_b32 v10, 2, v0')
        lp, ld = s.lab('fp'), s.lab('fpd')
        for t in range(16):
            A(f'buffer_load_dwordx4 v[{16+4*t}:{19+4*t}], v9, s[44:47], s{80+t//4} offen offset:{(t%4)*1024} {s.pol_hl}')
        A('s_mov_b32 s61, 0x100000')
        A(f'{lp}:')
        if s.maskpoll:
            tags = [16 + 4 * t + k for t in range(16) for k in (1, 3)]
            A('s_waitcnt vmcnt(0)')
            A(f'v_min_u32 v80, v{tags[0]}, v{tags[1]}\nv_max_u32 v81, v{tags[0]}, v{tags[1]}')
            for i in range(2, 32, 2):
                A(f'v_min3_u32 v80, v80, v{tags[i]}, v{tags[i+1]}')
                A(f'v_max3_u32 v81, v81, v{tags[i]}, v{tags[i+1]}')
            A('v_cmp_ne_u32 vcc, s58, v80')
            A('v_cmp_ne_u32 s[76:77], s58, v81')
            A('s_or_b64 vcc, vcc, s[76:77]')
            A(f's_cbranch_vccz {ld}')
            for t in range(16):
                A(f'v_cmp_ne_u32 vcc, s58, v{17+4*t}')
                A(f'v_cmp_ne_u32 s[76:77], s58, v{19+4*t}')
                A('s_or_b64 vcc, vcc, s[76:77]')
                ls = s.lab('ok')
                A(f's_cbranch_vccz {ls}')
                A('s_mov_b64 exec, vcc')
                A(f'buffer_load_dwordx4 v[{16+4*t}:{19+4*t}], v9, s[44:47], s{80+t//4} offen offset:{(t%4)*1024} {s.pol_hl}')
                A('s_mov_b64 exec, -1')
                A(f'{ls}:')
            A('s_sub_u32 s61, s61, 1\ns_cmp_lg_u32 s61, 0')
            A(f's_cbranch_scc1 {lp}')
            A('s_waitcnt vmcnt(0)')
        else:
            tags = [16 + 4 * t + k for t in range(16) for k in (1, 3)]
            A('s_waitcnt vmcnt(12)')
            A(f'v_min_u32 v80, v{tags[0]}, v{tags[1]}\nv_max_u32 v81, v{tags[0]}, v{tags[1]}')
            for i in range(2, 32, 2):
                if i in (8, 16, 24): A(f's_waitcnt vmcnt({12 - i//2})')
                A(f'v_min3_u32 v80, v80, v{tags[i]}, v{tags[i+1]}')
                A(f'v_max3_u32 v81, v81, v{tags[i]}, v{tags[i+1]}')
            A('v_cmp_ne_u32 vcc, s58, v80')
            A('v_cmp_ne_u32 s[76:77], s58, v81')
            A('s_or_b64 vcc, vcc, s[76:77]')
            A(f's_cbranch_vccz {ld}')
            for t in range(16):
                A(f'buffer_load_dwordx4 v[{16+4*t}:{19+4*t}], v9, s[44:47], s{80+t//4} offen offset:{(t%4)*1024} {s.pol_hl}')
            A('s_sub_u32 s61, s61, 1\ns_cmp_lg_u32 s61, 0')
            A(f's_cbranch_scc1 {lp}')
            A('s_waitcnt vmcnt(0)')
        A(f'{ld}:')
        step = 1
        while step < 16:
            for t in range(0, 16, 2 * step):
                for k in (0, 2): A(f'v_add_f32 v{16+4*t+k}, v{16+4*t+k}, v{16+4*(t+step)+k}')
            step *= 2
        for k in (0, 2): A(f'v_mov_b32 v{20+k}, v{16+k}')
        for k in (0, 2): A(f'v_permlane16_swap_b32 v{16+k}, v{20+k}')
        for k in (0, 2): A(f'v_add_f32 v{16+k}, v{16+k}, v{20+k}')
        for k in (0, 2): A(f'v_mov_b32 v{20+k}, v{16+k}')
        for k in (0, 2): A(f'v_permlane32_swap_b32 v{16+k}, v{20+k}')
        for k in (0, 2): A(f'v_add_f32 v{16+k}, v{16+k}, v{20+k}')
        A('v_cvt_pk_bf16_f32 v16, v16, v18')
        A('v_lshlrev_b32 v17, 16, v16\nv_and_b32 v18, 0xffff0000, v16')
        A('v_mul_f32 v17, v17, v88\nv_mul_f32 v18, v18, v89')
        A('v_cvt_pk_bf16_f32 v16, v17, v18')
        A('v_lshlrev_b32 v17, 16, v16\nv_and_b32 v18, 0xffff0000, v16')
        A('v_add_f32 v17, v17, v92\nv_add_f32 v18, v18, v93')
        A('v_cvt_pk_bf16_f32 v16, v17, v18')
        A('s_mov_b64 exec, 0xffff')
        A('buffer_store_dword v16, v10, s[48:51], s52 offen')
        A('s_mov_b64 exec, -1')
        A('s_or_b32 s60, s65, s84\ns_cmp_lg_u32 s60, 0')
        A(f's_cbranch_scc1 {l_nf}')
        A(f'v_mov_b32 v9, 0\nv_mov_b32 v11, s58\ns_mov_b32 s60, {hex(W_NONCE)}')
        A('s_mov_b64 exec, 1')
        A('buffer_store_dword v11, v9, s[44:47], s60 offen sc1')
        A('s_mov_b64 exec, -1')
        A(f'{l_nf}:')
        if not s.fineF: s.stamp(6)
        s.stamp_store(7)

    def text(s):
        s.build()
        body = hz.fix(s.L)
        out = [HEADER + f'; @launch grid=(256,1,1) block=(512,1,1) lds={LDS_BYTES}',
               '.amdgcn_target "amdgcn-amd-amdhsa--gfx950"', '.text', f'.globl {NAME}_kernel', '.p2align 8',
               f'.type {NAME}_kernel,@function']
        out += body
        out += ['.section .rodata,"a"', '.p2align 6', f'.amdhsa_kernel {NAME}_kernel',
                '  .amdhsa_next_free_vgpr 256', '  .amdhsa_next_free_sgpr 102', '  .amdhsa_accum_offset 256',
                '  .amdhsa_group_segment_fixed_size 0', '  .amdhsa_kernarg_size 96', '  .amdhsa_user_sgpr_count 2',
                '  .amdhsa_user_sgpr_kernarg_segment_ptr 1', '  .amdhsa_system_sgpr_workgroup_id_x 1',
                '  .amdhsa_float_denorm_mode_32 3',
                '.end_amdhsa_kernel']
        return '\n'.join(out) + '\n'

if __name__ == '__main__':
    import argparse
    ap = argparse.ArgumentParser()
    ap.add_argument('-o', default='cdna_kernels/' + NAME + '.s')
    ap.add_argument('--cfg', default='{}')
    a = ap.parse_args()
    g = Gen(**eval(a.cfg))
    open(a.o, 'w').write(g.text())
    print('wrote', a.o)
```
